```python
import torch

def _softmax(x, axis=-1):
    return torch.softmax(x, dim=axis)

def _gelu(x):
    return torch.nn.functional.gelu(x, approximate='tanh')

def _silu(x):
    return torch.nn.functional.silu(x)

def _sigmoid(x):
    return torch.sigmoid(x)

def _layernorm(x, axis=-1, eps=1e-05):
    m = x.mean(dim=axis, keepdim=True)
    v = x.var(dim=axis, keepdim=True, unbiased=False)
    return (x - m) / torch.sqrt(v + eps)

def _scatter_add(tgt, idx, src, axis=0):
    return tgt.clone().index_add_(axis, idx, src)

def _segment_sum(src, seg, n):
    out = torch.zeros((n,) + src.shape[1:], dtype=src.dtype)
    return out.index_add_(0, seg, src)

def _pad(x, pw):
    flat = tuple((v for pair in reversed(pw) for v in pair))
    return torch.nn.functional.pad(x, flat)
kernel_name = 'adaLN_cond__ssm_conv_s4__glu_gated_reglu__prompt'

def setup_inputs():

    _w = lambda a: (lambda t: t.to(torch.bfloat16) if t.is_floating_point() else t)(torch.as_tensor(a))

    def _A_setup():
        B, L, D, N = (1, 2048, 448, 256)
        A_re = -(lambda _x: torch.exp(torch.as_tensor(_x)))((lambda *s: torch.randn(*s, dtype=torch.bfloat16) * 3.2)(D, N))
        A_im = torch.pi * (lambda *s: torch.randn(*s, dtype=torch.bfloat16) * 0.1)(D, N)
        B_re = (lambda *s: torch.randn(*s, dtype=torch.bfloat16) * 0.1)(D, N)
        B_im = (lambda *s: torch.randn(*s, dtype=torch.bfloat16) * 0.1)(D, N)
        C_re = (lambda *s: torch.randn(*s, dtype=torch.bfloat16) * 0.1)(D, N)
        C_im = (lambda *s: torch.randn(*s, dtype=torch.bfloat16) * 0.1)(D, N)
        log_dt = (lambda *s: torch.randn(*s, dtype=torch.bfloat16) * 0.1)(D) * 0.5 - 4.0
        Dskip = (lambda *s: torch.randn(*s, dtype=torch.bfloat16) * 0.1)(D)
        return {'u': _w((lambda *s: torch.randn(*s, dtype=torch.bfloat16) * 0.05)(B, L, D)), 'A_re': _w(A_re), 'A_im': _w(A_im), 'B_re': _w(B_re), 'B_im': _w(B_im), 'C_re': _w(C_re), 'C_im': _w(C_im), 'log_dt': _w(log_dt), 'Dskip': _w(Dskip)}
    _A_in = _A_setup()

    def _B_setup():
        B, S, D, F = (1, 2048, 448, 1792)
        return {'x': _w((lambda *s: torch.randn(*s, dtype=torch.bfloat16) * 0.05)(B, S, D)), 'W_gate': _w((lambda *s: torch.randn(*s, dtype=torch.bfloat16) * 1.6)(D, F) * (2.0 / D) ** 0.5), 'W_up': _w((lambda *s: torch.randn(*s, dtype=torch.bfloat16) * 1.6)(D, F) * (2.0 / D) ** 0.5), 'W_down': _w((lambda *s: torch.randn(*s, dtype=torch.bfloat16) * 1.6)(F, D) * (1.0 / F) ** 0.5)}
    _B_in = _B_setup()
    return {'A_u': _A_in['u'], 'A_A_re': _A_in['A_re'], 'A_A_im': _A_in['A_im'], 'A_B_re': _A_in['B_re'], 'A_B_im': _A_in['B_im'], 'A_C_re': _A_in['C_re'], 'A_C_im': _A_in['C_im'], 'A_log_dt': _A_in['log_dt'], 'A_Dskip': _A_in['Dskip'], 'B_x': _B_in['x'], 'B_W_gate': _B_in['W_gate'], 'B_W_up': _B_in['W_up'], 'B_W_down': _B_in['W_down'], 'c': _w((lambda *s: torch.randn(*s, dtype=torch.bfloat16) * 0.2)(1, 448) * 8.0), 'w_mod': _w((lambda *s: torch.randn(*s, dtype=torch.bfloat16) * 0.2)(448, 6 * 448) * 448 ** (-0.5) * 8.0)}

def reference(A_u, A_A_re, A_A_im, A_B_re, A_B_im, A_C_re, A_C_im, A_log_dt, A_Dskip, B_x, B_W_gate, B_W_up, B_W_down, c, w_mod):

    def _A_ref(u, A_re, A_im, B_re, B_im, C_re, C_im, log_dt, Dskip):
        Bsz, L, D = u.shape
        dt = torch.exp(log_dt)[:, None]
        A = A_re + 1j * A_im
        Bc = B_re + 1j * B_im
        Cc = C_re + 1j * C_im
        logdA = dt * A
        dB = dt * Bc
        l = (lambda x, dt: x.to(dt))(torch.arange(L), A_re.dtype)
        P = torch.exp(logdA[:, :, None] * l[None, None, :])
        K = torch.einsum('dn,dnl,dn->dl', Cc, P, dB).real
        L2 = 2 * L
        Kp = _pad(K, ((0, 0), (0, L)))
        up = (lambda x, *d: x.permute(*d))(u, 0, 2, 1)
        up = _pad(up, ((0, 0), (0, 0), (0, L)))
        Kf = (lambda x, axes=(-2, -1): torch.fft.rfft2(x.float(), dim=axes))(Kp[:, None, :], axes=(-2, -1))
        Uf = (lambda x, axes=(-2, -1): torch.fft.rfft2(x.float(), dim=axes))(up[:, :, None, :], axes=(-2, -1))
        Yf = Uf * Kf[None, :, :, :]
        y = (lambda x, s, axes=(-2, -1): torch.fft.irfft2(x, s=s, dim=axes).to(torch.bfloat16))(Yf, (1, L2), axes=(-2, -1))[:, :, 0, :L]
        y = (lambda x, *d: x.permute(*d))(y, 0, 2, 1) + u * Dskip[None, None, :]
        return y

    def _B_ref(x, W_gate, W_up, W_down):
        gate = torch.einsum('bsd,df->bsf', x, W_gate)
        up = torch.einsum('bsd,df->bsf', x, W_up)
        gate = gate * (lambda x, dt: x.to(dt))(gate > 0, gate.dtype)
        h = gate * up
        return torch.einsum('bsf,fd->bsd', h, W_down)
    x = A_u
    mod = (_silu(c) @ w_mod).reshape(c.shape[0], 6, 1, -1)
    sa, ca, ga, sb, cb, gb = (mod[:, 0].clone(), mod[:, 1].clone(), mod[:, 2].clone(), mod[:, 3].clone(), mod[:, 4].clone(), mod[:, 5].clone())
    h = _layernorm(x, axis=-1) * (1 + ca) + sa
    x = x + ga * _A_ref(h, A_A_re, A_A_im, A_B_re, A_B_im, A_C_re, A_C_im, A_log_dt, A_Dskip)
    h = _layernorm(x, axis=-1) * (1 + cb) + sb
    x = x + gb * _B_ref(h, B_W_gate, B_W_up, B_W_down)
    return x
```

```python
import re

REG = re.compile(r'^(-|abs\()?\|?([vas])(?:(\d+)|\[(\d+):(\d+)\])\|?\)?$')

def regs_of(tok):
    tok = tok.strip()
    if tok in ('vcc',): return {('s', 106), ('s', 107)}
    if tok == 'vcc_lo': return {('s', 106)}
    if tok == 'vcc_hi': return {('s', 107)}
    if tok == 'exec': return {('s', 126), ('s', 127)}
    if tok == 'm0': return {('s', 124)}
    m = REG.match(tok)
    if not m: return set()
    f = m.group(2)
    if m.group(3) is not None: return {(f, int(m.group(3)))}
    return {(f, i) for i in range(int(m.group(4)), int(m.group(5)) + 1)}

TRANS = ('v_exp_f32', 'v_log_f32', 'v_rcp_f32', 'v_rsq_f32', 'v_sqrt_f32', 'v_sin_f32', 'v_cos_f32', 'v_rcp_iflag_f32')

class Ins:
    def __init__(s, text):
        s.text = text
        body = text.split(';')[0].strip()
        s.label = body.endswith(':')
        s.directive = body.startswith('.')
        s.empty = not body
        s.op = body.split()[0] if body else ''
        rest = body[len(s.op):].strip()
        ops, cur, depth = [], '', 0
        for ch in rest:
            if ch in '[(': depth += 1
            if ch in '])': depth -= 1
            if ch == ',' and depth == 0: ops.append(cur.strip()); cur = ''
            else: cur += ch
        if cur.strip(): ops.append(cur.strip())
        s.mods = ''
        if ops:
            parts = ops[-1].split(None, 1)
            ops[-1] = parts[0]
            s.mods = parts[1] if len(parts) > 1 else ''
        s.ops = ops
        op = s.op
        s.mfma = op.startswith('v_mfma')
        s.valu = op.startswith('v_') and not s.mfma
        s.trans = any(op.startswith(t) for t in TRANS)
        s.dot = op.startswith('v_dot')
        s.dpp = '_dpp' in op or 'row_' in s.mods or 'quad_perm' in s.mods or 'wave_' in s.mods
        s.permlane = op.startswith('v_permlane')
        s.readlane = op.startswith('v_readlane') or op.startswith('v_readfirstlane')
        s.vmem = op.startswith(('global_', 'buffer_', 'flat_'))
        s.ds = op.startswith('ds_')
        s.salu = op.startswith('s_')
        s.ldsdma = s.vmem and ('_lds_' in op or re.search(r'\blds\b', s.mods) is not None)
        s.store = s.vmem and ('store' in op or 'atomic' in op)
        s.widestore = s.store and ('x4' in op or 'x3' in op)
        s.passes = 0
        if s.mfma: s.passes = 8 if '32x32x16' in op else 4 if '16x16x32' in op else None
        R = [regs_of(o) for o in ops]
        s.w, s.r = set(), set()
        if s.label or s.directive or s.empty: return
        allr = set().union(*R) if R else set()
        if s.mfma:
            s.w = R[0]; s.A = R[1]; s.B = R[2]; s.C = R[3]; s.r = R[1] | R[2] | R[3]
        elif s.valu:
            if s.permlane and 'swap' in op: s.w = R[0] | R[1]; s.r = R[0] | R[1]
            elif op.startswith(('v_add_co', 'v_sub_co', 'v_addc_co', 'v_subb_co')):
                s.w = R[0] | R[1]; s.r = set().union(*R[2:])
            else:
                s.w = R[0]; s.r = set().union(*R[1:]) if len(R) > 1 else set()
                if op.startswith(('v_fmac', 'v_dot2c', 'v_pk_fmac')) or s.dpp: s.r |= R[0]
                if op.startswith('v_cndmask') and len(ops) == 3: s.r |= regs_of('vcc')
        elif s.vmem:
            if s.store or s.ldsdma or op.startswith(('buffer_wbl2', 'buffer_inv')):
                s.r = allr
                s.data = (R[1] if op.startswith(('global_', 'flat_')) else R[0]) if s.store else set()
            else:
                s.w = R[0]; s.r = set().union(*R[1:])
                if 'd16' in op: s.r |= R[0]
            if s.ldsdma: s.r |= regs_of('m0')
        elif s.ds:
            if 'write' in op or op.startswith(('ds_add', 'ds_max', 'ds_min')): s.r = allr
            else: s.w = R[0]; s.r = set().union(*R[1:]) if len(R) > 1 else set()
            if 'addtid' in op: s.r |= regs_of('m0')
        elif s.salu:
            if op.startswith(('s_cmp', 's_cbranch', 's_branch', 's_waitcnt', 's_barrier', 's_nop', 's_endpgm', 's_setprio', 's_sleep')):
                s.r = allr
            else:
                s.w = R[0] if R else set(); s.r = set().union(*R[1:]) if len(R) > 1 else set()
                if 'saveexec' in op: s.w |= regs_of('exec')
    def states(s):
        if s.label or s.directive or s.empty: return 0
        if s.op == 's_nop': return int(s.ops[0], 0) + 1
        return 1

def need(p, c):
    n = 0
    vw = {r for r in p.w if r[0] in 'va'}
    sw = {r for r in p.w if r[0] == 's'}
    if p.mfma:
        P = p.passes
        full = {4: 8, 8: 12}[P]; ovl = {4: 6, 8: 10}[P]; war = {4: 3, 8: 7}[P]
        if c.mfma:
            if p.w & (c.A | c.B): n = max(n, full)
            if p.w & c.C and not (p.w == c.C and c.passes == P): n = max(n, ovl)
            if p.w & c.w and not (p.w & c.C): n = max(n, full)
        else:
            if p.w & (c.r | c.w): n = max(n, full)
            if c.valu and (p.C & c.w): n = max(n, war)
        return n
    if p.valu:
        if c.mfma and vw & c.r: n = max(n, 2)
        if p.trans and (vw & c.r) and not c.trans: n = max(n, 1)
        if c.valu and c.dpp and vw & c.r: n = max(n, 2)
        if c.permlane and vw & c.r: n = max(n, 2)
        if c.readlane and vw & c.r: n = max(n, 1)
        if sw:
            if c.valu and sw & c.r: n = max(n, 4 if c.readlane or c.op.startswith('v_writelane') else 2)
            if c.vmem and sw & c.r: n = max(n, 5)
            if c.salu and sw & c.r: n = max(n, 1)
        if p.dot and vw & (c.r | c.w):
            same_chain = c.op == p.op and len(c.ops) >= 3 and not (vw & (regs_of(c.ops[1]) | regs_of(c.ops[2])))
            if not same_chain: n = max(n, 3)
        if ('sdwa' in p.op or 'dst_sel' in p.mods) and 'dst_sel:DWORD' not in p.mods and vw & (c.r | c.w): n = max(n, 1)
    if p.salu and ('s', 124) in p.w and (c.ldsdma or 'addtid' in c.op): n = max(n, 1)
    if p.widestore and p.data & c.w: n = max(n, 2 if c.valu else 1)
    return n

def fix_hazards(lines):
    out, hist = [], []
    for ln in lines:
        c = Ins(ln)
        assert not (c.op.startswith('v_pk_') and re.search(r'op_sel:\[0,1', c.mods)), ln
        if c.label or c.directive or c.empty:
            out.append(ln)
            continue
        dist, req = 0, 0
        for p in reversed(hist):
            if dist >= 12: break
            nd = need(p, c)
            if nd > dist: req = max(req, nd - dist)
            dist += p.states()
        if req:
            nop = Ins(f'  s_nop {req - 1}')
            out.append(nop.text + '   ; hazard pad'); hist.append(nop)
        out.append(ln); hist.append(c)
        if c.op in ('s_endpgm', 's_branch'): hist = []
        hist = hist[-16:]
    return out

class Asm:
    def __init__(s): s.lines = []
    def __call__(s, text):
        for ln in text.strip('\n').split('\n'):
            ln = ln.strip()
            if not ln: continue
            s.lines.append(ln if ln.endswith(':') or ln.startswith('.') else '  ' + ln)
    def text(s): return '\n'.join(fix_hazards(s.lines)) + '\n'

def v(a, n=1): return f'v{a}' if n == 1 else f'v[{a}:{a+n-1}]'
def a_(a, n=1): return f'a{a}' if n == 1 else f'a[{a}:{a+n-1}]'
def s_(a, n=1): return f's{a}' if n == 1 else f's[{a}:{a+n-1}]'

def kdesc(name, vgpr, sgpr, accum=None):
    acc = accum if accum is not None else (vgpr + 3) // 4 * 4
    return f""".p2align 6
.amdhsa_kernel {name}
  .amdhsa_next_free_vgpr {vgpr}
  .amdhsa_next_free_sgpr {sgpr}
  .amdhsa_accum_offset {acc}
  .amdhsa_group_segment_fixed_size 0
  .amdhsa_kernarg_size 144
  .amdhsa_user_sgpr_count 2
  .amdhsa_user_sgpr_kernarg_segment_ptr 1
  .amdhsa_system_sgpr_workgroup_id_x 1
.end_amdhsa_kernel
"""
```

```python
import sys, struct
import numpy as np
from asmlib import Asm, v, a_, s_, kdesc

NAME = "adaLN_cond__ssm_conv_s4__glu_gated_reglu__prompt"
L, D, N, F = 2048, 448, 256, 1792

WS_XT   = 0x000000
WS_STM  = 0x1C0000
WS_STR  = 0x1C2000
WS_MOD  = 0x1C4000
WS_R2   = 0x1C8000
WS_FL   = 0x1D0000
WS_KG   = 0x200000
WS_X1T  = 0x400000
WS_WF   = 0x600000
WS_WDF  = 0xA00000
WS_HF   = 0xC00000
TB = 28672
WF_FT = 29 * 2048
WF_FG = 29 * 1024
HF_TT = 112 * 1024

LOG2E = 0x3fb8aa3b
INV448 = 0x3b124925
EPS = 0x3727c5ac
ONES = 0x3f803f80

def f2u(x): return struct.unpack('<I', struct.pack('<f', x))[0]

def bf16_round_int(l):
    u = f2u(float(l))
    u = (u + 0x7fff + ((u >> 16) & 1)) & 0xffff0000
    return int(struct.unpack('<f', struct.pack('<I', u))[0])

XROWS = [0, 1, 2, 3, 4, 5, 6, 7, 256, 258, 260, 262, 512, 768, 516, 772, 1024, 1280, 1536, 1792, 2048]
RS = 1040

def ktable():
    tab = {}
    for i, o in enumerate(XROWS):
        for j in range(32):
            tab.setdefault(o + 8 * j, (i, j))
    out = []
    for x in range(2048):
        i, j = tab[bf16_round_int(2047 - x)]
        out.append(i * RS + j * 4)
    return out

def add64(A, dst, src, imm):
    A(f"s_add_u32 s{dst}, s{src}, {imm}\ns_addc_u32 s{dst+1}, s{src+1}, 0")

def cmul(A, d, a, b):
    return [f"v_pk_mul_f32 {v(d,2)}, {v(a,2)}, {v(b,2)} op_sel_hi:[1,0]",
            f"v_pk_fma_f32 {v(d,2)}, {v(a,2)}, {v(b,2)}, {v(d,2)} op_sel:[1,1,0] op_sel_hi:[0,1,1] neg_lo:[1,0,0]"]
```

```python
from common import *
K1_KG, K1_LN, K1_MOD = 448, 64, 84
K1_GRID = K1_KG + K1_LN + K1_MOD
K1_LDS = 32 * RS

def k1(A):
    A(f""".globl prep_kernel
.p2align 8
.type prep_kernel,@function
prep_kernel:
s_cmp_ge_u32 s2, {K1_KG}
s_cbranch_scc1 K1_other
s_load_dwordx16 s[4:19], s[0:1], 8
s_load_dwordx2 s[20:21], s[0:1], 136
s_getpc_b64 s[22:23]
K1_pc:
s_add_u32 s22, s22, ktab-K1_pc
s_addc_u32 s23, s23, 0
s_lshl_b32 s3, s2, 9
v_lshlrev_b32 v3, 4, v0
v_lshl_add_u32 v1, v0, 1, s3
s_lshl_b32 s3, s2, 1
v_mov_b32 v2, s3
""")
    for r in range(10, 17): A(f"v_mov_b32 v{r}, 0")
    A("global_load_dwordx4 v[20:23], v3, s[22:23]")
    A("s_waitcnt lgkmcnt(0)")
    A("global_load_short_d16_hi v16, v2, s[16:17]")
    for i in range(6): A(f"global_load_short_d16_hi v{10+i}, v1, s[{4+2*i}:{5+2*i}]")
    A(f"""
v_lshrrev_b32 v4, 6, v0
v_and_b32 v5, 63, v0
v_readfirstlane_b32 s24, v4
v_and_b32 v6, 31, v5
v_lshrrev_b32 v7, 5, v5
s_lshl_b32 s24, s24, 8
s_mov_b32 m0, s24
v_mul_u32_u24 v8, {RS}, v6
v_lshl_add_u32 v8, v7, 4, v8
v_add_u32 v8, s24, v8
v_mul_u32_u24 v9, {4*RS}, v7
v_lshl_add_u32 v9, v6, 2, v9
v_add_u32 v9, s24, v9
s_lshl_b32 s3, s2, 12
s_add_u32 s3, s3, {WS_KG}
s_add_u32 s20, s20, s3
s_addc_u32 s21, s21, 0
s_mov_b32 s25, {LOG2E}
s_waitcnt vmcnt(6)
v_mul_f32 v16, s25, v16
v_exp_f32 v16, v16
""")
    for e in range(8):
        src = 20 + e // 2
        A(f"v_and_b32 v{24+e}, 0xffff, v{src}" if e % 2 == 0 else f"v_lshrrev_b32 v{24+e}, 16, v{src}")
    A("""
v_cvt_pk_bf16_f32 v16, v16, v16
v_and_b32 v16, 0xffff0000, v16        ; dt
s_waitcnt vmcnt(0)
v_mul_f32 v10, v16, v10
v_mul_f32 v11, v16, v11
v_mul_f32 v10, s25, v10
v_mul_f32 v11, 0.15915494, v11
v_mul_f32 v12, v16, v12               ; dB
v_mul_f32 v13, v16, v13
""")
    def zdirect(dst, l, t):
        if l == 1:
            A(f"v_fract_f32 v{t+1}, v11\nv_exp_f32 v{t}, v10")
        else:
            A(f"v_mul_f32 v{t+1}, {hex(f2u(float(l)))}, v11\nv_mul_f32 v{t}, {hex(f2u(float(l)))}, v10\nv_fract_f32 v{t+1}, v{t+1}\nv_exp_f32 v{t}, v{t}")
        A(f"v_cos_f32 v{dst}, v{t+1}\nv_sin_f32 v{dst+1}, v{t+1}")
        A(f"v_pk_mul_f32 {v(dst,2)}, {v(dst,2)}, {v(t,2)} op_sel_hi:[1,0]")
    Z1, Z8, P = 32, 34, 36
    zdirect(Z1, 1, 18); zdirect(P, 256, 18); zdirect(Z8, 8, 18)
    X = lambda i: 40 + 2 * i
    seq = [(0, 14, 12)]
    for i in range(1, 8): seq.append((i, X(i - 1), Z1))
    for i, srci in ((8, 0), (9, 2), (10, 4), (11, 6), (12, 8), (14, 10), (13, 12), (15, 14), (16, 13), (17, 16), (18, 17), (19, 18), (20, 19)):
        seq.append((i, X(srci), P))
    pend = None
    T = [84, 85]
    for n, (i, a, b) in enumerate(seq):
        m, f_ = cmul(A, X(i), a, b)
        A(m)
        if pend is not None: A(f"v_cvt_pk_bf16_f32 v{T[n&1]}, v{X(pend)}, -v{X(pend)+1}")
        A(f_)
        if pend is not None: A(f"ds_write_addtid_b32 v{T[n&1]} offset:{pend*RS}")
        pend = i
    A(f"v_cvt_pk_bf16_f32 v{T[0]}, v{X(pend)}, -v{X(pend)+1}")
    A(f"v_mov_b32 v{T[1]}, 0x3f80")
    A(f"ds_write_addtid_b32 v{T[0]} offset:{pend*RS}")
    AF, BF, ACC = 96, 128, 160
    for ks in range(8): A(f"ds_read_b128 {v(AF+4*ks,4)}, v8 offset:{ks*32}")
    A(f"ds_write_addtid_b32 v{T[1]} offset:0")
    Y = [40, 42]
    prev = Z8; pend = (1, Z8)
    for j in range(2, 32):
        d = Y[j & 1]
        m, f_ = cmul(A, d, prev, Z8)
        A(m)
        A(f"v_cvt_pk_bf16_f32 v{T[j&1]}, v{pend[1]}, v{pend[1]+1}")
        A(f_)
        A(f"ds_write_addtid_b32 v{T[j&1]} offset:{pend[0]*RS}")
        prev = d; pend = (j, d)
    A(f"v_cvt_pk_bf16_f32 v{T[0]}, v{pend[1]}, v{pend[1]+1}")
    A(f"ds_write_addtid_b32 v{T[0]} offset:{pend[0]*RS}")
    for ks in range(8): A(f"ds_read_b128 {v(BF+4*ks,4)}, v8 offset:{ks*32}")
    for ks in range(8):
        A(f"s_waitcnt lgkmcnt({7-ks})")
        A(f"v_mfma_f32_32x32x16_bf16 {v(ACC,16)}, {v(AF+4*ks,4)}, {v(BF+4*ks,4)}, {'0' if ks==0 else v(ACC,16)}")
    for r in range(12):
        A(f"ds_write_b32 v9, v{ACC+r} offset:{((r&3)+8*(r>>2))*RS}")
    A("s_waitcnt lgkmcnt(0)\ns_barrier")
    E = 40
    for e in range(8):
        A(f"ds_read2st64_b32 {v(E+4*e,2)}, v{24+e} offset0:0 offset1:1")
        A(f"ds_read2st64_b32 {v(E+4*e+2,2)}, v{24+e} offset0:2 offset1:3")
        if e == 3: pass
    for e in range(8):
        A(f"s_waitcnt lgkmcnt({14-2*e})")
        A(f"v_pk_add_f32 {v(E+4*e,2)}, {v(E+4*e,2)}, {v(E+4*e+2,2)}")
        A(f"v_add_f32 v{E+4*e}, v{E+4*e}, v{E+4*e+1}")
        if e & 1: A(f"v_cvt_pk_bf16_f32 v{80+e//2}, v{E+4*e-4}, v{E+4*e}")
    A("global_store_dwordx4 v3, v[80:83], s[20:21]\ns_endpgm")

    LS = 928
    A(f"""
K1_other:
s_cmp_ge_u32 s2, {K1_KG + K1_LN}
s_cbranch_scc1 K1_mod
s_load_dwordx2 s[4:5], s[0:1], 0
s_load_dwordx2 s[6:7], s[0:1], 136
s_sub_u32 s3, s2, {K1_KG}             ; t-block
s_mul_i32 s8, s3, {TB}
v_lshrrev_b32 v1, 3, v0               ; row
v_and_b32 v2, 7, v0                   ; sub
v_mul_u32_u24 v3, 896, v1
v_lshl_add_u32 v3, v2, 4, v3
v_mul_u32_u24 v4, {LS}, v1
v_lshl_add_u32 v4, v2, 4, v4
s_waitcnt lgkmcnt(0)
s_add_u32 s4, s4, s8
s_addc_u32 s5, s5, 0
""")
    for i in range(7): A(f"global_load_dwordx4 {v(16+4*i,4)}, v3, s[4:5] offset:{128*i}")
    A(f"""
s_add_u32 s10, s6, s8
s_addc_u32 s11, s7, 0
s_lshl_b32 s9, s3, 7
s_add_u32 s9, s9, {WS_STM}
s_add_u32 s12, s6, s9
s_addc_u32 s13, s7, 0
v_lshlrev_b32 v5, 2, v1               ; row*4
v_lshrrev_b32 v6, 6, v0               ; w
v_bfe_u32 v7, v0, 4, 2                ; g
v_bfe_u32 v8, v0, 2, 2                ; e
v_and_b32 v9, 3, v0                   ; cq
v_lshl_add_u32 v8, v7, 3, v8
v_mul_u32_u24 v8, {LS}, v8
v_lshl_add_u32 v8, v9, 3, v8
v_lshl_add_u32 v8, v6, 5, v8
v_and_b32 v9, 15, v0
v_lshlrev_b32 v9, 6, v9
v_lshl_add_u32 v9, v7, 4, v9
v_lshl_add_u32 v9, v6, 10, v9
s_mov_b32 s14, {ONES}
v_mov_b32 v10, 0
v_mov_b32 v11, 0
""")
    for i in range(7):
        A(f"s_waitcnt vmcnt({6-i})")
        A(f"ds_write_b128 v4, {v(16+4*i,4)} offset:{128*i}")
        for j in range(4): A(f"v_dot2_f32_bf16 v{10+(j&1)}, v{16+4*i+j}, s14, v{10+(j&1)}")
    def red8(r, t):
        A(f"""
v_add_f32_dpp v{r}, v{r}, v{r} quad_perm:[1,0,3,2] row_mask:0xf bank_mask:0xf
v_add_f32_dpp v{r}, v{r}, v{r} quad_perm:[2,3,0,1] row_mask:0xf bank_mask:0xf
v_add_f32_dpp v{r}, v{r}, v{r} row_half_mirror row_mask:0xf bank_mask:0xf
""")
    A("v_add_f32 v10, v10, v11")
    red8(10, 11)
    A(f"""
v_mul_f32 v10, {hex(INV448)}, v10     ; mean
s_waitcnt lgkmcnt(0)
s_barrier
""")
    for c in range(7):
        A(f"ds_read_b64_tr_b16 {v(48+4*c,2)}, v8 offset:{128*c}")
        A(f"ds_read_b64_tr_b16 {v(50+4*c,2)}, v8 offset:{128*c+4*LS}")
    A("v_mov_b32 v12, 0\nv_mov_b32 v13, 0\nv_mov_b32 v11, v10")
    for k in range(28):
        t = 76 + 2 * (k & 1)
        A(f"v_lshlrev_b32 v{t}, 16, v{16+k}\nv_and_b32 v{t+1}, 0xffff0000, v{16+k}")
        A(f"v_pk_add_f32 {v(t,2)}, {v(t,2)}, v[10:11] neg_lo:[0,1] neg_hi:[0,1]")
        A(f"v_pk_fma_f32 v[12:13], {v(t,2)}, {v(t,2)}, v[12:13]")
        if k % 4 == 3:
            c = k // 4
            A(f"s_waitcnt lgkmcnt({12-2*c})")
            if c: A(f"v_add_u32 v9, 4096, v9")
            A(f"global_store_dwordx4 v9, {v(48+4*c,4)}, s[10:11]")
    A("v_add_f32 v12, v12, v13")
    red8(12, 13)
    A(f"""
v_mul_f32 v12, {hex(INV448)}, v12     ; var
v_cvt_pk_bf16_f32 v10, v10, v12
v_and_b32 v12, 0xffff0000, v10
v_lshlrev_b32 v10, 16, v10
v_add_f32 v12, {hex(EPS)}, v12
v_cvt_pk_bf16_f32 v12, v12, v12
v_and_b32 v12, 0xffff0000, v12
v_sqrt_f32 v12, v12
v_cvt_pk_bf16_f32 v12, v12, v12
v_and_b32 v12, 0xffff0000, v12
v_rcp_f32 v12, v12
v_add_u32 v6, {WS_STR - WS_STM}, v5
global_store_dword v5, v10, s[12:13]
global_store_dword v6, v12, s[12:13]
s_endpgm
""")
    A(f"""
K1_mod:
s_cmp_ge_u32 s2, {K1_GRID}
s_cbranch_scc1 K1_end
s_load_dwordx4 s[4:7], s[0:1], 104    ; c, w_mod
s_load_dwordx2 s[8:9], s[0:1], 136
s_sub_u32 s3, s2, {K1_KG + K1_LN}
v_lshrrev_b32 v1, 2, v0               ; rg
v_and_b32 v2, 3, v0                   ; cc
v_mul_u32_u24 v3, 5376, v1
v_lshl_add_u32 v3, v2, 4, v3
s_lshl_b32 s10, s3, 6
v_add_u32 v3, s10, v3                 ; w off
v_lshlrev_b32 v4, 1, v1               ; c off
""")
    for i in range(7): A(f"v_mov_b32 v{8+i}, 0")
    A("s_waitcnt lgkmcnt(0)")
    for i in range(7): A(f"global_load_short_d16_hi v{8+i}, v4, s[4:5] offset:{128*i}")
    for i in range(7):
        A(f"global_load_dwordx4 {v(16+4*i,4)}, v3, s[6:7]")
        if i < 6: A(f"v_add_u32 v3, {64*5376}, v3")
    A(f"""
s_lshl_b32 s10, s3, 7
s_add_u32 s10, s10, {WS_MOD}
s_add_u32 s8, s8, s10
s_addc_u32 s9, s9, 0
s_mov_b32 s11, {hex(LOG2E | 0x80000000)}
v_lshrrev_b32 v5, 4, v0
v_lshlrev_b32 v5, 7, v5
v_lshl_add_u32 v5, v2, 5, v5
v_lshlrev_b32 v6, 2, v0
s_waitcnt vmcnt(7)
""")
    for i in range(7): A(f"v_mul_f32 v{44+i}, s11, v{8+i}")
    for i in range(7): A(f"v_exp_f32 v{44+i}, v{44+i}")
    for i in range(7): A(f"v_add_f32 v{44+i}, 1.0, v{44+i}")
    for i in range(7): A(f"v_rcp_f32 v{44+i}, v{44+i}")
    for i in range(7): A(f"v_mul_f32 v{8+i}, v{8+i}, v{44+i}")
    for i in range(7): A(f"v_cvt_pk_bf16_f32 v{8+i}, v{8+i}, v{8+i}")
    for i in range(7): A(f"v_and_b32 v{52+2*i}, 0xffff0000, v{8+i}")
    AC = 68
    for i in range(7):
        A(f"s_waitcnt vmcnt({6-i})")
        for j in range(4):
            t = 44 + 2 * j
            A(f"v_lshlrev_b32 v{t}, 16, v{16+4*i+j}\nv_and_b32 v{t+1}, 0xffff0000, v{16+4*i+j}")
        for j in range(4):
            t = 44 + 2 * j
            if i == 0: A(f"v_pk_mul_f32 {v(AC+2*j,2)}, {v(t,2)}, {v(52+2*i,2)} op_sel_hi:[1,0]")
            else: A(f"v_pk_fma_f32 {v(AC+2*j,2)}, {v(t,2)}, {v(52+2*i,2)}, {v(AC+2*j,2)} op_sel_hi:[1,0,1]")
    for sh in (8, 4):
        for j in range(8): A(f"v_add_f32_dpp v{AC+j}, v{AC+j}, v{AC+j} row_ror:{sh} row_mask:0xf bank_mask:0xf")
    A(f"""
ds_write_b128 v5, {v(AC,4)}
ds_write_b128 v5, {v(AC+4,4)} offset:16
s_waitcnt lgkmcnt(0)
s_barrier
v_cmp_gt_u32 vcc, 32, v0
s_and_saveexec_b64 s[12:13], vcc
s_cbranch_execz K1_end
""")
    for i in range(8): A(f"ds_read2_b32 {v(16+2*i,2)}, v6 offset0:{64*i} offset1:{64*i+32}" if 64*i+32 < 256 else f"ds_read2_b32 {v(16+2*i,2)}, v7 offset0:{64*i-256} offset1:{64*i+32-256}") if i != 4 else A(f"v_add_u32 v7, 1024, v6\nds_read2_b32 {v(16+2*i,2)}, v7 offset0:0 offset1:32")
    A("s_waitcnt lgkmcnt(0)")
    for i in range(4): A(f"v_pk_add_f32 {v(16+2*i,2)}, {v(16+2*i,2)}, {v(24+2*i,2)}")
    for i in range(2): A(f"v_pk_add_f32 {v(16+2*i,2)}, {v(16+2*i,2)}, {v(20+2*i,2)}")
    A("""
v_pk_add_f32 v[16:17], v[16:17], v[18:19]
v_add_f32 v16, v16, v17
v_cvt_pk_bf16_f32 v16, v16, v16
v_and_b32 v16, 0xffff0000, v16
global_store_dword v6, v16, s[8:9]
K1_end:
s_endpgm
""")
    tab = ktable()
    A(".p2align 4\n.type ktab,@object\nktab:")
    for i in range(0, 2048, 16): A(".short " + ", ".join(str(t) for t in tab[i:i+16]))
    A(".size ktab, 4096")
    return kdesc("prep_kernel", 176, 32)
```

```python
from common import *
K2_CV, K2_GU, K2_DN = 224, 112, 49
K2_GRID = K2_CV + K2_GU + K2_DN
KC = 4160
L_K = 0
L_H = 4 * KC
HS = 4608
L_Y = L_H + 2 * HS
YW = 10240
K2_LDS = L_Y + 4 * YW

def k2(A):
    A(f""".globl conv_kernel
.p2align 8
.type conv_kernel,@function
conv_kernel:
s_cmp_ge_u32 s2, {K2_CV}
s_cbranch_scc1 K2_other
s_load_dwordx2 s[4:5], s[0:1], 136
s_load_dwordx2 s[6:7], s[0:1], 64     ; Dskip
v_lshrrev_b32 v1, 2, v0
v_mul_u32_u24 v1, {TB}, v1
v_and_b32 v2, 3, v0
v_lshl_add_u32 v1, v2, 4, v1
s_lshl_b32 s3, s2, 7
v_add_u32 v1, s3, v1
v_lshlrev_b32 v2, 4, v0               ; tid*16
v_lshlrev_b32 v3, 5, v0               ; tid*32
s_lshl_b32 s8, s2, 13
s_add_u32 s8, s8, {WS_KG}
s_lshl_b32 s9, s2, 3
s_add_u32 s9, s9, {WS_MOD}
s_lshl_b32 s10, s2, 2
s_waitcnt lgkmcnt(0)
s_add_u32 s12, s4, s8
s_addc_u32 s13, s5, 0                 ; KG + d0*4096
s_add_u32 s14, s4, {WS_STM}
s_addc_u32 s15, s5, 0
s_add_u32 s16, s4, s9
s_addc_u32 s17, s5, 0                 ; MOD + d0*4
s_add_u32 s6, s6, s10
s_addc_u32 s7, s7, 0
global_load_dwordx4 v[8:11], v1, s[4:5]
global_load_dwordx4 v[12:15], v1, s[4:5] offset:64
global_load_dwordx4 v[16:19], v3, s[14:15]
global_load_dwordx4 v[20:23], v3, s[14:15] offset:16
v_add_u32 v4, {WS_STR - WS_STM}, v3
global_load_dwordx4 v[24:27], v4, s[14:15]
global_load_dwordx4 v[28:31], v4, s[14:15] offset:16
v_add_u32 v4, 4096, v2
global_load_dwordx4 v[32:35], v2, s[12:13]
global_load_dword v36, v2, s[12:13] offset:16
global_load_dwordx4 v[40:43], v4, s[12:13]
global_load_dword v44, v4, s[12:13] offset:16
s_load_dwordx2 s[20:21], s[16:17], 0        ; sa
s_load_dwordx2 s[22:23], s[16:17], {448*4}  ; ca
s_load_dwordx2 s[24:25], s[16:17], {896*4}  ; ga
s_load_dword s26, s[6:7], 0
s_add_u32 s18, s4, {WS_X1T}
s_addc_u32 s19, s5, 0
v_mov_b32 v48, 0
v_mov_b32 v49, 0
v_mov_b32 v50, 0
v_mov_b32 v51, 0
v_lshrrev_b32 v5, 5, v0
v_mul_u32_u24 v5, {HS}, v5
v_and_b32 v6, 31, v0
v_lshl_add_u32 v5, v6, 4, v5
v_add_u32 v5, {L_H}, v5
v_bfe_u32 v6, v0, 1, 2
v_mul_u32_u24 v6, {KC}, v6
v_and_b32 v7, 1, v0
v_lshl_add_u32 v6, v7, 4, v6
v_add_u32 v6, 4096, v6
v_cmp_gt_u32 vcc, 64, v0
v_cndmask_b32 v5, v6, v5, vcc
ds_write_b128 v5, v[48:51]
v_lshrrev_b32 v5, 6, v0               ; w
v_and_b32 v6, 15, v0                  ; m / p
v_bfe_u32 v7, v0, 4, 2                ; kq
v_readfirstlane_b32 s27, v5
s_lshr_b32 s28, s27, 1                ; ch
s_and_b32 s29, s27, 1                 ; half
v_and_b32 v52, 1, v6
v_xor_b32 v52, 1, v52
v_mul_u32_u24 v52, {KC}, v52
v_lshrrev_b32 v53, 1, v6
v_lshlrev_b32 v53, 2, v53
v_sub_u32 v52, v52, v53
v_lshl_add_u32 v52, v7, 4, v52
s_mul_i32 s30, s28, {2*KC}
s_lshl_b32 s31, s29, 8
s_sub_u32 s30, s30, s31
s_add_u32 s30, s30, {L_K + 4060 - 192 - 512}
v_add_u32 v52, s30, v52
v_subrev_u32 v53, 1024, v52
v_subrev_u32 v54, 2048, v52
v_subrev_u32 v55, 3072, v52
v_lshlrev_b32 v56, 5, v6
v_lshl_add_u32 v56, v7, 4, v56
s_mul_i32 s30, s28, {HS}
s_sub_u32 s30, s30, s31
s_add_u32 s30, s30, {L_H + 480 - 192}
v_add_u32 v56, s30, v56
v_mul_u32_u24 v57, 320, v7
v_lshl_add_u32 v57, v6, 4, v57
s_mul_i32 s30, s27, {YW}
s_add_u32 s30, s30, {L_Y}
v_add_u32 v57, s30, v57
v_lshrrev_b32 v58, 5, v0
v_mul_u32_u24 v58, 1280, v58
v_and_b32 v59, 1, v0
v_mul_u32_u24 v59, 640, v59
v_add_u32 v58, v58, v59
v_bfe_u32 v59, v0, 1, 4
v_lshl_add_u32 v58, v59, 4, v58
v_add_u32 v58, {L_Y}, v58
v_cmp_eq_u32 vcc, 255, v0
s_waitcnt lgkmcnt(0)
v_add_f32 v60, 1.0, s22
v_add_f32 v61, 1.0, s23
v_cvt_pk_bf16_f32 v60, v60, v61
v_and_b32 v62, 0xffff0000, v60
v_lshlrev_b32 v60, 16, v60
v_mov_b32 v64, s20
v_mov_b32 v66, s21
s_waitcnt vmcnt(4)
""")
    for ch in range(2):
        for j in range(4):
            t = 80 + 2 * j
            A(f"v_lshlrev_b32 v{t}, 16, v{8+4*ch+j}\nv_and_b32 v{t+1}, 0xffff0000, v{8+4*ch+j}")
        for j in range(4): A(f"v_pk_add_f32 {v(80+2*j,2)}, {v(80+2*j,2)}, {v(16+2*j,2)} neg_lo:[0,1] neg_hi:[0,1]")
        for j in range(4): A(f"v_pk_mul_f32 {v(80+2*j,2)}, {v(80+2*j,2)}, {v(24+2*j,2)}")
        for j in range(4): A(f"v_pk_fma_f32 {v(80+2*j,2)}, {v(80+2*j,2)}, {v(60+2*ch,2)}, {v(64+2*ch,2)} op_sel_hi:[1,0,0]")
        for j in range(4): A(f"v_cvt_pk_bf16_f32 v{68+4*ch+j}, v{80+2*j}, v{81+2*j}")
        A(f"ds_write_b128 v2, {v(68+4*ch,4)} offset:{L_H + ch*HS + 512}")
    for ch in range(2):
        b = 32 + 8 * ch
        A(f"s_waitcnt vmcnt({2-2*ch})")
        A(f"v_cndmask_b32 v{b+4}, v{b+4}, v48, vcc")
        A(f"ds_write_b128 v2, {v(b,4)} offset:{L_K + ch*2*KC}")
        for j in range(4): A(f"v_alignbit_b32 v{80+4*ch+j}, v{b+j+1}, v{b+j}, 16")
        A(f"ds_write_b128 v2, {v(80+4*ch,4)} offset:{L_K + ch*2*KC + KC}")
    A("s_waitcnt lgkmcnt(0)\ns_barrier")
    ACC = 88
    FB = [120, 184]
    def reads(s, buf):
        out = []
        base = FB[buf]
        for c in range(8): out.append(f"ds_read_b128 {v(base+32+4*c,4)}, v56 offset:{512*c + 192 - 64*s}")
        for G in range(8):
            o = (512 * (1 - (G & 1)) + 192 - 64 * s) // 4
            out.append(f"ds_read2_b32 {v(base+4*G,2)}, v{52+G//2} offset0:{o} offset1:{o+1}")
            out.append(f"ds_read2_b32 {v(base+4*G+2,2)}, v{52+G//2} offset0:{o+2} offset1:{o+3}")
        return out
    for r in reads(0, 0): A(r)
    for s in range(4):
        base = FB[s & 1]
        nxt = reads(s + 1, (s + 1) & 1) if s < 3 else []
        if s > 0: A("s_waitcnt lgkmcnt(0)")
        n = 0
        for G in range(8):
            if s == 0: A(f"s_waitcnt lgkmcnt({min(15, 14 - 2*G + 0)})") if G == 0 else None
            if s == 0 and G == 1: A("s_waitcnt lgkmcnt(0)")
            for c in range(G, 8):
                first = (s == 0 and G == 0)
                A(f"v_mfma_f32_16x16x32_bf16 {v(ACC+4*c,4)}, {v(base+4*G,4)}, {v(base+32+4*(c-G),4)}, {'0' if first else v(ACC+4*c,4)}")
                if nxt and not (s == 0 and G == 0): A(nxt.pop(0))
        assert not nxt
    for c in range(8): A(f"ds_write_b128 v57, {v(ACC+4*c,4)} offset:{1280*c}")
    A("""
s_lshl_b32 s30, s26, 16
s_and_b32 s31, s26, 0xffff0000
""")
    U = 120
    for ch in range(2):
        for j in range(4):
            t = U + 8 * ch + 2 * j
            A(f"v_lshlrev_b32 v{t}, 16, v{68+4*ch+j}\nv_and_b32 v{t+1}, 0xffff0000, v{68+4*ch+j}")
        for j in range(8): A(f"v_mul_f32 v{U+8*ch+j}, s{30+ch}, v{U+8*ch+j}")
        for j in range(4): A(f"v_cvt_pk_bf16_f32 v{68+4*ch+j}, v{U+8*ch+2*j}, v{U+8*ch+2*j+1}")
        for j in range(4):
            t = U + 8 * ch + 2 * j
            A(f"v_lshlrev_b32 v{t}, 16, v{68+4*ch+j}\nv_and_b32 v{t+1}, 0xffff0000, v{68+4*ch+j}")
    A("s_waitcnt lgkmcnt(0)\ns_barrier")
    YR = 136
    for ch in range(2):
        for hf in range(2):
            for q in range(2):
                A(f"ds_read_b128 {v(YR+16*ch+8*hf+4*q,4)}, v58 offset:{(2*ch+hf)*YW + 320*q}")
    XU = 168
    for ch in range(2):
        for j in range(4):
            t = XU + 8 * ch + 2 * j
            A(f"v_lshlrev_b32 v{t}, 16, v{8+4*ch+j}\nv_and_b32 v{t+1}, 0xffff0000, v{8+4*ch+j}")
    def rnd(b, tmp):
        for j in range(4): A(f"v_cvt_pk_bf16_f32 v{tmp+j}, v{b+2*j}, v{b+2*j+1}")
        for j in range(4): A(f"v_lshlrev_b32 v{b+2*j}, 16, v{tmp+j}\nv_and_b32 v{b+2*j+1}, 0xffff0000, v{tmp+j}")
    for ch in range(2):
        y = YR + 16 * ch
        A(f"s_waitcnt lgkmcnt({4-4*ch})")
        for j in range(4): A(f"v_pk_add_f32 {v(y+2*j,2)}, {v(y+2*j,2)}, {v(y+8+2*j,2)}")
        rnd(y, 80)
        for j in range(4): A(f"v_pk_add_f32 {v(y+2*j,2)}, {v(y+2*j,2)}, {v(U+8*ch+2*j,2)}")
        rnd(y, 80)
        for j in range(8): A(f"v_mul_f32 v{y+j}, s{24+ch}, v{y+j}")
        rnd(y, 80)
        for j in range(4): A(f"v_pk_add_f32 {v(y+2*j,2)}, {v(y+2*j,2)}, {v(XU+8*ch+2*j,2)}")
        for j in range(4): A(f"v_cvt_pk_bf16_f32 v{68+4*ch+j}, v{y+2*j}, v{y+2*j+1}")
        A(f"global_store_dwordx4 v1, {v(68+4*ch,4)}, s[18:19] offset:{64*ch}")
    A("s_endpgm")

    A(f"""
K2_other:
s_cmp_ge_u32 s2, {K2_CV + K2_GU}
s_cbranch_scc1 K2_dn
s_load_dwordx4 s[4:7], s[0:1], 80
s_load_dwordx2 s[8:9], s[0:1], 136
s_sub_u32 s3, s2, {K2_CV}
s_and_b32 s10, s3, 7
s_lshr_b32 s11, s3, 3                 ; 0..13
s_and_b32 s12, s11, 1
s_lshr_b32 s11, s11, 1                ; 0..6
s_lshl_b32 s11, s11, 3
s_add_u32 s11, s11, s10
s_and_b32 s13, s11, 1                 ; mat
s_and_b32 s11, s11, 0xfe
s_add_u32 s11, s11, s12               ; ft
v_cmp_gt_u32 vcc, 224, v0
v_min_u32 v1, 223, v0
v_lshrrev_b32 v2, 3, v1               ; rgrp (0..27)
v_and_b32 v3, 7, v1                   ; cq
v_mul_u32_u24 v4, {8*3584}, v2
v_lshl_add_u32 v4, v3, 3, v4
s_lshl_b32 s14, s11, 6
v_add_u32 v4, s14, v4                 ; W off
v_lshlrev_b32 v5, 5, v2
s_waitcnt lgkmcnt(0)
s_cmp_eq_u32 s13, 0
s_cselect_b32 s4, s4, s6
s_cselect_b32 s5, s5, s7
s_add_u32 s16, s8, {WS_MOD + 3*448*4}
s_addc_u32 s17, s9, 0
""")
    WL = [16, 48]
    SB = [80, 96]; CB = [88, 104]
    for u in range(2):
        A(f"global_load_dwordx4 {v(SB[u],4)}, v5, s[16:17] offset:{u*896}")
        A(f"global_load_dwordx4 {v(SB[u]+4,4)}, v5, s[16:17] offset:{u*896+16}")
        A(f"global_load_dwordx4 {v(CB[u],4)}, v5, s[16:17] offset:{u*896+1792}")
        A(f"global_load_dwordx4 {v(CB[u]+4,4)}, v5, s[16:17] offset:{u*896+1792+16}")
    for u in range(2):
        for j in range(8):
            A(f"global_load_dwordx2 {v(WL[u]+2*j,2)}, v4, s[4:5]" + (" offset:3584" if j & 1 else ""))
            if j & 1 and not (u == 1 and j == 7): A(f"v_add_u32 v4, {7168 if j < 7 else 7168 + 27*8*3584}, v4")
    A(f"""
s_mul_i32 s14, s11, {WF_FT}
s_lshl_b32 s15, s13, 10
s_add_u32 s14, s14, s15
s_add_u32 s14, s14, {WS_WF}
s_add_u32 s8, s8, s14
s_addc_u32 s9, s9, 0
v_lshrrev_b32 v6, 1, v2
v_lshlrev_b32 v6, 11, v6
v_and_b32 v7, 1, v2
v_lshl_add_u32 v6, v7, 9, v6
v_lshl_add_u32 v6, v3, 6, v6
s_mov_b32 s18, {ONES}
s_and_saveexec_b64 s[20:21], vcc
s_waitcnt vmcnt(16)
""")
    for u in range(2):
        for j in range(8): A(f"v_add_f32 v{CB[u]+j}, 1.0, v{CB[u]+j}")
        for j in range(4): A(f"v_cvt_pk_bf16_f32 v{112+j}, v{CB[u]+2*j}, v{CB[u]+2*j+1}")
        for j in range(4): A(f"v_lshlrev_b32 v{CB[u]+2*j}, 16, v{112+j}\nv_and_b32 v{CB[u]+2*j+1}, 0xffff0000, v{112+j}")
    US, VS = 8, 12
    for j in range(8): A(f"v_mov_b32 v{8+j}, 0")
    UN = 112
    OUT = 144
    for u in range(2):
        A(f"s_waitcnt vmcnt({8 if u == 0 else 4})")
        for j in range(8):
            for h in range(2):
                t = UN + 4 * j + 2 * h
                A(f"v_lshlrev_b32 v{t}, 16, v{WL[u]+2*j+h}\nv_and_b32 v{t+1}, 0xffff0000, v{WL[u]+2*j+h}")
        for j in range(8):
            sel = "op_sel:[0,1,0] op_sel_hi:[1,1,1]" if j & 1 else "op_sel_hi:[1,0,1]"
            for h in range(2):
                A(f"v_pk_fma_f32 {v(VS+2*h,2)}, {v(UN+4*j+2*h,2)}, {v(SB[u]+(j&~1),2)}, {v(VS+2*h,2)} {sel}")
        for j in range(8):
            sel = "op_sel:[0,1] op_sel_hi:[1,1]" if j & 1 else "op_sel_hi:[1,0]"
            for h in range(2):
                A(f"v_pk_mul_f32 {v(UN+4*j+2*h,2)}, {v(UN+4*j+2*h,2)}, {v(CB[u]+(j&~1),2)} {sel}")
        o = OUT + 16 * u
        for i in range(4):
            for jp in range(4): A(f"v_cvt_pk_bf16_f32 v{o+4*i+jp}, v{UN+8*jp+i}, v{UN+8*jp+4+i}")
        if u == 1: A(f"v_add_u32 v6, {14*2048}, v6")
        for i in range(4): A(f"global_store_dwordx4 v6, {v(o+4*i,4)}, s[8:9] offset:{16*i}")
        for jp in range(4):
            for i in range(4): A(f"v_dot2_f32_bf16 v{US+i}, v{o+4*i+jp}, s18, v{US+i}")
    for j in range(8): A(f"v_add_f32_dpp v{8+j}, v{8+j}, v{8+j} row_ror:8 row_mask:0xf bank_mask:0xf")
    A(f"""
v_lshrrev_b32 v7, 4, v0
v_lshlrev_b32 v7, 8, v7
v_lshl_add_u32 v7, v3, 4, v7
ds_write_b128 v7, v[8:11]
ds_write_b128 v7, v[12:15] offset:128
s_mov_b64 exec, s[20:21]
s_waitcnt lgkmcnt(0)
s_barrier
v_cmp_gt_u32 vcc, 64, v0
s_and_saveexec_b64 s[20:21], vcc
s_cbranch_execz K2_end
v_lshlrev_b32 v7, 2, v0
""")
    for i in range(7): A(f"ds_read2st64_b32 {v(16+2*i,2)}, v7 offset0:{2*i} offset1:{2*i+1}")
    A(f"""
v_lshlrev_b32 v6, 4, v0
v_add_u32 v6, {28*2048}, v6
s_waitcnt lgkmcnt(0)
v_pk_add_f32 v[16:17], v[16:17], v[18:19]
v_pk_add_f32 v[20:21], v[20:21], v[22:23]
v_pk_add_f32 v[24:25], v[24:25], v[26:27]
v_pk_add_f32 v[16:17], v[16:17], v[28:29]
v_pk_add_f32 v[20:21], v[20:21], v[24:25]
v_pk_add_f32 v[16:17], v[16:17], v[20:21]
v_add_f32 v16, v16, v17               ; total
v_cvt_pk_bf16_f32 v17, v16, v16
v_and_b32 v17, 0xffff0000, v17        ; hi
v_sub_f32 v18, v16, v17
v_cvt_pk_bf16_f32 v19, v18, v18
v_and_b32 v19, 0xffff0000, v19        ; mid
v_sub_f32 v18, v18, v19               ; lo
v_cvt_pk_bf16_f32 v8, v17, v19
v_mov_b32 v10, 0
v_cvt_pk_bf16_f32 v9, v18, v10
v_mov_b32 v11, 0
global_store_dwordx4 v6, v[8:11], s[8:9]
s_endpgm
""")
    A(f"""
K2_dn:
s_cmp_ge_u32 s2, {K2_GRID}
s_cbranch_scc1 K2_end
s_load_dwordx2 s[4:5], s[0:1], 96
s_load_dwordx2 s[8:9], s[0:1], 136
s_sub_u32 s3, s2, {K2_CV + K2_GU}     ; 0..48
s_mul_i32 s10, s3, 37
s_lshr_b32 s10, s10, 8                ; /7
s_mul_i32 s11, s10, 7
s_sub_u32 s11, s3, s11                ; colgrp
v_lshrrev_b32 v1, 4, v0
v_and_b32 v2, 15, v0                  ; cql
v_lshrrev_b32 v3, 1, v1
v_and_b32 v4, 1, v1
v_lshlrev_b32 v5, 4, v3
v_lshl_add_u32 v5, v4, 2, v5
v_mul_u32_u24 v5, 896, v5
v_lshl_add_u32 v5, v2, 3, v5
s_mul_i32 s12, s10, {256*896}
s_lshl_b32 s13, s11, 7
s_add_u32 s12, s12, s13
v_add_u32 v5, s12, v5
s_waitcnt lgkmcnt(0)
""")
    for u in range(2):
        for j in range(8):
            A(f"global_load_dwordx2 {v(16+16*u+2*j,2)}, v5, s[4:5] offset:{896*(j&3)}")
            if j == 3: A(f"v_add_u32 v5, {8*896}, v5")
            if j == 7 and u == 0: A(f"v_add_u32 v5, {120*896}, v5")
    A(f"""
v_lshrrev_b32 v6, 3, v2
v_mul_u32_u24 v6, {HF_TT}, v6
v_lshl_add_u32 v6, v3, 10, v6
v_lshl_add_u32 v6, v4, 9, v6
v_and_b32 v7, 7, v2
v_lshl_add_u32 v6, v7, 6, v6
s_mul_i32 s12, s11, {2*HF_TT}
s_lshl_b32 s13, s10, 14
s_add_u32 s12, s12, s13
s_add_u32 s12, s12, {WS_WDF}
s_add_u32 s8, s8, s12
s_addc_u32 s9, s9, 0
s_mov_b32 s14, 0x05040100
s_mov_b32 s15, 0x07060302
""")
    for u in range(2):
        A(f"s_waitcnt vmcnt({8 if u == 0 else 4})")
        o = 48 + 16 * u
        for i in range(4):
            for jp in range(4):
                lo = 16 + 16 * u + 4 * jp + (i >> 1); hi = lo + 2
                A(f"v_perm_b32 v{o+4*i+jp}, v{hi}, v{lo}, s{14+(i&1)}")
        if u == 1: A(f"v_add_u32 v6, 8192, v6")
        for i in range(4): A(f"global_store_dwordx4 v6, {v(o+4*i,4)}, s[8:9] offset:{16*i}")
    A("K2_end:\ns_endpgm")
    return kdesc("conv_kernel", 248, 40)
```

```python
from common import *
K3_GRID = 224
L_ST = 4 * TB
K3_LDS = L_ST + 1024

def k3(A):
    A(f""".globl ffn1_kernel
.p2align 8
.type ffn1_kernel,@function
ffn1_kernel:
s_cmp_ge_u32 s2, {K3_GRID}
s_cbranch_scc1 K3_end
s_load_dwordx2 s[4:5], s[0:1], 136
s_and_b32 s6, s2, 3
s_lshl_b32 s6, s6, 2
s_lshr_b32 s7, s2, 3
s_and_b32 s8, s7, 3
s_add_u32 s6, s6, s8                  ; rb
s_bfe_u32 s8, s2, 0x10002
s_mul_i32 s8, s8, 7
s_lshr_b32 s7, s7, 2
s_add_u32 s7, s7, s8                  ; fb
v_lshrrev_b32 v1, 6, v0
v_and_b32 v2, 63, v0                  ; lane
v_readfirstlane_b32 s9, v1            ; w
v_lshlrev_b32 v3, 4, v2               ; lane*16
s_lshl_b32 s10, s6, 2
s_add_u32 s10, s10, s9
s_mul_i32 s11, s10, {TB}
s_add_u32 s11, s11, {WS_X1T}
s_lshl_b32 s12, s7, 2
s_add_u32 s12, s12, s9                ; ft
s_mul_i32 s13, s12, {WF_FT}
s_add_u32 s13, s13, {WS_WF + 4096}
s_mul_i32 s14, s9, {TB}
s_waitcnt lgkmcnt(0)
s_add_u32 s16, s4, s11
s_addc_u32 s17, s5, 0                 ; x source
s_add_u32 s18, s4, s13
s_addc_u32 s19, s5, 0                 ; W source (+4096)
""")
    def issue_group(g):
        A(f"s_add_u32 s15, s14, {g*4096}\ns_mov_b32 m0, s15")
        for i in range(4): A(f"global_load_lds_dwordx4 v3, s[16:17] offset:{1024*i}")
        for i in range(8): A(f"global_load_dwordx4 {a_(32*g+4*i,4)}, v3, s[18:19] offset:{1024*i-4096}")
        A("s_add_u32 s16, s16, 4096\ns_addc_u32 s17, s17, 0\ns_add_u32 s18, s18, 8192\ns_addc_u32 s19, s19, 0")
        if g == 6:
            for i in range(2): A(f"global_load_dwordx4 {a_(224+4*i,4)}, v3, s[18:19] offset:{1024*i-4096}")
    for g in range(5): issue_group(g)
    A(f"""
v_lshrrev_b32 v4, 5, v2               ; kh
v_bfe_u32 v5, v2, 2, 2                ; e
v_lshl_add_u32 v5, v4, 3, v5
v_lshlrev_b32 v5, 6, v5
v_bfe_u32 v6, v2, 4, 1                ; th
v_lshl_add_u32 v5, v6, 5, v5
v_and_b32 v6, 3, v2
v_lshl_add_u32 v5, v6, 3, v5
""")
    for i in range(4):
        A(f"s_xor_b32 s20, s9, {i}\ns_mul_i32 s21, s20, {TB}\nv_add_u32 v{8+i}, s21, v5")
        A(f"s_lshl_b32 s21, s20, 8\ns_add_u32 s21, s21, {L_ST}\nv_lshl_add_u32 v{12+i}, v2, 2, s21")
        A(f"s_mul_i32 s21, s20, {HF_TT}\nv_add_u32 v{16+i}, s21, v3")
    A(f"""
s_lshl_b32 s20, s6, 2
s_mul_i32 s20, s20, {HF_TT}
s_lshl_b32 s21, s12, 11
s_add_u32 s20, s20, s21
s_add_u32 s20, s20, {WS_HF}
s_add_u32 s22, s4, s20
s_addc_u32 s23, s5, 0
s_lshl_b32 s20, s10, 7
s_add_u32 s20, s20, {WS_R2}
s_add_u32 s24, s4, s20
s_addc_u32 s25, s5, 0                 ; R2 + tile*128
s_mov_b32 s26, {ONES}
v_mov_b32 v20, 0
v_mov_b32 v21, 0
v_mov_b32 v22, 0
v_mov_b32 v23, 0
""")
    XF = [24, 40]
    ACC = 56
    def reads(s):
        out = []
        for i in range(4):
            for h in range(2):
                out.append(f"ds_read_b64_tr_b16 {v(XF[s&1]+4*i+2*h,2)}, v{8+i} offset:{1024*s+256*h}")
        return out
    def wait_group(g):
        issued_groups = min(g + 4, 6)
        n = 12 * (issued_groups - g) + (2 if issued_groups == 6 else 0)
        if g == 6: n = 2
        A(f"s_waitcnt vmcnt({n})\ns_barrier")
    wait_group(0)
    for r in reads(0): A(r)
    for s in range(28):
        g = s // 4
        fill = []
        A("s_waitcnt lgkmcnt(0)")
        mf = []
        for i in range(4):
            for mat in range(2):
                t = ACC + 16 * (4 * mat + i)
                mf.append(f"v_mfma_f32_32x32x16_bf16 {v(t,16)}, {a_(8*s+4*mat,4)}, {v(XF[s&1]+4*i,4)}, {'0' if s == 0 else v(t,16)}")
        dots = []
        for j in range(4):
            x = XF[s & 1] + j
            dots.append(f"v_dot2_f32_bf16 v{20+(j&1)}, v{x}, s26, v{20+(j&1)}")
            dots.append(f"v_dot2_f32_bf16 v{22+(j&1)}, v{x}, v{x}, v{22+(j&1)}")
        nxt = reads(s + 1) if s < 27 else []
        A(mf[0])
        if s % 4 == 0 and g + 5 <= 6: issue_group(g + 5)
        if s % 4 == 3 and s < 27: wait_group(g + 1)
        for k in range(1, 8):
            if nxt: A(nxt.pop(0))
            if nxt and k < 3: A(nxt.pop(0))
            A(dots.pop(0))
            A(mf[k])
        A(dots.pop(0))
        assert not nxt and not dots
    A(f"""
v_add_f32 v20, v20, v21
v_add_f32 v22, v22, v23
v_mov_b32 v21, v20
v_mov_b32 v23, v22
v_permlane32_swap_b32 v20, v21
v_permlane32_swap_b32 v22, v23
v_add_f32 v20, v20, v21
v_add_f32 v22, v22, v23
v_mul_f32 v20, {hex(INV448)}, v20     ; mean
v_mul_f32 v22, {hex(INV448)}, v22
v_fma_f32 v22, -v20, v20, v22
v_max_f32 v22, 0, v22                 ; var
v_cvt_pk_bf16_f32 v22, v22, v22
v_and_b32 v22, 0xffff0000, v22
v_add_f32 v22, {hex(EPS)}, v22
v_cvt_pk_bf16_f32 v22, v22, v22
v_and_b32 v22, 0xffff0000, v22
v_sqrt_f32 v22, v22
v_cvt_pk_bf16_f32 v20, -v20, -v20
v_cmp_gt_u32 vcc, 32, v2
v_cvt_pk_bf16_f32 v22, v22, v22
v_cndmask_b32 v21, v22, v20, vcc
ds_write_b32 v12, v21
v_and_b32 v22, 0xffff0000, v22
v_mul_f32 v22, v22, v22
v_rcp_f32 v22, v22
v_and_b32 v23, 31, v2
v_lshlrev_b32 v23, 2, v23
s_waitcnt lgkmcnt(0)
s_barrier
""")
    for i in range(4): A(f"ds_read2_b32 {v(XF[1]+4*i,2)}, v{12+i} offset0:0 offset1:0")
    A("global_store_dword v23, v22, s[24:25]")
    A("s_waitcnt vmcnt(1)")
    for i in range(4):
        A(f"s_waitcnt lgkmcnt({3-i})")
        for mat in range(2):
            t = ACC + 16 * (4 * mat + i)
            A(f"v_mfma_f32_32x32x16_bf16 {v(t,16)}, {a_(224+4*mat,4)}, {v(XF[1]+4*i,4)}, {v(t,16)}")
    for i in range(4):
        G = ACC + 16 * i; U = ACC + 16 * (4 + i)
        for r in range(16): A(f"v_max_f32 v{G+r}, 0, v{G+r}")
        for r in range(0, 16, 2): A(f"v_pk_mul_f32 {v(G+r,2)}, {v(G+r,2)}, {v(U+r,2)}")
        for r in range(0, 16, 2): A(f"v_cvt_pk_bf16_f32 v{U+r//2}, v{G+r}, v{G+r+1}")
        A(f"global_store_dwordx4 v{16+i}, {v(U,4)}, s[22:23]")
        A(f"global_store_dwordx4 v{16+i}, {v(U+4,4)}, s[22:23] offset:1024")
    A("K3_end:\ns_endpgm")
    return kdesc("ffn1_kernel", 184 + 232, 32, accum=184)
```

```python
from common import *
K4_GRID = 224
K4_LDS = 12 * 4096
RING = 10

def k4(A):
    A(f""".globl ffn2_kernel
.p2align 8
.type ffn2_kernel,@function
ffn2_kernel:
s_cmp_ge_u32 s2, {K4_GRID}
s_cbranch_scc1 K4_end
s_load_dwordx2 s[4:5], s[0:1], 136
s_load_dwordx2 s[6:7], s[0:1], 120
s_and_b32 s8, s2, 3
s_lshl_b32 s8, s8, 3
s_and_b32 s9, s2, 4
s_add_u32 s8, s8, s9
s_lshr_b32 s9, s2, 3
s_and_b32 s10, s9, 3
s_add_u32 s8, s8, s10                 ; tb64
s_lshr_b32 s9, s9, 2                  ; db
v_lshrrev_b32 v1, 6, v0
v_and_b32 v2, 63, v0
v_readfirstlane_b32 s10, v1           ; w
v_lshlrev_b32 v3, 4, v2               ; lane*16
s_lshr_b32 s11, s10, 1                ; wa (d)
s_and_b32 s12, s10, 1                 ; wb (t)
s_lshl_b32 s13, s9, 1
s_add_u32 s13, s13, s11
s_lshl_b32 s14, s8, 1
s_add_u32 s14, s14, s12
s_mul_i32 s15, s10, {28*1024}
s_add_u32 s15, s15, 4096
s_waitcnt lgkmcnt(0)
""")
    for i, (base, reg) in enumerate(((WS_WDF, 13), (WS_WDF, 13), (WS_HF, 14), (WS_HF, 14))):
        A(f"s_xor_b32 s24, s{reg}, {i&1}\ns_mul_i32 s24, s24, {HF_TT}\ns_add_u32 s24, s24, s15\ns_add_u32 s24, s24, {base}")
        A(f"s_add_u32 s{16+2*i}, s4, s24\ns_addc_u32 s{17+2*i}, s5, 0")
    def issue(s):
        slot = s % RING
        if s and s % 8 == 0: A("v_add_u32 v3, 8192, v3")
        for i in range(4): A(f"global_load_dwordx4 {a_(16*slot+4*i,4)}, v3, s[{16+2*i}:{17+2*i}] offset:{1024*(s%8)-4096}")
    for s in range(RING): issue(s)
    A(f"""
v_and_b32 v4, 31, v2                  ; t
v_lshrrev_b32 v5, 5, v2               ; half
v_lshlrev_b32 v6, 1, v4
v_lshl_add_u32 v6, v5, 8, v6          ; half*4*64 + t*2
s_mul_i32 s24, s14, {TB}
s_lshl_b32 s25, s13, 11
s_add_u32 s24, s24, s25
s_add_u32 s24, s24, {WS_X1T}
s_add_u32 s26, s4, s24
s_addc_u32 s27, s5, 0
s_lshl_b32 s24, s13, 7
s_add_u32 s24, s24, {WS_MOD + 5*448*4}
s_add_u32 s28, s4, s24
s_addc_u32 s29, s5, 0
s_lshl_b32 s24, s14, 7
s_add_u32 s24, s24, {WS_R2}
s_add_u32 s30, s4, s24
s_addc_u32 s31, s5, 0
v_lshlrev_b32 v7, 4, v5
v_lshlrev_b32 v8, 2, v4
""")
    X1, GB, R2 = 16, 32, 10
    for r in range(16): A(f"v_mov_b32 v{X1+r}, 0")
    for r in range(16): A(f"global_load_short_d16_hi v{X1+r}, v6, s[26:27] offset:{((r&3)+8*(r>>2))*64}")
    for q in range(4): A(f"global_load_dwordx4 {v(GB+4*q,4)}, v7, s[28:29] offset:{32*q}")
    A(f"global_load_dword v{R2}, v8, s[30:31]")
    NEP = 21
    A(f"""
v_mul_u32_u24 v9, 896, v4
v_lshl_add_u32 v9, v5, 3, v9
s_mul_i32 s24, s14, {32*896}
s_lshl_b32 s25, s13, 6
s_add_u32 s24, s24, s25
s_add_u32 s6, s6, s24
s_addc_u32 s7, s7, 0
v_lshlrev_b32 v11, 4, v2
""")
    for i in range(1, 4):
        A(f"s_xor_b32 s24, s10, {i}\ns_mul_i32 s24, s24, 12288\ns_add_u32 s24, s24, {(i-1)*4096}\nv_add_u32 v{11+i}, s24, v11")
    A("s_mul_i32 s24, s10, 12288\nv_add_u32 v11, s24, v11")
    ACC = 48
    for s in range(28):
        slot = s % RING
        later = 4 * (min(s + RING, 28) - 1 - s) + (NEP if s < RING else 0)
        A(f"s_waitcnt vmcnt({later})")
        for ia in range(2):
            for ib in range(2):
                t = ACC + 16 * (2 * ia + ib)
                A(f"v_mfma_f32_32x32x16_bf16 {v(t,16)}, {a_(16*slot+4*ia,4)}, {a_(16*slot+8+4*ib,4)}, {'0' if s == 0 else v(t,16)}")
        if s + RING < 28: issue(s + RING)
    for i in (1, 2, 3):
        for q in range(4): A(f"ds_write_b128 v{11+i}, {v(ACC+16*i+4*q,4)} offset:{1024*q}")
    A("s_waitcnt lgkmcnt(0)\ns_barrier")
    for i in range(3):
        for q in range(4): A(f"ds_read_b128 {v(ACC+16+16*i+4*q,4)}, v11 offset:{4096*i+1024*q}")
    for i in range(3):
        A(f"s_waitcnt lgkmcnt({8-4*i})")
        for r in range(0, 16, 2): A(f"v_pk_add_f32 {v(ACC+r,2)}, {v(ACC+r,2)}, {v(ACC+16+16*i+r,2)}")
    T = ACC + 16
    def rnd():
        for j in range(8): A(f"v_cvt_pk_bf16_f32 v{T+j}, v{ACC+2*j}, v{ACC+2*j+1}")
        for j in range(8): A(f"v_lshlrev_b32 v{ACC+2*j}, 16, v{T+j}\nv_and_b32 v{ACC+2*j+1}, 0xffff0000, v{T+j}")
    for r in range(0, 16, 2): A(f"v_pk_mul_f32 {v(ACC+r,2)}, {v(ACC+r,2)}, {v(R2,2)} op_sel_hi:[1,0]")
    rnd()
    for r in range(0, 16, 2): A(f"v_pk_mul_f32 {v(ACC+r,2)}, {v(ACC+r,2)}, {v(GB+r,2)}")
    rnd()
    for r in range(0, 16, 2): A(f"v_pk_add_f32 {v(ACC+r,2)}, {v(ACC+r,2)}, {v(X1+r,2)}")
    for j in range(8): A(f"v_cvt_pk_bf16_f32 v{T+j}, v{ACC+2*j}, v{ACC+2*j+1}")
    for q in range(4): A(f"global_store_dwordx2 v9, {v(T+2*q,2)}, s[6:7] offset:{16*q}")
    A("K4_end:\ns_endpgm")
    return kdesc("ffn2_kernel", 112 + 16 * RING, 32, accum=112)
```

```python
import sys
from common import *
from k1 import *
from k2 import *
from k3 import *
from k4 import *


def main():
    A = Asm()
    which = sys.argv[2] if len(sys.argv) > 2 else "1234"
    hdr = []
    descs = []
    A('.amdgcn_target "amdgcn-amd-amdhsa--gfx950"\n.text')
    if '1' in which:
        hdr.append(f"; @launch kernel=prep_kernel grid=({K1_GRID},1,1) block=(256,1,1) lds={K1_LDS}"); descs.append(k1(A))
    if '2' in which:
        hdr.append(f"; @launch kernel=conv_kernel grid=({K2_GRID},1,1) block=(256,1,1) lds={K2_LDS}"); descs.append(k2(A))
    if '3' in which:
        hdr.append(f"; @launch kernel=ffn1_kernel grid=({K3_GRID},1,1) block=(256,1,1) lds={K3_LDS}"); descs.append(k3(A))
    if '4' in which:
        hdr.append(f"; @launch kernel=ffn2_kernel grid=({K4_GRID},1,1) block=(256,1,1) lds={K4_LDS}"); descs.append(k4(A))
    txt = "; generated by dev/gen.py (hand-written generator); see comments there\n" + "\n".join(hdr) + "\n" + A.text() + '.section .rodata,"a"\n' + "".join(descs)
    open(sys.argv[1], "w").write(txt)

if __name__ == "__main__":
    main()
```

```python
import sys
from common import *
from k1 import *
from k2 import *
from k3 import *
from k4 import *

def ke(A):
    A(""".globl empty_kernel
.p2align 8
.type empty_kernel,@function
empty_kernel:
s_endpgm""")
    return kdesc("empty_kernel", 8, 16)

KS = {'1': ("prep_kernel", K1_GRID, K1_LDS, k1), '2': ("conv_kernel", K2_GRID, K2_LDS, k2),
      '3': ("ffn1_kernel", K3_GRID, K3_LDS, k3), '4': ("ffn2_kernel", K4_GRID, K4_LDS, k4),
      'e': ("empty_kernel", 1, 0, ke)}

def main():
    A = Asm()
    which = sys.argv[2] if len(sys.argv) > 2 else "1234"
    hdr = []
    descs = []
    A('.amdgcn_target "amdgcn-amd-amdhsa--gfx950"\n.text')
    seen = set()
    for ch in which:
        name, grid, lds, fn = KS[ch]
        hdr.append(f"; @launch kernel={name} grid=({grid},1,1) block=(256,1,1) lds={lds}")
        if ch not in seen: descs.append(fn(A)); seen.add(ch)
    txt = "; generated by dev/gen.py (hand-written generator); see comments there\n" + "\n".join(hdr) + "\n" + A.text() + '.section .rodata,"a"\n' + "".join(descs)
    open(sys.argv[1], "w").write(txt)

if __name__ == "__main__":
    main()
```

```python
from common import *
K2_CV, K2_GU, K2_DN = 224, 112, 49
K2_GRID = K2_CV + K2_GU + K2_DN
KC = 4160
L_K = 0
L_H = 4 * KC
HS = 4608
L_Y = L_H + 2 * HS
YW = 10240
K2_LDS = L_Y + 4 * YW

def k2(A):
    A(f""".globl conv_kernel
.p2align 8
.type conv_kernel,@function
conv_kernel:
s_cmp_ge_u32 s2, {K2_CV}
s_cbranch_scc1 K2_other
s_load_dwordx2 s[4:5], s[0:1], 136
s_load_dwordx2 s[6:7], s[0:1], 64     ; Dskip
v_lshrrev_b32 v1, 2, v0
v_mul_u32_u24 v1, {TB}, v1
v_and_b32 v2, 3, v0
v_lshl_add_u32 v1, v2, 4, v1
s_lshl_b32 s3, s2, 7
v_add_u32 v1, s3, v1
v_lshlrev_b32 v2, 4, v0               ; tid*16
v_lshlrev_b32 v3, 5, v0               ; tid*32
s_lshl_b32 s8, s2, 13
s_add_u32 s8, s8, {WS_KG}
s_lshl_b32 s9, s2, 3
s_add_u32 s9, s9, {WS_MOD}
s_lshl_b32 s10, s2, 2
s_waitcnt lgkmcnt(0)
s_add_u32 s12, s4, s8
s_addc_u32 s13, s5, 0                 ; KG + d0*4096
s_add_u32 s14, s4, {WS_STM}
s_addc_u32 s15, s5, 0
s_add_u32 s16, s4, s9
s_addc_u32 s17, s5, 0                 ; MOD + d0*4
s_add_u32 s6, s6, s10
s_addc_u32 s7, s7, 0
global_load_dwordx4 v[8:11], v1, s[4:5]
global_load_dwordx4 v[12:15], v1, s[4:5] offset:64
global_load_dwordx4 v[16:19], v3, s[14:15]
global_load_dwordx4 v[20:23], v3, s[14:15] offset:16
v_add_u32 v4, {WS_STR - WS_STM}, v3
global_load_dwordx4 v[24:27], v4, s[14:15]
global_load_dwordx4 v[28:31], v4, s[14:15] offset:16
v_add_u32 v4, 4096, v2
global_load_dwordx4 v[32:35], v2, s[12:13]
global_load_dword v36, v2, s[12:13] offset:16
global_load_dwordx4 v[40:43], v4, s[12:13]
global_load_dword v44, v4, s[12:13] offset:16
s_load_dwordx2 s[20:21], s[16:17], 0        ; sa
s_load_dwordx2 s[22:23], s[16:17], {448*4}  ; ca
s_load_dwordx2 s[24:25], s[16:17], {896*4}  ; ga
s_load_dword s26, s[6:7], 0
s_add_u32 s18, s4, {WS_X1T}
s_addc_u32 s19, s5, 0
v_mov_b32 v48, 0
v_mov_b32 v49, 0
v_mov_b32 v50, 0
v_mov_b32 v51, 0
v_lshrrev_b32 v5, 5, v0
v_mul_u32_u24 v5, {HS}, v5
v_and_b32 v6, 31, v0
v_lshl_add_u32 v5, v6, 4, v5
v_add_u32 v5, {L_H}, v5
v_bfe_u32 v6, v0, 1, 2
v_mul_u32_u24 v6, {KC}, v6
v_and_b32 v7, 1, v0
v_lshl_add_u32 v6, v7, 4, v6
v_add_u32 v6, 4096, v6
v_cmp_gt_u32 vcc, 64, v0
v_cndmask_b32 v5, v6, v5, vcc
ds_write_b128 v5, v[48:51]
v_lshrrev_b32 v5, 6, v0               ; w
v_and_b32 v6, 15, v0                  ; m / p
v_bfe_u32 v7, v0, 4, 2                ; kq
v_readfirstlane_b32 s27, v5
s_lshr_b32 s28, s27, 1                ; ch
s_and_b32 s29, s27, 1                 ; half
v_and_b32 v52, 1, v6
v_xor_b32 v52, 1, v52
v_mul_u32_u24 v52, {KC}, v52
v_lshrrev_b32 v53, 1, v6
v_lshlrev_b32 v53, 2, v53
v_sub_u32 v52, v52, v53
v_lshl_add_u32 v52, v7, 4, v52
s_mul_i32 s30, s28, {2*KC}
s_lshl_b32 s31, s29, 8
s_sub_u32 s30, s30, s31
s_add_u32 s30, s30, {L_K + 4060 - 192 - 512}
v_add_u32 v52, s30, v52
v_subrev_u32 v53, 1024, v52
v_subrev_u32 v54, 2048, v52
v_subrev_u32 v55, 3072, v52
v_lshlrev_b32 v56, 5, v6
v_lshl_add_u32 v56, v7, 4, v56
s_mul_i32 s30, s28, {HS}
s_sub_u32 s30, s30, s31
s_add_u32 s30, s30, {L_H + 480 - 192}
v_add_u32 v56, s30, v56
v_mul_u32_u24 v57, 320, v7
v_lshl_add_u32 v57, v6, 4, v57
s_mul_i32 s30, s27, {YW}
s_add_u32 s30, s30, {L_Y}
v_add_u32 v57, s30, v57
v_lshrrev_b32 v58, 5, v0
v_mul_u32_u24 v58, 1280, v58
v_and_b32 v59, 1, v0
v_mul_u32_u24 v59, 640, v59
v_add_u32 v58, v58, v59
v_bfe_u32 v59, v0, 1, 4
v_lshl_add_u32 v58, v59, 4, v58
v_add_u32 v58, {L_Y}, v58
v_cmp_eq_u32 vcc, 255, v0
s_waitcnt lgkmcnt(0)
v_add_f32 v60, 1.0, s22
v_add_f32 v61, 1.0, s23
v_cvt_pk_bf16_f32 v60, v60, v61
v_and_b32 v62, 0xffff0000, v60
v_lshlrev_b32 v60, 16, v60
v_mov_b32 v64, s20
v_mov_b32 v66, s21
s_waitcnt vmcnt(4)
""")
    for ch in range(2):
        for j in range(4):
            t = 80 + 2 * j
            A(f"v_lshlrev_b32 v{t}, 16, v{8+4*ch+j}\nv_and_b32 v{t+1}, 0xffff0000, v{8+4*ch+j}")
        for j in range(4): A(f"v_pk_add_f32 {v(80+2*j,2)}, {v(80+2*j,2)}, {v(16+2*j,2)} neg_lo:[0,1] neg_hi:[0,1]")
        for j in range(4): A(f"v_pk_mul_f32 {v(80+2*j,2)}, {v(80+2*j,2)}, {v(24+2*j,2)}")
        for j in range(4): A(f"v_pk_fma_f32 {v(80+2*j,2)}, {v(80+2*j,2)}, {v(60+2*ch,2)}, {v(64+2*ch,2)} op_sel_hi:[1,0,0]")
        for j in range(4): A(f"v_cvt_pk_bf16_f32 v{68+4*ch+j}, v{80+2*j}, v{81+2*j}")
        A(f"ds_write_b128 v2, {v(68+4*ch,4)} offset:{L_H + ch*HS + 512}")
    for ch in range(2):
        b = 32 + 8 * ch
        A(f"s_waitcnt vmcnt({2-2*ch})")
        A(f"v_cndmask_b32 v{b+4}, v{b+4}, v48, vcc")
        A(f"ds_write_b128 v2, {v(b,4)} offset:{L_K + ch*2*KC}")
        for j in range(4): A(f"v_alignbit_b32 v{80+4*ch+j}, v{b+j+1}, v{b+j}, 16")
        A(f"ds_write_b128 v2, {v(80+4*ch,4)} offset:{L_K + ch*2*KC + KC}")
    A("s_waitcnt lgkmcnt(0)\ns_barrier")
    ACC = 88
    FB = [120, 184]
    def reads(s, buf):
        out = []
        base = FB[buf]
        for c in range(8): out.append(f"ds_read_b128 {v(base+32+4*c,4)}, v56 offset:{512*c + 192 - 64*s}")
        for G in range(8):
            o = (512 * (1 - (G & 1)) + 192 - 64 * s) // 4
            out.append(f"ds_read2_b32 {v(base+4*G,2)}, v{52+G//2} offset0:{o} offset1:{o+1}")
            out.append(f"ds_read2_b32 {v(base+4*G+2,2)}, v{52+G//2} offset0:{o+2} offset1:{o+3}")
        return out
    for r in reads(0, 0): A(r)
    for s in range(4):
        base = FB[s & 1]
        nxt = reads(s + 1, (s + 1) & 1) if s < 3 else []
        if s > 0: A("s_waitcnt lgkmcnt(0)")
        n = 0
        for G in range(8):
            if s == 0: A(f"s_waitcnt lgkmcnt({min(15, 14 - 2*G + 0)})") if G == 0 else None
            if s == 0 and G == 1: A("s_waitcnt lgkmcnt(0)")
            for c in range(G, 8):
                first = (s == 0 and G == 0)
                A(f"v_mfma_f32_16x16x32_bf16 {v(ACC+4*c,4)}, {v(base+4*G,4)}, {v(base+32+4*(c-G),4)}, {'0' if first else v(ACC+4*c,4)}")
                if nxt and not (s == 0 and G == 0): A(nxt.pop(0))
        assert not nxt
    for c in range(8): A(f"ds_write_b128 v57, {v(ACC+4*c,4)} offset:{1280*c}")
    A("""
s_lshl_b32 s30, s26, 16
s_and_b32 s31, s26, 0xffff0000
""")
    U = 120
    for ch in range(2):
        for j in range(4):
            t = U + 8 * ch + 2 * j
            A(f"v_lshlrev_b32 v{t}, 16, v{68+4*ch+j}\nv_and_b32 v{t+1}, 0xffff0000, v{68+4*ch+j}")
        for j in range(8): A(f"v_mul_f32 v{U+8*ch+j}, s{30+ch}, v{U+8*ch+j}")
        for j in range(4): A(f"v_cvt_pk_bf16_f32 v{68+4*ch+j}, v{U+8*ch+2*j}, v{U+8*ch+2*j+1}")
        for j in range(4):
            t = U + 8 * ch + 2 * j
            A(f"v_lshlrev_b32 v{t}, 16, v{68+4*ch+j}\nv_and_b32 v{t+1}, 0xffff0000, v{68+4*ch+j}")
    A("s_waitcnt lgkmcnt(0)\ns_barrier")
    YR = 136
    for ch in range(2):
        for hf in range(2):
            for q in range(2):
                A(f"ds_read_b128 {v(YR+16*ch+8*hf+4*q,4)}, v58 offset:{(2*ch+hf)*YW + 320*q}")
    XU = 168
    for ch in range(2):
        for j in range(4):
            t = XU + 8 * ch + 2 * j
            A(f"v_lshlrev_b32 v{t}, 16, v{8+4*ch+j}\nv_and_b32 v{t+1}, 0xffff0000, v{8+4*ch+j}")
    def rnd(b, tmp):
        for j in range(4): A(f"v_cvt_pk_bf16_f32 v{tmp+j}, v{b+2*j}, v{b+2*j+1}")
        for j in range(4): A(f"v_lshlrev_b32 v{b+2*j}, 16, v{tmp+j}\nv_and_b32 v{b+2*j+1}, 0xffff0000, v{tmp+j}")
    for ch in range(2):
        y = YR + 16 * ch
        A(f"s_waitcnt lgkmcnt({4-4*ch})")
        for j in range(4): A(f"v_pk_add_f32 {v(y+2*j,2)}, {v(y+2*j,2)}, {v(y+8+2*j,2)}")
        rnd(y, 80)
        for j in range(4): A(f"v_pk_add_f32 {v(y+2*j,2)}, {v(y+2*j,2)}, {v(U+8*ch+2*j,2)}")
        rnd(y, 80)
        for j in range(8): A(f"v_mul_f32 v{y+j}, s{24+ch}, v{y+j}")
        rnd(y, 80)
        for j in range(4): A(f"v_pk_add_f32 {v(y+2*j,2)}, {v(y+2*j,2)}, {v(XU+8*ch+2*j,2)}")
        for j in range(4): A(f"v_cvt_pk_bf16_f32 v{68+4*ch+j}, v{y+2*j}, v{y+2*j+1}")
        A(f"global_store_dwordx4 v1, {v(68+4*ch,4)}, s[18:19] offset:{64*ch}")
    A("s_endpgm")

    A(f"""
K2_other:
s_cmp_ge_u32 s2, {K2_CV + K2_GU}
s_cbranch_scc1 K2_dn
s_load_dwordx4 s[4:7], s[0:1], 80
s_load_dwordx2 s[8:9], s[0:1], 136
s_sub_u32 s3, s2, {K2_CV}
s_and_b32 s10, s3, 7
s_lshr_b32 s11, s3, 3                 ; 0..13
s_and_b32 s12, s11, 1
s_lshr_b32 s11, s11, 1                ; 0..6
s_lshl_b32 s11, s11, 3
s_add_u32 s11, s11, s10
s_and_b32 s13, s11, 1                 ; mat
s_and_b32 s11, s11, 0xfe
s_add_u32 s11, s11, s12               ; ft
v_cmp_gt_u32 vcc, 224, v0
v_min_u32 v1, 223, v0
v_lshrrev_b32 v2, 3, v1               ; rgrp (0..27)
v_and_b32 v3, 7, v1                   ; cq
v_mul_u32_u24 v4, {8*3584}, v2
v_lshl_add_u32 v4, v3, 3, v4
s_lshl_b32 s14, s11, 6
v_add_u32 v4, s14, v4                 ; W off
v_lshlrev_b32 v5, 5, v2
s_waitcnt lgkmcnt(0)
s_cmp_eq_u32 s13, 0
s_cselect_b32 s4, s4, s6
s_cselect_b32 s5, s5, s7
s_add_u32 s16, s8, {WS_MOD + 3*448*4}
s_addc_u32 s17, s9, 0
""")
    WL = [16, 48]
    SB = [80, 96]; CB = [88, 104]
    for u in range(2):
        A(f"global_load_dwordx4 {v(SB[u],4)}, v5, s[16:17] offset:{u*896}")
        A(f"global_load_dwordx4 {v(SB[u]+4,4)}, v5, s[16:17] offset:{u*896+16}")
        A(f"global_load_dwordx4 {v(CB[u],4)}, v5, s[16:17] offset:{u*896+1792}")
        A(f"global_load_dwordx4 {v(CB[u]+4,4)}, v5, s[16:17] offset:{u*896+1792+16}")
    for u in range(2):
        for j in range(8):
            A(f"global_load_dwordx2 {v(WL[u]+2*j,2)}, v4, s[4:5]" + (" offset:3584" if j & 1 else ""))
            if j & 1 and not (u == 1 and j == 7): A(f"v_add_u32 v4, {7168 if j < 7 else 7168 + 27*8*3584}, v4")
    A(f"""
s_mul_i32 s14, s11, {WF_FT}
s_lshl_b32 s15, s13, 10
s_add_u32 s14, s14, s15
s_add_u32 s14, s14, {WS_WF}
s_add_u32 s8, s8, s14
s_addc_u32 s9, s9, 0
v_lshrrev_b32 v6, 1, v2
v_lshlrev_b32 v6, 11, v6
v_and_b32 v7, 1, v2
v_lshl_add_u32 v6, v7, 9, v6
v_lshl_add_u32 v6, v3, 6, v6
s_mov_b32 s18, {ONES}
s_and_saveexec_b64 s[20:21], vcc
s_waitcnt vmcnt(16)
""")
    for u in range(2):
        for j in range(8): A(f"v_add_f32 v{CB[u]+j}, 1.0, v{CB[u]+j}")
        for j in range(4): A(f"v_cvt_pk_bf16_f32 v{112+j}, v{CB[u]+2*j}, v{CB[u]+2*j+1}")
        for j in range(4): A(f"v_lshlrev_b32 v{CB[u]+2*j}, 16, v{112+j}\nv_and_b32 v{CB[u]+2*j+1}, 0xffff0000, v{112+j}")
    US, VS = 8, 12
    for j in range(8): A(f"v_mov_b32 v{8+j}, 0")
    UN = 112
    OUT = 144
    for u in range(2):
        A(f"s_waitcnt vmcnt({8 if u == 0 else 4})")
        for j in range(8):
            for h in range(2):
                t = UN + 4 * j + 2 * h
                A(f"v_lshlrev_b32 v{t}, 16, v{WL[u]+2*j+h}\nv_and_b32 v{t+1}, 0xffff0000, v{WL[u]+2*j+h}")
        for j in range(8):
            sel = "op_sel:[1,0,0] op_sel_hi:[1,1,1]" if j & 1 else "op_sel_hi:[0,1,1]"
            for h in range(2):
                A(f"v_pk_fma_f32 {v(VS+2*h,2)}, {v(SB[u]+(j&~1),2)}, {v(UN+4*j+2*h,2)}, {v(VS+2*h,2)} {sel}")
        for j in range(8):
            sel = "op_sel:[1,0] op_sel_hi:[1,1]" if j & 1 else "op_sel_hi:[0,1]"
            for h in range(2):
                A(f"v_pk_mul_f32 {v(UN+4*j+2*h,2)}, {v(CB[u]+(j&~1),2)}, {v(UN+4*j+2*h,2)} {sel}")
        o = OUT + 16 * u
        for i in range(4):
            for jp in range(4): A(f"v_cvt_pk_bf16_f32 v{o+4*i+jp}, v{UN+8*jp+i}, v{UN+8*jp+4+i}")
        if u == 1: A(f"v_add_u32 v6, {14*2048}, v6")
        for i in range(4): A(f"global_store_dwordx4 v6, {v(o+4*i,4)}, s[8:9] offset:{16*i}")
        for jp in range(4):
            for i in range(4): A(f"v_dot2_f32_bf16 v{US+i}, v{o+4*i+jp}, s18, v{US+i}")
    for j in range(8): A(f"v_add_f32_dpp v{8+j}, v{8+j}, v{8+j} row_ror:8 row_mask:0xf bank_mask:0xf")
    A(f"""
v_lshrrev_b32 v7, 4, v0
v_lshlrev_b32 v7, 8, v7
v_lshl_add_u32 v7, v3, 4, v7
ds_write_b128 v7, v[8:11]
ds_write_b128 v7, v[12:15] offset:128
s_mov_b64 exec, s[20:21]
s_waitcnt lgkmcnt(0)
s_barrier
v_cmp_gt_u32 vcc, 64, v0
s_and_saveexec_b64 s[20:21], vcc
s_cbranch_execz K2_end
v_lshlrev_b32 v7, 2, v0
""")
    for i in range(7): A(f"ds_read2st64_b32 {v(16+2*i,2)}, v7 offset0:{2*i} offset1:{2*i+1}")
    A(f"""
v_lshlrev_b32 v6, 4, v0
v_add_u32 v6, {28*2048}, v6
s_waitcnt lgkmcnt(0)
v_pk_add_f32 v[16:17], v[16:17], v[18:19]
v_pk_add_f32 v[20:21], v[20:21], v[22:23]
v_pk_add_f32 v[24:25], v[24:25], v[26:27]
v_pk_add_f32 v[16:17], v[16:17], v[28:29]
v_pk_add_f32 v[20:21], v[20:21], v[24:25]
v_pk_add_f32 v[16:17], v[16:17], v[20:21]
v_add_f32 v16, v16, v17               ; total
v_cvt_pk_bf16_f32 v17, v16, v16
v_and_b32 v17, 0xffff0000, v17        ; hi
v_sub_f32 v18, v16, v17
v_cvt_pk_bf16_f32 v19, v18, v18
v_and_b32 v19, 0xffff0000, v19        ; mid
v_sub_f32 v18, v18, v19               ; lo
v_cvt_pk_bf16_f32 v8, v17, v19
v_mov_b32 v10, 0
v_cvt_pk_bf16_f32 v9, v18, v10
v_mov_b32 v11, 0
global_store_dwordx4 v6, v[8:11], s[8:9]
s_endpgm
""")
    A(f"""
K2_dn:
s_cmp_ge_u32 s2, {K2_GRID}
s_cbranch_scc1 K2_end
s_load_dwordx2 s[4:5], s[0:1], 96
s_load_dwordx2 s[8:9], s[0:1], 136
s_sub_u32 s3, s2, {K2_CV + K2_GU}     ; 0..48
s_mul_i32 s10, s3, 37
s_lshr_b32 s10, s10, 8                ; /7
s_mul_i32 s11, s10, 7
s_sub_u32 s11, s3, s11                ; colgrp
v_lshrrev_b32 v1, 4, v0
v_and_b32 v2, 15, v0                  ; cql
v_lshrrev_b32 v3, 1, v1
v_and_b32 v4, 1, v1
v_lshlrev_b32 v5, 4, v3
v_lshl_add_u32 v5, v4, 2, v5
v_mul_u32_u24 v5, 896, v5
v_lshl_add_u32 v5, v2, 3, v5
s_mul_i32 s12, s10, {256*896}
s_lshl_b32 s13, s11, 7
s_add_u32 s12, s12, s13
v_add_u32 v5, s12, v5
s_waitcnt lgkmcnt(0)
""")
    for u in range(2):
        for j in range(8):
            A(f"global_load_dwordx2 {v(16+16*u+2*j,2)}, v5, s[4:5] offset:{896*(j&3)}")
            if j == 3: A(f"v_add_u32 v5, {8*896}, v5")
            if j == 7 and u == 0: A(f"v_add_u32 v5, {120*896}, v5")
    A(f"""
v_lshrrev_b32 v6, 3, v2
v_mul_u32_u24 v6, {HF_TT}, v6
v_lshl_add_u32 v6, v3, 10, v6
v_lshl_add_u32 v6, v4, 9, v6
v_and_b32 v7, 7, v2
v_lshl_add_u32 v6, v7, 6, v6
s_mul_i32 s12, s11, {2*HF_TT}
s_lshl_b32 s13, s10, 14
s_add_u32 s12, s12, s13
s_add_u32 s12, s12, {WS_WDF}
s_add_u32 s8, s8, s12
s_addc_u32 s9, s9, 0
s_mov_b32 s14, 0x05040100
s_mov_b32 s15, 0x07060302
""")
    for u in range(2):
        A(f"s_waitcnt vmcnt({8 if u == 0 else 4})")
        o = 48 + 16 * u
        for i in range(4):
            for jp in range(4):
                lo = 16 + 16 * u + 4 * jp + (i >> 1); hi = lo + 2
                A(f"v_perm_b32 v{o+4*i+jp}, v{hi}, v{lo}, s{14+(i&1)}")
        if u == 1: A(f"v_add_u32 v6, 8192, v6")
        for i in range(4): A(f"global_store_dwordx4 v6, {v(o+4*i,4)}, s[8:9] offset:{16*i}")
    A("K2_end:\ns_endpgm")
    return kdesc("conv_kernel", 248, 40)
```

```python
import sys, os
import re
from common import *
from k1 import *
from k2 import *
from k3 import *
from k4 import *

def ke(A):
    A(""".globl empty_kernel
.p2align 8
.type empty_kernel,@function
empty_kernel:
s_endpgm""")
    return kdesc("empty_kernel", 8, 16)

KS = {'1': ("prep_kernel", K1_GRID, K1_LDS, k1), '2': ("conv_kernel", K2_GRID, K2_LDS, k2),
      '3': ("ffn1_kernel", K3_GRID, K3_LDS, k3), '4': ("ffn2_kernel", K4_GRID, K4_LDS, k4),
      'e': ("empty_kernel", 1, 0, ke)}

WS_TS = 0x2000000
def add_stamps(A, names):
    out = []
    for ln in A.lines:
        t = ln.strip()
        if t[:-1] in names and t.endswith(':'):
            ki = names.index(t[:-1])
            out.append(ln)
            out += ["  " + x for x in f"""s_memrealtime s[90:91]
s_memtime s[80:81]
s_load_dwordx2 s[92:93], s[0:1], 136
v_lshrrev_b32 v1, 6, v0
s_nop 1
v_readfirstlane_b32 s94, v1
s_lshl_b32 s95, s2, 3
s_add_u32 s94, s94, s95
s_lshl_b32 s94, s94, 6
s_add_u32 s94, s94, {WS_TS + ki * 0x80000}
s_mov_b32 s82, 0
s_mov_b32 s84, 0
s_mov_b32 s86, 0
s_mov_b32 s88, 0
s_mov_b32 s76, 0
s_mov_b32 s78, 0
s_waitcnt lgkmcnt(0)""".split("\n")]
        elif t.startswith(";TS"):
            i = int(t[3:]); r = [82, 84, 86, 88, 76, 78][i]
            out.append(f"  s_memtime s[{r}:{r+1}]")
        elif t == "s_endpgm":
            out += ["  " + x for x in """s_waitcnt vmcnt(0) lgkmcnt(0)
s_memrealtime s[96:97]
s_memtime s[98:99]
s_getreg_b32 s100, hwreg(HW_REG_HW_ID)
s_getreg_b32 s101, hwreg(HW_REG_XCC_ID)
s_mov_b64 exec, 1
s_waitcnt lgkmcnt(0)
v_mov_b32 v0, s90
v_mov_b32 v1, s96
v_mov_b32 v2, s100
v_mov_b32 v3, s101
v_mov_b32 v4, s80
v_mov_b32 v5, s82
v_mov_b32 v6, s84
v_mov_b32 v7, s86
v_mov_b32 v8, s88
v_mov_b32 v9, s76
v_mov_b32 v10, s78
v_mov_b32 v11, s98
v_mov_b32 v12, s94
global_store_dwordx4 v12, v[0:3], s[92:93]
global_store_dwordx4 v12, v[4:7], s[92:93] offset:16
global_store_dwordx4 v12, v[8:11], s[92:93] offset:32
s_endpgm""".split("\n")]
        else: out.append(ln)
    A.lines = out

def main():
    A = Asm()
    which = sys.argv[2] if len(sys.argv) > 2 else "1234"
    hdr = []
    descs = []
    A('.amdgcn_target "amdgcn-amd-amdhsa--gfx950"\n.text')
    seen = set()
    for ch in which:
        name, grid, lds, fn = KS[ch]
        hdr.append(f"; @launch kernel={name} grid=({grid},1,1) block=(256,1,1) lds={lds}")
        if ch not in seen: descs.append(fn(A)); seen.add(ch)
    if os.environ.get("TS"): add_stamps(A, [KS[ch][0] for ch in "1234"])
    txt = "; generated by dev/gen.py (hand-written generator); see comments there\n" + "\n".join(hdr) + "\n" + A.text() + '.section .rodata,"a"\n' + ("".join(descs) if not os.environ.get("TS") else re.sub(r"next_free_sgpr \d+", "next_free_sgpr 102", "".join(descs)))
    open(sys.argv[1], "w").write(txt)

if __name__ == "__main__":
    main()
```

```python
from common import *
K1_KG, K1_LN, K1_MOD = 448, 64, 84
K1_GRID = K1_KG + K1_LN + K1_MOD
K1_LDS = 32 * RS

def k1(A):
    A(f""".globl prep_kernel
.p2align 8
.type prep_kernel,@function
prep_kernel:
s_cmp_ge_u32 s2, {K1_KG}
s_cbranch_scc1 K1_other
s_load_dwordx16 s[4:19], s[0:1], 8
s_load_dwordx2 s[20:21], s[0:1], 136
s_getpc_b64 s[22:23]
K1_pc:
s_add_u32 s22, s22, ktab-K1_pc
s_addc_u32 s23, s23, 0
s_lshl_b32 s3, s2, 9
v_lshlrev_b32 v3, 4, v0
v_lshl_add_u32 v1, v0, 1, s3
s_lshl_b32 s3, s2, 1
v_mov_b32 v2, s3
""")
    for r in range(10, 17): A(f"v_mov_b32 v{r}, 0")
    A("global_load_dwordx4 v[20:23], v3, s[22:23]")
    A("s_waitcnt lgkmcnt(0)")
    A("global_load_short_d16_hi v16, v2, s[16:17]")
    for i in range(6): A(f"global_load_short_d16_hi v{10+i}, v1, s[{4+2*i}:{5+2*i}]")
    A(f"""
v_lshrrev_b32 v4, 6, v0
v_and_b32 v5, 63, v0
v_readfirstlane_b32 s24, v4
v_and_b32 v6, 31, v5
v_lshrrev_b32 v7, 5, v5
s_lshl_b32 s24, s24, 8
s_mov_b32 m0, s24
v_mul_u32_u24 v8, {RS}, v6
v_lshl_add_u32 v8, v7, 4, v8
v_add_u32 v8, s24, v8
v_mul_u32_u24 v9, {4*RS}, v7
v_lshl_add_u32 v9, v6, 2, v9
v_add_u32 v9, s24, v9
s_lshl_b32 s3, s2, 12
s_add_u32 s3, s3, {WS_KG}
s_add_u32 s20, s20, s3
s_addc_u32 s21, s21, 0
s_mov_b32 s25, {LOG2E}
s_waitcnt vmcnt(6)
v_mul_f32 v16, s25, v16
v_exp_f32 v16, v16
""")
    for e in range(8):
        src = 20 + e // 2
        A(f"v_and_b32 v{24+e}, 0xffff, v{src}" if e % 2 == 0 else f"v_lshrrev_b32 v{24+e}, 16, v{src}")
    A("""
v_cvt_pk_bf16_f32 v16, v16, v16
v_and_b32 v16, 0xffff0000, v16        ; dt
s_waitcnt vmcnt(0)
;TS0
v_mul_f32 v10, v16, v10
v_mul_f32 v11, v16, v11
v_mul_f32 v10, s25, v10
v_mul_f32 v11, 0.15915494, v11
v_mul_f32 v12, v16, v12               ; dB
v_mul_f32 v13, v16, v13
""")
    def zdirect(dst, l, t):
        if l == 1:
            A(f"v_fract_f32 v{t+1}, v11\nv_exp_f32 v{t}, v10")
        else:
            A(f"v_mul_f32 v{t+1}, {hex(f2u(float(l)))}, v11\nv_mul_f32 v{t}, {hex(f2u(float(l)))}, v10\nv_fract_f32 v{t+1}, v{t+1}\nv_exp_f32 v{t}, v{t}")
        A(f"v_cos_f32 v{dst}, v{t+1}\nv_sin_f32 v{dst+1}, v{t+1}")
        A(f"v_pk_mul_f32 {v(dst,2)}, {v(dst,2)}, {v(t,2)} op_sel_hi:[1,0]")
    Z1, Z8, P = 32, 34, 36
    zdirect(Z1, 1, 18); zdirect(P, 256, 18); zdirect(Z8, 8, 18)
    X = lambda i: 40 + 2 * i
    seq = [(0, 14, 12)]
    for i in range(1, 8): seq.append((i, X(i - 1), Z1))
    for i, srci in ((8, 0), (9, 2), (10, 4), (11, 6), (12, 8), (14, 10), (13, 12), (15, 14), (16, 13), (17, 16), (18, 17), (19, 18), (20, 19)):
        seq.append((i, X(srci), P))
    pend = None
    T = [84, 85]
    for n, (i, a, b) in enumerate(seq):
        m, f_ = cmul(A, X(i), a, b)
        A(m)
        if pend is not None: A(f"v_cvt_pk_bf16_f32 v{T[n&1]}, v{X(pend)}, -v{X(pend)+1}")
        A(f_)
        if pend is not None: A(f"ds_write_addtid_b32 v{T[n&1]} offset:{pend*RS}")
        pend = i
    A(f"v_cvt_pk_bf16_f32 v{T[0]}, v{X(pend)}, -v{X(pend)+1}")
    A(f"v_mov_b32 v{T[1]}, 0x3f80")
    A(f"ds_write_addtid_b32 v{T[0]} offset:{pend*RS}")
    AF, BF, ACC = 96, 128, 160
    A(";TS1")
    for ks in range(8): A(f"ds_read_b128 {v(AF+4*ks,4)}, v8 offset:{ks*32}")
    A(f"ds_write_addtid_b32 v{T[1]} offset:0")
    Y = [40, 42]
    prev = Z8; pend = (1, Z8)
    for j in range(2, 32):
        d = Y[j & 1]
        m, f_ = cmul(A, d, prev, Z8)
        A(m)
        A(f"v_cvt_pk_bf16_f32 v{T[j&1]}, v{pend[1]}, v{pend[1]+1}")
        A(f_)
        A(f"ds_write_addtid_b32 v{T[j&1]} offset:{pend[0]*RS}")
        prev = d; pend = (j, d)
    A(f"v_cvt_pk_bf16_f32 v{T[0]}, v{pend[1]}, v{pend[1]+1}")
    A(f"ds_write_addtid_b32 v{T[0]} offset:{pend[0]*RS}")
    A(";TS2")
    for ks in range(8): A(f"ds_read_b128 {v(BF+4*ks,4)}, v8 offset:{ks*32}")
    for ks in range(8):
        A(f"s_waitcnt lgkmcnt({7-ks})")
        A(f"v_mfma_f32_32x32x16_bf16 {v(ACC,16)}, {v(AF+4*ks,4)}, {v(BF+4*ks,4)}, {'0' if ks==0 else v(ACC,16)}")
    for r in range(12):
        A(f"ds_write_b32 v9, v{ACC+r} offset:{((r&3)+8*(r>>2))*RS}")
    A("s_waitcnt lgkmcnt(0)\ns_barrier")
    E = 40
    A(";TS3")
    for e in range(8):
        A(f"ds_read2st64_b32 {v(E+4*e,2)}, v{24+e} offset0:0 offset1:1")
        A(f"ds_read2st64_b32 {v(E+4*e+2,2)}, v{24+e} offset0:2 offset1:3")
        if e == 3: pass
    for e in range(8):
        A(f"s_waitcnt lgkmcnt({14-2*e})")
        A(f"v_pk_add_f32 {v(E+4*e,2)}, {v(E+4*e,2)}, {v(E+4*e+2,2)}")
        A(f"v_add_f32 v{E+4*e}, v{E+4*e}, v{E+4*e+1}")
        if e & 1: A(f"v_cvt_pk_bf16_f32 v{80+e//2}, v{E+4*e-4}, v{E+4*e}")
    A(";TS4")
    A("global_store_dwordx4 v3, v[80:83], s[20:21]\ns_endpgm")

    LS = 928
    A(f"""
K1_other:
s_cmp_ge_u32 s2, {K1_KG + K1_LN}
s_cbranch_scc1 K1_mod
s_load_dwordx2 s[4:5], s[0:1], 0
s_load_dwordx2 s[6:7], s[0:1], 136
s_sub_u32 s3, s2, {K1_KG}             ; t-block
s_mul_i32 s8, s3, {TB}
v_lshrrev_b32 v1, 3, v0               ; row
v_and_b32 v2, 7, v0                   ; sub
v_mul_u32_u24 v3, 896, v1
v_lshl_add_u32 v3, v2, 4, v3
v_mul_u32_u24 v4, {LS}, v1
v_lshl_add_u32 v4, v2, 4, v4
s_waitcnt lgkmcnt(0)
s_add_u32 s4, s4, s8
s_addc_u32 s5, s5, 0
""")
    for i in range(7): A(f"global_load_dwordx4 {v(16+4*i,4)}, v3, s[4:5] offset:{128*i}")
    A(f"""
s_add_u32 s10, s6, s8
s_addc_u32 s11, s7, 0
s_lshl_b32 s9, s3, 7
s_add_u32 s9, s9, {WS_STM}
s_add_u32 s12, s6, s9
s_addc_u32 s13, s7, 0
v_lshlrev_b32 v5, 2, v1               ; row*4
v_lshrrev_b32 v6, 6, v0               ; w
v_bfe_u32 v7, v0, 4, 2                ; g
v_bfe_u32 v8, v0, 2, 2                ; e
v_and_b32 v9, 3, v0                   ; cq
v_lshl_add_u32 v8, v7, 3, v8
v_mul_u32_u24 v8, {LS}, v8
v_lshl_add_u32 v8, v9, 3, v8
v_lshl_add_u32 v8, v6, 5, v8
v_and_b32 v9, 15, v0
v_lshlrev_b32 v9, 6, v9
v_lshl_add_u32 v9, v7, 4, v9
v_lshl_add_u32 v9, v6, 10, v9
s_mov_b32 s14, {ONES}
v_mov_b32 v10, 0
v_mov_b32 v11, 0
""")
    for i in range(7):
        A(f"s_waitcnt vmcnt({6-i})")
        A(f"ds_write_b128 v4, {v(16+4*i,4)} offset:{128*i}")
        for j in range(4): A(f"v_dot2_f32_bf16 v{10+(j&1)}, v{16+4*i+j}, s14, v{10+(j&1)}")
    def red8(r, t):
        A(f"""
v_add_f32_dpp v{r}, v{r}, v{r} quad_perm:[1,0,3,2] row_mask:0xf bank_mask:0xf
v_add_f32_dpp v{r}, v{r}, v{r} quad_perm:[2,3,0,1] row_mask:0xf bank_mask:0xf
v_add_f32_dpp v{r}, v{r}, v{r} row_half_mirror row_mask:0xf bank_mask:0xf
""")
    A("v_add_f32 v10, v10, v11")
    red8(10, 11)
    A(f"""
v_mul_f32 v10, {hex(INV448)}, v10     ; mean
s_waitcnt lgkmcnt(0)
s_barrier
""")
    for c in range(7):
        A(f"ds_read_b64_tr_b16 {v(48+4*c,2)}, v8 offset:{128*c}")
        A(f"ds_read_b64_tr_b16 {v(50+4*c,2)}, v8 offset:{128*c+4*LS}")
    A("v_mov_b32 v12, 0\nv_mov_b32 v13, 0\nv_mov_b32 v11, v10")
    for k in range(28):
        t = 76 + 2 * (k & 1)
        A(f"v_lshlrev_b32 v{t}, 16, v{16+k}\nv_and_b32 v{t+1}, 0xffff0000, v{16+k}")
        A(f"v_pk_add_f32 {v(t,2)}, {v(t,2)}, v[10:11] neg_lo:[0,1] neg_hi:[0,1]")
        A(f"v_pk_fma_f32 v[12:13], {v(t,2)}, {v(t,2)}, v[12:13]")
        if k % 4 == 3:
            c = k // 4
            A(f"s_waitcnt lgkmcnt({12-2*c})")
            if c: A(f"v_add_u32 v9, 4096, v9")
            A(f"global_store_dwordx4 v9, {v(48+4*c,4)}, s[10:11]")
    A("v_add_f32 v12, v12, v13")
    red8(12, 13)
    A(f"""
v_mul_f32 v12, {hex(INV448)}, v12     ; var
v_cvt_pk_bf16_f32 v10, v10, v12
v_and_b32 v12, 0xffff0000, v10
v_lshlrev_b32 v10, 16, v10
v_add_f32 v12, {hex(EPS)}, v12
v_cvt_pk_bf16_f32 v12, v12, v12
v_and_b32 v12, 0xffff0000, v12
v_sqrt_f32 v12, v12
v_cvt_pk_bf16_f32 v12, v12, v12
v_and_b32 v12, 0xffff0000, v12
v_rcp_f32 v12, v12
v_add_u32 v6, {WS_STR - WS_STM}, v5
global_store_dword v5, v10, s[12:13]
global_store_dword v6, v12, s[12:13]
s_endpgm
""")
    A(f"""
K1_mod:
s_cmp_ge_u32 s2, {K1_GRID}
s_cbranch_scc1 K1_end
s_load_dwordx4 s[4:7], s[0:1], 104    ; c, w_mod
s_load_dwordx2 s[8:9], s[0:1], 136
s_sub_u32 s3, s2, {K1_KG + K1_LN}
v_lshrrev_b32 v1, 2, v0               ; rg
v_and_b32 v2, 3, v0                   ; cc
v_mul_u32_u24 v3, 5376, v1
v_lshl_add_u32 v3, v2, 4, v3
s_lshl_b32 s10, s3, 6
v_add_u32 v3, s10, v3                 ; w off
v_lshlrev_b32 v4, 1, v1               ; c off
""")
    for i in range(7): A(f"v_mov_b32 v{8+i}, 0")
    A("s_waitcnt lgkmcnt(0)")
    for i in range(7): A(f"global_load_short_d16_hi v{8+i}, v4, s[4:5] offset:{128*i}")
    for i in range(7):
        A(f"global_load_dwordx4 {v(16+4*i,4)}, v3, s[6:7]")
        if i < 6: A(f"v_add_u32 v3, {64*5376}, v3")
    A(f"""
s_lshl_b32 s10, s3, 7
s_add_u32 s10, s10, {WS_MOD}
s_add_u32 s8, s8, s10
s_addc_u32 s9, s9, 0
s_mov_b32 s11, {hex(LOG2E | 0x80000000)}
v_lshrrev_b32 v5, 4, v0
v_lshlrev_b32 v5, 7, v5
v_lshl_add_u32 v5, v2, 5, v5
v_lshlrev_b32 v6, 2, v0
s_waitcnt vmcnt(7)
""")
    for i in range(7): A(f"v_mul_f32 v{44+i}, s11, v{8+i}")
    for i in range(7): A(f"v_exp_f32 v{44+i}, v{44+i}")
    for i in range(7): A(f"v_add_f32 v{44+i}, 1.0, v{44+i}")
    for i in range(7): A(f"v_rcp_f32 v{44+i}, v{44+i}")
    for i in range(7): A(f"v_mul_f32 v{8+i}, v{8+i}, v{44+i}")
    for i in range(7): A(f"v_cvt_pk_bf16_f32 v{8+i}, v{8+i}, v{8+i}")
    for i in range(7): A(f"v_and_b32 v{52+2*i}, 0xffff0000, v{8+i}")
    AC = 68
    for i in range(7):
        A(f"s_waitcnt vmcnt({6-i})")
        for j in range(4):
            t = 44 + 2 * j
            A(f"v_lshlrev_b32 v{t}, 16, v{16+4*i+j}\nv_and_b32 v{t+1}, 0xffff0000, v{16+4*i+j}")
        for j in range(4):
            t = 44 + 2 * j
            if i == 0: A(f"v_pk_mul_f32 {v(AC+2*j,2)}, {v(t,2)}, {v(52+2*i,2)} op_sel_hi:[1,0]")
            else: A(f"v_pk_fma_f32 {v(AC+2*j,2)}, {v(t,2)}, {v(52+2*i,2)}, {v(AC+2*j,2)} op_sel_hi:[1,0,1]")
    for sh in (8, 4):
        for j in range(8): A(f"v_add_f32_dpp v{AC+j}, v{AC+j}, v{AC+j} row_ror:{sh} row_mask:0xf bank_mask:0xf")
    A(f"""
ds_write_b128 v5, {v(AC,4)}
ds_write_b128 v5, {v(AC+4,4)} offset:16
s_waitcnt lgkmcnt(0)
s_barrier
v_cmp_gt_u32 vcc, 32, v0
s_and_saveexec_b64 s[12:13], vcc
s_cbranch_execz K1_end
""")
    for i in range(8): A(f"ds_read2_b32 {v(16+2*i,2)}, v6 offset0:{64*i} offset1:{64*i+32}" if 64*i+32 < 256 else f"ds_read2_b32 {v(16+2*i,2)}, v7 offset0:{64*i-256} offset1:{64*i+32-256}") if i != 4 else A(f"v_add_u32 v7, 1024, v6\nds_read2_b32 {v(16+2*i,2)}, v7 offset0:0 offset1:32")
    A("s_waitcnt lgkmcnt(0)")
    for i in range(4): A(f"v_pk_add_f32 {v(16+2*i,2)}, {v(16+2*i,2)}, {v(24+2*i,2)}")
    for i in range(2): A(f"v_pk_add_f32 {v(16+2*i,2)}, {v(16+2*i,2)}, {v(20+2*i,2)}")
    A("""
v_pk_add_f32 v[16:17], v[16:17], v[18:19]
v_add_f32 v16, v16, v17
v_cvt_pk_bf16_f32 v16, v16, v16
v_and_b32 v16, 0xffff0000, v16
global_store_dword v6, v16, s[8:9]
K1_end:
s_endpgm
""")
    tab = ktable()
    A(".p2align 4\n.type ktab,@object\nktab:")
    for i in range(0, 2048, 16): A(".short " + ", ".join(str(t) for t in tab[i:i+16]))
    A(".size ktab, 4096")
    return kdesc("prep_kernel", 176, 32)
```

```python
from common import *
K2_CV, K2_GU, K2_DN = 224, 112, 49
K2_GRID = K2_CV + K2_GU + K2_DN
KC = 4160
L_K = 0
L_H = 4 * KC
HS = 4608
L_Y = L_H + 2 * HS
YW = 10240
K2_LDS = L_Y + 4 * YW

def k2(A):
    A(f""".globl conv_kernel
.p2align 8
.type conv_kernel,@function
conv_kernel:
s_cmp_ge_u32 s2, {K2_CV}
s_cbranch_scc1 K2_other
s_load_dwordx2 s[4:5], s[0:1], 136
s_load_dwordx2 s[6:7], s[0:1], 64     ; Dskip
v_lshrrev_b32 v1, 2, v0
v_mul_u32_u24 v1, {TB}, v1
v_and_b32 v2, 3, v0
v_lshl_add_u32 v1, v2, 4, v1
s_lshl_b32 s3, s2, 7
v_add_u32 v1, s3, v1
v_lshlrev_b32 v2, 4, v0               ; tid*16
v_lshlrev_b32 v3, 5, v0               ; tid*32
s_lshl_b32 s8, s2, 13
s_add_u32 s8, s8, {WS_KG}
s_lshl_b32 s9, s2, 3
s_add_u32 s9, s9, {WS_MOD}
s_lshl_b32 s10, s2, 2
s_waitcnt lgkmcnt(0)
s_add_u32 s12, s4, s8
s_addc_u32 s13, s5, 0                 ; KG + d0*4096
s_add_u32 s14, s4, {WS_STM}
s_addc_u32 s15, s5, 0
s_add_u32 s16, s4, s9
s_addc_u32 s17, s5, 0                 ; MOD + d0*4
s_add_u32 s6, s6, s10
s_addc_u32 s7, s7, 0
global_load_dwordx4 v[8:11], v1, s[4:5]
global_load_dwordx4 v[12:15], v1, s[4:5] offset:64
global_load_dwordx4 v[16:19], v3, s[14:15]
global_load_dwordx4 v[20:23], v3, s[14:15] offset:16
v_add_u32 v4, {WS_STR - WS_STM}, v3
global_load_dwordx4 v[24:27], v4, s[14:15]
global_load_dwordx4 v[28:31], v4, s[14:15] offset:16
v_add_u32 v4, 4096, v2
global_load_dwordx4 v[32:35], v2, s[12:13]
global_load_dword v36, v2, s[12:13] offset:16
global_load_dwordx4 v[40:43], v4, s[12:13]
global_load_dword v44, v4, s[12:13] offset:16
s_load_dwordx2 s[20:21], s[16:17], 0        ; sa
s_load_dwordx2 s[22:23], s[16:17], {448*4}  ; ca
s_load_dwordx2 s[24:25], s[16:17], {896*4}  ; ga
s_load_dword s26, s[6:7], 0
s_add_u32 s18, s4, {WS_X1T}
s_addc_u32 s19, s5, 0
v_mov_b32 v48, 0
v_mov_b32 v49, 0
v_mov_b32 v50, 0
v_mov_b32 v51, 0
v_lshrrev_b32 v5, 5, v0
v_mul_u32_u24 v5, {HS}, v5
v_and_b32 v6, 31, v0
v_lshl_add_u32 v5, v6, 4, v5
v_add_u32 v5, {L_H}, v5
v_bfe_u32 v6, v0, 1, 2
v_mul_u32_u24 v6, {KC}, v6
v_and_b32 v7, 1, v0
v_lshl_add_u32 v6, v7, 4, v6
v_add_u32 v6, 4096, v6
v_cmp_gt_u32 vcc, 64, v0
v_cndmask_b32 v5, v6, v5, vcc
ds_write_b128 v5, v[48:51]
v_lshrrev_b32 v5, 6, v0               ; w
v_and_b32 v6, 15, v0                  ; m / p
v_bfe_u32 v7, v0, 4, 2                ; kq
v_readfirstlane_b32 s27, v5
s_lshr_b32 s28, s27, 1                ; ch
s_and_b32 s29, s27, 1                 ; half
v_and_b32 v52, 1, v6
v_xor_b32 v52, 1, v52
v_mul_u32_u24 v52, {KC}, v52
v_lshrrev_b32 v53, 1, v6
v_lshlrev_b32 v53, 2, v53
v_sub_u32 v52, v52, v53
v_lshl_add_u32 v52, v7, 4, v52
s_mul_i32 s30, s28, {2*KC}
s_lshl_b32 s31, s29, 8
s_sub_u32 s30, s30, s31
s_add_u32 s30, s30, {L_K + 4060 - 192 - 512}
v_add_u32 v52, s30, v52
v_subrev_u32 v53, 1024, v52
v_subrev_u32 v54, 2048, v52
v_subrev_u32 v55, 3072, v52
v_lshlrev_b32 v56, 5, v6
v_lshl_add_u32 v56, v7, 4, v56
s_mul_i32 s30, s28, {HS}
s_sub_u32 s30, s30, s31
s_add_u32 s30, s30, {L_H + 480 - 192}
v_add_u32 v56, s30, v56
v_mul_u32_u24 v57, 320, v7
v_lshl_add_u32 v57, v6, 4, v57
s_mul_i32 s30, s27, {YW}
s_add_u32 s30, s30, {L_Y}
v_add_u32 v57, s30, v57
v_lshrrev_b32 v58, 5, v0
v_mul_u32_u24 v58, 1280, v58
v_and_b32 v59, 1, v0
v_mul_u32_u24 v59, 640, v59
v_add_u32 v58, v58, v59
v_bfe_u32 v59, v0, 1, 4
v_lshl_add_u32 v58, v59, 4, v58
v_add_u32 v58, {L_Y}, v58
v_cmp_eq_u32 vcc, 255, v0
s_waitcnt lgkmcnt(0)
v_add_f32 v60, 1.0, s22
v_add_f32 v61, 1.0, s23
v_cvt_pk_bf16_f32 v60, v60, v61
v_and_b32 v62, 0xffff0000, v60
v_lshlrev_b32 v60, 16, v60
v_mov_b32 v64, s20
v_mov_b32 v66, s21
s_waitcnt vmcnt(4)
;TS0
""")
    for ch in range(2):
        for j in range(4):
            t = 80 + 2 * j
            A(f"v_lshlrev_b32 v{t}, 16, v{8+4*ch+j}\nv_and_b32 v{t+1}, 0xffff0000, v{8+4*ch+j}")
        for j in range(4): A(f"v_pk_add_f32 {v(80+2*j,2)}, {v(80+2*j,2)}, {v(16+2*j,2)} neg_lo:[0,1] neg_hi:[0,1]")
        for j in range(4): A(f"v_pk_mul_f32 {v(80+2*j,2)}, {v(80+2*j,2)}, {v(24+2*j,2)}")
        for j in range(4): A(f"v_pk_fma_f32 {v(80+2*j,2)}, {v(80+2*j,2)}, {v(60+2*ch,2)}, {v(64+2*ch,2)} op_sel_hi:[1,0,0]")
        for j in range(4): A(f"v_cvt_pk_bf16_f32 v{68+4*ch+j}, v{80+2*j}, v{81+2*j}")
        A(f"ds_write_b128 v2, {v(68+4*ch,4)} offset:{L_H + ch*HS + 512}")
    for ch in range(2):
        b = 32 + 8 * ch
        A(f"s_waitcnt vmcnt({2-2*ch})")
        A(f"v_cndmask_b32 v{b+4}, v{b+4}, v48, vcc")
        A(f"ds_write_b128 v2, {v(b,4)} offset:{L_K + ch*2*KC}")
        for j in range(4): A(f"v_alignbit_b32 v{80+4*ch+j}, v{b+j+1}, v{b+j}, 16")
        A(f"ds_write_b128 v2, {v(80+4*ch,4)} offset:{L_K + ch*2*KC + KC}")
    A("s_waitcnt lgkmcnt(0)\ns_barrier")
    A(";TS1")
    ACC = 88
    FB = [120, 184]
    def reads(s, buf):
        out = []
        base = FB[buf]
        for c in range(8): out.append(f"ds_read_b128 {v(base+32+4*c,4)}, v56 offset:{512*c + 192 - 64*s}")
        for G in range(8):
            o = (512 * (1 - (G & 1)) + 192 - 64 * s) // 4
            out.append(f"ds_read2_b32 {v(base+4*G,2)}, v{52+G//2} offset0:{o} offset1:{o+1}")
            out.append(f"ds_read2_b32 {v(base+4*G+2,2)}, v{52+G//2} offset0:{o+2} offset1:{o+3}")
        return out
    for r in reads(0, 0): A(r)
    for s in range(4):
        base = FB[s & 1]
        nxt = reads(s + 1, (s + 1) & 1) if s < 3 else []
        if s > 0: A("s_waitcnt lgkmcnt(0)")
        n = 0
        for G in range(8):
            if s == 0: A(f"s_waitcnt lgkmcnt({min(15, 14 - 2*G + 0)})") if G == 0 else None
            if s == 0 and G == 1: A("s_waitcnt lgkmcnt(0)")
            for c in range(G, 8):
                first = (s == 0 and G == 0)
                A(f"v_mfma_f32_16x16x32_bf16 {v(ACC+4*c,4)}, {v(base+4*G,4)}, {v(base+32+4*(c-G),4)}, {'0' if first else v(ACC+4*c,4)}")
                if nxt and not (s == 0 and G == 0): A(nxt.pop(0))
        assert not nxt
    A(";TS2")
    for c in range(8): A(f"ds_write_b128 v57, {v(ACC+4*c,4)} offset:{1280*c}")
    A("""
s_lshl_b32 s30, s26, 16
s_and_b32 s31, s26, 0xffff0000
""")
    U = 120
    for ch in range(2):
        for j in range(4):
            t = U + 8 * ch + 2 * j
            A(f"v_lshlrev_b32 v{t}, 16, v{68+4*ch+j}\nv_and_b32 v{t+1}, 0xffff0000, v{68+4*ch+j}")
        for j in range(8): A(f"v_mul_f32 v{U+8*ch+j}, s{30+ch}, v{U+8*ch+j}")
        for j in range(4): A(f"v_cvt_pk_bf16_f32 v{68+4*ch+j}, v{U+8*ch+2*j}, v{U+8*ch+2*j+1}")
        for j in range(4):
            t = U + 8 * ch + 2 * j
            A(f"v_lshlrev_b32 v{t}, 16, v{68+4*ch+j}\nv_and_b32 v{t+1}, 0xffff0000, v{68+4*ch+j}")
    A("s_waitcnt lgkmcnt(0)\ns_barrier")
    YR = 136
    A(";TS3")
    for ch in range(2):
        for hf in range(2):
            for q in range(2):
                A(f"ds_read_b128 {v(YR+16*ch+8*hf+4*q,4)}, v58 offset:{(2*ch+hf)*YW + 320*q}")
    XU = 168
    for ch in range(2):
        for j in range(4):
            t = XU + 8 * ch + 2 * j
            A(f"v_lshlrev_b32 v{t}, 16, v{8+4*ch+j}\nv_and_b32 v{t+1}, 0xffff0000, v{8+4*ch+j}")
    def rnd(b, tmp):
        for j in range(4): A(f"v_cvt_pk_bf16_f32 v{tmp+j}, v{b+2*j}, v{b+2*j+1}")
        for j in range(4): A(f"v_lshlrev_b32 v{b+2*j}, 16, v{tmp+j}\nv_and_b32 v{b+2*j+1}, 0xffff0000, v{tmp+j}")
    for ch in range(2):
        y = YR + 16 * ch
        A(f"s_waitcnt lgkmcnt({4-4*ch})")
        for j in range(4): A(f"v_pk_add_f32 {v(y+2*j,2)}, {v(y+2*j,2)}, {v(y+8+2*j,2)}")
        rnd(y, 80)
        for j in range(4): A(f"v_pk_add_f32 {v(y+2*j,2)}, {v(y+2*j,2)}, {v(U+8*ch+2*j,2)}")
        rnd(y, 80)
        for j in range(8): A(f"v_mul_f32 v{y+j}, s{24+ch}, v{y+j}")
        rnd(y, 80)
        for j in range(4): A(f"v_pk_add_f32 {v(y+2*j,2)}, {v(y+2*j,2)}, {v(XU+8*ch+2*j,2)}")
        for j in range(4): A(f"v_cvt_pk_bf16_f32 v{68+4*ch+j}, v{y+2*j}, v{y+2*j+1}")
        A(f"global_store_dwordx4 v1, {v(68+4*ch,4)}, s[18:19] offset:{64*ch}")
    A(";TS4\ns_endpgm")

    A(f"""
K2_other:
s_cmp_ge_u32 s2, {K2_CV + K2_GU}
s_cbranch_scc1 K2_dn
s_load_dwordx4 s[4:7], s[0:1], 80
s_load_dwordx2 s[8:9], s[0:1], 136
s_sub_u32 s3, s2, {K2_CV}
s_and_b32 s10, s3, 7
s_lshr_b32 s11, s3, 3                 ; 0..13
s_and_b32 s12, s11, 1
s_lshr_b32 s11, s11, 1                ; 0..6
s_lshl_b32 s11, s11, 3
s_add_u32 s11, s11, s10
s_and_b32 s13, s11, 1                 ; mat
s_and_b32 s11, s11, 0xfe
s_add_u32 s11, s11, s12               ; ft
v_cmp_gt_u32 vcc, 224, v0
v_min_u32 v1, 223, v0
v_lshrrev_b32 v2, 3, v1               ; rgrp (0..27)
v_and_b32 v3, 7, v1                   ; cq
v_mul_u32_u24 v4, {8*3584}, v2
v_lshl_add_u32 v4, v3, 3, v4
s_lshl_b32 s14, s11, 6
v_add_u32 v4, s14, v4                 ; W off
v_lshlrev_b32 v5, 5, v2
s_waitcnt lgkmcnt(0)
s_cmp_eq_u32 s13, 0
s_cselect_b32 s4, s4, s6
s_cselect_b32 s5, s5, s7
s_add_u32 s16, s8, {WS_MOD + 3*448*4}
s_addc_u32 s17, s9, 0
""")
    WL = [16, 48]
    SB = [80, 96]; CB = [88, 104]
    for u in range(2):
        A(f"global_load_dwordx4 {v(SB[u],4)}, v5, s[16:17] offset:{u*896}")
        A(f"global_load_dwordx4 {v(SB[u]+4,4)}, v5, s[16:17] offset:{u*896+16}")
        A(f"global_load_dwordx4 {v(CB[u],4)}, v5, s[16:17] offset:{u*896+1792}")
        A(f"global_load_dwordx4 {v(CB[u]+4,4)}, v5, s[16:17] offset:{u*896+1792+16}")
    for u in range(2):
        for j in range(8):
            A(f"global_load_dwordx2 {v(WL[u]+2*j,2)}, v4, s[4:5]" + (" offset:3584" if j & 1 else ""))
            if j & 1 and not (u == 1 and j == 7): A(f"v_add_u32 v4, {7168 if j < 7 else 7168 + 27*8*3584}, v4")
    A(f"""
s_mul_i32 s14, s11, {WF_FT}
s_lshl_b32 s15, s13, 10
s_add_u32 s14, s14, s15
s_add_u32 s14, s14, {WS_WF}
s_add_u32 s8, s8, s14
s_addc_u32 s9, s9, 0
v_lshrrev_b32 v6, 1, v2
v_lshlrev_b32 v6, 11, v6
v_and_b32 v7, 1, v2
v_lshl_add_u32 v6, v7, 9, v6
v_lshl_add_u32 v6, v3, 6, v6
s_mov_b32 s18, {ONES}
s_and_saveexec_b64 s[20:21], vcc
s_waitcnt vmcnt(16)
;TS0
""")
    for u in range(2):
        for j in range(8): A(f"v_add_f32 v{CB[u]+j}, 1.0, v{CB[u]+j}")
        for j in range(4): A(f"v_cvt_pk_bf16_f32 v{112+j}, v{CB[u]+2*j}, v{CB[u]+2*j+1}")
        for j in range(4): A(f"v_lshlrev_b32 v{CB[u]+2*j}, 16, v{112+j}\nv_and_b32 v{CB[u]+2*j+1}, 0xffff0000, v{112+j}")
    US, VS = 8, 12
    for j in range(8): A(f"v_mov_b32 v{8+j}, 0")
    UN = 112
    OUT = 144
    for u in range(2):
        A(f"s_waitcnt vmcnt({8 if u == 0 else 4})")
        A(f";TS{1+u}")
        for j in range(8):
            for h in range(2):
                t = UN + 4 * j + 2 * h
                A(f"v_lshlrev_b32 v{t}, 16, v{WL[u]+2*j+h}\nv_and_b32 v{t+1}, 0xffff0000, v{WL[u]+2*j+h}")
        for j in range(8):
            sel = "op_sel:[1,0,0] op_sel_hi:[1,1,1]" if j & 1 else "op_sel_hi:[0,1,1]"
            for h in range(2):
                A(f"v_pk_fma_f32 {v(VS+2*h,2)}, {v(SB[u]+(j&~1),2)}, {v(UN+4*j+2*h,2)}, {v(VS+2*h,2)} {sel}")
        for j in range(8):
            sel = "op_sel:[1,0] op_sel_hi:[1,1]" if j & 1 else "op_sel_hi:[0,1]"
            for h in range(2):
                A(f"v_pk_mul_f32 {v(UN+4*j+2*h,2)}, {v(CB[u]+(j&~1),2)}, {v(UN+4*j+2*h,2)} {sel}")
        o = OUT + 16 * u
        for i in range(4):
            for jp in range(4): A(f"v_cvt_pk_bf16_f32 v{o+4*i+jp}, v{UN+8*jp+i}, v{UN+8*jp+4+i}")
        if u == 1: A(f"v_add_u32 v6, {14*2048}, v6")
        for i in range(4): A(f"global_store_dwordx4 v6, {v(o+4*i,4)}, s[8:9] offset:{16*i}")
        for jp in range(4):
            for i in range(4): A(f"v_dot2_f32_bf16 v{US+i}, v{o+4*i+jp}, s18, v{US+i}")
    A(";TS3")
    for j in range(8): A(f"v_add_f32_dpp v{8+j}, v{8+j}, v{8+j} row_ror:8 row_mask:0xf bank_mask:0xf")
    A(f"""
v_lshrrev_b32 v7, 4, v0
v_lshlrev_b32 v7, 8, v7
v_lshl_add_u32 v7, v3, 4, v7
ds_write_b128 v7, v[8:11]
ds_write_b128 v7, v[12:15] offset:128
s_mov_b64 exec, s[20:21]
s_waitcnt lgkmcnt(0)
s_barrier
v_cmp_gt_u32 vcc, 64, v0
s_and_saveexec_b64 s[20:21], vcc
s_cbranch_execz K2_end
v_lshlrev_b32 v7, 2, v0
""")
    for i in range(7): A(f"ds_read2st64_b32 {v(16+2*i,2)}, v7 offset0:{2*i} offset1:{2*i+1}")
    A(f"""
v_lshlrev_b32 v6, 4, v0
v_add_u32 v6, {28*2048}, v6
s_waitcnt lgkmcnt(0)
v_pk_add_f32 v[16:17], v[16:17], v[18:19]
v_pk_add_f32 v[20:21], v[20:21], v[22:23]
v_pk_add_f32 v[24:25], v[24:25], v[26:27]
v_pk_add_f32 v[16:17], v[16:17], v[28:29]
v_pk_add_f32 v[20:21], v[20:21], v[24:25]
v_pk_add_f32 v[16:17], v[16:17], v[20:21]
v_add_f32 v16, v16, v17               ; total
v_cvt_pk_bf16_f32 v17, v16, v16
v_and_b32 v17, 0xffff0000, v17        ; hi
v_sub_f32 v18, v16, v17
v_cvt_pk_bf16_f32 v19, v18, v18
v_and_b32 v19, 0xffff0000, v19        ; mid
v_sub_f32 v18, v18, v19               ; lo
v_cvt_pk_bf16_f32 v8, v17, v19
v_mov_b32 v10, 0
v_cvt_pk_bf16_f32 v9, v18, v10
v_mov_b32 v11, 0
global_store_dwordx4 v6, v[8:11], s[8:9]
s_endpgm
""")
    A(f"""
K2_dn:
s_cmp_ge_u32 s2, {K2_GRID}
s_cbranch_scc1 K2_end
s_load_dwordx2 s[4:5], s[0:1], 96
s_load_dwordx2 s[8:9], s[0:1], 136
s_sub_u32 s3, s2, {K2_CV + K2_GU}     ; 0..48
s_mul_i32 s10, s3, 37
s_lshr_b32 s10, s10, 8                ; /7
s_mul_i32 s11, s10, 7
s_sub_u32 s11, s3, s11                ; colgrp
v_lshrrev_b32 v1, 4, v0
v_and_b32 v2, 15, v0                  ; cql
v_lshrrev_b32 v3, 1, v1
v_and_b32 v4, 1, v1
v_lshlrev_b32 v5, 4, v3
v_lshl_add_u32 v5, v4, 2, v5
v_mul_u32_u24 v5, 896, v5
v_lshl_add_u32 v5, v2, 3, v5
s_mul_i32 s12, s10, {256*896}
s_lshl_b32 s13, s11, 7
s_add_u32 s12, s12, s13
v_add_u32 v5, s12, v5
s_waitcnt lgkmcnt(0)
""")
    for u in range(2):
        for j in range(8):
            A(f"global_load_dwordx2 {v(16+16*u+2*j,2)}, v5, s[4:5] offset:{896*(j&3)}")
            if j == 3: A(f"v_add_u32 v5, {8*896}, v5")
            if j == 7 and u == 0: A(f"v_add_u32 v5, {120*896}, v5")
    A(f"""
v_lshrrev_b32 v6, 3, v2
v_mul_u32_u24 v6, {HF_TT}, v6
v_lshl_add_u32 v6, v3, 10, v6
v_lshl_add_u32 v6, v4, 9, v6
v_and_b32 v7, 7, v2
v_lshl_add_u32 v6, v7, 6, v6
s_mul_i32 s12, s11, {2*HF_TT}
s_lshl_b32 s13, s10, 14
s_add_u32 s12, s12, s13
s_add_u32 s12, s12, {WS_WDF}
s_add_u32 s8, s8, s12
s_addc_u32 s9, s9, 0
s_mov_b32 s14, 0x05040100
s_mov_b32 s15, 0x07060302
""")
    for u in range(2):
        A(f"s_waitcnt vmcnt({8 if u == 0 else 4})")
        o = 48 + 16 * u
        for i in range(4):
            for jp in range(4):
                lo = 16 + 16 * u + 4 * jp + (i >> 1); hi = lo + 2
                A(f"v_perm_b32 v{o+4*i+jp}, v{hi}, v{lo}, s{14+(i&1)}")
        if u == 1: A(f"v_add_u32 v6, 8192, v6")
        for i in range(4): A(f"global_store_dwordx4 v6, {v(o+4*i,4)}, s[8:9] offset:{16*i}")
    A("K2_end:\ns_endpgm")
    return kdesc("conv_kernel", 248, 40)
```

```python
from common import *
K3_GRID = 224
L_ST = 4 * TB
K3_LDS = L_ST + 1024

def k3(A):
    A(f""".globl ffn1_kernel
.p2align 8
.type ffn1_kernel,@function
ffn1_kernel:
s_cmp_ge_u32 s2, {K3_GRID}
s_cbranch_scc1 K3_end
s_load_dwordx2 s[4:5], s[0:1], 136
s_and_b32 s6, s2, 3
s_lshl_b32 s6, s6, 2
s_lshr_b32 s7, s2, 3
s_and_b32 s8, s7, 3
s_add_u32 s6, s6, s8                  ; rb
s_bfe_u32 s8, s2, 0x10002
s_mul_i32 s8, s8, 7
s_lshr_b32 s7, s7, 2
s_add_u32 s7, s7, s8                  ; fb
v_lshrrev_b32 v1, 6, v0
v_and_b32 v2, 63, v0                  ; lane
v_readfirstlane_b32 s9, v1            ; w
v_lshlrev_b32 v3, 4, v2               ; lane*16
s_lshl_b32 s10, s6, 2
s_add_u32 s10, s10, s9
s_mul_i32 s11, s10, {TB}
s_add_u32 s11, s11, {WS_X1T}
s_lshl_b32 s12, s7, 2
s_add_u32 s12, s12, s9                ; ft
s_mul_i32 s13, s12, {WF_FT}
s_add_u32 s13, s13, {WS_WF + 4096}
s_mul_i32 s14, s9, {TB}
s_waitcnt lgkmcnt(0)
s_add_u32 s16, s4, s11
s_addc_u32 s17, s5, 0                 ; x source
s_add_u32 s18, s4, s13
s_addc_u32 s19, s5, 0                 ; W source (+4096)
""")
    def issue_group(g):
        A(f"s_add_u32 s15, s14, {g*4096}\ns_mov_b32 m0, s15")
        for i in range(4): A(f"global_load_lds_dwordx4 v3, s[16:17] offset:{1024*i}")
        for i in range(8): A(f"global_load_dwordx4 {a_(32*g+4*i,4)}, v3, s[18:19] offset:{1024*i-4096}")
        A("s_add_u32 s16, s16, 4096\ns_addc_u32 s17, s17, 0\ns_add_u32 s18, s18, 8192\ns_addc_u32 s19, s19, 0")
        if g == 6:
            for i in range(2): A(f"global_load_dwordx4 {a_(224+4*i,4)}, v3, s[18:19] offset:{1024*i-4096}")
    for g in range(5): issue_group(g)
    A(f"""
v_lshrrev_b32 v4, 5, v2               ; kh
v_bfe_u32 v5, v2, 2, 2                ; e
v_lshl_add_u32 v5, v4, 3, v5
v_lshlrev_b32 v5, 6, v5
v_bfe_u32 v6, v2, 4, 1                ; th
v_lshl_add_u32 v5, v6, 5, v5
v_and_b32 v6, 3, v2
v_lshl_add_u32 v5, v6, 3, v5
""")
    for i in range(4):
        A(f"s_xor_b32 s20, s9, {i}\ns_mul_i32 s21, s20, {TB}\nv_add_u32 v{8+i}, s21, v5")
        A(f"s_lshl_b32 s21, s20, 8\ns_add_u32 s21, s21, {L_ST}\nv_lshl_add_u32 v{12+i}, v2, 2, s21")
        A(f"s_mul_i32 s21, s20, {HF_TT}\nv_add_u32 v{16+i}, s21, v3")
    A(f"""
s_lshl_b32 s20, s6, 2
s_mul_i32 s20, s20, {HF_TT}
s_lshl_b32 s21, s12, 11
s_add_u32 s20, s20, s21
s_add_u32 s20, s20, {WS_HF}
s_add_u32 s22, s4, s20
s_addc_u32 s23, s5, 0
s_lshl_b32 s20, s10, 7
s_add_u32 s20, s20, {WS_R2}
s_add_u32 s24, s4, s20
s_addc_u32 s25, s5, 0                 ; R2 + tile*128
s_mov_b32 s26, {ONES}
v_mov_b32 v20, 0
v_mov_b32 v21, 0
v_mov_b32 v22, 0
v_mov_b32 v23, 0
""")
    XF = [24, 40]
    ACC = 56
    def reads(s):
        out = []
        for i in range(4):
            for h in range(2):
                out.append(f"ds_read_b64_tr_b16 {v(XF[s&1]+4*i+2*h,2)}, v{8+i} offset:{1024*s+256*h}")
        return out
    def wait_group(g):
        issued_groups = min(g + 4, 6)
        n = 12 * (issued_groups - g) + (2 if issued_groups == 6 else 0)
        if g == 6: n = 2
        A(f"s_waitcnt vmcnt({n})\ns_barrier")
    wait_group(0)
    A(";TS0")
    for r in reads(0): A(r)
    for s in range(28):
        g = s // 4
        fill = []
        A("s_waitcnt lgkmcnt(0)")
        if s == 8: A(";TS1")
        if s == 16: A(";TS2")
        mf = []
        for i in range(4):
            for mat in range(2):
                t = ACC + 16 * (4 * mat + i)
                mf.append(f"v_mfma_f32_32x32x16_bf16 {v(t,16)}, {a_(8*s+4*mat,4)}, {v(XF[s&1]+4*i,4)}, {'0' if s == 0 else v(t,16)}")
        dots = []
        for j in range(4):
            x = XF[s & 1] + j
            dots.append(f"v_dot2_f32_bf16 v{20+(j&1)}, v{x}, s26, v{20+(j&1)}")
            dots.append(f"v_dot2_f32_bf16 v{22+(j&1)}, v{x}, v{x}, v{22+(j&1)}")
        nxt = reads(s + 1) if s < 27 else []
        A(mf[0])
        if s % 4 == 0 and g + 5 <= 6: issue_group(g + 5)
        if s % 4 == 3 and s < 27: wait_group(g + 1)
        for k in range(1, 8):
            if nxt: A(nxt.pop(0))
            if nxt and k < 3: A(nxt.pop(0))
            A(dots.pop(0))
            A(mf[k])
        A(dots.pop(0))
        assert not nxt and not dots
    A(";TS3")
    A(f"""
v_add_f32 v20, v20, v21
v_add_f32 v22, v22, v23
v_mov_b32 v21, v20
v_mov_b32 v23, v22
v_permlane32_swap_b32 v20, v21
v_permlane32_swap_b32 v22, v23
v_add_f32 v20, v20, v21
v_add_f32 v22, v22, v23
v_mul_f32 v20, {hex(INV448)}, v20     ; mean
v_mul_f32 v22, {hex(INV448)}, v22
v_fma_f32 v22, -v20, v20, v22
v_max_f32 v22, 0, v22                 ; var
v_cvt_pk_bf16_f32 v22, v22, v22
v_and_b32 v22, 0xffff0000, v22
v_add_f32 v22, {hex(EPS)}, v22
v_cvt_pk_bf16_f32 v22, v22, v22
v_and_b32 v22, 0xffff0000, v22
v_sqrt_f32 v22, v22
v_cvt_pk_bf16_f32 v20, -v20, -v20
v_cmp_gt_u32 vcc, 32, v2
v_cvt_pk_bf16_f32 v22, v22, v22
v_cndmask_b32 v21, v22, v20, vcc
ds_write_b32 v12, v21
v_and_b32 v22, 0xffff0000, v22
v_mul_f32 v22, v22, v22
v_rcp_f32 v22, v22
v_and_b32 v23, 31, v2
v_lshlrev_b32 v23, 2, v23
s_waitcnt lgkmcnt(0)
s_barrier
""")
    for i in range(4): A(f"ds_read2_b32 {v(XF[1]+4*i,2)}, v{12+i} offset0:0 offset1:0")
    A(";TS4")
    A("global_store_dword v23, v22, s[24:25]")
    A("s_waitcnt vmcnt(1)")
    for i in range(4):
        A(f"s_waitcnt lgkmcnt({3-i})")
        for mat in range(2):
            t = ACC + 16 * (4 * mat + i)
            A(f"v_mfma_f32_32x32x16_bf16 {v(t,16)}, {a_(224+4*mat,4)}, {v(XF[1]+4*i,4)}, {v(t,16)}")
    for i in range(4):
        G = ACC + 16 * i; U = ACC + 16 * (4 + i)
        for r in range(16): A(f"v_max_f32 v{G+r}, 0, v{G+r}")
        for r in range(0, 16, 2): A(f"v_pk_mul_f32 {v(G+r,2)}, {v(G+r,2)}, {v(U+r,2)}")
        for r in range(0, 16, 2): A(f"v_cvt_pk_bf16_f32 v{U+r//2}, v{G+r}, v{G+r+1}")
        A(f"global_store_dwordx4 v{16+i}, {v(U,4)}, s[22:23]")
        A(f"global_store_dwordx4 v{16+i}, {v(U+4,4)}, s[22:23] offset:1024")
    A(";TS5")
    A("K3_end:\ns_endpgm")
    return kdesc("ffn1_kernel", 184 + 232, 32, accum=184)
```

```python
from common import *
K4_GRID = 224
K4_LDS = 12 * 4096
RING = 10

def k4(A):
    A(f""".globl ffn2_kernel
.p2align 8
.type ffn2_kernel,@function
ffn2_kernel:
s_cmp_ge_u32 s2, {K4_GRID}
s_cbranch_scc1 K4_end
s_load_dwordx2 s[4:5], s[0:1], 136
s_load_dwordx2 s[6:7], s[0:1], 120
s_and_b32 s8, s2, 3
s_lshl_b32 s8, s8, 3
s_and_b32 s9, s2, 4
s_add_u32 s8, s8, s9
s_lshr_b32 s9, s2, 3
s_and_b32 s10, s9, 3
s_add_u32 s8, s8, s10                 ; tb64
s_lshr_b32 s9, s9, 2                  ; db
v_lshrrev_b32 v1, 6, v0
v_and_b32 v2, 63, v0
v_readfirstlane_b32 s10, v1           ; w
v_lshlrev_b32 v3, 4, v2               ; lane*16
s_lshr_b32 s11, s10, 1                ; wa (d)
s_and_b32 s12, s10, 1                 ; wb (t)
s_lshl_b32 s13, s9, 1
s_add_u32 s13, s13, s11
s_lshl_b32 s14, s8, 1
s_add_u32 s14, s14, s12
s_mul_i32 s15, s10, {28*1024}
s_add_u32 s15, s15, 4096
s_waitcnt lgkmcnt(0)
""")
    for i, (base, reg) in enumerate(((WS_WDF, 13), (WS_WDF, 13), (WS_HF, 14), (WS_HF, 14))):
        A(f"s_xor_b32 s24, s{reg}, {i&1}\ns_mul_i32 s24, s24, {HF_TT}\ns_add_u32 s24, s24, s15\ns_add_u32 s24, s24, {base}")
        A(f"s_add_u32 s{16+2*i}, s4, s24\ns_addc_u32 s{17+2*i}, s5, 0")
    def issue(s):
        slot = s % RING
        if s and s % 8 == 0: A("v_add_u32 v3, 8192, v3")
        for i in range(4): A(f"global_load_dwordx4 {a_(16*slot+4*i,4)}, v3, s[{16+2*i}:{17+2*i}] offset:{1024*(s%8)-4096}")
    for s in range(RING): issue(s)
    A(f"""
v_and_b32 v4, 31, v2                  ; t
v_lshrrev_b32 v5, 5, v2               ; half
v_lshlrev_b32 v6, 1, v4
v_lshl_add_u32 v6, v5, 8, v6          ; half*4*64 + t*2
s_mul_i32 s24, s14, {TB}
s_lshl_b32 s25, s13, 11
s_add_u32 s24, s24, s25
s_add_u32 s24, s24, {WS_X1T}
s_add_u32 s26, s4, s24
s_addc_u32 s27, s5, 0
s_lshl_b32 s24, s13, 7
s_add_u32 s24, s24, {WS_MOD + 5*448*4}
s_add_u32 s28, s4, s24
s_addc_u32 s29, s5, 0
s_lshl_b32 s24, s14, 7
s_add_u32 s24, s24, {WS_R2}
s_add_u32 s30, s4, s24
s_addc_u32 s31, s5, 0
v_lshlrev_b32 v7, 4, v5
v_lshlrev_b32 v8, 2, v4
""")
    X1, GB, R2 = 16, 32, 10
    for r in range(16): A(f"v_mov_b32 v{X1+r}, 0")
    for r in range(16): A(f"global_load_short_d16_hi v{X1+r}, v6, s[26:27] offset:{((r&3)+8*(r>>2))*64}")
    for q in range(4): A(f"global_load_dwordx4 {v(GB+4*q,4)}, v7, s[28:29] offset:{32*q}")
    A(f"global_load_dword v{R2}, v8, s[30:31]")
    NEP = 21
    A(f"""
v_mul_u32_u24 v9, 896, v4
v_lshl_add_u32 v9, v5, 3, v9
s_mul_i32 s24, s14, {32*896}
s_lshl_b32 s25, s13, 6
s_add_u32 s24, s24, s25
s_add_u32 s6, s6, s24
s_addc_u32 s7, s7, 0
v_lshlrev_b32 v11, 4, v2
""")
    for i in range(1, 4):
        A(f"s_xor_b32 s24, s10, {i}\ns_mul_i32 s24, s24, 12288\ns_add_u32 s24, s24, {(i-1)*4096}\nv_add_u32 v{11+i}, s24, v11")
    A("s_mul_i32 s24, s10, 12288\nv_add_u32 v11, s24, v11")
    ACC = 48
    for s in range(28):
        slot = s % RING
        later = 4 * (min(s + RING, 28) - 1 - s) + (NEP if s < RING else 0)
        A(f"s_waitcnt vmcnt({later})")
        if s in (0, 9, 18): A(f";TS{s//9}")
        for ia in range(2):
            for ib in range(2):
                t = ACC + 16 * (2 * ia + ib)
                A(f"v_mfma_f32_32x32x16_bf16 {v(t,16)}, {a_(16*slot+4*ia,4)}, {a_(16*slot+8+4*ib,4)}, {'0' if s == 0 else v(t,16)}")
        if s + RING < 28: issue(s + RING)
    A(";TS3")
    for i in (1, 2, 3):
        for q in range(4): A(f"ds_write_b128 v{11+i}, {v(ACC+16*i+4*q,4)} offset:{1024*q}")
    A("s_waitcnt lgkmcnt(0)\ns_barrier")
    for i in range(3):
        for q in range(4): A(f"ds_read_b128 {v(ACC+16+16*i+4*q,4)}, v11 offset:{4096*i+1024*q}")
    for i in range(3):
        A(f"s_waitcnt lgkmcnt({8-4*i})")
        for r in range(0, 16, 2): A(f"v_pk_add_f32 {v(ACC+r,2)}, {v(ACC+r,2)}, {v(ACC+16+16*i+r,2)}")
    T = ACC + 16
    A(";TS4")
    def rnd():
        for j in range(8): A(f"v_cvt_pk_bf16_f32 v{T+j}, v{ACC+2*j}, v{ACC+2*j+1}")
        for j in range(8): A(f"v_lshlrev_b32 v{ACC+2*j}, 16, v{T+j}\nv_and_b32 v{ACC+2*j+1}, 0xffff0000, v{T+j}")
    for r in range(0, 16, 2): A(f"v_pk_mul_f32 {v(ACC+r,2)}, {v(ACC+r,2)}, {v(R2,2)} op_sel_hi:[1,0]")
    rnd()
    for r in range(0, 16, 2): A(f"v_pk_mul_f32 {v(ACC+r,2)}, {v(ACC+r,2)}, {v(GB+r,2)}")
    rnd()
    for r in range(0, 16, 2): A(f"v_pk_add_f32 {v(ACC+r,2)}, {v(ACC+r,2)}, {v(X1+r,2)}")
    for j in range(8): A(f"v_cvt_pk_bf16_f32 v{T+j}, v{ACC+2*j}, v{ACC+2*j+1}")
    for q in range(4): A(f"global_store_dwordx2 v9, {v(T+2*q,2)}, s[6:7] offset:{16*q}")
    A(";TS5")
    A("K4_end:\ns_endpgm")
    return kdesc("ffn2_kernel", 112 + 16 * RING, 32, accum=112)
```

```python
import sys, os
import re
from common import *
from k1 import *
from k2 import *
from k3 import *
from k4 import *

def ke(A):
    A(""".globl empty_kernel
.p2align 8
.type empty_kernel,@function
empty_kernel:
s_endpgm""")
    return kdesc("empty_kernel", 8, 16)

KS = {'1': ("prep_kernel", K1_GRID, K1_LDS, k1), '2': ("conv_kernel", K2_GRID, K2_LDS, k2),
      '3': ("ffn1_kernel", K3_GRID, K3_LDS, k3), '4': ("ffn2_kernel", K4_GRID, K4_LDS, k4),
      'e': ("empty_kernel", 1, 0, ke)}

WS_TS = 0x2000000
def add_stamps(A, names):
    out = []
    for ln in A.lines:
        t = ln.strip()
        if t[:-1] in names and t.endswith(':'):
            ki = names.index(t[:-1])
            out.append(ln)
            out += ["  " + x for x in f"""s_memrealtime s[90:91]
s_memtime s[80:81]
s_load_dwordx2 s[92:93], s[0:1], 136
v_lshrrev_b32 v1, 6, v0
s_nop 1
v_readfirstlane_b32 s94, v1
s_lshl_b32 s95, s2, 3
s_add_u32 s94, s94, s95
s_lshl_b32 s94, s94, 6
s_add_u32 s94, s94, {WS_TS + ki * 0x80000}
s_mov_b32 s82, 0
s_mov_b32 s84, 0
s_mov_b32 s86, 0
s_mov_b32 s88, 0
s_mov_b32 s76, 0
s_mov_b32 s78, 0
s_waitcnt lgkmcnt(0)""".split("\n")]
        elif t.startswith(";TS"):
            i = int(t[3:]); r = [82, 84, 86, 88, 76, 78][i]
            out.append(f"  s_memtime s[{r}:{r+1}]")
        elif t == "s_endpgm":
            out += ["  " + x for x in """s_waitcnt vmcnt(0) lgkmcnt(0)
s_memrealtime s[96:97]
s_memtime s[98:99]
s_getreg_b32 s100, hwreg(HW_REG_HW_ID)
s_getreg_b32 s101, hwreg(HW_REG_XCC_ID)
s_mov_b64 exec, 1
s_waitcnt lgkmcnt(0)
v_mov_b32 v0, s90
v_mov_b32 v1, s96
v_mov_b32 v2, s100
v_mov_b32 v3, s101
v_mov_b32 v4, s80
v_mov_b32 v5, s82
v_mov_b32 v6, s84
v_mov_b32 v7, s86
v_mov_b32 v8, s88
v_mov_b32 v9, s76
v_mov_b32 v10, s78
v_mov_b32 v11, s98
v_mov_b32 v12, s94
global_store_dwordx4 v12, v[0:3], s[92:93]
global_store_dwordx4 v12, v[4:7], s[92:93] offset:16
global_store_dwordx4 v12, v[8:11], s[92:93] offset:32
s_endpgm""".split("\n")]
        else: out.append(ln)
    A.lines = out

def add_dbg(A, names):
    out = []; n = 0
    for ln in A.lines:
        t = ln.strip()
        if t[:-1] in names and t.endswith(':'):
            ki = names.index(t[:-1])
            out.append(ln)
            out += ["  " + x for x in f"""s_memrealtime s[90:91]
s_load_dwordx2 s[92:93], s[0:1], 128
v_lshrrev_b32 v1, 6, v0
s_nop 1
v_readfirstlane_b32 s94, v1
s_lshr_b32 s95, s2, 3
s_xor_b32 s95, s95, s2
s_and_b32 s95, s95, 7
s_or_b32 s94, s94, s95
s_waitcnt lgkmcnt(0)
s_add_u32 s92, s92, {(3 - ki) * 512 + ki * 16}
s_addc_u32 s93, s93, 0""".split("\n")]
        elif t == "s_endpgm":
            n += 1
            out += ["  " + x for x in f"""s_cmp_lg_u32 s94, 0
s_cbranch_scc1 DBGE{n}
s_waitcnt vmcnt(0) lgkmcnt(0)
s_memrealtime s[96:97]
s_mov_b64 exec, 1
s_not_b32 s90, s90
s_waitcnt lgkmcnt(0)
v_mov_b32 v0, s90
v_mov_b32 v1, s96
v_mov_b32 v2, 0
global_atomic_umax v2, v0, s[92:93]
global_atomic_umax v2, v1, s[92:93] offset:4
DBGE{n}:
s_endpgm""".split("\n")]
        else: out.append(ln)
    A.lines = out

def main():
    A = Asm()
    which = sys.argv[2] if len(sys.argv) > 2 else "1234"
    hdr = []
    descs = []
    A('.amdgcn_target "amdgcn-amd-amdhsa--gfx950"\n.text')
    seen = set()
    for ch in which:
        name, grid, lds, fn = KS[ch]
        hdr.append(f"; @launch kernel={name} grid=({grid},1,1) block=(256,1,1) lds={lds}")
        if ch not in seen: descs.append(fn(A)); seen.add(ch)
    if os.environ.get("DBG"): add_dbg(A, [KS[ch][0] for ch in "1234"])
    if os.environ.get("TS"): add_stamps(A, [KS[ch][0] for ch in "1234"])
    txt = "; generated by dev/gen.py (hand-written generator); see comments there\n" + "\n".join(hdr) + "\n" + A.text() + '.section .rodata,"a"\n' + ("".join(descs) if not (os.environ.get("TS") or os.environ.get("DBG")) else re.sub(r"next_free_sgpr \d+", "next_free_sgpr 102", "".join(descs)))
    open(sys.argv[1], "w").write(txt)

if __name__ == "__main__":
    main()
```

```python
import sys, os
import re
from common import *
from k1 import *
from k2 import *
from k3 import *
from k4 import *

def ke(A):
    A(""".globl empty_kernel
.p2align 8
.type empty_kernel,@function
empty_kernel:
s_endpgm""")
    return kdesc("empty_kernel", 8, 16)

def kz(A):
    a, b = [int(x) for x in os.environ["ZQ"].split(",")]
    A(f""".globl z_kernel
.p2align 8
.type z_kernel,@function
z_kernel:
s_cmp_lg_u32 s2, 0
s_cbranch_scc1 Zend
s_memrealtime s[10:11]
s_load_dwordx2 s[4:5], s[0:1], 128
v_mov_b32 v1, 0
s_waitcnt lgkmcnt(0)
global_load_dword v2, v1, s[4:5] offset:{16*a} sc1
global_load_dword v3, v1, s[4:5] offset:{16*b+4} sc1
s_waitcnt vmcnt(0)
v_readfirstlane_b32 s6, v2
v_readfirstlane_b32 s7, v3
s_nop 3
s_not_b32 s6, s6
s_sub_u32 s6, s7, s6
s_min_u32 s6, s6, 10000
s_lshl_b32 s6, s6, 2
Zl:
s_memrealtime s[12:13]
s_waitcnt lgkmcnt(0)
s_sub_u32 s8, s12, s10
s_cmp_lt_u32 s8, s6
s_cbranch_scc1 Zl
Zend:
s_endpgm""")
    return kdesc("z_kernel", 8, 16)

KS = {'z': ("z_kernel", 1, 0, kz),'1': ("prep_kernel", K1_GRID, K1_LDS, k1), '2': ("conv_kernel", K2_GRID, K2_LDS, k2),
      '3': ("ffn1_kernel", K3_GRID, K3_LDS, k3), '4': ("ffn2_kernel", K4_GRID, K4_LDS, k4),
      'e': ("empty_kernel", 1, 0, ke)}

WS_TS = 0x2000000
def add_stamps(A, names):
    out = []
    for ln in A.lines:
        t = ln.strip()
        if t[:-1] in names and t.endswith(':'):
            ki = names.index(t[:-1])
            out.append(ln)
            out += ["  " + x for x in f"""s_memrealtime s[90:91]
s_memtime s[80:81]
s_load_dwordx2 s[92:93], s[0:1], 136
v_lshrrev_b32 v1, 6, v0
s_nop 1
v_readfirstlane_b32 s94, v1
s_lshl_b32 s95, s2, 3
s_add_u32 s94, s94, s95
s_lshl_b32 s94, s94, 6
s_add_u32 s94, s94, {WS_TS + ki * 0x80000}
s_mov_b32 s82, 0
s_mov_b32 s84, 0
s_mov_b32 s86, 0
s_mov_b32 s88, 0
s_mov_b32 s76, 0
s_mov_b32 s78, 0
s_waitcnt lgkmcnt(0)""".split("\n")]
        elif t.startswith(";TS"):
            i = int(t[3:]); r = [82, 84, 86, 88, 76, 78][i]
            out.append(f"  s_memtime s[{r}:{r+1}]")
        elif t == "s_endpgm":
            out += ["  " + x for x in """s_waitcnt vmcnt(0) lgkmcnt(0)
s_memrealtime s[96:97]
s_memtime s[98:99]
s_getreg_b32 s100, hwreg(HW_REG_HW_ID)
s_getreg_b32 s101, hwreg(HW_REG_XCC_ID)
s_mov_b64 exec, 1
s_waitcnt lgkmcnt(0)
v_mov_b32 v0, s90
v_mov_b32 v1, s96
v_mov_b32 v2, s100
v_mov_b32 v3, s101
v_mov_b32 v4, s80
v_mov_b32 v5, s82
v_mov_b32 v6, s84
v_mov_b32 v7, s86
v_mov_b32 v8, s88
v_mov_b32 v9, s76
v_mov_b32 v10, s78
v_mov_b32 v11, s98
v_mov_b32 v12, s94
global_store_dwordx4 v12, v[0:3], s[92:93]
global_store_dwordx4 v12, v[4:7], s[92:93] offset:16
global_store_dwordx4 v12, v[8:11], s[92:93] offset:32
s_endpgm""".split("\n")]
        else: out.append(ln)
    A.lines = out

def add_dbg(A, names):
    out = []; n = 0
    NL = len(sys.argv[2]); inz = False
    for ln in A.lines:
        t = ln.strip()
        if t in ("z_kernel:", "empty_kernel:"): inz = True
        if inz: out.append(ln); continue
        if t[:-1] in names and t.endswith(':'):
            ki = names.index(t[:-1])
            out.append(ln)
            out += ["  " + x for x in f"""s_memrealtime s[90:91]
s_load_dwordx2 s[92:93], s[0:1], 128
v_lshrrev_b32 v1, 6, v0
s_nop 1
v_readfirstlane_b32 s94, v1
s_lshr_b32 s95, s2, 3
s_xor_b32 s95, s95, s2
s_and_b32 s95, s95, 7
s_or_b32 s94, s94, s95
s_waitcnt lgkmcnt(0)
s_add_u32 s92, s92, {(NL - 1 - ki) * 512 + ki * 16}
s_addc_u32 s93, s93, 0""".split("\n")]
        elif t == "s_endpgm":
            n += 1
            out += ["  " + x for x in f"""s_cmp_lg_u32 s94, 0
s_cbranch_scc1 DBGE{n}
s_waitcnt vmcnt(0) lgkmcnt(0)
s_memrealtime s[96:97]
s_mov_b64 exec, 1
s_not_b32 s90, s90
s_waitcnt lgkmcnt(0)
v_mov_b32 v0, s90
v_mov_b32 v1, s96
v_mov_b32 v2, 0
global_atomic_umax v2, v0, s[92:93]
global_atomic_umax v2, v1, s[92:93] offset:4
DBGE{n}:
s_endpgm""".split("\n")]
        else: out.append(ln)
    A.lines = out

def main():
    A = Asm()
    which = sys.argv[2] if len(sys.argv) > 2 else "1234"
    hdr = []
    descs = []
    A('.amdgcn_target "amdgcn-amd-amdhsa--gfx950"\n.text')
    seen = set()
    for ch in which:
        name, grid, lds, fn = KS[ch]
        hdr.append(f"; @launch kernel={name} grid=({grid},1,1) block=(256,1,1) lds={lds}")
        if ch not in seen: descs.append(fn(A)); seen.add(ch)
    if os.environ.get("DBG"): add_dbg(A, [KS[ch][0] for ch in "1234"])
    if os.environ.get("TS"): add_stamps(A, [KS[ch][0] for ch in "1234"])
    txt = "; generated by dev/gen.py (hand-written generator); see comments there\n" + "\n".join(hdr) + "\n" + A.text() + '.section .rodata,"a"\n' + ("".join(descs) if not (os.environ.get("TS") or os.environ.get("DBG")) else re.sub(r"next_free_sgpr \d+", "next_free_sgpr 102", "".join(descs)))
    open(sys.argv[1], "w").write(txt)

if __name__ == "__main__":
    main()
```

```python
from common import *
K1_KG, K1_LN, K1_MOD = 448, 64, 84
K1_GRID = K1_KG + K1_LN + K1_MOD
K1_LDS = 32 * RS

def k1(A):
    A(f""".globl prep_kernel
.p2align 8
.type prep_kernel,@function
prep_kernel:
s_cmp_lt_u32 s2, {K1_LN + K1_MOD}
s_cbranch_scc1 K1_other
s_cmp_ge_u32 s2, {K1_GRID}
s_cbranch_scc1 K1_end
s_sub_u32 s2, s2, {K1_LN + K1_MOD}
s_load_dwordx16 s[4:19], s[0:1], 8
s_load_dwordx2 s[20:21], s[0:1], 136
s_getpc_b64 s[22:23]
K1_pc:
s_add_u32 s22, s22, ktab-K1_pc
s_addc_u32 s23, s23, 0
s_lshl_b32 s3, s2, 9
v_lshlrev_b32 v3, 4, v0
v_lshl_add_u32 v1, v0, 1, s3
s_lshl_b32 s3, s2, 1
v_mov_b32 v2, s3
""")
    for r in range(10, 17): A(f"v_mov_b32 v{r}, 0")
    A("global_load_dwordx4 v[20:23], v3, s[22:23]")
    A("s_waitcnt lgkmcnt(0)")
    A("global_load_short_d16_hi v16, v2, s[16:17]")
    for i in range(6): A(f"global_load_short_d16_hi v{10+i}, v1, s[{4+2*i}:{5+2*i}]")
    A(f"""
v_lshrrev_b32 v4, 6, v0
v_and_b32 v5, 63, v0
v_readfirstlane_b32 s24, v4
v_and_b32 v6, 31, v5
v_lshrrev_b32 v7, 5, v5
s_lshl_b32 s24, s24, 8
s_mov_b32 m0, s24
v_mul_u32_u24 v8, {RS}, v6
v_lshl_add_u32 v8, v7, 4, v8
v_add_u32 v8, s24, v8
v_mul_u32_u24 v9, {4*RS}, v7
v_lshl_add_u32 v9, v6, 2, v9
v_add_u32 v9, s24, v9
s_lshl_b32 s3, s2, 12
s_add_u32 s3, s3, {WS_KG}
s_add_u32 s20, s20, s3
s_addc_u32 s21, s21, 0
s_mov_b32 s25, {LOG2E}
s_waitcnt vmcnt(6)
v_mul_f32 v16, s25, v16
v_exp_f32 v16, v16
""")
    for e in range(8):
        src = 20 + e // 2
        A(f"v_and_b32 v{24+e}, 0xffff, v{src}" if e % 2 == 0 else f"v_lshrrev_b32 v{24+e}, 16, v{src}")
    A("""
v_cvt_pk_bf16_f32 v16, v16, v16
v_and_b32 v16, 0xffff0000, v16        ; dt
s_waitcnt vmcnt(0)
;TS0
v_mul_f32 v10, v16, v10
v_mul_f32 v11, v16, v11
v_mul_f32 v10, s25, v10
v_mul_f32 v11, 0.15915494, v11
v_mul_f32 v12, v16, v12               ; dB
v_mul_f32 v13, v16, v13
""")
    def zdirect(dst, l, t):
        if l == 1:
            A(f"v_fract_f32 v{t+1}, v11\nv_exp_f32 v{t}, v10")
        else:
            A(f"v_mul_f32 v{t+1}, {hex(f2u(float(l)))}, v11\nv_mul_f32 v{t}, {hex(f2u(float(l)))}, v10\nv_fract_f32 v{t+1}, v{t+1}\nv_exp_f32 v{t}, v{t}")
        A(f"v_cos_f32 v{dst}, v{t+1}\nv_sin_f32 v{dst+1}, v{t+1}")
        A(f"v_pk_mul_f32 {v(dst,2)}, {v(dst,2)}, {v(t,2)} op_sel_hi:[1,0]")
    Z1, Z8, P = 32, 34, 36
    zdirect(Z1, 1, 18); zdirect(P, 256, 18); zdirect(Z8, 8, 18)
    X = lambda i: 40 + 2 * i
    seq = [(0, 14, 12)]
    for i in range(1, 8): seq.append((i, X(i - 1), Z1))
    for i, srci in ((8, 0), (9, 2), (10, 4), (11, 6), (12, 8), (14, 10), (13, 12), (15, 14), (16, 13), (17, 16), (18, 17), (19, 18), (20, 19)):
        seq.append((i, X(srci), P))
    pend = None
    T = [84, 85]
    for n, (i, a, b) in enumerate(seq):
        m, f_ = cmul(A, X(i), a, b)
        A(m)
        if pend is not None: A(f"v_cvt_pk_bf16_f32 v{T[n&1]}, v{X(pend)}, -v{X(pend)+1}")
        A(f_)
        if pend is not None: A(f"ds_write_addtid_b32 v{T[n&1]} offset:{pend*RS}")
        pend = i
    A(f"v_cvt_pk_bf16_f32 v{T[0]}, v{X(pend)}, -v{X(pend)+1}")
    A(f"v_mov_b32 v{T[1]}, 0x3f80")
    A(f"ds_write_addtid_b32 v{T[0]} offset:{pend*RS}")
    AF, BF, ACC = 88, 44, 120
    A(";TS1")
    for ks in range(8): A(f"ds_read_b128 {v(AF+4*ks,4)}, v8 offset:{ks*32}")
    A(f"ds_write_addtid_b32 v{T[1]} offset:0")
    Y = [40, 42]
    prev = Z8; pend = (1, Z8)
    for j in range(2, 32):
        d = Y[j & 1]
        m, f_ = cmul(A, d, prev, Z8)
        A(m)
        A(f"v_cvt_pk_bf16_f32 v{T[j&1]}, v{pend[1]}, v{pend[1]+1}")
        A(f_)
        A(f"ds_write_addtid_b32 v{T[j&1]} offset:{pend[0]*RS}")
        prev = d; pend = (j, d)
    A(f"v_cvt_pk_bf16_f32 v{T[0]}, v{pend[1]}, v{pend[1]+1}")
    A(f"ds_write_addtid_b32 v{T[0]} offset:{pend[0]*RS}")
    A(";TS2")
    for ks in range(8): A(f"ds_read_b128 {v(BF+4*ks,4)}, v8 offset:{ks*32}")
    for ks in range(8):
        A(f"s_waitcnt lgkmcnt({7-ks})")
        A(f"v_mfma_f32_32x32x16_bf16 {v(ACC,16)}, {v(AF+4*ks,4)}, {v(BF+4*ks,4)}, {'0' if ks==0 else v(ACC,16)}")
    for r in range(12):
        A(f"ds_write_b32 v9, v{ACC+r} offset:{((r&3)+8*(r>>2))*RS}")
    A("s_waitcnt lgkmcnt(0)\ns_barrier")
    E = 40
    A(";TS3")
    for e in range(8):
        A(f"ds_read2st64_b32 {v(E+4*e,2)}, v{24+e} offset0:0 offset1:1")
        A(f"ds_read2st64_b32 {v(E+4*e+2,2)}, v{24+e} offset0:2 offset1:3")
        if e == 3: pass
    for e in range(8):
        A(f"s_waitcnt lgkmcnt({14-2*e})")
        A(f"v_pk_add_f32 {v(E+4*e,2)}, {v(E+4*e,2)}, {v(E+4*e+2,2)}")
        A(f"v_add_f32 v{E+4*e}, v{E+4*e}, v{E+4*e+1}")
        if e & 1: A(f"v_cvt_pk_bf16_f32 v{80+e//2}, v{E+4*e-4}, v{E+4*e}")
    A(";TS4")
    A("global_store_dwordx4 v3, v[80:83], s[20:21]\ns_endpgm")

    LS = 928
    A(f"""
K1_other:
s_cmp_ge_u32 s2, {K1_LN}
s_cbranch_scc1 K1_mod
s_load_dwordx2 s[4:5], s[0:1], 0
s_load_dwordx2 s[6:7], s[0:1], 136
s_mov_b32 s3, s2                      ; t-block
s_mul_i32 s8, s3, {TB}
v_lshrrev_b32 v1, 3, v0               ; row
v_and_b32 v2, 7, v0                   ; sub
v_mul_u32_u24 v3, 896, v1
v_lshl_add_u32 v3, v2, 4, v3
v_mul_u32_u24 v4, {LS}, v1
v_lshl_add_u32 v4, v2, 4, v4
s_waitcnt lgkmcnt(0)
s_add_u32 s4, s4, s8
s_addc_u32 s5, s5, 0
""")
    for i in range(7): A(f"global_load_dwordx4 {v(16+4*i,4)}, v3, s[4:5] offset:{128*i}")
    A(f"""
s_add_u32 s10, s6, s8
s_addc_u32 s11, s7, 0
s_lshl_b32 s9, s3, 7
s_add_u32 s9, s9, {WS_STM}
s_add_u32 s12, s6, s9
s_addc_u32 s13, s7, 0
v_lshlrev_b32 v5, 2, v1               ; row*4
v_lshrrev_b32 v6, 6, v0               ; w
v_bfe_u32 v7, v0, 4, 2                ; g
v_bfe_u32 v8, v0, 2, 2                ; e
v_and_b32 v9, 3, v0                   ; cq
v_lshl_add_u32 v8, v7, 3, v8
v_mul_u32_u24 v8, {LS}, v8
v_lshl_add_u32 v8, v9, 3, v8
v_lshl_add_u32 v8, v6, 5, v8
v_and_b32 v9, 15, v0
v_lshlrev_b32 v9, 6, v9
v_lshl_add_u32 v9, v7, 4, v9
v_lshl_add_u32 v9, v6, 10, v9
s_mov_b32 s14, {ONES}
v_mov_b32 v10, 0
v_mov_b32 v11, 0
""")
    for i in range(7):
        A(f"s_waitcnt vmcnt({6-i})")
        A(f"ds_write_b128 v4, {v(16+4*i,4)} offset:{128*i}")
        for j in range(4): A(f"v_dot2_f32_bf16 v{10+(j&1)}, v{16+4*i+j}, s14, v{10+(j&1)}")
    def red8(r, t):
        A(f"""
v_add_f32_dpp v{r}, v{r}, v{r} quad_perm:[1,0,3,2] row_mask:0xf bank_mask:0xf
v_add_f32_dpp v{r}, v{r}, v{r} quad_perm:[2,3,0,1] row_mask:0xf bank_mask:0xf
v_add_f32_dpp v{r}, v{r}, v{r} row_half_mirror row_mask:0xf bank_mask:0xf
""")
    A("v_add_f32 v10, v10, v11")
    red8(10, 11)
    A(f"""
v_mul_f32 v10, {hex(INV448)}, v10     ; mean
s_waitcnt lgkmcnt(0)
s_barrier
""")
    for c in range(7):
        A(f"ds_read_b64_tr_b16 {v(48+4*c,2)}, v8 offset:{128*c}")
        A(f"ds_read_b64_tr_b16 {v(50+4*c,2)}, v8 offset:{128*c+4*LS}")
    A("v_mov_b32 v12, 0\nv_mov_b32 v13, 0\nv_mov_b32 v11, v10")
    for k in range(28):
        t = 76 + 2 * (k & 1)
        A(f"v_lshlrev_b32 v{t}, 16, v{16+k}\nv_and_b32 v{t+1}, 0xffff0000, v{16+k}")
        A(f"v_pk_add_f32 {v(t,2)}, {v(t,2)}, v[10:11] neg_lo:[0,1] neg_hi:[0,1]")
        A(f"v_pk_fma_f32 v[12:13], {v(t,2)}, {v(t,2)}, v[12:13]")
        if k % 4 == 3:
            c = k // 4
            A(f"s_waitcnt lgkmcnt({12-2*c})")
            if c: A(f"v_add_u32 v9, 4096, v9")
            A(f"global_store_dwordx4 v9, {v(48+4*c,4)}, s[10:11]")
    A("v_add_f32 v12, v12, v13")
    red8(12, 13)
    A(f"""
v_mul_f32 v12, {hex(INV448)}, v12     ; var
v_cvt_pk_bf16_f32 v10, v10, v12
v_and_b32 v12, 0xffff0000, v10
v_lshlrev_b32 v10, 16, v10
v_add_f32 v12, {hex(EPS)}, v12
v_cvt_pk_bf16_f32 v12, v12, v12
v_and_b32 v12, 0xffff0000, v12
v_sqrt_f32 v12, v12
v_cvt_pk_bf16_f32 v12, v12, v12
v_and_b32 v12, 0xffff0000, v12
v_rcp_f32 v12, v12
v_add_u32 v6, {WS_STR - WS_STM}, v5
global_store_dword v5, v10, s[12:13]
global_store_dword v6, v12, s[12:13]
s_lshl_b32 s9, s3, 9
s_add_u32 s9, s9, {WS_FL}
v_lshl_add_u32 v6, v5, 2, s9
v_mov_b32 v13, 0
global_store_dword v6, v13, s[6:7]
s_endpgm
""")
    A(f"""
K1_mod:
s_load_dwordx4 s[4:7], s[0:1], 104    ; c, w_mod
s_load_dwordx2 s[8:9], s[0:1], 136
s_sub_u32 s3, s2, {K1_LN}
v_lshrrev_b32 v1, 2, v0               ; rg
v_and_b32 v2, 3, v0                   ; cc
v_mul_u32_u24 v3, 5376, v1
v_lshl_add_u32 v3, v2, 4, v3
s_lshl_b32 s10, s3, 6
v_add_u32 v3, s10, v3                 ; w off
v_lshlrev_b32 v4, 1, v1               ; c off
""")
    for i in range(7): A(f"v_mov_b32 v{8+i}, 0")
    A("s_waitcnt lgkmcnt(0)")
    for i in range(7): A(f"global_load_short_d16_hi v{8+i}, v4, s[4:5] offset:{128*i}")
    for i in range(7):
        A(f"global_load_dwordx4 {v(16+4*i,4)}, v3, s[6:7]")
        if i < 6: A(f"v_add_u32 v3, {64*5376}, v3")
    A(f"""
s_lshl_b32 s10, s3, 7
s_add_u32 s10, s10, {WS_MOD}
s_add_u32 s8, s8, s10
s_addc_u32 s9, s9, 0
s_mov_b32 s11, {hex(LOG2E | 0x80000000)}
v_lshrrev_b32 v5, 4, v0
v_lshlrev_b32 v5, 7, v5
v_lshl_add_u32 v5, v2, 5, v5
v_lshlrev_b32 v6, 2, v0
s_waitcnt vmcnt(7)
""")
    for i in range(7): A(f"v_mul_f32 v{44+i}, s11, v{8+i}")
    for i in range(7): A(f"v_exp_f32 v{44+i}, v{44+i}")
    for i in range(7): A(f"v_add_f32 v{44+i}, 1.0, v{44+i}")
    for i in range(7): A(f"v_rcp_f32 v{44+i}, v{44+i}")
    for i in range(7): A(f"v_mul_f32 v{8+i}, v{8+i}, v{44+i}")
    for i in range(7): A(f"v_cvt_pk_bf16_f32 v{8+i}, v{8+i}, v{8+i}")
    for i in range(7): A(f"v_and_b32 v{52+2*i}, 0xffff0000, v{8+i}")
    AC = 68
    for i in range(7):
        A(f"s_waitcnt vmcnt({6-i})")
        for j in range(4):
            t = 44 + 2 * j
            A(f"v_lshlrev_b32 v{t}, 16, v{16+4*i+j}\nv_and_b32 v{t+1}, 0xffff0000, v{16+4*i+j}")
        for j in range(4):
            t = 44 + 2 * j
            if i == 0: A(f"v_pk_mul_f32 {v(AC+2*j,2)}, {v(t,2)}, {v(52+2*i,2)} op_sel_hi:[1,0]")
            else: A(f"v_pk_fma_f32 {v(AC+2*j,2)}, {v(t,2)}, {v(52+2*i,2)}, {v(AC+2*j,2)} op_sel_hi:[1,0,1]")
    for sh in (8, 4):
        for j in range(8): A(f"v_add_f32_dpp v{AC+j}, v{AC+j}, v{AC+j} row_ror:{sh} row_mask:0xf bank_mask:0xf")
    A(f"""
ds_write_b128 v5, {v(AC,4)}
ds_write_b128 v5, {v(AC+4,4)} offset:16
s_waitcnt lgkmcnt(0)
s_barrier
v_cmp_gt_u32 vcc, 32, v0
s_and_saveexec_b64 s[12:13], vcc
s_cbranch_execz K1_end
""")
    for i in range(8): A(f"ds_read2_b32 {v(16+2*i,2)}, v6 offset0:{64*i} offset1:{64*i+32}" if 64*i+32 < 256 else f"ds_read2_b32 {v(16+2*i,2)}, v7 offset0:{64*i-256} offset1:{64*i+32-256}") if i != 4 else A(f"v_add_u32 v7, 1024, v6\nds_read2_b32 {v(16+2*i,2)}, v7 offset0:0 offset1:32")
    A("s_waitcnt lgkmcnt(0)")
    for i in range(4): A(f"v_pk_add_f32 {v(16+2*i,2)}, {v(16+2*i,2)}, {v(24+2*i,2)}")
    for i in range(2): A(f"v_pk_add_f32 {v(16+2*i,2)}, {v(16+2*i,2)}, {v(20+2*i,2)}")
    A("""
v_pk_add_f32 v[16:17], v[16:17], v[18:19]
v_add_f32 v16, v16, v17
v_cvt_pk_bf16_f32 v16, v16, v16
v_and_b32 v16, 0xffff0000, v16
global_store_dword v6, v16, s[8:9]
K1_end:
s_endpgm
""")
    tab = ktable()
    A(".p2align 4\n.type ktab,@object\nktab:")
    for i in range(0, 2048, 16): A(".short " + ", ".join(str(t) for t in tab[i:i+16]))
    A(".size ktab, 4096")
    return kdesc("prep_kernel", 136, 32)
```

```python
from common import *
K2_CV, K2_GU, K2_DN = 224, 112, 49
K2_GRID = K2_CV + K2_GU + K2_DN
KC = 4160
L_K = 0
L_H = 4 * KC
HS = 4608
L_Y = L_H + 2 * HS
YW = 10240
K2_LDS = L_Y + 4 * YW

def k2(A):
    A(f""".globl conv_kernel
.p2align 8
.type conv_kernel,@function
conv_kernel:
s_cmp_ge_u32 s2, {K2_CV}
s_cbranch_scc1 K2_other
s_load_dwordx2 s[4:5], s[0:1], 136
s_load_dwordx2 s[6:7], s[0:1], 64     ; Dskip
v_lshrrev_b32 v1, 2, v0
v_mul_u32_u24 v1, {TB}, v1
v_and_b32 v2, 3, v0
v_lshl_add_u32 v1, v2, 4, v1
s_lshl_b32 s3, s2, 7
v_add_u32 v1, s3, v1
v_lshlrev_b32 v2, 4, v0               ; tid*16
v_lshlrev_b32 v3, 5, v0               ; tid*32
s_lshl_b32 s8, s2, 13
s_add_u32 s8, s8, {WS_KG}
s_lshl_b32 s9, s2, 3
s_add_u32 s9, s9, {WS_MOD}
s_lshl_b32 s10, s2, 2
s_waitcnt lgkmcnt(0)
s_add_u32 s12, s4, s8
s_addc_u32 s13, s5, 0                 ; KG + d0*4096
s_add_u32 s14, s4, {WS_STM}
s_addc_u32 s15, s5, 0
s_add_u32 s16, s4, s9
s_addc_u32 s17, s5, 0                 ; MOD + d0*4
s_add_u32 s6, s6, s10
s_addc_u32 s7, s7, 0
global_load_dwordx4 v[8:11], v1, s[4:5]
global_load_dwordx4 v[12:15], v1, s[4:5] offset:64
global_load_dwordx4 v[16:19], v3, s[14:15]
global_load_dwordx4 v[20:23], v3, s[14:15] offset:16
v_add_u32 v4, {WS_STR - WS_STM}, v3
global_load_dwordx4 v[24:27], v4, s[14:15]
global_load_dwordx4 v[28:31], v4, s[14:15] offset:16
v_add_u32 v4, 4096, v2
global_load_dwordx4 v[32:35], v2, s[12:13]
global_load_dword v36, v2, s[12:13] offset:16
global_load_dwordx4 v[40:43], v4, s[12:13]
global_load_dword v44, v4, s[12:13] offset:16
s_load_dwordx2 s[20:21], s[16:17], 0        ; sa
s_load_dwordx2 s[22:23], s[16:17], {448*4}  ; ca
s_load_dwordx2 s[24:25], s[16:17], {896*4}  ; ga
s_load_dword s26, s[6:7], 0
s_add_u32 s18, s4, {WS_X1T}
s_addc_u32 s19, s5, 0
v_mov_b32 v48, 0
v_mov_b32 v49, 0
v_mov_b32 v50, 0
v_mov_b32 v51, 0
v_lshrrev_b32 v5, 5, v0
v_mul_u32_u24 v5, {HS}, v5
v_and_b32 v6, 31, v0
v_lshl_add_u32 v5, v6, 4, v5
v_add_u32 v5, {L_H}, v5
v_bfe_u32 v6, v0, 1, 2
v_mul_u32_u24 v6, {KC}, v6
v_and_b32 v7, 1, v0
v_lshl_add_u32 v6, v7, 4, v6
v_add_u32 v6, 4096, v6
v_cmp_gt_u32 vcc, 64, v0
v_cndmask_b32 v5, v6, v5, vcc
ds_write_b128 v5, v[48:51]
v_lshrrev_b32 v5, 6, v0               ; w
v_and_b32 v6, 15, v0                  ; m / p
v_bfe_u32 v7, v0, 4, 2                ; kq
v_readfirstlane_b32 s27, v5
s_lshr_b32 s28, s27, 1                ; ch
s_and_b32 s29, s27, 1                 ; half
v_and_b32 v52, 1, v6
v_xor_b32 v52, 1, v52
v_mul_u32_u24 v52, {KC}, v52
v_lshrrev_b32 v53, 1, v6
v_lshlrev_b32 v53, 2, v53
v_sub_u32 v52, v52, v53
v_lshl_add_u32 v52, v7, 4, v52
s_mul_i32 s30, s28, {2*KC}
s_lshl_b32 s31, s29, 8
s_sub_u32 s30, s30, s31
s_add_u32 s30, s30, {L_K + 4060 - 192 - 512}
v_add_u32 v52, s30, v52
v_subrev_u32 v53, 1024, v52
v_subrev_u32 v54, 2048, v52
v_subrev_u32 v55, 3072, v52
v_lshlrev_b32 v56, 5, v6
v_lshl_add_u32 v56, v7, 4, v56
s_mul_i32 s30, s28, {HS}
s_sub_u32 s30, s30, s31
s_add_u32 s30, s30, {L_H + 480 - 192}
v_add_u32 v56, s30, v56
v_mul_u32_u24 v57, 320, v7
v_lshl_add_u32 v57, v6, 4, v57
s_mul_i32 s30, s27, {YW}
s_add_u32 s30, s30, {L_Y}
v_add_u32 v57, s30, v57
v_lshrrev_b32 v58, 5, v0
v_mul_u32_u24 v58, 1280, v58
v_and_b32 v59, 1, v0
v_mul_u32_u24 v59, 640, v59
v_add_u32 v58, v58, v59
v_bfe_u32 v59, v0, 1, 4
v_lshl_add_u32 v58, v59, 4, v58
v_add_u32 v58, {L_Y}, v58
v_cmp_eq_u32 vcc, 255, v0
s_waitcnt lgkmcnt(0)
v_add_f32 v60, 1.0, s22
v_add_f32 v61, 1.0, s23
v_cvt_pk_bf16_f32 v60, v60, v61
v_and_b32 v62, 0xffff0000, v60
v_lshlrev_b32 v60, 16, v60
v_mov_b32 v64, s20
v_mov_b32 v66, s21
s_waitcnt vmcnt(4)
;TS0
""")
    for ch in range(2):
        for j in range(4):
            t = 80 + 2 * j
            A(f"v_lshlrev_b32 v{t}, 16, v{8+4*ch+j}\nv_and_b32 v{t+1}, 0xffff0000, v{8+4*ch+j}")
        for j in range(4): A(f"v_pk_add_f32 {v(80+2*j,2)}, {v(80+2*j,2)}, {v(16+2*j,2)} neg_lo:[0,1] neg_hi:[0,1]")
        for j in range(4): A(f"v_pk_mul_f32 {v(80+2*j,2)}, {v(80+2*j,2)}, {v(24+2*j,2)}")
        for j in range(4): A(f"v_pk_fma_f32 {v(80+2*j,2)}, {v(80+2*j,2)}, {v(60+2*ch,2)}, {v(64+2*ch,2)} op_sel_hi:[1,0,0]")
        for j in range(4): A(f"v_cvt_pk_bf16_f32 v{68+4*ch+j}, v{80+2*j}, v{81+2*j}")
        A(f"ds_write_b128 v2, {v(68+4*ch,4)} offset:{L_H + ch*HS + 512}")
    for ch in range(2):
        b = 32 + 8 * ch
        A(f"s_waitcnt vmcnt({2-2*ch})")
        A(f"v_cndmask_b32 v{b+4}, v{b+4}, v48, vcc")
        A(f"ds_write_b128 v2, {v(b,4)} offset:{L_K + ch*2*KC}")
        for j in range(4): A(f"v_alignbit_b32 v{80+4*ch+j}, v{b+j+1}, v{b+j}, 16")
        A(f"ds_write_b128 v2, {v(80+4*ch,4)} offset:{L_K + ch*2*KC + KC}")
    A("s_waitcnt lgkmcnt(0)\ns_barrier")
    A(";TS1")
    ACC = 88
    FB = [120, 184]
    def reads(s, buf):
        out = []
        base = FB[buf]
        for c in range(8): out.append(f"ds_read_b128 {v(base+32+4*c,4)}, v56 offset:{512*c + 192 - 64*s}")
        for G in range(8):
            o = (512 * (1 - (G & 1)) + 192 - 64 * s) // 4
            out.append(f"ds_read2_b32 {v(base+4*G,2)}, v{52+G//2} offset0:{o} offset1:{o+1}")
            out.append(f"ds_read2_b32 {v(base+4*G+2,2)}, v{52+G//2} offset0:{o+2} offset1:{o+3}")
        return out
    for r in reads(0, 0): A(r)
    for s in range(4):
        base = FB[s & 1]
        nxt = reads(s + 1, (s + 1) & 1) if s < 3 else []
        if s > 0: A("s_waitcnt lgkmcnt(0)")
        n = 0
        for G in range(8):
            if s == 0: A(f"s_waitcnt lgkmcnt({min(15, 14 - 2*G + 0)})") if G == 0 else None
            if s == 0 and G == 1: A("s_waitcnt lgkmcnt(0)")
            for c in range(G, 8):
                first = (s == 0 and G == 0)
                A(f"v_mfma_f32_16x16x32_bf16 {v(ACC+4*c,4)}, {v(base+4*G,4)}, {v(base+32+4*(c-G),4)}, {'0' if first else v(ACC+4*c,4)}")
                if nxt and not (s == 0 and G == 0): A(nxt.pop(0))
        assert not nxt
    A(";TS2")
    for c in range(8): A(f"ds_write_b128 v57, {v(ACC+4*c,4)} offset:{1280*c}")
    A("""
s_lshl_b32 s30, s26, 16
s_and_b32 s31, s26, 0xffff0000
""")
    U = 120
    for ch in range(2):
        for j in range(4):
            t = U + 8 * ch + 2 * j
            A(f"v_lshlrev_b32 v{t}, 16, v{68+4*ch+j}\nv_and_b32 v{t+1}, 0xffff0000, v{68+4*ch+j}")
        for j in range(8): A(f"v_mul_f32 v{U+8*ch+j}, s{30+ch}, v{U+8*ch+j}")
        for j in range(4): A(f"v_cvt_pk_bf16_f32 v{68+4*ch+j}, v{U+8*ch+2*j}, v{U+8*ch+2*j+1}")
        for j in range(4):
            t = U + 8 * ch + 2 * j
            A(f"v_lshlrev_b32 v{t}, 16, v{68+4*ch+j}\nv_and_b32 v{t+1}, 0xffff0000, v{68+4*ch+j}")
    A("s_waitcnt lgkmcnt(0)\ns_barrier")
    YR = 136
    A(";TS3")
    for ch in range(2):
        for hf in range(2):
            for q in range(2):
                A(f"ds_read_b128 {v(YR+16*ch+8*hf+4*q,4)}, v58 offset:{(2*ch+hf)*YW + 320*q}")
    XU = 168
    for ch in range(2):
        for j in range(4):
            t = XU + 8 * ch + 2 * j
            A(f"v_lshlrev_b32 v{t}, 16, v{8+4*ch+j}\nv_and_b32 v{t+1}, 0xffff0000, v{8+4*ch+j}")
    def rnd(b, tmp):
        for j in range(4): A(f"v_cvt_pk_bf16_f32 v{tmp+j}, v{b+2*j}, v{b+2*j+1}")
        for j in range(4): A(f"v_lshlrev_b32 v{b+2*j}, 16, v{tmp+j}\nv_and_b32 v{b+2*j+1}, 0xffff0000, v{tmp+j}")
    for ch in range(2):
        y = YR + 16 * ch
        A(f"s_waitcnt lgkmcnt({4-4*ch})")
        for j in range(4): A(f"v_pk_add_f32 {v(y+2*j,2)}, {v(y+2*j,2)}, {v(y+8+2*j,2)}")
        rnd(y, 80)
        for j in range(4): A(f"v_pk_add_f32 {v(y+2*j,2)}, {v(y+2*j,2)}, {v(U+8*ch+2*j,2)}")
        rnd(y, 80)
        for j in range(8): A(f"v_mul_f32 v{y+j}, s{24+ch}, v{y+j}")
        rnd(y, 80)
        for j in range(4): A(f"v_pk_add_f32 {v(y+2*j,2)}, {v(y+2*j,2)}, {v(XU+8*ch+2*j,2)}")
        for j in range(4): A(f"v_cvt_pk_bf16_f32 v{68+4*ch+j}, v{y+2*j}, v{y+2*j+1}")
        A(f"global_store_dwordx4 v1, {v(68+4*ch,4)}, s[18:19] offset:{64*ch}")
    A(";TS4\ns_endpgm")

    A(f"""
K2_other:
s_cmp_ge_u32 s2, {K2_CV + K2_GU}
s_cbranch_scc1 K2_dn
s_load_dwordx4 s[4:7], s[0:1], 80
s_load_dwordx2 s[8:9], s[0:1], 136
s_sub_u32 s3, s2, {K2_CV}
s_and_b32 s10, s3, 7
s_lshr_b32 s11, s3, 3                 ; 0..13
s_and_b32 s12, s11, 1
s_lshr_b32 s11, s11, 1                ; 0..6
s_lshl_b32 s11, s11, 3
s_add_u32 s11, s11, s10
s_and_b32 s13, s11, 1                 ; mat
s_and_b32 s11, s11, 0xfe
s_add_u32 s11, s11, s12               ; ft
v_cmp_gt_u32 vcc, 224, v0
v_min_u32 v1, 223, v0
v_lshrrev_b32 v2, 3, v1               ; rgrp (0..27)
v_and_b32 v3, 7, v1                   ; cq
v_mul_u32_u24 v4, {8*3584}, v2
v_lshl_add_u32 v4, v3, 3, v4
s_lshl_b32 s14, s11, 6
v_add_u32 v4, s14, v4                 ; W off
v_lshlrev_b32 v5, 5, v2
s_waitcnt lgkmcnt(0)
s_cmp_eq_u32 s13, 0
s_cselect_b32 s4, s4, s6
s_cselect_b32 s5, s5, s7
s_add_u32 s16, s8, {WS_MOD + 3*448*4}
s_addc_u32 s17, s9, 0
""")
    WL = [16, 48]
    SB = [80, 96]; CB = [88, 104]
    for u in range(2):
        A(f"global_load_dwordx4 {v(SB[u],4)}, v5, s[16:17] offset:{u*896}")
        A(f"global_load_dwordx4 {v(SB[u]+4,4)}, v5, s[16:17] offset:{u*896+16}")
        A(f"global_load_dwordx4 {v(CB[u],4)}, v5, s[16:17] offset:{u*896+1792}")
        A(f"global_load_dwordx4 {v(CB[u]+4,4)}, v5, s[16:17] offset:{u*896+1792+16}")
    for u in range(2):
        for j in range(8):
            A(f"global_load_dwordx2 {v(WL[u]+2*j,2)}, v4, s[4:5]" + (" offset:3584" if j & 1 else ""))
            if j & 1 and not (u == 1 and j == 7): A(f"v_add_u32 v4, {7168 if j < 7 else 7168 + 27*8*3584}, v4")
    A(f"""
s_mul_i32 s14, s11, {WF_FT}
s_lshl_b32 s15, s13, 8
s_add_u32 s14, s14, s15
s_add_u32 s14, s14, {WS_WF}
s_add_u32 s8, s8, s14
s_addc_u32 s9, s9, 0
v_lshrrev_b32 v6, 2, v3
v_mul_u32_u24 v6, {WF_FG}, v6
v_lshl_add_u32 v6, v2, 9, v6
v_and_b32 v7, 3, v3
v_lshl_add_u32 v6, v7, 6, v6
s_mov_b32 s18, {ONES}
s_and_saveexec_b64 s[20:21], vcc
s_waitcnt vmcnt(16)
;TS0
""")
    for u in range(2):
        for j in range(8): A(f"v_add_f32 v{CB[u]+j}, 1.0, v{CB[u]+j}")
        for j in range(4): A(f"v_cvt_pk_bf16_f32 v{112+j}, v{CB[u]+2*j}, v{CB[u]+2*j+1}")
        for j in range(4): A(f"v_lshlrev_b32 v{CB[u]+2*j}, 16, v{112+j}\nv_and_b32 v{CB[u]+2*j+1}, 0xffff0000, v{112+j}")
    US, VS = 8, 12
    for j in range(8): A(f"v_mov_b32 v{8+j}, 0")
    UN = 112
    OUT = 144
    for u in range(2):
        A(f"s_waitcnt vmcnt({8 if u == 0 else 4})")
        A(f";TS{1+u}")
        for j in range(8):
            for h in range(2):
                t = UN + 4 * j + 2 * h
                A(f"v_lshlrev_b32 v{t}, 16, v{WL[u]+2*j+h}\nv_and_b32 v{t+1}, 0xffff0000, v{WL[u]+2*j+h}")
        for j in range(8):
            sel = "op_sel:[1,0,0] op_sel_hi:[1,1,1]" if j & 1 else "op_sel_hi:[0,1,1]"
            for h in range(2):
                A(f"v_pk_fma_f32 {v(VS+2*h,2)}, {v(SB[u]+(j&~1),2)}, {v(UN+4*j+2*h,2)}, {v(VS+2*h,2)} {sel}")
        for j in range(8):
            sel = "op_sel:[1,0] op_sel_hi:[1,1]" if j & 1 else "op_sel_hi:[0,1]"
            for h in range(2):
                A(f"v_pk_mul_f32 {v(UN+4*j+2*h,2)}, {v(CB[u]+(j&~1),2)}, {v(UN+4*j+2*h,2)} {sel}")
        o = OUT + 16 * u
        for i in range(4):
            for jp in range(4): A(f"v_cvt_pk_bf16_f32 v{o+4*i+jp}, v{UN+8*jp+i}, v{UN+8*jp+4+i}")
        if u == 1: A(f"v_add_u32 v6, {14*1024}, v6")
        for i in range(4): A(f"global_store_dwordx4 v6, {v(o+4*i,4)}, s[8:9] offset:{16*i}")
        for jp in range(4):
            for i in range(4): A(f"v_dot2_f32_bf16 v{US+i}, v{o+4*i+jp}, s18, v{US+i}")
    A(";TS3")
    for j in range(8): A(f"v_add_f32_dpp v{8+j}, v{8+j}, v{8+j} row_ror:8 row_mask:0xf bank_mask:0xf")
    A(f"""
v_lshrrev_b32 v7, 4, v0
v_lshlrev_b32 v7, 8, v7
v_lshl_add_u32 v7, v3, 4, v7
ds_write_b128 v7, v[8:11]
ds_write_b128 v7, v[12:15] offset:128
s_mov_b64 exec, s[20:21]
s_waitcnt lgkmcnt(0)
s_barrier
v_cmp_gt_u32 vcc, 64, v0
s_and_saveexec_b64 s[20:21], vcc
s_cbranch_execz K2_end
v_lshlrev_b32 v7, 2, v0
""")
    for i in range(7): A(f"ds_read2st64_b32 {v(16+2*i,2)}, v7 offset0:{2*i} offset1:{2*i+1}")
    A(f"""
v_bfe_u32 v6, v0, 4, 1
v_mul_u32_u24 v6, {WF_FG}, v6
v_lshrrev_b32 v5, 5, v0
v_lshl_add_u32 v6, v5, 9, v6
v_and_b32 v5, 15, v0
v_lshl_add_u32 v6, v5, 4, v6
v_add_u32 v6, {28*1024}, v6
s_waitcnt lgkmcnt(0)
v_pk_add_f32 v[16:17], v[16:17], v[18:19]
v_pk_add_f32 v[20:21], v[20:21], v[22:23]
v_pk_add_f32 v[24:25], v[24:25], v[26:27]
v_pk_add_f32 v[16:17], v[16:17], v[28:29]
v_pk_add_f32 v[20:21], v[20:21], v[24:25]
v_pk_add_f32 v[16:17], v[16:17], v[20:21]
v_add_f32 v16, v16, v17               ; total
v_cvt_pk_bf16_f32 v17, v16, v16
v_and_b32 v17, 0xffff0000, v17        ; hi
v_sub_f32 v18, v16, v17
v_cvt_pk_bf16_f32 v19, v18, v18
v_and_b32 v19, 0xffff0000, v19        ; mid
v_sub_f32 v18, v18, v19               ; lo
v_cvt_pk_bf16_f32 v8, v17, v19
v_mov_b32 v10, 0
v_cvt_pk_bf16_f32 v9, v18, v10
v_mov_b32 v11, 0
global_store_dwordx4 v6, v[8:11], s[8:9]
s_endpgm
""")
    A(f"""
K2_dn:
s_cmp_ge_u32 s2, {K2_GRID}
s_cbranch_scc1 K2_end
s_load_dwordx2 s[4:5], s[0:1], 96
s_load_dwordx2 s[8:9], s[0:1], 136
s_sub_u32 s3, s2, {K2_CV + K2_GU}     ; 0..48
s_mul_i32 s10, s3, 37
s_lshr_b32 s10, s10, 8                ; /7
s_mul_i32 s11, s10, 7
s_sub_u32 s11, s3, s11                ; colgrp
v_lshrrev_b32 v1, 4, v0
v_and_b32 v2, 15, v0                  ; cql
v_lshrrev_b32 v3, 1, v1
v_and_b32 v4, 1, v1
v_lshlrev_b32 v5, 4, v3
v_lshl_add_u32 v5, v4, 2, v5
v_mul_u32_u24 v5, 896, v5
v_lshl_add_u32 v5, v2, 3, v5
s_mul_i32 s12, s10, {256*896}
s_lshl_b32 s13, s11, 7
s_add_u32 s12, s12, s13
v_add_u32 v5, s12, v5
s_waitcnt lgkmcnt(0)
""")
    for u in range(2):
        for j in range(8):
            A(f"global_load_dwordx2 {v(16+16*u+2*j,2)}, v5, s[4:5] offset:{896*(j&3)}")
            if j == 3: A(f"v_add_u32 v5, {8*896}, v5")
            if j == 7 and u == 0: A(f"v_add_u32 v5, {120*896}, v5")
    A(f"""
v_lshrrev_b32 v6, 3, v2
v_mul_u32_u24 v6, {HF_TT}, v6
v_lshl_add_u32 v6, v3, 10, v6
v_lshl_add_u32 v6, v4, 9, v6
v_and_b32 v7, 7, v2
v_lshl_add_u32 v6, v7, 6, v6
s_mul_i32 s12, s11, {2*HF_TT}
s_lshl_b32 s13, s10, 14
s_add_u32 s12, s12, s13
s_add_u32 s12, s12, {WS_WDF}
s_add_u32 s8, s8, s12
s_addc_u32 s9, s9, 0
s_mov_b32 s14, 0x05040100
s_mov_b32 s15, 0x07060302
""")
    for u in range(2):
        A(f"s_waitcnt vmcnt({8 if u == 0 else 4})")
        o = 48 + 16 * u
        for i in range(4):
            for jp in range(4):
                lo = 16 + 16 * u + 4 * jp + (i >> 1); hi = lo + 2
                A(f"v_perm_b32 v{o+4*i+jp}, v{hi}, v{lo}, s{14+(i&1)}")
        if u == 1: A(f"v_add_u32 v6, 8192, v6")
        for i in range(4): A(f"global_store_dwordx4 v6, {v(o+4*i,4)}, s[8:9] offset:{16*i}")
    A("K2_end:\ns_endpgm")
    return kdesc("conv_kernel", 248, 40)
```

```python
from common import *
import os
K3_GRID = 224
K3_BLOCK = 512
L_ST = 4 * TB
K3_LDS = L_ST + 4096
DOTS = os.environ.get("K3DOTS", "half")
PRE = int(os.environ.get("K3PRE", "4"))

XAHEAD = int(os.environ.get("K3XA", "0"))
XL = int(os.environ.get("K3XL", "1"))
def k3(A):
    A(f""".globl ffn1_kernel
.p2align 8
.type ffn1_kernel,@function
ffn1_kernel:
s_cmp_ge_u32 s2, {K3_GRID}
s_cbranch_scc1 K3_end
s_load_dwordx2 s[4:5], s[0:1], 136
s_and_b32 s6, s2, 3
s_lshl_b32 s6, s6, 2
s_lshr_b32 s7, s2, 3
s_and_b32 s8, s7, 3
s_add_u32 s6, s6, s8                  ; rb
s_bfe_u32 s8, s2, 0x10002
s_mul_i32 s8, s8, 7
s_lshr_b32 s7, s7, 2
s_add_u32 s7, s7, s8                  ; fb
v_lshrrev_b32 v1, 6, v0
v_and_b32 v2, 63, v0                  ; lane
v_readfirstlane_b32 s9, v1            ; w
v_lshlrev_b32 v3, 4, v2               ; lane*16
s_and_b32 s27, s9, 3
s_lshr_b32 s28, s9, 2                 ; parity
s_lshl_b32 s10, s6, 2
s_add_u32 s10, s10, s27
s_mul_i32 s11, s10, {TB}
s_lshl_b32 s15, s28, 10
s_add_u32 s11, s11, s15
s_add_u32 s11, s11, {WS_X1T}
s_lshl_b32 s12, s7, 3
s_add_u32 s12, s12, s9                ; fg
s_mul_i32 s13, s12, {WF_FG}
s_add_u32 s13, s13, {WS_WF + 4096}
s_mul_i32 s14, s27, {TB}
s_add_u32 s14, s14, s15
s_mov_b32 m0, s14
s_waitcnt lgkmcnt(0)
s_add_u32 s16, s4, s11
s_addc_u32 s17, s5, 0                 ; x source
s_add_u32 s18, s4, s13
s_addc_u32 s19, s5, 0                 ; W source (+4096)
""")
    Q = []
    def issue(op):
        kind, j = op
        if kind == 'x':
            if j and j % 2 == 0:
                A("s_add_u32 s16, s16, 4096\ns_addc_u32 s17, s17, 0\ns_add_u32 s14, s14, 4096\ns_mov_b32 m0, s14")
            A(f"global_load_lds_dwordx4 v3, s[16:17] offset:{2048*(j%2)}")
        else:
            if j and j % 8 == 0: A("s_add_u32 s18, s18, 8192\ns_addc_u32 s19, s19, 0")
            A(f"global_load_dwordx4 {a_(4*j,4)}, v3, s[18:19] offset:{1024*(j%8)-4096}")
        Q.append(op)
    def wait(op):
        n = len(Q) - 1 - Q.index(op)
        A(f"s_waitcnt vmcnt({n})")
    order = []
    xi = 0
    for s in range(29):
        while xi < 14 and xi <= (s if XAHEAD else (s + XL) // 2): order.append(('x', xi)); xi += 1
        order.append(('w', s))
    def issue_upto(s):
        while order and not (Q and Q[-1] == ('w', min(s, 28))): issue(order.pop(0))
    issue_upto(PRE - 1)
    A(f"""
v_lshrrev_b32 v4, 5, v2               ; kh
v_bfe_u32 v5, v2, 2, 2                ; e
v_lshl_add_u32 v5, v4, 3, v5
v_lshlrev_b32 v5, 6, v5
v_bfe_u32 v6, v2, 4, 1                ; th
v_lshl_add_u32 v5, v6, 5, v5
v_and_b32 v6, 3, v2
v_lshl_add_u32 v5, v6, 3, v5
""")
    for i in range(4):
        A(f"s_xor_b32 s20, s27, {i}\ns_mul_i32 s21, s20, {TB}\nv_add_u32 v{8+i}, s21, v5")
        A(f"s_lshl_b32 s21, s20, 8\ns_add_u32 s21, s21, {L_ST}\nv_lshl_add_u32 v{12+i}, v2, 2, s21")
        A(f"s_mul_i32 s21, s20, {HF_TT}\nv_add_u32 v{16+i}, s21, v3")
    A(f"""
s_lshl_b32 s20, s6, 2
s_mul_i32 s20, s20, {HF_TT}
s_lshl_b32 s21, s12, 10
s_add_u32 s20, s20, s21
s_add_u32 s20, s20, {WS_HF}
s_add_u32 s22, s4, s20
s_addc_u32 s23, s5, 0
s_lshl_b32 s20, s10, 7
s_add_u32 s20, s20, {WS_R2}
s_add_u32 s24, s4, s20
s_addc_u32 s25, s5, 0                 ; R2 + tile*128
s_mov_b32 s26, {ONES}
v_mov_b32 v20, 0
v_mov_b32 v21, 0
v_mov_b32 v22, 0
v_mov_b32 v23, 0
s_lshl_b32 s20, s9, 8
s_add_u32 s20, s20, {L_ST + 2048}
v_lshl_add_u32 v6, v2, 2, s20
s_xor_b32 s20, s20, 1024
v_lshl_add_u32 v7, v2, 2, s20
s_mov_b32 s29, 0
s_mov_b64 vcc, s[28:29]
""")
    XF = [24, 40]
    ACC = 56
    def reads(s):
        out = []
        for i in range(4):
            for h in range(2):
                out.append(f"ds_read_b64_tr_b16 {v(XF[s&1]+4*i+2*h,2)}, v{8+i} offset:{1024*s+256*h}")
        return out
    BAR = {0: 0, 2: 1, 4: 3, 8: 7, 16: 13} if XAHEAD else {2 * j: j for j in range(14)} if XL < 3 else {0: 0, 2: 1, 4: 3, 8: 5, 12: 7, 16: 9, 20: 11, 24: 13}
    wait(('x', 0)); A("s_barrier")
    A(";TS0")
    for r in reads(0): A(r)
    for s in range(28):
        if s == 8: A(";TS1")
        if s == 16: A(";TS2")
        mf = [f"v_mfma_f32_32x32x16_bf16 {v(ACC+16*i,16)}, {a_(4*s,4)}, {v(XF[s&1]+4*i,4)}, {'0' if s == 0 else v(ACC+16*i,16)}" for i in range(4)]
        dots = []
        for j in range(4):
            x = XF[s & 1] + j
            dots.append(f"v_dot2_f32_bf16 v{20+(j&1)}, v{x}, s26, v{20+(j&1)}")
            dots.append(f"v_dot2_f32_bf16 v{22+(j&1)}, v{x}, v{x}, v{22+(j&1)}")
        nxt = reads(s + 1) if s < 27 else []
        wait(('w', s))
        if s + 1 in BAR:
            wait(('x', BAR[s + 1])); A("s_barrier")
        for i in range(4):
            A(f"s_waitcnt lgkmcnt({(6 - 2*i) + (2*i if nxt or (s == 27 and False) else 0)})")
            A(mf[i])
            for _ in range(2):
                if nxt: A(nxt.pop(0))
            if i == 0: issue_upto(s + PRE)
            if DOTS == "all":
                A(dots.pop(0)); A(dots.pop(0))
            if DOTS == "half" and i == 1:
                A(f"s_cbranch_vcc{'nz' if s % 2 == 0 else 'z'} K3_sk{s}")
                for d in dots: A(d)
                A(f"K3_sk{s}:")
        assert not nxt
    A(";TS3")
    A(f"""
s_nop 2
v_add_f32 v20, v20, v21
v_add_f32 v22, v22, v23
v_permlane32_swap_b32 v20, v22
v_add_f32 v20, v20, v22
""")
    if DOTS == "half":
        A("""
ds_write_b32 v6, v20
s_waitcnt lgkmcnt(0)
s_barrier
ds_read_b32 v22, v7
s_waitcnt lgkmcnt(0)
v_add_f32 v20, v20, v22
""")
    A(f"""
v_mul_f32 v20, {hex(INV448)}, v20
v_mov_b32 v22, v20
v_permlane32_swap_b32 v20, v22        ; v20 = mean (all lanes), v22 = E[x^2]
v_fma_f32 v22, -v20, v20, v22
v_max_f32 v22, 0, v22                 ; var
v_cvt_pk_bf16_f32 v22, v22, v22
v_and_b32 v22, 0xffff0000, v22
v_add_f32 v22, {hex(EPS)}, v22
v_cvt_pk_bf16_f32 v22, v22, v22
v_and_b32 v22, 0xffff0000, v22
v_sqrt_f32 v22, v22
v_cvt_pk_bf16_f32 v20, -v20, -v20
v_cmp_gt_u32 vcc, 32, v2
v_cvt_pk_bf16_f32 v22, v22, v22
v_cndmask_b32 v21, v22, v20, vcc
ds_write_b32 v12, v21
v_and_b32 v22, 0xffff0000, v22
v_mul_f32 v22, v22, v22
v_rcp_f32 v22, v22
v_and_b32 v23, 31, v2
v_lshlrev_b32 v23, 2, v23
s_waitcnt lgkmcnt(0)
s_barrier
""")
    A(";TS4")
    for i in range(4): A(f"ds_read2_b32 {v(XF[1]+4*i,2)}, v{12+i} offset0:0 offset1:0")
    A("global_store_dword v23, v22, s[24:25]")
    A("s_waitcnt vmcnt(1)")
    for i in range(4):
        A(f"s_waitcnt lgkmcnt({3-i})")
        A(f"v_mfma_f32_32x32x16_bf16 {v(ACC+16*i,16)}, {a_(112,4)}, {v(XF[1]+4*i,4)}, {v(ACC+16*i,16)}")
    for i in range(4):
        G = ACC + 16 * i; U = G + 8
        for r in range(8): A(f"v_max_f32 v{G+r}, 0, v{G+r}")
        for r in range(8): A(f"v_mul_f32 v{G+r}, v{G+r}, v{U+r}")
        for r in range(0, 8, 2): A(f"v_cvt_pk_bf16_f32 v{U+r//2}, v{G+r}, v{G+r+1}")
        A(f"global_store_dwordx4 v{16+i}, {v(U,4)}, s[22:23]")
    A(";TS5")
    A("K3_end:\ns_endpgm")
    return kdesc("ffn1_kernel", 120 + 116, 32, accum=120)
```

```python
from common import *
import os
K34_GRID = 224
K34_BLOCK = 512
L_ST = 131072
K34_LDS = L_ST + 4096
PRE = int(os.environ.get("K3PRE", "4"))
RW = 6
XL = 1
SLP = os.environ.get("SLP", "1")
HST = os.environ.get("HST", "sc1")
FLV = int(os.environ.get("FLV", "3"))
MAP = os.environ.get("MAP", "0")

MAPALT = """
s_and_b32 s6, s2, 7
s_lshl_b32 s6, s6, 1
s_bfe_u32 s8, s2, 0x10003
s_add_u32 s6, s6, s8
s_bfe_u32 s30, s2, 0x10004
s_mul_i32 s8, s30, 7
s_add_u32 s7, s31, s8
"""
POLLOFF = ["""v_lshlrev_b32 v20, 2, v20
s_mul_i32 s39, s9, 56
v_add_u32 v20, s39, v20
s_lshl_b32 s39, s12, 2""", """v_lshlrev_b32 v20, 7, v20
s_mul_i32 s39, s9, 1792
v_add_u32 v20, s39, v20
s_lshl_b32 s39, s12, 7""", """s_mul_i32 s39, s9, 14
v_add_u32 v20, s39, v20
v_lshrrev_b32 v20, 3, v20
v_lshlrev_b32 v20, 7, v20
s_lshl_b32 s39, s7, 7""", """v_lshlrev_b32 v20, 7, v20
s_lshl_b32 s39, s7, 7"""]
WS_FL2 = 0x1800000
def k34(A):
    A(f""".globl ffn_kernel
.p2align 8
.type ffn_kernel,@function
ffn_kernel:
s_cmp_ge_u32 s2, {K34_GRID}
s_cbranch_scc1 K3_end
s_load_dwordx2 s[4:5], s[0:1], 136
s_load_dwordx2 s[36:37], s[0:1], 120
s_and_b32 s6, s2, 3
s_lshl_b32 s6, s6, 2
s_lshr_b32 s7, s2, 3
s_and_b32 s8, s7, 3
s_add_u32 s6, s6, s8                  ; rb
s_bfe_u32 s30, s2, 0x10002            ; th
s_mul_i32 s8, s30, 7
s_lshr_b32 s31, s7, 2                 ; db
s_add_u32 s7, s31, s8                 ; fb
{MAPALT if MAP == "1" else ""}
v_lshrrev_b32 v1, 6, v0
v_and_b32 v2, 63, v0                  ; lane
v_readfirstlane_b32 s9, v1            ; w
v_lshlrev_b32 v3, 4, v2               ; lane*16
s_and_b32 s27, s9, 3
s_lshr_b32 s28, s9, 2                 ; parity
s_lshl_b32 s10, s6, 2
s_add_u32 s10, s10, s27
s_mul_i32 s11, s10, {TB}
s_lshl_b32 s15, s28, 10
s_add_u32 s11, s11, s15
s_add_u32 s11, s11, {WS_X1T}
s_lshl_b32 s12, s7, 3
s_add_u32 s12, s12, s9                ; fg
s_mul_i32 s13, s12, {WF_FG}
s_add_u32 s13, s13, {WS_WF + 4096}
s_mul_i32 s14, s27, {TB}
s_add_u32 s14, s14, s15
s_mov_b32 m0, s14
s_mul_i32 s38, s9, {14*1024}
s_mul_i32 s20, s31, {2*HF_TT}
s_add_u32 s20, s20, s38
s_add_u32 s20, s20, {WS_WDF + 4096}
s_waitcnt lgkmcnt(0)
s_add_u32 s16, s4, s11
s_addc_u32 s17, s5, 0                 ; x source
s_add_u32 s18, s4, s13
s_addc_u32 s19, s5, 0                 ; W source (+4096)
s_add_u32 s32, s4, s20
s_addc_u32 s33, s5, 0
v_add_u32 v1, {HF_TT}, v3
""")
    Q = []
    WR = lambda s: 112 + 4 * (s % RW)
    def issue(op):
        kind, j = op
        if kind == 'x':
            if j and j % 2 == 0:
                A("s_add_u32 s16, s16, 4096\ns_addc_u32 s17, s17, 0\ns_add_u32 s14, s14, 4096\ns_mov_b32 m0, s14")
            A(f"global_load_lds_dwordx4 v3, s[16:17] offset:{2048*(j%2)}")
        elif kind == 'w':
            if j and j % 8 == 0: A("s_add_u32 s18, s18, 8192\ns_addc_u32 s19, s19, 0")
            A(f"global_load_dwordx4 {a_(WR(j),4)}, v3, s[18:19] offset:{1024*(j%8)-4096}")
        elif kind == 'd':
            if j == 16: A("s_add_u32 s32, s32, 8192\ns_addc_u32 s33, s33, 0")
            A(f"global_load_dwordx4 {a_(4*j,4)}, v{1 if j & 1 else 3}, s[32:33] offset:{1024*((j>>1)%8)-4096}")
        else:
            A(j)
        Q.append(op)
    def wait(op):
        n = len(Q) - 1 - Q.index(op)
        A(f"s_waitcnt vmcnt({n})")
    order = []
    xi = 0
    for s in range(29):
        while xi < 14 and xi <= (s + XL) // 2: order.append(('x', xi)); xi += 1
        order.append(('w', s))
    def issue_upto(s):
        while order and ('w', min(s, 28)) not in Q: issue(order.pop(0))
    issue_upto(PRE - 1)
    A(f"""
v_lshrrev_b32 v4, 5, v2               ; kh
v_bfe_u32 v5, v2, 2, 2                ; e
v_lshl_add_u32 v5, v4, 3, v5
v_lshlrev_b32 v5, 6, v5
v_bfe_u32 v6, v2, 4, 1                ; th
v_lshl_add_u32 v5, v6, 5, v5
v_and_b32 v6, 3, v2
v_lshl_add_u32 v5, v6, 3, v5
""")
    for i in range(4):
        A(f"s_xor_b32 s20, s27, {i}\ns_mul_i32 s21, s20, {TB}\nv_add_u32 v{8+i}, s21, v5")
        A(f"s_lshl_b32 s21, s20, 8\ns_add_u32 s21, s21, {L_ST}\nv_lshl_add_u32 v{12+i}, v2, 2, s21")
        A(f"s_mul_i32 s21, s20, {HF_TT}\nv_add_u32 v{16+i}, s21, v3")
    A(f"""
s_mul_i32 s20, s6, {4*HF_TT}
s_add_u32 s20, s20, {WS_HF}
s_lshl_b32 s21, s12, 10
s_add_u32 s21, s20, s21
s_add_u32 s22, s4, s21
s_addc_u32 s23, s5, 0
s_mul_i32 s21, s30, {2*HF_TT}
s_add_u32 s20, s20, s21
s_add_u32 s20, s20, s38
s_add_u32 s20, s20, 4096
s_add_u32 s34, s4, s20
s_addc_u32 s35, s5, 0
s_lshl_b32 s20, s6, 11
s_add_u32 s20, s20, {WS_FL}
s_add_u32 s24, s4, s20
s_addc_u32 s25, s5, 0
s_mov_b32 s26, {ONES}
v_mov_b32 v20, 0
v_mov_b32 v21, 0
v_mov_b32 v22, 0
v_mov_b32 v23, 0
s_lshl_b32 s20, s9, 8
s_add_u32 s20, s20, {L_ST + 2048}
v_lshl_add_u32 v6, v2, 2, s20
s_xor_b32 s20, s20, 1024
v_lshl_add_u32 v7, v2, 2, s20
s_mov_b32 s29, 0
s_mov_b64 vcc, s[28:29]
""")
    XF = [24, 40]
    ACC = 56
    def reads(s):
        out = []
        for i in range(4):
            for h in range(2):
                out.append(f"ds_read_b64_tr_b16 {v(XF[s&1]+4*i+2*h,2)}, v{8+i} offset:{1024*s+256*h}")
        return out
    BAR = {2 * j: j for j in range(14)}
    wait(('x', 0)); A("s_barrier")
    A(";TS0")
    for r in reads(0): A(r)
    for s in range(28):
        mf = [f"v_mfma_f32_32x32x16_bf16 {v(ACC+16*i,16)}, {a_(WR(s),4)}, {v(XF[s&1]+4*i,4)}, {'0' if s == 0 else v(ACC+16*i,16)}" for i in range(4)]
        dots = []
        for j in range(4):
            x = XF[s & 1] + j
            dots.append(f"v_dot2_f32_bf16 v{20+(j&1)}, v{x}, s26, v{20+(j&1)}")
            dots.append(f"v_dot2_f32_bf16 v{22+(j&1)}, v{x}, v{x}, v{22+(j&1)}")
        nxt = reads(s + 1) if s < 27 else []
        wait(('w', s))
        if s + 1 in BAR:
            wait(('x', BAR[s + 1])); A("s_barrier")
        for i in range(4):
            A(f"s_waitcnt lgkmcnt({6 if nxt else 6 - 2*i})")
            A(mf[i])
            for _ in range(2):
                if nxt: A(nxt.pop(0))
            if i == 0: issue_upto(s + PRE)
            if i == 2: issue(('d', s))
            if i == 1:
                A(f"s_cbranch_vcc{'nz' if s % 2 == 0 else 'z'} K3_sk{s}")
                for d in dots: A(d)
                A(f"K3_sk{s}:")
        assert not nxt
    A(";TS1")
    A(f"""
s_nop 2
v_add_f32 v20, v20, v21
v_add_f32 v22, v22, v23
v_permlane32_swap_b32 v20, v22
v_add_f32 v20, v20, v22
ds_write_b32 v6, v20
s_lshr_b32 s20, s27, 1
s_lshl_b32 s21, s30, 1
s_add_u32 s20, s20, s21
s_mul_i32 s21, s20, {TB}
s_lshl_b32 s39, s31, 12
s_add_u32 s21, s21, s39
s_lshl_b32 s39, s28, 11
s_add_u32 s21, s21, s39
s_and_b32 s39, s27, 1
s_lshl_b32 s40, s39, 5
s_add_u32 s21, s21, s40
v_lshrrev_b32 v4, 4, v2               ; octet
v_bfe_u32 v5, v2, 2, 2
v_lshl_add_u32 v5, v4, 3, v5
v_lshlrev_b32 v5, 6, v5
v_and_b32 v8, 3, v2
v_lshl_add_u32 v5, v8, 3, v5
v_add_u32 v5, s21, v5
ds_read_b64_tr_b16 v[8:9], v5
ds_read_b64_tr_b16 v[10:11], v5 offset:256
s_lshl_b32 s21, s20, 8
s_lshl_b32 s40, s39, 6
s_add_u32 s21, s21, s40
s_add_u32 s21, s21, {L_ST + 128}
v_and_b32 v0, 15, v2
v_lshl_add_u32 v5, v0, 2, s21
s_waitcnt lgkmcnt(0)
s_barrier
ds_read_b32 v22, v7
v_mul_u32_u24 v6, 896, v0
v_lshl_add_u32 v6, v4, 4, v6
s_lshl_b32 s20, s6, 3
s_lshl_b32 s21, s30, 2
s_add_u32 s20, s20, s21
s_add_u32 s20, s20, s27
s_mul_i32 s20, s20, {16*896}
s_lshl_b32 s21, s31, 7
s_add_u32 s20, s20, s21
s_lshl_b32 s21, s28, 6
s_add_u32 s20, s20, s21
s_add_u32 s36, s36, s20
s_addc_u32 s37, s37, 0
s_waitcnt lgkmcnt(0)
v_add_f32 v20, v20, v22
v_mul_f32 v20, {hex(INV448)}, v20
v_mov_b32 v22, v20
v_permlane32_swap_b32 v20, v22
v_fma_f32 v22, -v20, v20, v22
v_max_f32 v22, 0, v22                 ; var
v_cvt_pk_bf16_f32 v22, v22, v22
v_and_b32 v22, 0xffff0000, v22
v_add_f32 v22, {hex(EPS)}, v22
v_cvt_pk_bf16_f32 v22, v22, v22
v_and_b32 v22, 0xffff0000, v22
v_sqrt_f32 v22, v22
v_cvt_pk_bf16_f32 v20, -v20, -v20
v_cmp_gt_u32 vcc, 32, v2
v_cvt_pk_bf16_f32 v22, v22, v22
v_cndmask_b32 v21, v22, v20, vcc
ds_write_b32 v12, v21
s_waitcnt lgkmcnt(0)
s_barrier
""")
    for i in range(4): A(f"ds_read2_b32 {v(XF[1]+4*i,2)}, v{12+i} offset0:0 offset1:0")
    A("ds_read_b32 v7, v5")
    wait(('w', 28))
    for i in range(4):
        A(f"s_waitcnt lgkmcnt({4-i})")
        A(f"v_mfma_f32_32x32x16_bf16 {v(ACC+16*i,16)}, {a_(WR(28),4)}, {v(XF[1]+4*i,4)}, {v(ACC+16*i,16)}")
    for i in range(4):
        G = ACC + 16 * i; U = G + 8
        for r in range(8): A(f"v_max_f32 v{G+r}, 0, v{G+r}")
        for r in range(8): A(f"v_mul_f32 v{G+r}, v{G+r}, v{U+r}")
        for r in range(0, 8, 2): A(f"v_cvt_pk_bf16_f32 v{U+r//2}, v{G+r}, v{G+r+1}")
        A(f"global_store_dwordx4 v{16+i}, {v(U,4)}, s[22:23] {HST}")
    A(";TS2")
    A(f"""
s_lshl_b32 s20, s31, 8
s_lshl_b32 s21, s28, 7
s_add_u32 s20, s20, s21
s_add_u32 s20, s20, {WS_MOD + 5*448*4}
s_add_u32 s20, s4, s20
s_addc_u32 s21, s5, 0
v_lshlrev_b32 v4, 5, v4
v_min_u32 v20, 13, v2
{POLLOFF[FLV]}
v_mov_b32 v21, s39
v_mov_b32 v22, 1
s_waitcnt lgkmcnt(0)
v_and_b32 v7, 0xffff0000, v7
v_mul_f32 v7, v7, v7
v_rcp_f32 v7, v7                      ; r2
s_lshl_b32 s39, s9, 14
v_add_u32 v5, s39, v3
s_lshl_b32 s39, s28, 13
s_lshr_b32 s40, s27, 1
s_lshl_b32 s40, s40, 12
s_add_u32 s39, s39, s40
s_and_b32 s40, s27, 1
s_lshl_b32 s40, s40, 8
s_add_u32 s39, s39, s40
v_lshlrev_b32 v0, 4, v0
v_lshl_add_u32 v0, v4, 5, v0
v_add_u32 v0, s39, v0
s_waitcnt vmcnt(0)
{"s_barrier" if FLV >= 2 else ""}
s_mov_b64 exec, 1
{"s_cmp_lg_u32 s9, 0" if FLV >= 2 else ""}
{"s_cbranch_scc1 K3_nofl" if FLV >= 2 else ""}
global_store_dword v21, v22, s[24:25] {HST}
K3_nofl:
s_mov_b64 exec, -1
global_load_dwordx4 v[12:15], v4, s[20:21]
global_load_dwordx4 v[16:19], v4, s[20:21] offset:16
;TS3
{"s_cbranch_scc1 K3_np" if FLV == 3 else ""}
K3_poll:
{"s_sleep " + SLP if SLP != "0" else ""}
global_load_dword v23, v20, s[24:25] sc1
s_waitcnt vmcnt(0)
v_cmp_eq_u32 vcc, 0, v23
s_cbranch_vccnz K3_poll
K3_np:
{"s_barrier" if FLV == 3 else ""}
;TS4
""")
    def HR(k, tt):
        sl = k % 7
        return v(24 + 8 * sl + 4 * tt, 4) if sl < 4 else a_(112 + 8 * (sl - 4) + 4 * tt, 4)
    Q.clear()
    def issue_h(k):
        if k == 8: A("s_add_u32 s34, s34, 8192\ns_addc_u32 s35, s35, 0")
        for tt in range(2):
            issue(('h', f"global_load_dwordx4 {HR(k,tt)}, v{1 if tt else 3}, s[34:35] offset:{1024*(k%8)-4096} sc1"))
    for k in range(7): issue_h(k)
    for k in range(14):
        for tt in range(2):
            A(f"s_waitcnt vmcnt({len(Q) - 1 - (2*k+tt)})")
            for dt in range(2):
                t = ACC + 16 * (2 * dt + tt)
                A(f"v_mfma_f32_32x32x16_bf16 {v(t,16)}, {a_(8*k+4*dt,4)}, {HR(k,tt)}, {'0' if k == 0 else v(t,16)}")
        if k + 7 < 14: issue_h(k + 7)
    A(";TS5")
    for i in (0, 2, 1, 3):
        for q in range(4): A(f"ds_write_b128 v5, {v(ACC+16*i+4*q,4)} offset:{4096*i+1024*q}")
    A("v_add_u32 v1, 65536, v0")
    A("s_waitcnt lgkmcnt(0)\ns_barrier")
    for src in range(8):
        for h in range(2):
            A(f"ds_read_b128 {v(ACC+8*src+4*h,4)}, v{0 if src < 4 else 1} offset:{16384*(src&3)+512*h}")
    XR = 24
    for j in range(4): A(f"v_lshlrev_b32 v{XR+2*j}, 16, v{8+j}\nv_and_b32 v{XR+2*j+1}, 0xffff0000, v{8+j}")
    for src in range(1, 8):
        A(f"s_waitcnt lgkmcnt({14-2*src})")
        for r in range(0, 8, 2): A(f"v_pk_add_f32 {v(ACC+r,2)}, {v(ACC+r,2)}, {v(ACC+8*src+r,2)}")
    T = 32
    def rnd():
        for j in range(4): A(f"v_cvt_pk_bf16_f32 v{T+j}, v{ACC+2*j}, v{ACC+2*j+1}")
        for j in range(4): A(f"v_lshlrev_b32 v{ACC+2*j}, 16, v{T+j}\nv_and_b32 v{ACC+2*j+1}, 0xffff0000, v{T+j}")
    for r in range(8): A(f"v_mul_f32 v{ACC+r}, v{ACC+r}, v7")
    rnd()
    for r in range(0, 8, 2): A(f"v_pk_mul_f32 {v(ACC+r,2)}, {v(ACC+r,2)}, {v(12+r,2)}")
    rnd()
    for r in range(0, 8, 2): A(f"v_pk_add_f32 {v(ACC+r,2)}, {v(ACC+r,2)}, {v(XR+r,2)}")
    for j in range(4): A(f"v_cvt_pk_bf16_f32 v{T+j}, v{ACC+2*j}, v{ACC+2*j+1}")
    A(f"global_store_dwordx4 v6, {v(T,4)}, s[36:37]")
    A("K3_end:\ns_endpgm")
    return kdesc("ffn_kernel", 256, 48, accum=120)
```

```python
import sys, os
import re
from common import *
from k1 import *
from k2 import *
from k3 import *
from k4 import *
from k34 import k34, K34_GRID, K34_LDS, K34_BLOCK

def ke(A):
    A(""".globl empty_kernel
.p2align 8
.type empty_kernel,@function
empty_kernel:
s_endpgm""")
    return kdesc("empty_kernel", 8, 16)

def kz(A):
    a, b = [int(x) for x in os.environ["ZQ"].split(",")]
    A(f""".globl z_kernel
.p2align 8
.type z_kernel,@function
z_kernel:
s_cmp_lg_u32 s2, 0
s_cbranch_scc1 Zend
s_memrealtime s[10:11]
s_load_dwordx2 s[4:5], s[0:1], 128
v_mov_b32 v1, 0
s_waitcnt lgkmcnt(0)
global_load_dword v2, v1, s[4:5] offset:{16*a} sc1
global_load_dword v3, v1, s[4:5] offset:{16*b+4} sc1
s_waitcnt vmcnt(0)
v_readfirstlane_b32 s6, v2
v_readfirstlane_b32 s7, v3
s_nop 3
s_not_b32 s6, s6
s_sub_u32 s6, s7, s6
s_min_u32 s6, s6, 10000
s_lshl_b32 s6, s6, 2
Zl:
s_memrealtime s[12:13]
s_waitcnt lgkmcnt(0)
s_sub_u32 s8, s12, s10
s_cmp_lt_u32 s8, s6
s_cbranch_scc1 Zl
Zend:
s_endpgm""")
    return kdesc("z_kernel", 8, 16)

KS = {'f': ("ffn_kernel", K34_GRID, K34_LDS, k34), 'z': ("z_kernel", 1, 0, kz),'1': ("prep_kernel", K1_GRID, K1_LDS, k1), '2': ("conv_kernel", K2_GRID, K2_LDS, k2),
      '3': ("ffn1_kernel", K3_GRID, K3_LDS, k3), '4': ("ffn2_kernel", K4_GRID, K4_LDS, k4),
      'e': ("empty_kernel", 1, 0, ke)}

BLK = {'3': K3_BLOCK, 'f': K34_BLOCK}
WS_TS = 0x2000000
def add_stamps(A, names):
    out = []
    for ln in A.lines:
        t = ln.strip()
        if t[:-1] in names and t.endswith(':'):
            ki = names.index(t[:-1])
            out.append(ln)
            out += ["  " + x for x in f"""s_memrealtime s[90:91]
s_memtime s[80:81]
s_load_dwordx2 s[92:93], s[0:1], 136
v_lshrrev_b32 v1, 6, v0
s_nop 1
v_readfirstlane_b32 s94, v1
s_lshl_b32 s95, s2, 3
s_add_u32 s94, s94, s95
s_lshl_b32 s94, s94, 6
s_add_u32 s94, s94, {WS_TS + ki * 0x80000}
s_mov_b32 s82, 0
s_mov_b32 s84, 0
s_mov_b32 s86, 0
s_mov_b32 s88, 0
s_mov_b32 s76, 0
s_mov_b32 s78, 0
s_waitcnt lgkmcnt(0)""".split("\n")]
        elif t.startswith(";TS"):
            i = int(t[3:]); r = [82, 84, 86, 88, 76, 78][i]
            out.append(f"  s_memtime s[{r}:{r+1}]")
        elif t == "s_endpgm":
            out += ["  " + x for x in """s_waitcnt vmcnt(0) lgkmcnt(0)
s_memrealtime s[96:97]
s_memtime s[98:99]
s_getreg_b32 s100, hwreg(HW_REG_HW_ID)
s_getreg_b32 s101, hwreg(HW_REG_XCC_ID)
s_mov_b64 exec, 1
s_waitcnt lgkmcnt(0)
v_mov_b32 v0, s90
v_mov_b32 v1, s96
v_mov_b32 v2, s100
v_mov_b32 v3, s101
v_mov_b32 v4, s80
v_mov_b32 v5, s82
v_mov_b32 v6, s84
v_mov_b32 v7, s86
v_mov_b32 v8, s88
v_mov_b32 v9, s76
v_mov_b32 v10, s78
v_mov_b32 v11, s98
v_mov_b32 v12, s94
global_store_dwordx4 v12, v[0:3], s[92:93]
global_store_dwordx4 v12, v[4:7], s[92:93] offset:16
global_store_dwordx4 v12, v[8:11], s[92:93] offset:32
s_endpgm""".split("\n")]
        else: out.append(ln)
    if os.environ["TS"] == "2": out = [l.replace("s_memtime", "s_memrealtime") for l in out]
    A.lines = out

def strip(A, name, pred):
    out = []; on = False
    for ln in A.lines:
        t = ln.strip()
        if t.endswith("_kernel:"): on = t == name + ":"
        if on and pred(t): continue
        out.append(ln)
    A.lines = out

def add_dbg(A, names):
    out = []; n = 0
    NL = len(sys.argv[2]); inz = False
    for ln in A.lines:
        t = ln.strip()
        if t in ("z_kernel:", "empty_kernel:"): inz = True
        if inz: out.append(ln); continue
        if t[:-1] in names and t.endswith(':'):
            ki = names.index(t[:-1])
            out.append(ln)
            out += ["  " + x for x in f"""s_memrealtime s[90:91]
s_load_dwordx2 s[92:93], s[0:1], 128
v_lshrrev_b32 v1, 6, v0
s_nop 1
v_readfirstlane_b32 s94, v1
s_lshr_b32 s95, s2, 3
s_xor_b32 s95, s95, s2
s_and_b32 s95, s95, 7
s_or_b32 s94, s94, s95
s_waitcnt lgkmcnt(0)
s_add_u32 s92, s92, {(NL - 1 - ki) * 512 + ki * 16}
s_addc_u32 s93, s93, 0""".split("\n")]
        elif t == "s_endpgm":
            n += 1
            out += ["  " + x for x in f"""s_cmp_lg_u32 s94, 0
s_cbranch_scc1 DBGE{n}
s_waitcnt vmcnt(0) lgkmcnt(0)
s_memrealtime s[96:97]
s_mov_b64 exec, 1
s_not_b32 s90, s90
s_waitcnt lgkmcnt(0)
v_mov_b32 v0, s90
v_mov_b32 v1, s96
v_mov_b32 v2, 0
global_atomic_umax v2, v0, s[92:93]
global_atomic_umax v2, v1, s[92:93] offset:4
DBGE{n}:
s_endpgm""".split("\n")]
        else: out.append(ln)
    A.lines = out

def main():
    A = Asm()
    which = sys.argv[2] if len(sys.argv) > 2 else "12f"
    hdr = []
    descs = []
    A('.amdgcn_target "amdgcn-amd-amdhsa--gfx950"\n.text')
    seen = set()
    for ch in which:
        name, grid, lds, fn = KS[ch]
        hdr.append(f"; @launch kernel={name} grid=({grid},1,1) block=({BLK.get(ch, 256)},1,1) lds={lds}")
        if ch not in seen: descs.append(fn(A)); seen.add(ch)
    for kn in os.environ.get("NOMF", ""): strip(A, KS[kn][0], lambda t: t.startswith("v_mfma"))
    for kn in os.environ.get("NOLD", ""): strip(A, KS[kn][0], lambda t: t.startswith("global_load"))
    for kn in os.environ.get("NODS", ""): strip(A, KS[kn][0], lambda t: t.startswith("ds_read"))
    if os.environ.get("DBG"): add_dbg(A, [KS[ch][0] for ch in which if ch not in "ez"])
    if os.environ.get("TS"): add_stamps(A, [KS[ch][0] for ch in which if ch not in "ez"])
    txt = "; generated by dev/gen.py (hand-written generator); see comments there\n" + "\n".join(hdr) + "\n" + A.text() + '.section .rodata,"a"\n' + ("".join(descs) if not (os.environ.get("TS") or os.environ.get("DBG")) else re.sub(r"next_free_sgpr \d+", "next_free_sgpr 102", "".join(descs)))
    open(sys.argv[1], "w").write(txt)

if __name__ == "__main__":
    main()
```

```python
import sys, struct
import numpy as np
from asmlib import Asm, v, a_, s_, kdesc

NAME = "adaLN_cond__ssm_conv_s4__glu_gated_reglu__prompt"
L, D, N, F = 2048, 448, 256, 1792

WS_XT   = 0x000000
WS_STM  = 0x1C0000
WS_STR  = 0x1C2000
WS_MOD  = 0x1C4000
WS_R2   = 0x1C8000
WS_FL   = 0x1D0000
WS_SG   = 0x1C0000
WS_MG   = 0x001000
WS_EP   = 0x000100
WS_XG   = 0x1400000
WS_KG   = 0x200000
WS_X1T  = 0x400000
WS_WF   = 0x600000
WS_WDF  = 0xA00000
WS_HF   = 0xC00000
TB = 28672
WF_FT = 29 * 2048
WF_FG = 29 * 1024
HF_TT = 112 * 1024

LOG2E = 0x3fb8aa3b
INV448 = 0x3b124925
EPS = 0x3727c5ac
ONES = 0x3f803f80

def f2u(x): return struct.unpack('<I', struct.pack('<f', x))[0]

def bf16_round_int(l):
    u = f2u(float(l))
    u = (u + 0x7fff + ((u >> 16) & 1)) & 0xffff0000
    return int(struct.unpack('<f', struct.pack('<I', u))[0])

XROWS = [0, 1, 2, 3, 4, 5, 6, 7, 256, 258, 260, 262, 512, 768, 516, 772, 1024, 1280, 1536, 1792, 2048]
RS = 1040

def ktable():
    tab = {}
    for i, o in enumerate(XROWS):
        for j in range(32):
            tab.setdefault(o + 8 * j, (i, j))
    out = []
    for x in range(2048):
        i, j = tab[bf16_round_int(2047 - x)]
        out.append(i * RS + j * 4)
    return out

def add64(A, dst, src, imm):
    A(f"s_add_u32 s{dst}, s{src}, {imm}\ns_addc_u32 s{dst+1}, s{src+1}, 0")

def cmul(A, d, a, b):
    return [f"v_pk_mul_f32 {v(d,2)}, {v(a,2)}, {v(b,2)} op_sel_hi:[1,0]",
            f"v_pk_fma_f32 {v(d,2)}, {v(a,2)}, {v(b,2)}, {v(d,2)} op_sel:[1,1,0] op_sel_hi:[0,1,1] neg_lo:[1,0,0]"]
```

```python
from common import *
K1_KG, K1_LN, K1_MOD = 448, 64, 84
K1_GRID = K1_KG + K1_LN + K1_MOD
K1_LDS = 32 * RS

def k1(A):
    A(f""".globl prep_kernel
.p2align 8
.type prep_kernel,@function
prep_kernel:
s_cmp_lt_u32 s2, {K1_LN + K1_MOD}
s_cbranch_scc1 K1_other
s_cmp_ge_u32 s2, {K1_GRID}
s_cbranch_scc1 K1_end
s_sub_u32 s2, s2, {K1_LN + K1_MOD}
s_load_dwordx16 s[4:19], s[0:1], 8
s_load_dwordx2 s[20:21], s[0:1], 136
s_getpc_b64 s[22:23]
K1_pc:
s_add_u32 s22, s22, ktab-K1_pc
s_addc_u32 s23, s23, 0
s_lshl_b32 s3, s2, 9
v_lshlrev_b32 v3, 4, v0
v_lshl_add_u32 v1, v0, 1, s3
s_lshl_b32 s3, s2, 1
v_mov_b32 v2, s3
""")
    for r in range(10, 17): A(f"v_mov_b32 v{r}, 0")
    A("global_load_dwordx4 v[20:23], v3, s[22:23]")
    A("s_waitcnt lgkmcnt(0)")
    A("global_load_short_d16_hi v16, v2, s[16:17]")
    for i in range(6): A(f"global_load_short_d16_hi v{10+i}, v1, s[{4+2*i}:{5+2*i}]")
    A(f"""
v_lshrrev_b32 v4, 6, v0
v_and_b32 v5, 63, v0
v_readfirstlane_b32 s24, v4
v_and_b32 v6, 31, v5
v_lshrrev_b32 v7, 5, v5
s_lshl_b32 s24, s24, 8
s_mov_b32 m0, s24
v_mul_u32_u24 v8, {RS}, v6
v_lshl_add_u32 v8, v7, 4, v8
v_add_u32 v8, s24, v8
v_mul_u32_u24 v9, {4*RS}, v7
v_lshl_add_u32 v9, v6, 2, v9
v_add_u32 v9, s24, v9
s_lshl_b32 s3, s2, 12
s_add_u32 s3, s3, {WS_KG}
s_add_u32 s20, s20, s3
s_addc_u32 s21, s21, 0
s_mov_b32 s25, {LOG2E}
s_waitcnt vmcnt(6)
v_mul_f32 v16, s25, v16
v_exp_f32 v16, v16
""")
    for e in range(8):
        src = 20 + e // 2
        A(f"v_and_b32 v{24+e}, 0xffff, v{src}" if e % 2 == 0 else f"v_lshrrev_b32 v{24+e}, 16, v{src}")
    A("""
v_cvt_pk_bf16_f32 v16, v16, v16
v_and_b32 v16, 0xffff0000, v16        ; dt
s_waitcnt vmcnt(0)
s_mov_b32 s30, 0
K1_rep:
;TS0
v_mul_f32 v10, v16, v10
v_mul_f32 v11, v16, v11
v_mul_f32 v10, s25, v10
v_mul_f32 v11, 0.15915494, v11
v_mul_f32 v12, v16, v12               ; dB
v_mul_f32 v13, v16, v13
""")
    def zdirect(dst, l, t):
        if l == 1:
            A(f"v_fract_f32 v{t+1}, v11\nv_exp_f32 v{t}, v10")
        else:
            A(f"v_mul_f32 v{t+1}, {hex(f2u(float(l)))}, v11\nv_mul_f32 v{t}, {hex(f2u(float(l)))}, v10\nv_fract_f32 v{t+1}, v{t+1}\nv_exp_f32 v{t}, v{t}")
        A(f"v_cos_f32 v{dst}, v{t+1}\nv_sin_f32 v{dst+1}, v{t+1}")
        A(f"v_pk_mul_f32 {v(dst,2)}, {v(dst,2)}, {v(t,2)} op_sel_hi:[1,0]")
    Z1, Z8, P = 32, 34, 36
    zdirect(Z1, 1, 18); zdirect(P, 256, 18); zdirect(Z8, 8, 18)
    X = lambda i: 40 + 2 * i
    seq = [(0, 14, 12)]
    for i in range(1, 8): seq.append((i, X(i - 1), Z1))
    for i, srci in ((8, 0), (9, 2), (10, 4), (11, 6), (12, 8), (14, 10), (13, 12), (15, 14), (16, 13), (17, 16), (18, 17), (19, 18), (20, 19)):
        seq.append((i, X(srci), P))
    pend = None
    T = [84, 85]
    for n, (i, a, b) in enumerate(seq):
        m, f_ = cmul(A, X(i), a, b)
        A(m)
        if pend is not None: A(f"v_cvt_pk_bf16_f32 v{T[n&1]}, v{X(pend)}, -v{X(pend)+1}")
        A(f_)
        if pend is not None: A(f"ds_write_addtid_b32 v{T[n&1]} offset:{pend*RS}")
        pend = i
    A(f"v_cvt_pk_bf16_f32 v{T[0]}, v{X(pend)}, -v{X(pend)+1}")
    A(f"v_mov_b32 v{T[1]}, 0x3f80")
    A(f"ds_write_addtid_b32 v{T[0]} offset:{pend*RS}")
    AF, BF, ACC = 88, 44, 120
    A(";TS1")
    for ks in range(8): A(f"ds_read_b128 {v(AF+4*ks,4)}, v8 offset:{ks*32}")
    A(f"ds_write_addtid_b32 v{T[1]} offset:0")
    Y = [40, 42]
    prev = Z8; pend = (1, Z8)
    for j in range(2, 32):
        d = Y[j & 1]
        m, f_ = cmul(A, d, prev, Z8)
        A(m)
        A(f"v_cvt_pk_bf16_f32 v{T[j&1]}, v{pend[1]}, v{pend[1]+1}")
        A(f_)
        A(f"ds_write_addtid_b32 v{T[j&1]} offset:{pend[0]*RS}")
        prev = d; pend = (j, d)
    A(f"v_cvt_pk_bf16_f32 v{T[0]}, v{pend[1]}, v{pend[1]+1}")
    A(f"ds_write_addtid_b32 v{T[0]} offset:{pend[0]*RS}")
    A(";TS2")
    for ks in range(8): A(f"ds_read_b128 {v(BF+4*ks,4)}, v8 offset:{ks*32}")
    for ks in range(8):
        A(f"s_waitcnt lgkmcnt({7-ks})")
        A(f"v_mfma_f32_32x32x16_bf16 {v(ACC,16)}, {v(AF+4*ks,4)}, {v(BF+4*ks,4)}, {'0' if ks==0 else v(ACC,16)}")
    for r in range(12):
        A(f"ds_write_b32 v9, v{ACC+r} offset:{((r&3)+8*(r>>2))*RS}")
    A("s_waitcnt lgkmcnt(0)\ns_barrier")
    E = 40
    A(";TS3")
    for e in range(8):
        A(f"ds_read2st64_b32 {v(E+4*e,2)}, v{24+e} offset0:0 offset1:1")
        A(f"ds_read2st64_b32 {v(E+4*e+2,2)}, v{24+e} offset0:2 offset1:3")
        if e == 3: pass
    for e in range(8):
        A(f"s_waitcnt lgkmcnt({14-2*e})")
        A(f"v_pk_add_f32 {v(E+4*e,2)}, {v(E+4*e,2)}, {v(E+4*e+2,2)}")
        A(f"v_add_f32 v{E+4*e}, v{E+4*e}, v{E+4*e+1}")
        if e & 1: A(f"v_cvt_pk_bf16_f32 v{80+e//2}, v{E+4*e-4}, v{E+4*e}")
    A(";TS4")
    import os
    if os.environ.get("K1REP"): A("s_barrier\ns_add_u32 s30, s30, 1\ns_cmp_lt_u32 s30, 2\ns_cbranch_scc1 K1_rep")
    A("global_store_dwordx4 v3, v[80:83], s[20:21]\ns_endpgm")

    LS = 928
    A(f"""
K1_other:
s_cmp_ge_u32 s2, {K1_LN}
s_cbranch_scc1 K1_mod
s_load_dwordx2 s[4:5], s[0:1], 0
s_load_dwordx2 s[6:7], s[0:1], 136
s_mov_b32 s3, s2                      ; t-block
s_mul_i32 s8, s3, {TB}
v_lshrrev_b32 v1, 3, v0               ; row
v_and_b32 v2, 7, v0                   ; sub
v_mul_u32_u24 v3, 896, v1
v_lshl_add_u32 v3, v2, 4, v3
v_mul_u32_u24 v4, {LS}, v1
v_lshl_add_u32 v4, v2, 4, v4
s_waitcnt lgkmcnt(0)
s_add_u32 s4, s4, s8
s_addc_u32 s5, s5, 0
""")
    for i in range(7): A(f"global_load_dwordx4 {v(16+4*i,4)}, v3, s[4:5] offset:{128*i}")
    A(f"""
s_add_u32 s10, s6, s8
s_addc_u32 s11, s7, 0
s_lshl_b32 s9, s3, 7
s_add_u32 s9, s9, {WS_STM}
s_add_u32 s12, s6, s9
s_addc_u32 s13, s7, 0
v_lshlrev_b32 v5, 2, v1               ; row*4
v_lshrrev_b32 v6, 6, v0               ; w
v_bfe_u32 v7, v0, 4, 2                ; g
v_bfe_u32 v8, v0, 2, 2                ; e
v_and_b32 v9, 3, v0                   ; cq
v_lshl_add_u32 v8, v7, 3, v8
v_mul_u32_u24 v8, {LS}, v8
v_lshl_add_u32 v8, v9, 3, v8
v_lshl_add_u32 v8, v6, 5, v8
v_and_b32 v9, 15, v0
v_lshlrev_b32 v9, 6, v9
v_lshl_add_u32 v9, v7, 4, v9
v_lshl_add_u32 v9, v6, 10, v9
s_mov_b32 s14, {ONES}
v_mov_b32 v10, 0
v_mov_b32 v11, 0
""")
    for i in range(7):
        A(f"s_waitcnt vmcnt({6-i})")
        A(f"ds_write_b128 v4, {v(16+4*i,4)} offset:{128*i}")
        for j in range(4): A(f"v_dot2_f32_bf16 v{10+(j&1)}, v{16+4*i+j}, s14, v{10+(j&1)}")
    def red8(r, t):
        A(f"""
v_add_f32_dpp v{r}, v{r}, v{r} quad_perm:[1,0,3,2] row_mask:0xf bank_mask:0xf
v_add_f32_dpp v{r}, v{r}, v{r} quad_perm:[2,3,0,1] row_mask:0xf bank_mask:0xf
v_add_f32_dpp v{r}, v{r}, v{r} row_half_mirror row_mask:0xf bank_mask:0xf
""")
    A("v_add_f32 v10, v10, v11")
    red8(10, 11)
    A(f"""
v_mul_f32 v10, {hex(INV448)}, v10     ; mean
s_waitcnt lgkmcnt(0)
s_barrier
""")
    for c in range(7):
        A(f"ds_read_b64_tr_b16 {v(48+4*c,2)}, v8 offset:{128*c}")
        A(f"ds_read_b64_tr_b16 {v(50+4*c,2)}, v8 offset:{128*c+4*LS}")
    A("v_mov_b32 v12, 0\nv_mov_b32 v13, 0\nv_mov_b32 v11, v10")
    for k in range(28):
        t = 76 + 2 * (k & 1)
        A(f"v_lshlrev_b32 v{t}, 16, v{16+k}\nv_and_b32 v{t+1}, 0xffff0000, v{16+k}")
        A(f"v_pk_add_f32 {v(t,2)}, {v(t,2)}, v[10:11] neg_lo:[0,1] neg_hi:[0,1]")
        A(f"v_pk_fma_f32 v[12:13], {v(t,2)}, {v(t,2)}, v[12:13]")
        if k % 4 == 3:
            c = k // 4
            A(f"s_waitcnt lgkmcnt({12-2*c})")
            if c: A(f"v_add_u32 v9, 4096, v9")
            A(f"global_store_dwordx4 v9, {v(48+4*c,4)}, s[10:11]")
    A("v_add_f32 v12, v12, v13")
    red8(12, 13)
    A(f"""
v_mul_f32 v12, {hex(INV448)}, v12     ; var
v_cvt_pk_bf16_f32 v10, v10, v12
v_and_b32 v12, 0xffff0000, v10
v_lshlrev_b32 v10, 16, v10
v_add_f32 v12, {hex(EPS)}, v12
v_cvt_pk_bf16_f32 v12, v12, v12
v_and_b32 v12, 0xffff0000, v12
v_sqrt_f32 v12, v12
v_cvt_pk_bf16_f32 v12, v12, v12
v_and_b32 v12, 0xffff0000, v12
v_rcp_f32 v12, v12
v_add_u32 v6, {WS_STR - WS_STM}, v5
global_store_dword v5, v10, s[12:13]
global_store_dword v6, v12, s[12:13]
s_lshl_b32 s9, s3, 9
s_add_u32 s9, s9, {WS_FL}
v_lshl_add_u32 v6, v5, 2, s9
v_mov_b32 v13, 0
global_store_dword v6, v13, s[6:7]
s_endpgm
""")
    A(f"""
K1_mod:
s_load_dwordx4 s[4:7], s[0:1], 104    ; c, w_mod
s_load_dwordx2 s[8:9], s[0:1], 136
s_sub_u32 s3, s2, {K1_LN}
v_lshrrev_b32 v1, 2, v0               ; rg
v_and_b32 v2, 3, v0                   ; cc
v_mul_u32_u24 v3, 5376, v1
v_lshl_add_u32 v3, v2, 4, v3
s_lshl_b32 s10, s3, 6
v_add_u32 v3, s10, v3                 ; w off
v_lshlrev_b32 v4, 1, v1               ; c off
""")
    for i in range(7): A(f"v_mov_b32 v{8+i}, 0")
    A("s_waitcnt lgkmcnt(0)")
    for i in range(7): A(f"global_load_short_d16_hi v{8+i}, v4, s[4:5] offset:{128*i}")
    for i in range(7):
        A(f"global_load_dwordx4 {v(16+4*i,4)}, v3, s[6:7]")
        if i < 6: A(f"v_add_u32 v3, {64*5376}, v3")
    A(f"""
s_lshl_b32 s10, s3, 7
s_add_u32 s10, s10, {WS_MOD}
s_add_u32 s8, s8, s10
s_addc_u32 s9, s9, 0
s_mov_b32 s11, {hex(LOG2E | 0x80000000)}
v_lshrrev_b32 v5, 4, v0
v_lshlrev_b32 v5, 7, v5
v_lshl_add_u32 v5, v2, 5, v5
v_lshlrev_b32 v6, 2, v0
s_waitcnt vmcnt(7)
""")
    for i in range(7): A(f"v_mul_f32 v{44+i}, s11, v{8+i}")
    for i in range(7): A(f"v_exp_f32 v{44+i}, v{44+i}")
    for i in range(7): A(f"v_add_f32 v{44+i}, 1.0, v{44+i}")
    for i in range(7): A(f"v_rcp_f32 v{44+i}, v{44+i}")
    for i in range(7): A(f"v_mul_f32 v{8+i}, v{8+i}, v{44+i}")
    for i in range(7): A(f"v_cvt_pk_bf16_f32 v{8+i}, v{8+i}, v{8+i}")
    for i in range(7): A(f"v_and_b32 v{52+2*i}, 0xffff0000, v{8+i}")
    AC = 68
    for i in range(7):
        A(f"s_waitcnt vmcnt({6-i})")
        for j in range(4):
            t = 44 + 2 * j
            A(f"v_lshlrev_b32 v{t}, 16, v{16+4*i+j}\nv_and_b32 v{t+1}, 0xffff0000, v{16+4*i+j}")
        for j in range(4):
            t = 44 + 2 * j
            if i == 0: A(f"v_pk_mul_f32 {v(AC+2*j,2)}, {v(t,2)}, {v(52+2*i,2)} op_sel_hi:[1,0]")
            else: A(f"v_pk_fma_f32 {v(AC+2*j,2)}, {v(t,2)}, {v(52+2*i,2)}, {v(AC+2*j,2)} op_sel_hi:[1,0,1]")
    for sh in (8, 4):
        for j in range(8): A(f"v_add_f32_dpp v{AC+j}, v{AC+j}, v{AC+j} row_ror:{sh} row_mask:0xf bank_mask:0xf")
    A(f"""
ds_write_b128 v5, {v(AC,4)}
ds_write_b128 v5, {v(AC+4,4)} offset:16
s_waitcnt lgkmcnt(0)
s_barrier
v_cmp_gt_u32 vcc, 32, v0
s_and_saveexec_b64 s[12:13], vcc
s_cbranch_execz K1_end
""")
    for i in range(8): A(f"ds_read2_b32 {v(16+2*i,2)}, v6 offset0:{64*i} offset1:{64*i+32}" if 64*i+32 < 256 else f"ds_read2_b32 {v(16+2*i,2)}, v7 offset0:{64*i-256} offset1:{64*i+32-256}") if i != 4 else A(f"v_add_u32 v7, 1024, v6\nds_read2_b32 {v(16+2*i,2)}, v7 offset0:0 offset1:32")
    A("s_waitcnt lgkmcnt(0)")
    for i in range(4): A(f"v_pk_add_f32 {v(16+2*i,2)}, {v(16+2*i,2)}, {v(24+2*i,2)}")
    for i in range(2): A(f"v_pk_add_f32 {v(16+2*i,2)}, {v(16+2*i,2)}, {v(20+2*i,2)}")
    A("""
v_pk_add_f32 v[16:17], v[16:17], v[18:19]
v_add_f32 v16, v16, v17
v_cvt_pk_bf16_f32 v16, v16, v16
v_and_b32 v16, 0xffff0000, v16
global_store_dword v6, v16, s[8:9]
K1_end:
s_endpgm
""")
    tab = ktable()
    A(".p2align 4\n.type ktab,@object\nktab:")
    for i in range(0, 2048, 16): A(".short " + ", ".join(str(t) for t in tab[i:i+16]))
    A(".size ktab, 4096")
    return kdesc("prep_kernel", 136, 32)
```

```python
from common import *
import os
K12_GRID = 256
K12_BLOCK = 512
NCV = 224
KGS = 53 * RS
KC = 4160
L_Y = 0
YW = 10240
L_K = 2 * KGS
L_H = L_K + 4 * KC
HS = 4608
L_R = L_H + 2 * HS
RSTR = 912
L_U = L_R
L_S = L_R + 8 * RSTR
L_V = L_S + 64
K12_LDS = L_V + 1024
TAGC = 0x2F4A7C15
XGP = 14336
MGH = 2688 * 8
TAG = 's40'

LIMIT = int(os.environ.get("LIMIT", "20000"))
def lim(lbl): return f"s_add_u32 s43, s43, 1\ns_cmp_gt_u32 s43, {LIMIT}\ns_cbranch_scc1 {lbl}"

GPOS = int(os.environ.get('GPOS', '1'))
WPOS = int(os.environ.get('WPOS', '1'))
WST = os.environ.get('WST', '')
XST = os.environ.get('XST', '')
XLAY = int(os.environ.get('XLAY', '0'))
PUBA = f"""s_mul_i32 s3, s2, {XGP}
s_add_u32 s3, s3, {WS_XG}
v_lshl_add_u32 v29, v0, 4, s3
v_add_u32 v27, {XGP//2}, v29"""
PUBB = f"""s_lshr_b32 s3, s2, 1
s_mul_i32 s3, s3, {2*XGP}
s_and_b32 s59, s2, 1
s_lshl_b32 s59, s59, 6
s_add_u32 s3, s3, s59
s_add_u32 s3, s3, {WS_XG}
v_lshl_add_u32 v29, v29, 5, s3
v_lshl_add_u32 v29, v30, 4, v29
v_add_u32 v27, {XGP}, v29"""
W0a = """s_cmp_lg_u32 s60, 0
s_waitcnt vmcnt(22)
s_cbranch_scc1 F_row
s_waitcnt vmcnt(6)
F_row:"""
W0b = """s_cmp_lg_u32 s38, 0
s_waitcnt vmcnt(18)
s_cbranch_scc1 F_pubd"""
SPA = int(os.environ.get('SPA', '0'))
CPF = """s_lshr_b32 s3, s2, 3
s_lshl_b32 s3, s3, 11
v_lshrrev_b32 v3, 5, v0
v_lshl_add_u32 v3, v3, 7, s3
v_min_u32 v3, code_end-front_kernel-4, v3
s_sub_u32 s24, s22, ktab-front_kernel
s_subb_u32 s25, s23, 0
global_load_dword v219, v3, s[24:25]"""
def k12(A):
    WL, DL = 232, 224
    def wloads(lbl, own=True):
        A(f"""
s_cmp_eq_u32 s38, 0
s_cbranch_scc1 {lbl}
s_lshr_b32 s24, s2, 5
s_lshl_b32 s24, s24, 3
s_add_u32 s24, s24, s34               ; q
s_and_b32 s25, s24, 1                 ; mat
s_lshr_b32 s24, s24, 1                ; cg
s_bfe_u32 s26, s2, 0x20003            ; rq
s_cmp_eq_u32 s25, 0
s_cselect_b32 s44, s44, s46
s_cselect_b32 s45, s45, s47
v_and_b32 v220, 255, v0
v_min_u32 v220, 223, v220
v_lshrrev_b32 v221, 4, v220           ; rgrp 0..13
v_and_b32 v222, 15, v220              ; cq
v_mul_u32_u24 v223, {8*3584}, v221
v_lshl_add_u32 v223, v222, 3, v223
s_mul_i32 s3, s26, {112*3584}
s_lshl_b32 s46, s24, 7
s_add_u32 s3, s3, s46
v_add_u32 v223, s3, v223
""")
        for j in range(8):
            A(f"global_load_dwordx2 {v(WL+2*j,2)}, v223, s[44:45]" + (" offset:3584" if j & 1 else ""))
            if j & 1 and j < 7: A("v_add_u32 v223, 7168, v223")
        A(f"""
s_lshr_b32 s3, s2, 1
s_lshl_b32 s3, s3, 2
s_and_b32 s46, s2, 1
s_add_u32 s3, s3, s46
s_mul_i32 s3, s3, {4*896}
v_lshl_add_u32 v223, v220, 2, s3
""")
        for j in range(8):
            A(f"global_load_dword v{DL+j}, v223, s[48:49] offset:{896*(j&3)}")
            if j == 3: A(f"v_add_u32 v223, {8*896}, v223")
        if own: A(f"{lbl}:")
    A(f""".globl front_kernel
.p2align 8
.type front_kernel,@function
front_kernel:
s_cmp_ge_u32 s2, {K12_GRID}
s_cbranch_scc1 F_end
s_load_dwordx2 s[36:37], s[0:1], 0
s_load_dwordx2 s[20:21], s[0:1], 136
s_load_dwordx16 s[4:19], s[0:1], 8
s_load_dwordx8 s[44:51], s[0:1], 80
s_load_dwordx2 s[52:53], s[0:1], 112  ; w_mod
s_getpc_b64 s[22:23]
F_pc:
s_add_u32 s22, s22, ktab-F_pc
s_addc_u32 s23, s23, 0
v_and_b32 v17, 255, v0
v_lshlrev_b32 v17, 4, v17             ; n*16
v_lshrrev_b32 v1, 6, v0
v_and_b32 v2, 63, v0                  ; lane
v_readfirstlane_b32 s33, v1           ; w
{CPF if os.environ.get("NOCPF") is None else ""}
global_load_dwordx4 v[20:23], v17, s[22:23]
global_load_ushort v19, v17, s[22:23] offset:16
v_lshlrev_b32 v3, 4, v2               ; lane*16
s_and_b32 s34, s2, 1
s_lshl_b32 s3, s2, 3
s_mul_i32 s34, s34, 6
s_sub_u32 s3, s3, s34
s_and_b32 s34, s33, 6
s_add_u32 s3, s3, s33
s_add_u32 s3, s3, s34
s_mul_i32 s3, s3, 896
v_add_u32 v8, s3, v3
v_mov_b32 v4, 0
v_mov_b32 v5, 0
v_mov_b32 v6, 0
v_mov_b32 v7, 0
s_and_b32 s34, s2, 7
s_lshr_b32 s35, s2, 4
s_lshl_b32 s35, s35, 3
s_add_u32 s35, s35, s34
s_lshl_b32 s35, s35, 1
s_bfe_u32 s38, s2, 0x10003
s_add_u32 s35, s35, s38               ; c
s_lshr_b32 s38, s33, 2                ; ch
s_mov_b32 s43, 0
s_mov_b32 s60, s38
s_mov_b32 s58, {L_R}
s_mov_b32 s42, {ONES}
s_cmp_ge_u32 s2, {NCV}
s_cbranch_scc1 F_spare_loads
s_lshl_b32 s3, s35, 10
v_lshl_add_u32 v1, v0, 1, s3
s_lshl_b32 s3, s35, 2
""")
    for r in range(10, 16): A(f"v_mov_b32 v{r}, 0")
    A(f"""
s_mov_b32 exec_hi, 0x00ffffff
s_waitcnt lgkmcnt(0)
global_load_dwordx4 v[4:7], v8, s[36:37]
s_mov_b32 exec_hi, -1
s_load_dword {TAG}, s[20:21], {WS_EP}
s_load_dword s39, s[16:17], s3
s_load_dword s41, s[18:19], s3
""")
    for i in range(6): A(f"global_load_short_d16_hi v{10+i}, v1, s[{4+2*i}:{5+2*i}]")
    if WPOS == 0: wloads("F_stats", False)
    A("s_branch F_stats\nF_spare_loads:")
    P = [96, 112, 128]
    AC = 64
    LM = 0
    A(f"""
s_sub_u32 s24, s2, {NCV}
s_min_u32 s25, s24, 27
s_and_b32 s26, s25, 1                 ; hf
s_lshr_b32 s25, s25, 1                ; g
v_lshrrev_b32 v12, 3, v0
v_min_u32 v12, 55, v12
v_and_b32 v13, 7, v0                  ; chunk
s_mul_i32 s27, s26, 448
v_lshl_add_u32 v10, v12, 3, s27       ; c offset
v_mul_u32_u24 v14, {4*5376}, v12
v_lshl_add_u32 v14, v13, 4, v14
s_mul_i32 s27, s26, {224*5376}
s_lshl_b32 s28, s25, 7
s_add_u32 s27, s27, s28
v_add_u32 v14, s27, v14
v_add_u32 v15, 5376, v14
v_add_u32 v16, {2*5376}, v14
v_add_u32 v18, {3*5376}, v14
s_cmp_ge_u32 s25, 7
s_cselect_b32 s29, 2, 1
s_mul_i32 s29, s29, 1792
s_mov_b32 exec_hi, 0x00ffffff
s_waitcnt lgkmcnt(0)
global_load_dwordx4 v[4:7], v8, s[36:37]
s_mov_b32 exec_hi, -1
s_load_dword {TAG}, s[20:21], {WS_EP}
s_cmp_eq_u32 s33, 7
s_cbranch_scc1 F_stats0
global_load_dwordx2 v[10:11], v10, s[50:51]
""")
    RA = [14, 15, 16, 18]
    for i in range(4): A(f"global_load_dwordx4 {v(P[0]+4*i,4)}, v{RA[i]}, s[52:53]")
    def p3addr(): A(f"v_add_u32 v14, s29, v14\nv_add_u32 v15, 5376, v14\nv_add_u32 v16, {2*5376}, v14\nv_add_u32 v18, {3*5376}, v14")
    if SPA:
        for k in range(4): A(f"global_load_dwordx4 {v(P[1]+4*k,4)}, v{RA[k]}, s[52:53] offset:2688")
        p3addr()
        for k in range(4): A(f"global_load_dwordx4 {v(P[2]+4*k,4)}, v{RA[k]}, s[52:53]")
    A("s_mov_b32 s60, 1")
    A(f"""
s_mov_b32 s27, {hex(LOG2E | 0x80000000)}
v_lshrrev_b32 v24, 5, v2
v_lshlrev_b32 v24, 4, v24
v_lshl_add_u32 v24, v13, 5, v24
v_bfe_u32 v25, v2, 4, 1
v_lshl_add_u32 v24, v25, 3, v24
s_lshl_b32 s3, s33, 8
v_add_u32 v24, s3, v24
s_waitcnt vmcnt({12 if SPA else 4})
v_lshlrev_b32 v44, 16, v10
v_and_b32 v45, 0xffff0000, v10
v_lshlrev_b32 v46, 16, v11
v_and_b32 v47, 0xffff0000, v11
""")
    for i in range(4): A(f"v_mul_f32 v{48+i}, s27, v{44+i}")
    for i in range(4): A(f"v_exp_f32 v{48+i}, v{48+i}")
    for i in range(4): A(f"v_add_f32 v{48+i}, 1.0, v{48+i}")
    for i in range(4): A(f"v_rcp_f32 v{48+i}, v{48+i}")
    for i in range(4): A(f"v_mul_f32 v{44+i}, v{44+i}, v{48+i}")
    A("v_cvt_pk_bf16_f32 v48, v44, v45\nv_cvt_pk_bf16_f32 v49, v46, v47")
    A("v_lshlrev_b32 v44, 16, v48\nv_and_b32 v45, 0xffff0000, v48\nv_lshlrev_b32 v46, 16, v49\nv_and_b32 v47, 0xffff0000, v49")
    def gemv(p, waitbase):
        for i in range(4):
            A(f"s_waitcnt vmcnt({waitbase - i})")
            for j in range(4): A(f"v_lshlrev_b32 v{56+2*j}, 16, v{P[p]+4*i+j}\nv_and_b32 v{57+2*j}, 0xffff0000, v{P[p]+4*i+j}")
            for j in range(8):
                if i == 0: A(f"v_mul_f32 v{AC+j}, v44, v{56+j}")
                else: A(f"v_fmac_f32 v{AC+j}, v{44+i}, v{56+j}")
            if p == 0 and i == 3 and not SPA:
                for k in range(4): A(f"global_load_dwordx4 {v(P[1]+4*k,4)}, v{RA[k]}, s[52:53] offset:2688")
        for j in range(4): A(f"v_permlane32_swap_b32 v{AC+j}, v{AC+4+j}")
        for j in range(4): A(f"v_add_f32 v{AC+j}, v{AC+j}, v{AC+4+j}")
        for j in range(2): A(f"v_permlane16_swap_b32 v{AC+j}, v{AC+2+j}")
        for j in range(2): A(f"v_add_f32 v{AC+j}, v{AC+j}, v{AC+2+j}")
        for j in range(2): A(f"v_add_f32_dpp v{AC+j}, v{AC+j}, v{AC+j} row_ror:8 row_mask:0xf bank_mask:0xf")
        A(f"ds_write_b64 v24, {v(AC,2)} offset:{LM + 2048*p}")
    gemv(0, 11 if SPA else 3)
    A(";TP s1\ns_branch F_stats\nF_stats0:\ns_waitcnt vmcnt(0)\nF_stats:")
    A(f"""
s_mul_i32 s3, s33, {RSTR}
s_add_u32 s3, s3, {L_R}
v_add_u32 v8, s3, v3
v_and_b32 v30, 3, v0
v_mul_u32_u24 v28, {2*RSTR}, v30
v_and_b32 v29, 0x1fc, v0
v_add3_u32 v28, v28, v29, s58
v_add_u32 v31, {L_S}, v3
{PUBA if XLAY == 0 else PUBB}
s_lshl_b32 s3, s33, 3
s_add_u32 s3, s3, {L_S}
v_mov_b32 v30, s3
{W0a if WPOS == 0 else "s_waitcnt vmcnt(6)"}
v_dot2_f32_bf16 v42, v4, s42, 0
v_dot2_f32_bf16 v43, v4, v4, 0
s_mov_b32 exec_hi, 0x00ffffff
ds_write_b128 v8, v[4:7]
s_mov_b32 exec_hi, -1
""")
    for j in range(1, 4): A(f"v_dot2_f32_bf16 v42, v{4+j}, s42, v42\nv_dot2_f32_bf16 v43, v{4+j}, v{4+j}, v43")
    A("v_permlane32_swap_b32 v42, v43\nv_add_f32 v42, v42, v43")
    for sh in (8, 4, 2, 1): A(f"v_add_f32_dpp v42, v42, v42 row_ror:{sh} row_mask:0xf bank_mask:0xf")
    A(f"""
v_mov_b32 v43, v42
v_permlane16_swap_b32 v42, v43
v_add_f32 v42, v42, v43
v_mul_f32 v42, {hex(INV448)}, v42
v_mov_b32 v43, v42
v_permlane32_swap_b32 v42, v43        ; v42 mean, v43 E[x^2]
v_fma_f32 v43, -v42, v42, v43
v_max_f32 v43, 0, v43
v_cvt_pk_bf16_f32 v43, v43, v43
v_and_b32 v43, 0xffff0000, v43
v_add_f32 v43, {hex(EPS)}, v43
v_cvt_pk_bf16_f32 v43, v43, v43
v_and_b32 v43, 0xffff0000, v43
v_sqrt_f32 v43, v43
s_waitcnt lgkmcnt(0)
s_add_u32 {TAG}, {TAG}, {hex(TAGC)}
v_mov_b32 v41, {TAG}
v_cvt_pk_bf16_f32 v40, v42, v43
ds_write_b64 v30, v[40:41]
v_mov_b32 v33, {TAG}
v_mov_b32 v35, {TAG}
v_mov_b32 v37, {TAG}
v_mov_b32 v39, {TAG}
s_waitcnt lgkmcnt(0)
s_barrier
s_cmp_eq_u32 s33, 7
s_cbranch_scc1 F_pub7
""")
    for j in range(4): A(f"ds_read_b32 v{32+2*j}, v28 offset:{(j&1)*RSTR + (j>>1)*448}")
    A(f"""
s_waitcnt lgkmcnt(2)
global_store_dwordx4 v29, v[32:35], s[20:21] sc1
s_waitcnt lgkmcnt(0)
global_store_dwordx4 v27, v[36:39], s[20:21] sc1
s_cmp_ge_u32 s2, {NCV}
s_cbranch_scc1 F_spare
{W0b if WPOS == 0 else ""}
s_waitcnt vmcnt(2)
s_branch F_pubd
F_pub7:
ds_read_b128 v[32:35], v31
s_lshr_b32 s3, s2, 1
s_lshl_b32 s3, s3, 6
s_and_b32 s59, s2, 1
s_lshl_b32 s59, s59, 13
s_add_u32 s3, s3, s59
s_add_u32 s3, s3, {WS_SG}
v_add_u32 v29, s3, v3
s_mov_b64 exec, 15
s_waitcnt lgkmcnt(0)
global_store_dwordx4 v29, v[32:35], s[20:21] sc1
s_mov_b64 exec, -1
s_cmp_ge_u32 s2, {NCV}
s_cbranch_scc1 F_spare7
s_waitcnt vmcnt({17 if WPOS == 0 else 1})
F_pubd:
""")
    if WPOS == 1: wloads("F_w1")
    A(f"""
s_and_b32 s27, s33, 3
s_lshl_b32 s27, s27, 8
s_mul_i32 s28, s38, {KGS}
s_add_u32 s27, s27, s28
s_mov_b32 m0, s27
s_lshl_b32 s3, s38, 4
s_lshr_b32 s39, s39, s3
s_lshl_b32 s39, s39, 16
s_mov_b32 s29, {LOG2E}
v_mov_b32 v16, s39
v_mul_f32 v16, s29, v16
v_exp_f32 v16, v16
v_and_b32 v6, 31, v2
v_lshrrev_b32 v7, 5, v2
v_mul_u32_u24 v8, {RS}, v6
v_lshl_add_u32 v8, v7, 4, v8
v_add_u32 v8, s27, v8
v_mul_u32_u24 v9, {4*RS}, v7
v_lshl_add_u32 v9, v6, 2, v9
v_add_u32 v9, s27, v9
""")
    TA = 24
    A("""
v_cvt_pk_bf16_f32 v16, v16, v16
v_and_b32 v16, 0xffff0000, v16        ; dt
v_mul_f32 v10, v16, v10
v_mul_f32 v11, v16, v11
v_mul_f32 v10, s29, v10
v_mul_f32 v11, 0.15915494, v11
v_mul_f32 v12, v16, v12               ; dB
v_mul_f32 v13, v16, v13
""")
    Z1, Z8, P_ = 34, 36, 38
    T1, T8, TP = 40, 42, 44
    A(f"""
v_mul_f32 v{T8+1}, {hex(f2u(8.0))}, v11
v_mul_f32 v{TP+1}, {hex(f2u(256.0))}, v11
v_mul_f32 v{T8}, {hex(f2u(8.0))}, v10
v_mul_f32 v{TP}, {hex(f2u(256.0))}, v10
v_fract_f32 v{T8+1}, v{T8+1}
v_fract_f32 v{T1+1}, v11
v_fract_f32 v{TP+1}, v{TP+1}
v_exp_f32 v{T8}, v{T8}
v_cos_f32 v{Z8}, v{T8+1}
v_sin_f32 v{Z8+1}, v{T8+1}
v_exp_f32 v{T1}, v10
v_cos_f32 v{Z1}, v{T1+1}
v_sin_f32 v{Z1+1}, v{T1+1}
v_pk_mul_f32 {v(Z8,2)}, {v(Z8,2)}, {v(T8,2)} op_sel_hi:[1,0]
v_exp_f32 v{TP}, v{TP}
v_cos_f32 v{P_}, v{TP+1}
v_sin_f32 v{P_+1}, v{TP+1}
v_pk_mul_f32 {v(Z1,2)}, {v(Z1,2)}, {v(T1,2)} op_sel_hi:[1,0]
s_nop 0
v_pk_mul_f32 {v(P_,2)}, {v(P_,2)}, {v(TP,2)} op_sel_hi:[1,0]
""")
    X = lambda i: 48 + 2 * i
    Y = lambda j: Z8 if j == 1 else 96 + 2 * j
    rounds = [
        [('x', 0, 14, 12), ('y', 2, Y(1), Y(1))],
        [('x', 1, X(0), Z1), ('x', 8, X(0), P_), ('y', 3, Y(2), Y(1)), ('y', 4, Y(2), Y(2))],
    ]
    xa = [(i, X(i - 1), Z1) for i in range(2, 8)]
    xb = [(12, X(8), P_), (13, X(12), P_), (16, X(13), P_), (17, X(16), P_), (18, X(17), P_), (19, X(18), P_), (20, X(19), P_)]
    xc = {1: (9, X(2), P_), 3: (10, X(4), P_), 4: (14, X(10), P_), 5: (15, X(14), P_), 6: (11, X(6), P_)}
    for r in range(7):
        rd = []
        if r < 6: rd.append(('x',) + xa[r])
        rd.append(('x',) + xb[r])
        if r in xc: rd.append(('x',) + xc[r])
        for j in range(5 + 4 * r, min(9 + 4 * r, 32)): rd.append(('y', j, Y(j - 4), Y(4)))
        rounds.append(rd)
    TT = 160
    tn = [0]
    def emit_out(k, i):
        t = TT + tn[0] % 16; tn[0] += 1
        if k == 'x': return [f"v_cvt_pk_bf16_f32 v{t}, v{X(i)}, -v{X(i)+1}", f"ds_write_addtid_b32 v{t} offset:{i*RS}"]
        return [f"v_cvt_pk_bf16_f32 v{t}, v{Y(i)}, v{Y(i)+1}", f"ds_write_addtid_b32 v{t} offset:{(21+i)*RS}"]
    A(f"v_mov_b32 v{TT+15}, 0x3f80\nds_write_addtid_b32 v{TT+15} offset:{21*RS}")
    pend = emit_out('y', 1)
    for rd in rounds:
        ms, fs = [], []
        for k, i, a, b in rd:
            m, f_ = cmul(A, X(i) if k == 'x' else Y(i), a, b)
            ms.append(m); fs.append(f_)
        for ins in ms + fs:
            A(ins)
            if pend: A(pend.pop(0))
        for ins in pend: A(ins)
        outs = [emit_out(k, i) for k, i, a, b in rd]
        pend = [o[0] for o in outs] + [o[1] for o in outs]
    for ins in pend: A(ins)
    AF, BF, ACC = 48, 96, 80
    for ks in range(8):
        A(f"ds_read_b128 {v(AF+4*ks,4)}, v8 offset:{ks*32}")
        A(f"ds_read_b128 {v(BF+4*ks,4)}, v8 offset:{21*RS + ks*32}")
    GX, GS, GM = 176, 184, 192
    A(f"""
v_lshrrev_b32 v4, 2, v0
v_mul_u32_u24 v4, {2*XGP}, v4
v_and_b32 v5, 3, v0
v_lshl_add_u32 v4, v5, 4, v4
s_lshl_b32 s3, s35, {6 + XLAY}
s_add_u32 s3, s3, {WS_XG}
v_add_u32 v4, s3, v4                  ; x granules
v_add_u32 v16, {XGP if XLAY == 0 else 64}, v4
v_and_b32 v5, 1, v0
v_mul_u32_u24 v6, {MGH}, v5
v_and_b32 v7, 2, v0
v_lshl_add_u32 v6, v7, 2, v6
s_lshl_b32 s3, s35, 4
s_add_u32 s3, s3, {WS_MG}
v_add_u32 v6, s3, v6
v_bfe_u32 v7, v0, 2, 1
v_mul_u32_u24 v59, {3*3584}, v7
v_add_u32 v59, v6, v59
v_add_u32 v59, {2*3584}, v59          ; ga / gb granules
v_mul_u32_u24 v7, 3584, v7
v_add_u32 v6, v6, v7                  ; sa / ca granules
v_lshlrev_b32 v5, 4, v0
v_add_u32 v5, {WS_SG + 4096}, v5      ; stat granules
v_add_u32 v15, 4096, v5
""".replace("v59", "v18"))
    def gran_loads():
        A(f"""
global_load_dwordx4 {v(GX,4)}, v4, s[20:21] sc1
global_load_dwordx4 {v(GX+4,4)}, v16, s[20:21] sc1
global_load_dwordx4 {v(GS,4)}, v5, s[20:21] offset:-4096 sc1
global_load_dwordx4 {v(GS+4,4)}, v15, s[20:21] sc1
""")
    mload = f"global_load_dwordx2 {v(GM,2)}, v6, s[20:21] sc1"
    if GPOS == 0: gran_loads(); A(mload)
    for e in range(8):
        src = 20 + e // 2
        A(f"v_and_b32 v{TA+e}, 0xffff, v{src}" if e % 2 == 0 else f"v_lshrrev_b32 v{TA+e}, 16, v{src}")
    for ks in range(8):
        A(f"s_waitcnt lgkmcnt({14-2*ks})")
        A(f"v_mfma_f32_32x32x16_bf16 {v(ACC,16)}, {v(AF+4*ks,4)}, {v(BF+4*ks,4)}, {'0' if ks==0 else v(ACC,16)}")
        A(f"v_add_u32 v{TA+ks}, s28, v{TA+ks}")
    A(f"""
v_add_u32 v{TA+8}, s28, v19
v_mov_b32 v128, 0
v_mov_b32 v129, 0
v_mov_b32 v130, 0
v_mov_b32 v131, 0
v_bfe_u32 v10, v0, 5, 1
v_mul_u32_u24 v10, {HS}, v10
v_and_b32 v11, 31, v0
v_lshl_add_u32 v10, v11, 4, v10
v_add_u32 v10, {L_H}, v10
v_bfe_u32 v11, v0, 1, 2
v_mul_u32_u24 v11, {KC}, v11
v_and_b32 v12, 1, v0
v_lshl_add_u32 v11, v12, 4, v11
v_add_u32 v11, {L_K + 4096}, v11
v_cmp_gt_u32 vcc, 64, v0
v_cndmask_b32 v10, v11, v10, vcc
ds_write_b128 v10, v[128:131]
""")
    for r in range(12):
        A(f"ds_write_b32 v9, v{ACC+r} offset:{((r&3)+8*(r>>2))*RS}")
    A(f"""
s_mul_i32 s3, s38, {2*KC}
s_add_u32 s3, s3, {L_K}
v_cmp_eq_u32 s[30:31], {255*16}, v17
v_add_u32 v17, s3, v17                ; K copy write addr
""".replace(f"v_cmp_eq_u32 s[30:31], {255*16}, v17", f"v_mov_b32 v10, {255*16}\nv_cmp_eq_u32 s[30:31], v10, v17"))
    if GPOS == 1: gran_loads(); A(mload)
    if WPOS == 2: wloads("F_w1")
    A(";TP pb2\ns_waitcnt lgkmcnt(0)\ns_barrier\n;TP b2")
    E = 48
    for e in range(9):
        A(f"ds_read2st64_b32 {v(E+4*e,2)}, v{TA+e} offset0:0 offset1:1")
        A(f"ds_read2st64_b32 {v(E+4*e+2,2)}, v{TA+e} offset0:2 offset1:3")
    for e in range(9):
        A(f"s_waitcnt lgkmcnt({min(15, 16-2*e)})")
        A(f"v_pk_add_f32 {v(E+4*e,2)}, {v(E+4*e,2)}, {v(E+4*e+2,2)}")
        A(f"v_add_f32 v{E+4*e}, v{E+4*e}, v{E+4*e+1}")
        if e == 8: A(f"v_cndmask_b32 v{E+32}, v{E+32}, v128, s[30:31]")
        if e & 1: A(f"v_cvt_pk_bf16_f32 v{88+e//2}, v{E+4*e-4}, v{E+4*e}")
        elif e: A(f"v_cvt_pk_bf16_f32 v{92+e//2-1}, v{E+4*e-4}, v{E+4*e}")
        if e == 7: A("ds_write_b128 v17, v[88:91]")
    A(f"ds_write_b128 v17, v[92:95] offset:{KC}")
    if GPOS == 2: gran_loads(); A(mload)
    A(f"""
F_chk:
s_waitcnt vmcnt(0)
v_xor_b32 v10, {TAG}, v{GX+1}
v_xor_b32 v11, {TAG}, v{GX+3}
v_xor_b32 v12, {TAG}, v{GX+5}
v_xor_b32 v13, {TAG}, v{GX+7}
v_or3_b32 v10, v10, v11, v12
v_xor_b32 v11, {TAG}, v{GS+1}
v_xor_b32 v12, {TAG}, v{GS+3}
v_or3_b32 v10, v10, v11, v12
v_xor_b32 v11, {TAG}, v{GS+5}
v_xor_b32 v12, {TAG}, v{GS+7}
v_or3_b32 v13, v13, v11, v12
v_or_b32 v10, v10, v13
v_cmp_ne_u32 vcc, 0, v10
s_cbranch_vccz F_ok
{lim('F_ok')}
s_mov_b64 exec, vcc
""")
    gran_loads()
    A(f"""
s_branch F_chk
F_ok:
s_mov_b64 exec, -1
""")
    XU, HP = 64, 72
    for t in range(4): A(f"v_and_b32 v{49+2*t}, 0xffff0000, v{GS+2*t}")
    for t in range(4): A(f"v_rcp_f32 v{49+2*t}, v{49+2*t}")
    for t in range(4): A(f"v_lshlrev_b32 v{48+2*t}, 16, v{GS+2*t}")
    for t in range(4): A(f"v_lshlrev_b32 v{XU+2*t}, 16, v{GX+2*t}\nv_and_b32 v{XU+2*t+1}, 0xffff0000, v{GX+2*t}")
    A(f"""
F_chkm:
v_cmp_ne_u32 vcc, {TAG}, v{GM+1}
s_cbranch_vccz F_okm
{lim('F_okm')}
{mload}
s_waitcnt vmcnt(0)
s_branch F_chkm
F_okm:
v_add_f32_dpp v10, v{GM}, v{GM} quad_perm:[1,0,3,2] row_mask:0xf bank_mask:0xf
global_load_dwordx2 v[62:63], v18, s[20:21] sc1
""")
    for t in range(4): A(f"v_pk_add_f32 {v(80+2*t,2)}, {v(XU+2*t,2)}, {v(48+2*t,2)} op_sel_hi:[1,0] neg_lo:[0,1] neg_hi:[0,1]")
    A(f"""
v_cvt_pk_bf16_f32 v10, v10, v10
v_and_b32 v10, 0xffff0000, v10
v_add_f32 v11, 1.0, v10
v_cvt_pk_bf16_f32 v11, v11, v11
v_and_b32 v11, 0xffff0000, v11
""")
    for t in range(4): A(f"v_pk_mul_f32 {v(80+2*t,2)}, {v(48+2*t,2)}, {v(80+2*t,2)} op_sel:[1,0]")
    A(f"""
v_readlane_b32 s30, v10, 0
v_readlane_b32 s31, v10, 2
v_readlane_b32 s54, v11, 4
v_readlane_b32 s55, v11, 6
v_lshlrev_b32 v14, 3, v0
v_add_u32 v14, {L_H}, v14
v_mov_b32 v10, s30
v_mov_b32 v11, s31
""")
    for t in range(4): A(f"v_pk_fma_f32 {v(80+2*t,2)}, {v(80+2*t,2)}, s[54:55], v[10:11]")
    for ch in range(2):
        for j in range(2): A(f"v_cvt_pk_bf16_f32 v{HP+2*ch+j}, v{80+4*j+ch}, v{82+4*j+ch}")
        A(f"ds_write_b64 v14, {v(HP+2*ch,2)} offset:{ch*HS + 512}")
    A(f"""
;TP h
s_cmp_lg_u32 s38, 0
s_cbranch_scc1 F_prep
s_setprio 1
v_and_b32 v6, 15, v0                  ; m / p
v_bfe_u32 v7, v0, 4, 2                ; kq
s_lshr_b32 s28, s33, 1
s_and_b32 s29, s33, 1                 ; half
v_and_b32 v52, 1, v6
v_xor_b32 v52, 1, v52
v_mul_u32_u24 v52, {KC}, v52
v_lshrrev_b32 v53, 1, v6
v_lshlrev_b32 v53, 2, v53
v_sub_u32 v52, v52, v53
v_lshl_add_u32 v52, v7, 4, v52
s_mul_i32 s30, s28, {2*KC}
s_lshl_b32 s31, s29, 8
s_sub_u32 s30, s30, s31
s_add_u32 s30, s30, {L_K + 4060 - 192 - 512}
v_add_u32 v52, s30, v52
v_subrev_u32 v53, 1024, v52
v_subrev_u32 v54, 2048, v52
v_subrev_u32 v55, 3072, v52
v_lshlrev_b32 v56, 5, v6
v_lshl_add_u32 v56, v7, 4, v56
s_mul_i32 s30, s28, {HS}
s_sub_u32 s30, s30, s31
s_add_u32 s30, s30, {L_H + 480 - 192}
v_add_u32 v56, s30, v56
s_waitcnt lgkmcnt(0)
s_barrier
;TP b3
""")
    ACC = 88
    FB = [120, 184]
    def reads(s, buf):
        out = []
        base = FB[buf]
        for c in range(8): out.append(f"ds_read_b128 {v(base+32+4*c,4)}, v56 offset:{512*c + 192 - 64*s}")
        for G in range(8):
            o = (512 * (1 - (G & 1)) + 192 - 64 * s) // 4
            out.append(f"ds_read2_b32 {v(base+4*G,2)}, v{52+G//2} offset0:{o} offset1:{o+1}")
            out.append(f"ds_read2_b32 {v(base+4*G+2,2)}, v{52+G//2} offset0:{o+2} offset1:{o+3}")
        return out
    EPA = f"""v_lshrrev_b32 v60, 3, v0
v_mul_u32_u24 v60, {TB}, v60
v_and_b32 v59, 7, v0
v_lshl_add_u32 v60, v59, 3, v60
s_lshl_b32 s3, s35, 7
s_add_u32 s3, s3, {WS_X1T}
v_add_u32 v60, s3, v60
v_and_b32 v58, 3, v0
v_mul_u32_u24 v58, 320, v58
v_bfe_u32 v59, v0, 2, 4
v_lshl_add_u32 v58, v59, 4, v58
s_mul_i32 s3, s33, 1280
v_add_u32 v58, s3, v58""".split("\n")
    U = 8
    def ucode():
        o = ["s_lshl_b32 s30, s41, 16", "s_and_b32 s31, s41, 0xffff0000"]
        for ch in range(2):
            for j in range(2):
                t = U + 4 * ch + 2 * j
                o += [f"v_lshlrev_b32 v{t}, 16, v{HP+2*ch+j}", f"v_and_b32 v{t+1}, 0xffff0000, v{HP+2*ch+j}"]
        for ch in range(2):
            for j in range(4): o.append(f"v_mul_f32 v{U+4*ch+j}, s{30+ch}, v{U+4*ch+j}")
        for j in range(4): o.append(f"v_cvt_pk_bf16_f32 v{80+j}, v{U+2*j}, v{U+2*j+1}")
        for j in range(4): o += [f"v_lshlrev_b32 v{U+2*j}, 16, v{80+j}", f"v_and_b32 v{U+2*j+1}, 0xffff0000, v{80+j}"]
        return o
    for r in reads(0, 0): A(r)
    A(f"v_mul_u32_u24 v57, 320, v7\nv_lshl_add_u32 v57, v6, 4, v57\ns_mul_i32 s30, s33, {YW}\nv_add_u32 v57, s30, v57")
    for ins in EPA: A(ins)
    for s in range(4):
        base = FB[s & 1]
        nxt = reads(s + 1, (s + 1) & 1) if s < 3 else ucode()
        if s > 0: A("s_waitcnt lgkmcnt(0)")
        for G in range(8):
            if s == 0 and G == 0: A("s_waitcnt lgkmcnt(14)")
            if s == 0 and G == 1: A("s_waitcnt lgkmcnt(0)")
            for c in range(G, 8):
                first = (s == 0 and G == 0)
                A(f"v_mfma_f32_16x16x32_bf16 {v(ACC+4*c,4)}, {v(base+4*G,4)}, {v(base+32+4*(c-G),4)}, {'0' if first else v(ACC+4*c,4)}")
                if nxt and not (s == 0 and G == 0): A(nxt.pop(0))
                if s == 3 and G >= 1 and c == min(G + 1, 7) and G < 7: A(f"ds_write_b128 v57, {v(ACC+4*(G-1),4)} offset:{1280*(G-1)}")
        assert not nxt
    for c in (6, 7): A(f"ds_write_b128 v57, {v(ACC+4*c,4)} offset:{1280*c}")
    A("s_setprio 0\ns_branch F_epi")

    GB = 196
    A(f"""
F_prep:
v_and_b32 v6, 31, v2
s_and_b32 s3, s33, 3
s_lshl_b32 s3, s3, 5
v_add_u32 v6, s3, v6
v_min_u32 v7, 111, v6
v_cmp_gt_u32 s[56:57], 32, v2
s_mul_i32 s3, s26, {112*8}
s_add_u32 s3, s3, {WS_MG + 3*3584}
v_lshl_add_u32 v7, v7, 3, s3
v_lshrrev_b32 v6, 5, v2
v_mul_u32_u24 v6, 3584, v6
v_add_u32 v7, v7, v6
v_add_u32 v6, {MGH}, v7
""")
    g2 = f"global_load_dwordx2 {v(GB,2)}, v7, s[20:21] sc1\nglobal_load_dwordx2 {v(GB+2,2)}, v6, s[20:21] sc1"
    A(g2)
    A(f"""
s_waitcnt lgkmcnt(0)
s_barrier
v_mul_u32_u24 v27, {HF_TT}, v221
v_lshl_add_u32 v27, v222, 5, v27
s_lshl_b32 s3, s2, 9
s_add_u32 s3, s3, {WS_WDF}
v_add_u32 v27, s3, v27
s_mov_b32 s14, 0x05040100
s_mov_b32 s15, 0x07060302
""")
    for i in range(2):
        for jp in range(4): A(f"v_perm_b32 v{144+4*i+jp}, v{DL+2*jp+1}, v{DL+2*jp}, s{14+i}")
        A(f"global_store_dwordx4 v27, {v(144+4*i,4)}, s[20:21] offset:{16*i} {WST}")
    SB, CB, UN, OUT = 88, 96, 112, 152
    for j in range(8):
        for h in range(2):
            t = UN + 4 * j + 2 * h
            A(f"v_lshlrev_b32 v{t}, 16, v{WL+2*j+h}\nv_and_b32 v{t+1}, 0xffff0000, v{WL+2*j+h}")
    for ins in EPA + ucode(): A(ins)
    A(f"""
s_mul_i32 s3, s24, {4*WF_FG}
s_lshl_b32 s27, s25, 8
s_add_u32 s3, s3, s27
s_add_u32 s3, s3, {WS_WF}
s_add_u32 s46, s20, s3
s_addc_u32 s47, s21, 0
v_lshrrev_b32 v27, 2, v222
v_mul_u32_u24 v27, {WF_FG}, v27
v_lshl_add_u32 v27, v221, 9, v27
v_and_b32 v26, 3, v222
v_lshl_add_u32 v27, v26, 6, v27
s_mul_i32 s3, s26, {14*512}
v_add_u32 v27, s3, v27
v_lshlrev_b32 v28, 9, v221
v_lshl_add_u32 v28, v222, 4, v28
v_add_u32 v28, {L_U}, v28
s_lshl_b32 s3, s33, 8
s_add_u32 s3, s3, {L_V - 1024}
v_lshl_add_u32 v29, v2, 2, s3
v_bfe_u32 v30, v2, 4, 2
v_lshl_add_u32 v30, v30, 5, s3
s_waitcnt vmcnt(2)
F_chk2:
v_xor_b32 v24, {TAG}, v{GB+1}
v_xor_b32 v25, {TAG}, v{GB+3}
v_or_b32 v24, v24, v25
v_cmp_ne_u32 vcc, 0, v24
s_cbranch_vccz F_ok2
{lim('F_ok2')}
{g2}
s_waitcnt vmcnt(0)
s_branch F_chk2
F_ok2:
v_add_f32 v24, v{GB}, v{GB+2}
v_cvt_pk_bf16_f32 v24, v24, v24
v_and_b32 v24, 0xffff0000, v24
v_add_f32 v25, 1.0, v24
v_cvt_pk_bf16_f32 v25, v25, v25
v_and_b32 v25, 0xffff0000, v25
v_cndmask_b32 v24, v25, v24, s[56:57]
ds_write_b32 v29, v24
ds_read_b128 {v(CB,4)}, v30 offset:128
ds_read_b128 {v(CB+4,4)}, v30 offset:144
ds_read_b128 {v(SB,4)}, v30
ds_read_b128 {v(SB+4,4)}, v30 offset:16
v_cmp_gt_u32 vcc, 480, v0
s_and_saveexec_b64 s[30:31], vcc
s_waitcnt lgkmcnt(0)
""")
    US, VS, SC = 104, 108, 168
    for j in range(8):
        for i in range(4): A(f"v_mul_f32 v{SC+4*j+i}, v{CB+j}, v{UN+4*j+i}")
    for i in range(4):
        for jp in range(4): A(f"v_cvt_pk_bf16_f32 v{OUT+4*i+jp}, v{SC+8*jp+i}, v{SC+8*jp+4+i}")
        A(f"global_store_dwordx4 v27, {v(OUT+4*i,4)}, s[46:47] offset:{16*i} {WST}")
    for j in range(8):
        for i in range(4):
            if j == 0: A(f"v_mul_f32 v{VS+i}, v{SB}, v{UN+i}")
            else: A(f"v_fmac_f32 v{VS+i}, v{SB+j}, v{UN+4*j+i}")
    for jp in range(4):
        for i in range(4): A(f"v_dot2_f32_bf16 v{US+i}, v{OUT+4*i+jp}, s42, {'0' if jp == 0 else 'v%d' % (US+i)}")
    A(f"""
ds_write_b128 v28, {v(VS,4)} offset:256
ds_write_b128 v28, {v(US,4)}
s_mov_b64 exec, s[30:31]
s_branch F_epi1
F_epi:
s_waitcnt vmcnt(0)
F_epi1:
v_cmp_ne_u32 vcc, {TAG}, v63
s_cbranch_vccz F_ok3
{lim('F_ok3')}
global_load_dwordx2 v[62:63], v18, s[20:21] sc1
s_branch F_epi
F_ok3:
v_add_f32_dpp v62, v62, v62 quad_perm:[1,0,3,2] row_mask:0xf bank_mask:0xf
v_cvt_pk_bf16_f32 v62, v62, v62
v_and_b32 v62, 0xffff0000, v62
s_waitcnt lgkmcnt(0)
s_barrier
;TP b4
""")
    def rnd(b, tmp):
        for j in range(4): A(f"v_cvt_pk_bf16_f32 v{tmp+j}, v{b+2*j}, v{b+2*j+1}")
        for j in range(4): A(f"v_lshlrev_b32 v{b+2*j}, 16, v{tmp+j}\nv_and_b32 v{b+2*j+1}, 0xffff0000, v{tmp+j}")
    YR = 136
    for hf in range(2):
        for ch in range(2):
            A(f"ds_read_b128 {v(YR+8*hf+4*ch,4)}, v58 offset:{(2*ch+hf)*YW}")
    A("v_readlane_b32 s30, v62, 0\nv_readlane_b32 s31, v62, 2\ns_waitcnt lgkmcnt(0)")
    for j in range(4): A(f"v_pk_add_f32 {v(YR+2*j,2)}, {v(YR+2*j,2)}, {v(YR+8+2*j,2)}")
    rnd(YR, 80)
    for j in range(4): A(f"v_pk_add_f32 {v(YR+2*j,2)}, {v(YR+2*j,2)}, {v(U+2*j,2)}")
    rnd(YR, 80)
    for j in range(8): A(f"v_mul_f32 v{YR+j}, s{30+j//4}, v{YR+j}")
    rnd(YR, 80)
    for j in range(8): A(f"v_add_f32 v{YR+j}, v{YR+j}, v{XU+2*(j&3)+j//4}")
    for j in range(4): A(f"v_cvt_pk_bf16_f32 v{80+j}, v{YR+2*j}, v{YR+2*j+1}")
    A(f"global_store_dwordx2 v60, v[80:81], s[20:21] {XST}\nglobal_store_dwordx2 v60, v[82:83], s[20:21] offset:64 {XST}")
    A(f"""
s_cmp_lt_u32 s33, 6
s_cbranch_scc1 F_end
s_cmp_eq_u32 s33, 7
s_cbranch_scc1 F_uv
v_lshlrev_b32 v6, 1, v2
s_lshl_b32 s3, s35, 3
s_add_u32 s3, s3, {WS_MOD + 5*448*4 - 8}
v_add_u32 v6, s3, v6
v_mov_b32 v12, {WS_EP}
v_mov_b32 v13, {TAG}
s_mov_b64 exec, 0x50
global_store_dword v6, v62, s[20:21]
s_cmp_lg_u32 s2, 0
s_cbranch_scc1 F_end
global_store_dword v12, v13, s[20:21]
s_endpgm
F_uv:
v_lshlrev_b32 v7, 3, v2
v_add_u32 v7, {L_U}, v7
""")
    for i in range(14): A(f"ds_read_b64 {v(16+2*i,2)}, v7 offset:{512*i}")
    A(f"""
v_bfe_u32 v6, v2, 3, 2
v_mul_u32_u24 v6, {WF_FG}, v6
v_lshrrev_b32 v5, 5, v2
v_lshl_add_u32 v6, v5, 9, v6
v_and_b32 v5, 7, v2
v_lshl_add_u32 v6, v5, 5, v6
s_lshl_b32 s3, s26, 2
s_add_u32 s3, s3, {28*1024}
v_add_u32 v6, s3, v6
""")
    def tree(n, base, w):
        regs = [base + w * i for i in range(n)]
        while len(regs) > 1:
            nx = []
            for i in range(0, len(regs) - 1, 2):
                if w == 2: A(f"v_pk_add_f32 {v(regs[i],2)}, {v(regs[i],2)}, {v(regs[i+1],2)}")
                else: A(f"v_add_f32 v{regs[i]}, v{regs[i]}, v{regs[i+1]}")
                nx.append(regs[i])
            if len(regs) & 1: nx.append(regs[-1])
            regs = nx
    A("s_waitcnt lgkmcnt(0)")
    tree(14, 16, 2)
    A(f"""
v_cvt_pk_bf16_f32 v18, v16, v17
v_lshlrev_b32 v20, 16, v18
v_and_b32 v21, 0xffff0000, v18
v_sub_f32 v16, v16, v20
v_sub_f32 v17, v17, v21
v_cvt_pk_bf16_f32 v16, v20, v16
v_cvt_pk_bf16_f32 v17, v21, v17
global_store_dword v6, v16, s[46:47]
global_store_dword v6, v17, s[46:47] offset:16
s_endpgm
""")

    A("F_spare:")
    if not SPA:
        p3addr()
        for k in range(4): A(f"global_load_dwordx4 {v(P[2]+4*k,4)}, v{RA[k]}, s[52:53]")
    gemv(1, 3 + 2 + 4)
    A("s_waitcnt lgkmcnt(0)\ns_barrier\n;TP s2")
    gemv(2, 5 if SPA else 3)
    A("s_waitcnt lgkmcnt(0)\ns_barrier\ns_endpgm")
    A(f"""
F_spare7:
v_lshlrev_b32 v26, 2, v2
s_mul_i32 s3, s26, {MGH}
s_lshl_b32 s28, s25, 9
s_add_u32 s3, s3, s28
s_add_u32 s3, s3, {WS_MG}
v_lshl_add_u32 v27, v2, 3, s3
""")
    for p in range(3):
        if p: A("s_barrier")
        for i in range(7): A(f"ds_read_b32 v{72+i}, v26 offset:{LM + 2048*p + 256*i}")
        if p == 1: A(f"v_add_u32 v28, {2688*4}, v27")
        if p == 2: A(f"s_lshl_b32 s29, s29, 2\nv_add_u32 v28, s29, v27")
        A("s_waitcnt lgkmcnt(0)")
        tree(7, 72, 1)
        A(f"v_mov_b32 v40, v72\nglobal_store_dwordx2 v{28 if p else 27}, v[40:41], s[20:21] sc1\n;TP s{p+2}")
        if p == 0:
            A(f"""
s_lshl_b32 s3, s24, 10
s_add_u32 s3, s3, {WS_FL}
v_add_u32 v29, s3, v3
v_mov_b32 v30, 0
global_store_dword v29, v30, s[20:21]
""")
    A("F_end:\ns_endpgm")
    tab = ktable() + [0] * 8
    A(".p2align 4\n.type ktab,@object\nktab:")
    for i in range(0, len(tab), 16): A(".short " + ", ".join(str(t) for t in tab[i:i+16]))
    A(f".size ktab, {2*len(tab)}")
    return kdesc("front_kernel", 248, 64)
```

```python
from common import *
import os
K34_GRID = 224
K34_BLOCK = 512
L_ST = 131072
K34_LDS = L_ST + 4096
PRE = int(os.environ.get("K3PRE", "4"))
RW = 6
XL = 1
SLP = os.environ.get("SLP", "1")
HST = os.environ.get("HST", "sc1")
FLV = int(os.environ.get("FLV", "3"))
MAP = os.environ.get("MAP", "0")

MAPALT = """
s_and_b32 s6, s2, 7
s_lshl_b32 s6, s6, 1
s_bfe_u32 s8, s2, 0x10003
s_add_u32 s6, s6, s8
s_bfe_u32 s30, s2, 0x10004
s_mul_i32 s8, s30, 7
s_add_u32 s7, s31, s8
"""
POLLOFF = ["""v_lshlrev_b32 v20, 2, v20
s_mul_i32 s39, s9, 56
v_add_u32 v20, s39, v20
s_lshl_b32 s39, s12, 2""", """v_lshlrev_b32 v20, 7, v20
s_mul_i32 s39, s9, 1792
v_add_u32 v20, s39, v20
s_lshl_b32 s39, s12, 7""", """s_mul_i32 s39, s9, 14
v_add_u32 v20, s39, v20
v_lshrrev_b32 v20, 3, v20
v_lshlrev_b32 v20, 7, v20
s_lshl_b32 s39, s7, 7""", """v_lshlrev_b32 v20, 7, v20
s_lshl_b32 s39, s7, 7"""]
GRAN = False
WS_FL2 = 0x1800000
def k34(A):
    A(f""".globl ffn_kernel
.p2align 8
.type ffn_kernel,@function
ffn_kernel:
s_cmp_ge_u32 s2, {K34_GRID}
s_cbranch_scc1 K3_end
s_load_dwordx2 s[4:5], s[0:1], 136
s_load_dwordx2 s[36:37], s[0:1], 120
s_and_b32 s6, s2, 3
s_lshl_b32 s6, s6, 2
s_lshr_b32 s7, s2, 3
s_and_b32 s8, s7, 3
s_add_u32 s6, s6, s8                  ; rb
s_bfe_u32 s30, s2, 0x10002            ; th
s_mul_i32 s8, s30, 7
s_lshr_b32 s31, s7, 2                 ; db
s_add_u32 s7, s31, s8                 ; fb
{MAPALT if MAP == "1" else ""}
v_lshrrev_b32 v1, 6, v0
v_and_b32 v2, 63, v0                  ; lane
v_readfirstlane_b32 s9, v1            ; w
v_lshlrev_b32 v3, 4, v2               ; lane*16
s_and_b32 s27, s9, 3
s_lshr_b32 s28, s9, 2                 ; parity
s_lshl_b32 s10, s6, 2
s_add_u32 s10, s10, s27
s_mul_i32 s11, s10, {TB}
s_lshl_b32 s15, s28, 10
s_add_u32 s11, s11, s15
s_add_u32 s11, s11, {WS_X1T}
s_lshl_b32 s12, s7, 3
s_add_u32 s12, s12, s9                ; fg
s_mul_i32 s13, s12, {WF_FG}
s_add_u32 s13, s13, {WS_WF + 4096}
s_mul_i32 s14, s27, {TB}
s_add_u32 s14, s14, s15
s_mov_b32 m0, s14
s_mul_i32 s38, s9, {14*1024}
s_mul_i32 s20, s31, {2*HF_TT}
s_add_u32 s20, s20, s38
s_add_u32 s20, s20, {WS_WDF + 4096}
s_waitcnt lgkmcnt(0)
s_add_u32 s16, s4, s11
s_addc_u32 s17, s5, 0                 ; x source
s_add_u32 s18, s4, s13
s_addc_u32 s19, s5, 0                 ; W source (+4096)
s_add_u32 s32, s4, s20
s_addc_u32 s33, s5, 0
v_add_u32 v1, {HF_TT}, v3
""")
    Q = []
    WR = lambda s: 112 + 4 * (s % RW)
    def issue(op):
        kind, j = op
        if kind == 'x':
            if j and j % 2 == 0:
                A("s_add_u32 s16, s16, 4096\ns_addc_u32 s17, s17, 0\ns_add_u32 s14, s14, 4096\ns_mov_b32 m0, s14")
            A(f"global_load_lds_dwordx4 v3, s[16:17] offset:{2048*(j%2)}")
        elif kind == 'w':
            if j and j % 8 == 0: A("s_add_u32 s18, s18, 8192\ns_addc_u32 s19, s19, 0")
            A(f"global_load_dwordx4 {a_(WR(j),4)}, v3, s[18:19] offset:{1024*(j%8)-4096}")
        elif kind == 'd':
            if j == 16: A("s_add_u32 s32, s32, 8192\ns_addc_u32 s33, s33, 0")
            A(f"global_load_dwordx4 {a_(4*j,4)}, v{1 if j & 1 else 3}, s[32:33] offset:{1024*((j>>1)%8)-4096}")
        else:
            A(j)
        Q.append(op)
    def wait(op):
        n = len(Q) - 1 - Q.index(op)
        A(f"s_waitcnt vmcnt({n})")
    order = []
    xi = 0
    for s in range(29):
        while xi < 14 and xi <= (s + XL) // 2: order.append(('x', xi)); xi += 1
        order.append(('w', s))
    def issue_upto(s):
        while order and ('w', min(s, 28)) not in Q: issue(order.pop(0))
    issue_upto(PRE - 1)
    A(f"""
v_lshrrev_b32 v4, 5, v2               ; kh
v_bfe_u32 v5, v2, 2, 2                ; e
v_lshl_add_u32 v5, v4, 3, v5
v_lshlrev_b32 v5, 6, v5
v_bfe_u32 v6, v2, 4, 1                ; th
v_lshl_add_u32 v5, v6, 5, v5
v_and_b32 v6, 3, v2
v_lshl_add_u32 v5, v6, 3, v5
""")
    for i in range(4):
        A(f"s_xor_b32 s20, s27, {i}\ns_mul_i32 s21, s20, {TB}\nv_add_u32 v{8+i}, s21, v5")
        A(f"s_lshl_b32 s21, s20, 8\ns_add_u32 s21, s21, {L_ST}\nv_lshl_add_u32 v{12+i}, v2, 2, s21")
        A(f"s_mul_i32 s21, s20, {HF_TT}\nv_add_u32 v{16+i}, s21, v3")
    A(f"""
s_mul_i32 s20, s6, {4*HF_TT}
s_add_u32 s20, s20, {WS_HF}
s_lshl_b32 s21, s12, 10
s_add_u32 s21, s20, s21
s_add_u32 s22, s4, s21
s_addc_u32 s23, s5, 0
s_mul_i32 s21, s30, {2*HF_TT}
s_add_u32 s20, s20, s21
s_add_u32 s20, s20, s38
s_add_u32 s20, s20, 4096
s_add_u32 s34, s4, s20
s_addc_u32 s35, s5, 0
s_lshl_b32 s20, s6, 11
s_add_u32 s20, s20, {WS_FL}
s_add_u32 s24, s4, s20
s_addc_u32 s25, s5, 0
s_mov_b32 s26, {ONES}
v_mov_b32 v20, 0
v_mov_b32 v21, 0
v_mov_b32 v22, 0
v_mov_b32 v23, 0
s_lshl_b32 s20, s9, 8
s_add_u32 s20, s20, {L_ST + 2048}
v_lshl_add_u32 v6, v2, 2, s20
s_xor_b32 s20, s20, 1024
v_lshl_add_u32 v7, v2, 2, s20
s_mov_b32 s29, 0
s_mov_b64 vcc, s[28:29]
""")
    XF = [24, 40]
    ACC = 56
    def reads(s):
        out = []
        for i in range(4):
            for h in range(2):
                out.append(f"ds_read_b64_tr_b16 {v(XF[s&1]+4*i+2*h,2)}, v{8+i} offset:{1024*s+256*h}")
        return out
    BAR = {2 * j: j for j in range(14)}
    wait(('x', 0)); A("s_barrier")
    A(";TS0")
    for r in reads(0): A(r)
    for s in range(28):
        mf = [f"v_mfma_f32_32x32x16_bf16 {v(ACC+16*i,16)}, {a_(WR(s),4)}, {v(XF[s&1]+4*i,4)}, {'0' if s == 0 else v(ACC+16*i,16)}" for i in range(4)]
        dots = []
        for j in range(4):
            x = XF[s & 1] + j
            dots.append(f"v_dot2_f32_bf16 v{20+(j&1)}, v{x}, s26, v{20+(j&1)}")
            dots.append(f"v_dot2_f32_bf16 v{22+(j&1)}, v{x}, v{x}, v{22+(j&1)}")
        nxt = reads(s + 1) if s < 27 else []
        wait(('w', s))
        if s + 1 in BAR:
            wait(('x', BAR[s + 1])); A("s_barrier")
        for i in range(4):
            A(f"s_waitcnt lgkmcnt({6 if nxt else 6 - 2*i})")
            A(mf[i])
            for _ in range(2):
                if nxt: A(nxt.pop(0))
            if i == 0: issue_upto(s + PRE)
            if i == 2: issue(('d', s))
            if i == 1:
                A(f"s_cbranch_vcc{'nz' if s % 2 == 0 else 'z'} K3_sk{s}")
                for d in dots: A(d)
                A(f"K3_sk{s}:")
        assert not nxt
    A(";TS1")
    A(f"""
s_nop 2
v_add_f32 v20, v20, v21
v_add_f32 v22, v22, v23
v_permlane32_swap_b32 v20, v22
v_add_f32 v20, v20, v22
ds_write_b32 v6, v20
s_lshr_b32 s20, s27, 1
s_lshl_b32 s21, s30, 1
s_add_u32 s20, s20, s21
s_mul_i32 s21, s20, {TB}
s_lshl_b32 s39, s31, 12
s_add_u32 s21, s21, s39
s_lshl_b32 s39, s28, 11
s_add_u32 s21, s21, s39
s_and_b32 s39, s27, 1
s_lshl_b32 s40, s39, 5
s_add_u32 s21, s21, s40
v_lshrrev_b32 v4, 4, v2               ; octet
v_bfe_u32 v5, v2, 2, 2
v_lshl_add_u32 v5, v4, 3, v5
v_lshlrev_b32 v5, 6, v5
v_and_b32 v8, 3, v2
v_lshl_add_u32 v5, v8, 3, v5
v_add_u32 v5, s21, v5
ds_read_b64_tr_b16 v[8:9], v5
ds_read_b64_tr_b16 v[10:11], v5 offset:256
s_lshl_b32 s21, s20, 8
s_lshl_b32 s40, s39, 6
s_add_u32 s21, s21, s40
s_add_u32 s21, s21, {L_ST + 128}
v_and_b32 v0, 15, v2
v_lshl_add_u32 v5, v0, 2, s21
s_waitcnt lgkmcnt(0)
s_barrier
ds_read_b32 v22, v7
v_mul_u32_u24 v6, 896, v0
v_lshl_add_u32 v6, v4, 4, v6
s_lshl_b32 s20, s6, 3
s_lshl_b32 s21, s30, 2
s_add_u32 s20, s20, s21
s_add_u32 s20, s20, s27
s_mul_i32 s20, s20, {16*896}
s_lshl_b32 s21, s31, 7
s_add_u32 s20, s20, s21
s_lshl_b32 s21, s28, 6
s_add_u32 s20, s20, s21
s_add_u32 s36, s36, s20
s_addc_u32 s37, s37, 0
s_waitcnt lgkmcnt(0)
v_add_f32 v20, v20, v22
v_mul_f32 v20, {hex(INV448)}, v20
v_mov_b32 v22, v20
v_permlane32_swap_b32 v20, v22
v_fma_f32 v22, -v20, v20, v22
v_max_f32 v22, 0, v22                 ; var
v_cvt_pk_bf16_f32 v22, v22, v22
v_and_b32 v22, 0xffff0000, v22
v_add_f32 v22, {hex(EPS)}, v22
v_cvt_pk_bf16_f32 v22, v22, v22
v_and_b32 v22, 0xffff0000, v22
v_sqrt_f32 v22, v22
v_cvt_pk_bf16_f32 v20, -v20, -v20
v_cmp_gt_u32 vcc, 32, v2
v_cvt_pk_bf16_f32 v22, v22, v22
v_cndmask_b32 v21, v22, v20, vcc
ds_write_b32 v12, v21
s_waitcnt lgkmcnt(0)
s_barrier
""")
    for i in range(4):
        A(f"ds_read2_b32 {v(XF[1]+4*i,2)}, v{12+i} offset0:0 offset1:0")
        if GRAN: A(f"ds_read2_b32 {v(XF[1]+4*i+2,2)}, v{12+i} offset0:0 offset1:0")
    A("ds_read_b32 v7, v5")
    wait(('w', 28))
    for i in range(4):
        A(f"s_waitcnt lgkmcnt({7-2*i if GRAN else 4-i})")
        A(f"v_mfma_f32_32x32x16_bf16 {v(ACC+16*i,16)}, {a_(WR(28),4)}, {v(XF[1]+4*i,4)}, {v(ACC+16*i,16)}")
    for i in range(4):
        G = ACC + 16 * i; U = G + 8
        for r in range(8): A(f"v_max_f32 v{G+r}, 0, v{G+r}")
        for r in range(8): A(f"v_mul_f32 v{G+r}, v{G+r}, v{U+r}")
        for r in range(0, 8, 2): A(f"v_cvt_pk_bf16_f32 v{U+r//2}, v{G+r}, v{G+r+1}")
        A(f"global_store_dwordx4 v{16+i}, {v(U,4)}, s[22:23] {HST}")
    A(";TS2")
    A(f"""
s_lshl_b32 s20, s31, 8
s_lshl_b32 s21, s28, 7
s_add_u32 s20, s20, s21
s_add_u32 s20, s20, {WS_MOD + 5*448*4}
s_add_u32 s20, s4, s20
s_addc_u32 s21, s5, 0
v_lshlrev_b32 v4, 5, v4
v_min_u32 v20, 13, v2
{POLLOFF[FLV]}
v_mov_b32 v21, s39
v_mov_b32 v22, 1
s_waitcnt lgkmcnt(0)
v_and_b32 v7, 0xffff0000, v7
v_mul_f32 v7, v7, v7
v_rcp_f32 v7, v7                      ; r2
s_lshl_b32 s39, s9, 14
v_add_u32 v5, s39, v3
s_lshl_b32 s39, s28, 13
s_lshr_b32 s40, s27, 1
s_lshl_b32 s40, s40, 12
s_add_u32 s39, s39, s40
s_and_b32 s40, s27, 1
s_lshl_b32 s40, s40, 8
s_add_u32 s39, s39, s40
v_lshlrev_b32 v0, 4, v0
v_lshl_add_u32 v0, v4, 5, v0
v_add_u32 v0, s39, v0
s_waitcnt vmcnt(0)
{"s_barrier" if FLV >= 2 else ""}
s_mov_b64 exec, 1
{"s_cmp_lg_u32 s9, 0" if FLV >= 2 else ""}
{"s_cbranch_scc1 K3_nofl" if FLV >= 2 else ""}
global_store_dword v21, v22, s[24:25] {HST}
K3_nofl:
s_mov_b64 exec, -1
global_load_dwordx4 v[12:15], v4, s[20:21]
global_load_dwordx4 v[16:19], v4, s[20:21] offset:16
;TS3
{"s_cbranch_scc1 K3_np" if FLV == 3 else ""}
K3_poll:
{"s_sleep " + SLP if SLP != "0" else ""}
global_load_dword v23, v20, s[24:25] sc1
s_waitcnt vmcnt(0)
v_cmp_eq_u32 vcc, 0, v23
s_cbranch_vccnz K3_poll
K3_np:
{"s_barrier" if FLV == 3 else ""}
;TS4
""")
    def HR(k, tt):
        sl = k % 7
        return v(24 + 8 * sl + 4 * tt, 4) if sl < 4 else a_(112 + 8 * (sl - 4) + 4 * tt, 4)
    Q.clear()
    def issue_h(k):
        if k == 8: A("s_add_u32 s34, s34, 8192\ns_addc_u32 s35, s35, 0")
        for tt in range(2):
            issue(('h', f"global_load_dwordx4 {HR(k,tt)}, v{1 if tt else 3}, s[34:35] offset:{1024*(k%8)-4096} sc1"))
    for k in range(7): issue_h(k)
    for k in range(14):
        for tt in range(2):
            A(f"s_waitcnt vmcnt({len(Q) - 1 - (2*k+tt)})")
            for dt in range(2):
                t = ACC + 16 * (2 * dt + tt)
                A(f"v_mfma_f32_32x32x16_bf16 {v(t,16)}, {a_(8*k+4*dt,4)}, {HR(k,tt)}, {'0' if k == 0 else v(t,16)}")
        if k + 7 < 14: issue_h(k + 7)
    A(";TS5")
    for i in (0, 2, 1, 3):
        for q in range(4): A(f"ds_write_b128 v5, {v(ACC+16*i+4*q,4)} offset:{4096*i+1024*q}")
    A("v_add_u32 v1, 65536, v0")
    A("s_waitcnt lgkmcnt(0)\ns_barrier")
    for src in range(8):
        for h in range(2):
            A(f"ds_read_b128 {v(ACC+8*src+4*h,4)}, v{0 if src < 4 else 1} offset:{16384*(src&3)+512*h}")
    XR = 24
    for j in range(4): A(f"v_lshlrev_b32 v{XR+2*j}, 16, v{8+j}\nv_and_b32 v{XR+2*j+1}, 0xffff0000, v{8+j}")
    for src in range(1, 8):
        A(f"s_waitcnt lgkmcnt({14-2*src})")
        for r in range(0, 8, 2): A(f"v_pk_add_f32 {v(ACC+r,2)}, {v(ACC+r,2)}, {v(ACC+8*src+r,2)}")
    T = 32
    def rnd():
        for j in range(4): A(f"v_cvt_pk_bf16_f32 v{T+j}, v{ACC+2*j}, v{ACC+2*j+1}")
        for j in range(4): A(f"v_lshlrev_b32 v{ACC+2*j}, 16, v{T+j}\nv_and_b32 v{ACC+2*j+1}, 0xffff0000, v{T+j}")
    for r in range(8): A(f"v_mul_f32 v{ACC+r}, v{ACC+r}, v7")
    rnd()
    for r in range(0, 8, 2): A(f"v_pk_mul_f32 {v(ACC+r,2)}, {v(ACC+r,2)}, {v(12+r,2)}")
    rnd()
    for r in range(0, 8, 2): A(f"v_pk_add_f32 {v(ACC+r,2)}, {v(ACC+r,2)}, {v(XR+r,2)}")
    for j in range(4): A(f"v_cvt_pk_bf16_f32 v{T+j}, v{ACC+2*j}, v{ACC+2*j+1}")
    A(f"global_store_dwordx4 v6, {v(T,4)}, s[36:37]")
    A("K3_end:\ns_endpgm")
    return kdesc("ffn_kernel", 256, 48, accum=120)
```

```python
import sys, os
import re
from common import *
from k1 import *
from k2 import *
from k3 import *
from k4 import *
import k34 as k34m
from k34 import k34, K34_GRID, K34_LDS, K34_BLOCK
from k12 import k12, K12_GRID, K12_LDS, K12_BLOCK

def ke(A):
    A(""".globl empty_kernel
.p2align 8
.type empty_kernel,@function
empty_kernel:
s_endpgm""")
    return kdesc("empty_kernel", 8, 16)

def kz(A):
    a, b = [int(x) for x in os.environ["ZQ"].split(",")]
    A(f""".globl z_kernel
.p2align 8
.type z_kernel,@function
z_kernel:
s_cmp_lg_u32 s2, 0
s_cbranch_scc1 Zend
s_memrealtime s[10:11]
s_load_dwordx2 s[4:5], s[0:1], 128
v_mov_b32 v1, 0
s_waitcnt lgkmcnt(0)
global_load_dword v2, v1, s[4:5] offset:{16*a} sc1
global_load_dword v3, v1, s[4:5] offset:{16*b+4} sc1
s_waitcnt vmcnt(0)
v_readfirstlane_b32 s6, v2
v_readfirstlane_b32 s7, v3
s_nop 3
s_not_b32 s6, s6
s_sub_u32 s6, s7, s6
s_min_u32 s6, s6, 10000
s_lshl_b32 s6, s6, 2
Zl:
s_memrealtime s[12:13]
s_waitcnt lgkmcnt(0)
s_sub_u32 s8, s12, s10
s_cmp_lt_u32 s8, s6
s_cbranch_scc1 Zl
Zend:
s_endpgm""")
    return kdesc("z_kernel", 8, 16)

KS = {'g': ("front_kernel", K12_GRID, K12_LDS, k12), 'f': ("ffn_kernel", K34_GRID, K34_LDS, k34), 'z': ("z_kernel", 1, 0, kz),'1': ("prep_kernel", K1_GRID, K1_LDS, k1), '2': ("conv_kernel", K2_GRID, K2_LDS, k2),
      '3': ("ffn1_kernel", K3_GRID, K3_LDS, k3), '4': ("ffn2_kernel", K4_GRID, K4_LDS, k4),
      'e': ("empty_kernel", 1, 0, ke)}

BLK = {'3': K3_BLOCK, 'f': K34_BLOCK, 'g': K12_BLOCK}
WS_TS = 0x2000000
def add_stamps(A, names):
    out = []
    for ln in A.lines:
        t = ln.strip()
        if t[:-1] in names and t.endswith(':'):
            ki = names.index(t[:-1])
            out.append(ln)
            out += ["  " + x for x in f"""s_memrealtime s[90:91]
s_memtime s[80:81]
s_load_dwordx2 s[92:93], s[0:1], 136
v_lshrrev_b32 v1, 6, v0
s_nop 1
v_readfirstlane_b32 s94, v1
s_lshl_b32 s95, s2, 3
s_add_u32 s94, s94, s95
s_lshl_b32 s94, s94, 6
s_add_u32 s94, s94, {WS_TS + ki * 0x80000}
s_mov_b32 s82, 0
s_mov_b32 s84, 0
s_mov_b32 s86, 0
s_mov_b32 s88, 0
s_mov_b32 s76, 0
s_mov_b32 s78, 0
s_waitcnt lgkmcnt(0)""".split("\n")]
        elif t.startswith(";TP "):
            sel = os.environ.get("TP", "row,pub,chain,kcopy,b3,b4").split(",")
            sel2 = os.environ.get("TPS", "row,pub,s1,s2,s3,s4").split(",")
            sel3 = os.environ.get('TPK', 'k0,k1,k2,k3,k4,k5').split(',')
            for sl in (sel, sel2, sel3):
                if t[4:] in sl:
                    r = [82, 84, 86, 88, 76, 78][sl.index(t[4:])]
                    out.append(f"  s_memtime s[{r}:{r+1}]"); break
        elif t.startswith(";TS"):
            i = int(t[3:]); r = [82, 84, 86, 88, 76, 78][i]
            out.append(f"  s_memtime s[{r}:{r+1}]")
        elif t == "s_endpgm":
            out += ["  " + x for x in """s_waitcnt vmcnt(0) lgkmcnt(0)
s_memrealtime s[96:97]
s_memtime s[98:99]
s_getreg_b32 s100, hwreg(HW_REG_HW_ID)
s_getreg_b32 s101, hwreg(HW_REG_XCC_ID)
s_mov_b64 exec, 1
s_waitcnt lgkmcnt(0)
v_mov_b32 v0, s90
v_mov_b32 v1, s96
v_mov_b32 v2, s100
v_mov_b32 v3, s101
v_mov_b32 v4, s80
v_mov_b32 v5, s82
v_mov_b32 v6, s84
v_mov_b32 v7, s86
v_mov_b32 v8, s88
v_mov_b32 v9, s76
v_mov_b32 v10, s78
v_mov_b32 v11, s98
v_mov_b32 v12, s94
global_store_dwordx4 v12, v[0:3], s[92:93]
global_store_dwordx4 v12, v[4:7], s[92:93] offset:16
global_store_dwordx4 v12, v[8:11], s[92:93] offset:32
s_endpgm""".split("\n")]
        else: out.append(ln)
    if os.environ["TS"] == "2": out = [l.replace("s_memtime", "s_memrealtime") for l in out]
    A.lines = out

def strip(A, name, pred):
    out = []; on = False
    for ln in A.lines:
        t = ln.strip()
        if t.endswith("_kernel:"): on = t == name + ":"
        if on and pred(t): continue
        out.append(ln)
    A.lines = out

def add_dbg(A, names):
    out = []; n = 0
    NL = len(sys.argv[2]); inz = False
    for ln in A.lines:
        t = ln.strip()
        if t in ("z_kernel:", "empty_kernel:"): inz = True
        if inz: out.append(ln); continue
        if t[:-1] in names and t.endswith(':'):
            ki = names.index(t[:-1])
            out.append(ln)
            out += ["  " + x for x in f"""s_memrealtime s[90:91]
s_load_dwordx2 s[92:93], s[0:1], 128
v_lshrrev_b32 v1, 6, v0
s_nop 1
v_readfirstlane_b32 s94, v1
s_lshr_b32 s95, s2, 3
s_xor_b32 s95, s95, s2
s_and_b32 s95, s95, 7
s_or_b32 s94, s94, s95
s_waitcnt lgkmcnt(0)
s_add_u32 s92, s92, {(NL - 1 - ki) * 512 + ki * 16}
s_addc_u32 s93, s93, 0""".split("\n")]
        elif t == "s_endpgm":
            n += 1
            out += ["  " + x for x in f"""s_cmp_lg_u32 s94, 0
s_cbranch_scc1 DBGE{n}
s_waitcnt vmcnt(0) lgkmcnt(0)
s_memrealtime s[96:97]
s_mov_b64 exec, 1
s_not_b32 s90, s90
s_waitcnt lgkmcnt(0)
v_mov_b32 v0, s90
v_mov_b32 v1, s96
v_mov_b32 v2, 0
global_atomic_umax v2, v0, s[92:93]
global_atomic_umax v2, v1, s[92:93] offset:4
DBGE{n}:
s_endpgm""".split("\n")]
        else: out.append(ln)
    A.lines = out

def main():
    A = Asm()
    which = sys.argv[2] if len(sys.argv) > 2 else "12f"
    hdr = []
    k34m.GRAN = 'g' in which
    descs = []
    A('.amdgcn_target "amdgcn-amd-amdhsa--gfx950"\n.text')
    seen = set()
    for ch in which:
        name, grid, lds, fn = KS[ch]
        hdr.append(f"; @launch kernel={name} grid=({grid},1,1) block=({BLK.get(ch, 256)},1,1) lds={lds}")
        if ch not in seen: descs.append(fn(A)); seen.add(ch)
    A("code_end:")
    for kn in os.environ.get("NOMF", ""): strip(A, KS[kn][0], lambda t: t.startswith("v_mfma"))
    for kn in os.environ.get("NOLD", ""): strip(A, KS[kn][0], lambda t: t.startswith("global_load"))
    for kn in os.environ.get("NODS", ""): strip(A, KS[kn][0], lambda t: t.startswith("ds_read"))
    if os.environ.get("DBG"): add_dbg(A, [KS[ch][0] for ch in which if ch not in "ez"])
    if os.environ.get("TS"): add_stamps(A, [KS[ch][0] for ch in which if ch not in "ez"])
    txt = "; generated by dev/gen.py (hand-written generator); see comments there\n" + "\n".join(hdr) + "\n" + A.text() + '.section .rodata,"a"\n' + ("".join(descs) if not (os.environ.get("TS") or os.environ.get("DBG")) else re.sub(r"next_free_sgpr \d+", "next_free_sgpr 102", "".join(descs)))
    open(sys.argv[1], "w").write(txt)

if __name__ == "__main__":
    main()
```

```python
from common import *
import os
K12_GRID = 256
K12_BLOCK = 512
NCV = 224
KGS = 53 * RS
KC = 4160
YW = 10240
L_K = 2 * KGS
L_H = L_K + 4 * KC
HS = 4608
L_R = L_H + 2 * HS
RSTR = 912
L_U = L_R
L_S = L_R + 8 * RSTR
L_V = L_S + 64
K12_LDS = L_V + 4 * 384
L_C = L_K + 4096 + 32
TAGC = 0x2F4A7C15
XGP = 14336
MGH = 2688 * 8
TAG = 's40'

LIMIT = int(os.environ.get("LIMIT", "20000"))
def lim(lbl): return f"s_add_u32 s43, s43, 1\ns_cmp_gt_u32 s43, {LIMIT}\ns_cbranch_scc1 {lbl}"

GPOS = int(os.environ.get('GPOS', '1'))
WST = os.environ.get('WST', 'sc1')
XST = os.environ.get('XST', 'sc1')
BPRIO = os.environ.get('BPRIO', '')
CPF = """s_lshr_b32 s3, s2, 3
s_lshl_b32 s3, s3, 11
v_lshrrev_b32 v3, 5, v0
v_lshl_add_u32 v3, v3, 7, s3
v_min_u32 v3, code_end-front_kernel-4, v3
s_sub_u32 s24, s22, ktab-front_kernel
s_subb_u32 s25, s23, 0
global_load_dword v255, v3, s[24:25]"""

pFR, pPW, pGX0, pGX1, pGS0, pGS1, pGM, pGA, pHW, pYR, pXO, pDK = range(204, 216)
pA0, pA1, pA2, pA3, pB, pYW = range(216, 222)
pWA, pWD, pSB0, pSB1, pDO, pFO, pUV, pVW = range(216, 224)
pVR, pAV = 248, 249
AU = 252

def schedule(items):
    dep = {n: [s for s in srcs if s in dict(items)] for n, srcs in items}
    height = {}
    def h(n):
        if n not in height: height[n] = 1 + max([h(m) for m, _ in items if n in dep[m]], default=0)
        return height[n]
    order, pos = [], {}
    left = [n for n, _ in items]
    while left:
        k = len(order)
        for gap in (3, 2):
            c = [n for n in left if all(s in pos and pos[s] <= k - gap for s in dep[n])]
            if c: break
        if not c: order.append(None); continue
        n = max(c, key=h); order.append(n); pos[n] = k; left.remove(n)
    return order

def k12(A):
    A(f""".globl front_kernel
.p2align 8
.type front_kernel,@function
front_kernel:
s_cmp_ge_u32 s2, {K12_GRID}
s_cbranch_scc1 F_end
s_load_dwordx2 s[36:37], s[0:1], 0
s_load_dwordx2 s[20:21], s[0:1], 136
s_load_dwordx16 s[4:19], s[0:1], 8
s_load_dwordx8 s[44:51], s[0:1], 80
s_load_dwordx2 s[52:53], s[0:1], 112  ; w_mod
s_getpc_b64 s[22:23]
F_pc:
s_add_u32 s22, s22, ktab-F_pc
s_addc_u32 s23, s23, 0
v_and_b32 v17, 255, v0
v_lshlrev_b32 v17, 4, v17             ; n*16
v_lshrrev_b32 v1, 6, v0
v_and_b32 v2, 63, v0                  ; lane
v_readfirstlane_b32 s33, v1           ; w
{CPF}
global_load_dwordx4 v[20:23], v17, s[22:23]
global_load_ushort v19, v17, s[22:23] offset:16
v_lshlrev_b32 v3, 4, v2               ; lane*16
s_and_b32 s34, s2, 1
s_lshl_b32 s3, s2, 3
s_mul_i32 s34, s34, 6
s_sub_u32 s3, s3, s34
s_and_b32 s34, s33, 6
s_add_u32 s3, s3, s33
s_add_u32 s3, s3, s34
s_mul_i32 s3, s3, 896
v_add_u32 v8, s3, v3
v_mov_b32 v4, 0
v_mov_b32 v5, 0
v_mov_b32 v6, 0
v_mov_b32 v7, 0
s_and_b32 s34, s2, 7
s_lshr_b32 s35, s2, 4
s_lshl_b32 s35, s35, 3
s_add_u32 s35, s35, s34
s_lshl_b32 s35, s35, 1
s_bfe_u32 s38, s2, 0x10003
s_add_u32 s35, s35, s38               ; c
s_lshr_b32 s38, s33, 2                ; ch
s_mov_b32 s43, 0
s_mov_b32 s58, {L_R}
s_mov_b32 s42, {ONES}
s_cmp_ge_u32 s2, {NCV}
s_cbranch_scc1 F_spare_loads
s_lshl_b32 s3, s35, 10
v_lshl_add_u32 v1, v0, 1, s3
s_lshl_b32 s3, s35, 2
v_bfe_u32 v10, v0, 5, 1
v_mul_u32_u24 v10, {HS}, v10
v_and_b32 v11, 31, v0
v_lshl_add_u32 v10, v11, 4, v10
v_add_u32 v10, {L_H}, v10
v_bfe_u32 v11, v0, 2, 2
v_mul_u32_u24 v11, {KC}, v11
v_and_b32 v12, 3, v0
v_lshl_add_u32 v11, v12, 4, v11
v_add_u32 v11, {L_K + 4096}, v11
v_cmp_gt_u32 vcc, 64, v0
v_cndmask_b32 v10, v11, v10, vcc
ds_write_b128 v10, v[4:7]
""")
    for r in range(10, 16): A(f"v_mov_b32 v{r}, 0")
    A(f"""
s_mov_b32 exec_hi, 0x00ffffff
s_waitcnt lgkmcnt(0)
global_load_dwordx4 v[4:7], v8, s[36:37]
s_mov_b32 exec_hi, -1
s_load_dword {TAG}, s[20:21], {WS_EP}
s_load_dword s39, s[16:17], s3
s_load_dword s41, s[18:19], s3
s_and_b32 s27, s33, 3
s_lshl_b32 s27, s27, 8
s_mul_i32 s28, s38, {KGS}
s_add_u32 s27, s27, s28
s_mov_b32 m0, s27
v_and_b32 v24, 31, v2
v_lshrrev_b32 v25, 5, v2
v_mul_u32_u24 v{pFR}, {RS}, v24
v_lshl_add_u32 v{pFR}, v25, 4, v{pFR}
v_add_u32 v{pFR}, s27, v{pFR}
v_mul_u32_u24 v{pPW}, {4*RS}, v25
v_lshl_add_u32 v{pPW}, v24, 2, v{pPW}
v_add_u32 v{pPW}, s27, v{pPW}
; granules
v_lshrrev_b32 v{pGX0}, 2, v0
v_mul_u32_u24 v{pGX0}, {2*XGP}, v{pGX0}
v_and_b32 v26, 3, v0
v_lshl_add_u32 v{pGX0}, v26, 4, v{pGX0}
s_lshl_b32 s3, s35, 6
s_add_u32 s3, s3, {WS_XG}
v_add_u32 v{pGX0}, s3, v{pGX0}
v_add_u32 v{pGX1}, {XGP}, v{pGX0}
v_lshlrev_b32 v{pGS0}, 4, v0
v_add_u32 v{pGS0}, {WS_SG}, v{pGS0}
v_add_u32 v{pGS1}, 8192, v{pGS0}
""")
    for i in range(6): A(f"global_load_short_d16_hi v{10+i}, v1, s[{4+2*i}:{5+2*i}]")
    A(f"""
v_and_b32 v27, 1, v0
v_mul_u32_u24 v{pGM}, {MGH}, v27
v_and_b32 v27, 2, v0
v_lshl_add_u32 v{pGM}, v27, 2, v{pGM}
s_lshl_b32 s3, s35, 4
s_add_u32 s3, s3, {WS_MG}
v_add_u32 v{pGM}, s3, v{pGM}
v_bfe_u32 v27, v0, 2, 1
v_mul_u32_u24 v{pGA}, {3*3584}, v27
v_add_u32 v{pGA}, v{pGM}, v{pGA}
v_add_u32 v{pGA}, {2*3584}, v{pGA}
v_mul_u32_u24 v27, 3584, v27
v_add_u32 v{pGM}, v{pGM}, v27
v_lshlrev_b32 v{pHW}, 3, v0
v_add_u32 v{pHW}, {L_H}, v{pHW}
v_lshrrev_b32 v{pXO}, 3, v0
v_mul_u32_u24 v{pXO}, {TB}, v{pXO}
v_and_b32 v27, 7, v0
v_lshl_add_u32 v{pXO}, v27, 3, v{pXO}
s_lshl_b32 s3, s35, 7
s_add_u32 s3, s3, {WS_X1T}
v_add_u32 v{pXO}, s3, v{pXO}
v_mul_u32_u24 v{pYR}, 320, v26
v_bfe_u32 v27, v0, 2, 4
v_lshl_add_u32 v{pYR}, v27, 4, v{pYR}
s_mul_i32 s3, s33, 1280
v_add_u32 v{pYR}, s3, v{pYR}
v_mov_b32 v27, {255*16}
v_cmp_eq_u32 s[30:31], v27, v17
s_mul_i32 s3, s38, {2*KC}
s_add_u32 s3, s3, {L_K}
v_add_u32 v17, s3, v17
v_and_b32 v26, 15, v0                 ; m / p / cq
v_bfe_u32 v27, v0, 4, 2               ; kq
s_cmp_lg_u32 s38, 0
s_cbranch_scc1 F_hb
s_lshr_b32 s3, s33, 1
s_and_b32 s29, s33, 1                 ; half
v_and_b32 v{pA0}, 1, v26
v_xor_b32 v{pA0}, 1, v{pA0}
v_mul_u32_u24 v{pA0}, {KC}, v{pA0}
v_lshrrev_b32 v{pA1}, 1, v26
v_lshlrev_b32 v{pA1}, 2, v{pA1}
v_sub_u32 v{pA0}, v{pA0}, v{pA1}
v_lshl_add_u32 v{pA0}, v27, 4, v{pA0}
s_mul_i32 s24, s3, {2*KC}
s_lshl_b32 s25, s29, 8
s_sub_u32 s24, s24, s25
s_add_u32 s24, s24, {L_K + 4060 - 192 - 512}
v_add_u32 v{pA0}, s24, v{pA0}
v_subrev_u32 v{pA1}, 1024, v{pA0}
v_subrev_u32 v{pA2}, 2048, v{pA0}
v_subrev_u32 v{pA3}, 3072, v{pA0}
v_lshlrev_b32 v{pB}, 5, v26
v_lshl_add_u32 v{pB}, v27, 4, v{pB}
s_mul_i32 s24, s3, {HS}
s_sub_u32 s24, s24, s25
s_add_u32 s24, s24, {L_H + 480 - 192}
v_add_u32 v{pB}, s24, v{pB}
v_mul_u32_u24 v{pYW}, 320, v27
v_lshl_add_u32 v{pYW}, v26, 4, v{pYW}
s_mul_i32 s24, s33, {YW}
v_add_u32 v{pYW}, s24, v{pYW}
s_branch F_stats
F_hb:
s_lshr_b32 s24, s2, 5
s_lshl_b32 s24, s24, 3
s_add_u32 s24, s24, s34               ; q
s_and_b32 s25, s24, 1                 ; mat
s_lshr_b32 s24, s24, 1                ; cg
s_bfe_u32 s26, s2, 0x20003            ; rq
s_cmp_eq_u32 s25, 0
s_cselect_b32 s44, s44, s46
s_cselect_b32 s45, s45, s47
v_bfe_u32 v28, v0, 4, 4
v_min_u32 v28, 13, v28                ; rgrp 0..13
v_mul_u32_u24 v{pWA}, {8*3584}, v28
v_lshl_add_u32 v{pWA}, v26, 3, v{pWA}
s_mul_i32 s3, s26, {112*3584}
s_lshl_b32 s46, s24, 7
s_add_u32 s3, s3, s46
s_add_u32 s3, s3, 3584
v_add_u32 v{pWA}, s3, v{pWA}
s_lshr_b32 s3, s2, 1
s_lshl_b32 s3, s3, 4
s_and_b32 s46, s2, 1
s_add_u32 s3, s3, s46
s_add_u32 s3, s3, 4
s_mul_i32 s3, s3, 896
v_lshlrev_b32 v{pWD}, 6, v28
v_lshl_add_u32 v{pWD}, v26, 2, v{pWD}
v_add_u32 v{pWD}, s3, v{pWD}          ; row +4
v_mul_u32_u24 v{pDO}, {HF_TT}, v28
v_lshl_add_u32 v{pDO}, v26, 4, v{pDO}
s_lshl_b32 s3, s2, 9
s_add_u32 s3, s3, {WS_WDF}
v_add_u32 v{pDO}, s3, v{pDO}
s_and_b32 s27, s33, 3
s_lshl_b32 s3, s27, 5
v_add_u32 v{pSB0}, s3, v24
v_min_u32 v{pSB0}, 111, v{pSB0}
s_mul_i32 s3, s26, {112*8}
s_add_u32 s3, s3, {WS_MG + 3*3584}
v_lshl_add_u32 v{pSB0}, v{pSB0}, 3, s3
v_mul_u32_u24 v29, 3584, v25
v_add_u32 v{pSB0}, v{pSB0}, v29
v_add_u32 v{pSB1}, {MGH}, v{pSB0}
s_mul_i32 s3, s24, {4*WF_FG}
s_lshl_b32 s46, s25, 8
s_add_u32 s3, s3, s46
s_add_u32 s59, s3, {WS_WF}
v_lshrrev_b32 v{pFO}, 2, v26
v_mul_u32_u24 v{pFO}, {WF_FG}, v{pFO}
v_lshl_add_u32 v{pFO}, v28, 9, v{pFO}
v_and_b32 v29, 3, v26
v_lshl_add_u32 v{pFO}, v29, 4, v{pFO}
s_mul_i32 s3, s26, {14*512}
s_add_u32 s3, s3, s59
v_add_u32 v{pFO}, s3, v{pFO}
s_lshl_b32 s3, s27, 9
s_add_u32 s3, s3, {L_U}
v_lshl_add_u32 v{pUV}, v25, 8, s3
v_lshl_add_u32 v{pUV}, v26, 4, v{pUV}
s_mul_i32 s3, s27, 384
s_add_u32 s3, s3, {L_V}
v_lshl_add_u32 v{pVW}, v2, 1, s3
v_and_b32 v{pVR}, 3, v28
v_lshl_add_u32 v{pVR}, v{pVR}, 5, s3
v_lshl_add_u32 v{pAV}, v27, 4, s3
v_mov_b32 v29, {L_H}
v_cmp_gt_u32 vcc, 480, v0
v_cmp_lt_u32 s[56:57], 7, v26
s_and_b64 s[56:57], s[56:57], vcc
v_cndmask_b32 v{pAV}, v29, v{pAV}, s[56:57]
s_xor_b64 s[56:57], s[56:57], vcc
v_mov_b32 v29, s42
v_cndmask_b32 v{AU}, 0, v29, s[56:57]
v_cndmask_b32 v{AU+1}, 0, v29, s[56:57]
v_cndmask_b32 v{AU+2}, 0, v29, s[56:57]
s_branch F_stats
F_spare_loads:
""")
    P = [96, 112, 128]
    AC = 64
    LM = 0
    A(f"""
s_sub_u32 s24, s2, {NCV}
s_min_u32 s25, s24, 27
s_and_b32 s26, s25, 1                 ; hf
s_lshr_b32 s25, s25, 1                ; g
v_lshrrev_b32 v12, 3, v0
v_min_u32 v12, 55, v12
v_and_b32 v13, 7, v0                  ; chunk
s_mul_i32 s27, s26, 448
v_lshl_add_u32 v10, v12, 3, s27       ; c offset
v_mul_u32_u24 v14, {4*5376}, v12
v_lshl_add_u32 v14, v13, 4, v14
s_mul_i32 s27, s26, {224*5376}
s_lshl_b32 s28, s25, 7
s_add_u32 s27, s27, s28
v_add_u32 v14, s27, v14
v_add_u32 v15, 5376, v14
v_add_u32 v16, {2*5376}, v14
v_add_u32 v18, {3*5376}, v14
s_cmp_ge_u32 s25, 7
s_cselect_b32 s29, 2, 1
s_mul_i32 s29, s29, 1792
s_mov_b32 exec_hi, 0x00ffffff
s_waitcnt lgkmcnt(0)
global_load_dwordx4 v[4:7], v8, s[36:37]
s_mov_b32 exec_hi, -1
s_load_dword {TAG}, s[20:21], {WS_EP}
s_cmp_eq_u32 s33, 7
s_cbranch_scc1 F_stats0
global_load_dwordx2 v[10:11], v10, s[50:51]
""")
    RA = [14, 15, 16, 18]
    for i in range(4): A(f"global_load_dwordx4 {v(P[0]+4*i,4)}, v{RA[i]}, s[52:53]")
    A(f"""
s_mov_b32 s27, {hex(LOG2E | 0x80000000)}
v_lshrrev_b32 v24, 5, v2
v_lshlrev_b32 v24, 4, v24
v_lshl_add_u32 v24, v13, 5, v24
v_bfe_u32 v25, v2, 4, 1
v_lshl_add_u32 v24, v25, 3, v24
s_lshl_b32 s3, s33, 8
v_add_u32 v24, s3, v24
s_waitcnt vmcnt(4)
v_lshlrev_b32 v44, 16, v10
v_and_b32 v45, 0xffff0000, v10
v_lshlrev_b32 v46, 16, v11
v_and_b32 v47, 0xffff0000, v11
""")
    for i in range(4): A(f"v_mul_f32 v{48+i}, s27, v{44+i}")
    for i in range(4): A(f"v_exp_f32 v{48+i}, v{48+i}")
    for i in range(4): A(f"v_add_f32 v{48+i}, 1.0, v{48+i}")
    for i in range(4): A(f"v_rcp_f32 v{48+i}, v{48+i}")
    for i in range(4): A(f"v_mul_f32 v{44+i}, v{44+i}, v{48+i}")
    A("v_cvt_pk_bf16_f32 v48, v44, v45\nv_cvt_pk_bf16_f32 v49, v46, v47")
    A("v_lshlrev_b32 v44, 16, v48\nv_and_b32 v45, 0xffff0000, v48\nv_lshlrev_b32 v46, 16, v49\nv_and_b32 v47, 0xffff0000, v49")
    def gemv(p, waitbase):
        for i in range(4):
            A(f"s_waitcnt vmcnt({waitbase - i})")
            if i == 3 and p < 2:
                for k in range(4): A(f"global_load_dwordx4 {v(P[p+1]+4*k,4)}, v{RA[k]}, s[52:53]" + (" offset:2688" if p == 0 else ""))
            for j in range(4): A(f"v_lshlrev_b32 v{56+2*j}, 16, v{P[p]+4*i+j}\nv_and_b32 v{57+2*j}, 0xffff0000, v{P[p]+4*i+j}")
            for j in range(8):
                if i == 0: A(f"v_mul_f32 v{AC+j}, v44, v{56+j}")
                else: A(f"v_fmac_f32 v{AC+j}, v{44+i}, v{56+j}")
        for j in range(4): A(f"v_permlane32_swap_b32 v{AC+j}, v{AC+4+j}")
        for j in range(4): A(f"v_add_f32 v{AC+j}, v{AC+j}, v{AC+4+j}")
        for j in range(2): A(f"v_permlane16_swap_b32 v{AC+j}, v{AC+2+j}")
        for j in range(2): A(f"v_add_f32 v{AC+j}, v{AC+j}, v{AC+2+j}")
        for j in range(2): A(f"v_add_f32_dpp v{AC+j}, v{AC+j}, v{AC+j} row_ror:8 row_mask:0xf bank_mask:0xf")
        A(f"ds_write_b64 v24, {v(AC,2)} offset:{LM + 2048*p}")
    gemv(0, 3)
    A(f""";TP s1
s_branch F_stats
F_stats0:
v_lshlrev_b32 v26, 2, v2
s_mul_i32 s3, s26, {MGH}
s_lshl_b32 s28, s25, 9
s_add_u32 s3, s3, s28
s_add_u32 s3, s3, {WS_MG}
v_lshl_add_u32 v25, v2, 3, s3
s_waitcnt vmcnt(0)
F_stats:
""")
    A(f"""
s_mul_i32 s3, s33, {RSTR}
s_add_u32 s3, s3, {L_R}
v_add_u32 v8, s3, v3
v_and_b32 v30, 3, v0
v_mul_u32_u24 v28, {2*RSTR}, v30
v_and_b32 v29, 0x1fc, v0
v_add3_u32 v28, v28, v29, s58
v_add_u32 v31, {L_S}, v3
s_mul_i32 s3, s2, {XGP}
s_add_u32 s3, s3, {WS_XG}
v_lshl_add_u32 v29, v0, 4, s3
v_add_u32 v27, {XGP//2}, v29
s_lshr_b32 s3, s2, 1
s_lshl_b32 s3, s3, 6
s_and_b32 s60, s2, 1
s_lshl_b32 s60, s60, 13
s_add_u32 s3, s3, s60
s_add_u32 s3, s3, {WS_SG}
v_add_u32 v9, s3, v3
s_lshl_b32 s3, s33, 3
s_add_u32 s3, s3, {L_S}
v_mov_b32 v30, s3
s_waitcnt vmcnt(6)
v_dot2_f32_bf16 v42, v4, s42, 0
v_dot2_f32_bf16 v43, v4, v4, 0
s_mov_b32 exec_hi, 0x00ffffff
ds_write_b128 v8, v[4:7]
s_mov_b32 exec_hi, -1
""")
    for j in range(1, 4): A(f"v_dot2_f32_bf16 v42, v{4+j}, s42, v42\nv_dot2_f32_bf16 v43, v{4+j}, v{4+j}, v43")
    A("v_permlane32_swap_b32 v42, v43\nv_add_f32 v42, v42, v43")
    for sh in (8, 4, 2, 1): A(f"v_add_f32_dpp v42, v42, v42 row_ror:{sh} row_mask:0xf bank_mask:0xf")
    PB_ = 160
    A(f"""
v_mov_b32 v43, v42
v_permlane16_swap_b32 v42, v43
v_add_f32 v42, v42, v43
v_mul_f32 v42, {hex(INV448)}, v42
v_mov_b32 v43, v42
v_permlane32_swap_b32 v42, v43        ; v42 mean, v43 E[x^2]
v_fma_f32 v43, -v42, v42, v43
v_max_f32 v43, 0, v43
v_cvt_pk_bf16_f32 v43, v43, v43
v_and_b32 v43, 0xffff0000, v43
v_add_f32 v43, {hex(EPS)}, v43
v_cvt_pk_bf16_f32 v43, v43, v43
v_and_b32 v43, 0xffff0000, v43
v_sqrt_f32 v43, v43
s_waitcnt lgkmcnt(0)
s_add_u32 {TAG}, {TAG}, {hex(TAGC)}
v_mov_b32 v33, {TAG}
v_cvt_pk_bf16_f32 v32, v42, v43
ds_write_b64 v30, v[32:33]
v_mov_b32 v{PB_+1}, {TAG}
v_mov_b32 v{PB_+3}, {TAG}
v_mov_b32 v{PB_+5}, {TAG}
v_mov_b32 v{PB_+7}, {TAG}
s_cmp_ge_u32 s2, {NCV}
s_cbranch_scc1 F_b1
""")
    Z1, Z8, P_ = 34, 36, 38
    T1, T8, TP = 40, 42, 44
    A(f"""
s_lshl_b32 s3, s38, 4
s_lshr_b32 s39, s39, s3
s_lshl_b32 s39, s39, 16
s_lshr_b32 s41, s41, s3
s_lshl_b32 s41, s41, 16
s_mov_b32 s29, {LOG2E}
v_mov_b32 v16, s39
v_mul_f32 v16, s29, v16
v_exp_f32 v16, v16
v_mov_b32 v{pDK}, s41
v_cndmask_b32 v{pDK}, 0, v{pDK}, s[30:31]
v_mov_b32 v{AU+3}, v{AU}
v_cvt_pk_bf16_f32 v16, v16, v16
v_and_b32 v16, 0xffff0000, v16        ; dt
s_waitcnt vmcnt(0)
v_mul_f32 v10, v16, v10
v_mul_f32 v11, v16, v11
v_mul_f32 v10, s29, v10
v_mul_f32 v11, 0.15915494, v11
v_mul_f32 v12, v16, v12               ; dB
v_mul_f32 v13, v16, v13
v_mul_f32 v{T8+1}, {hex(f2u(8.0))}, v11
v_mul_f32 v{TP+1}, {hex(f2u(256.0))}, v11
v_mul_f32 v{T8}, {hex(f2u(8.0))}, v10
v_mul_f32 v{TP}, {hex(f2u(256.0))}, v10
v_fract_f32 v{T8+1}, v{T8+1}
v_fract_f32 v{T1+1}, v11
v_fract_f32 v{TP+1}, v{TP+1}
v_exp_f32 v{T8}, v{T8}
v_cos_f32 v{Z8}, v{T8+1}
v_sin_f32 v{Z8+1}, v{T8+1}
v_exp_f32 v{T1}, v10
v_cos_f32 v{Z1}, v{T1+1}
v_sin_f32 v{Z1+1}, v{T1+1}
v_pk_mul_f32 {v(Z8,2)}, {v(Z8,2)}, {v(T8,2)} op_sel_hi:[1,0]
v_exp_f32 v{TP}, v{TP}
v_cos_f32 v{P_}, v{TP+1}
v_sin_f32 v{P_+1}, v{TP+1}
v_pk_mul_f32 {v(Z1,2)}, {v(Z1,2)}, {v(T1,2)} op_sel_hi:[1,0]
v_mov_b32 v175, 0x3f80
v_pk_mul_f32 {v(P_,2)}, {v(P_,2)}, {v(TP,2)} op_sel_hi:[1,0]
F_b1:
s_cmp_eq_u32 s33, 7
s_waitcnt lgkmcnt(0)
s_barrier
;TP b1
s_cbranch_scc1 F_pub7
""")
    for j in range(4): A(f"ds_read_b32 v{PB_+2*j}, v28 offset:{(j&1)*RSTR + (j>>1)*448}")
    A(f"""
s_cmp_ge_u32 s2, {NCV}
s_waitcnt lgkmcnt(2)
global_store_dwordx4 v29, {v(PB_,4)}, s[20:21] sc1
s_waitcnt lgkmcnt(0)
global_store_dwordx4 v27, {v(PB_+4,4)}, s[20:21] sc1
s_cbranch_scc1 F_spare
s_cmp_eq_u32 s38, 0
s_cbranch_scc1 F_kg
s_branch F_wl
F_pub7:
s_cmp_ge_u32 s2, {NCV}
s_cbranch_scc1 F_spare7
ds_read_b128 {v(PB_,4)}, v31
s_mov_b64 exec, 15
s_waitcnt lgkmcnt(0)
global_store_dwordx4 v9, {v(PB_,4)}, s[20:21] sc1
s_mov_b64 exec, -1
F_wl:
{"s_setprio " + BPRIO if BPRIO else ""}
""")
    WL, DL = 232, 224
    for j in range(8):
        A(f"global_load_dwordx2 {v(WL+2*j,2)}, v{pWA}, s[44:45] offset:{3584*(j%3-1)}")
        if j % 3 == 2: A(f"v_add_u32 v{pWA}, {3*3584}, v{pWA}")
    for e in (0, 4, 1, 5, 2): A(f"global_load_dword v{DL+e}, v{pWD}, s[48:49] offset:{896*(4*(e&3)+2*(e>>2)-4)}")
    A(f"v_add_u32 v{pWD}, {8*896}, v{pWD}")
    for e in (6, 3, 7): A(f"global_load_dword v{DL+e}, v{pWD}, s[48:49] offset:{896*(4*(e&3)+2*(e>>2)-12)}")
    A("F_kg:\n.p2align 3")
    X = lambda i: 48 + 2 * i
    Y = lambda j: Z8 if j == 1 else 96 + 2 * j
    reg = {'C': 14, 'B': 12, 'Z1': Z1, 'P': P_, 'y1': Z8}
    it = [('x0', ('C', 'B'))] + [(f'x{i}', (f'x{i-1}', 'Z1')) for i in range(1, 8)]
    for i, s in ((8, 0), (9, 2), (10, 4), (11, 6), (12, 8), (13, 12), (14, 10), (15, 14), (16, 13), (17, 16), (18, 17), (19, 18), (20, 19)):
        it.append((f'x{i}', (f'x{s}', 'P')))
    it += [('y2', ('y1', 'y1')), ('y3', ('y2', 'y1')), ('y4', ('y2', 'y2'))] + [(f'y{j}', (f'y{j-4}', 'y4')) for j in range(5, 9)]
    it += [(f'y{j}', (f'y{j-8}', 'y8')) for j in range(9, 32)]
    for n, _ in it: reg[n] = X(int(n[1:])) if n[0] == 'x' else Y(int(n[1:]))
    order = schedule(it); src = dict(it)
    TT = 168
    def outs(n, k):
        t = TT + k % 7
        i = int(n[1:])
        if n[0] == 'x': return f"v_cvt_pk_bf16_f32 v{t}, v{X(i)}, -v{X(i)+1}", f"ds_write_addtid_b32 v{t} offset:{i*RS}"
        return f"v_cvt_pk_bf16_f32 v{t}, v{Y(i)}, v{Y(i)+1}", f"ds_write_addtid_b32 v{t} offset:{(21+i)*RS}"
    seq = [None, None, 'y1'] + order
    N = len(seq)
    A(f"ds_write_addtid_b32 v175 offset:{21*RS}")
    for k in range(3, N + 4):
        g = lambda d: seq[k - d] if 0 <= k - d < N else None
        if g(0): A(cmul(A, reg[g(0)], reg[src[g(0)][0]], reg[src[g(0)][1]])[0])
        if g(3): A(outs(g(3), k - 3)[0])
        if g(1) and g(1) != 'y1': A(cmul(A, reg[g(1)], reg[src[g(1)][0]], reg[src[g(1)][1]])[1])
        if g(4): A(outs(g(4), k - 4)[1])
    AF, BF, ACC = 48, 96, 80
    TA = 24
    for ks in range(8):
        A(f"ds_read_b128 {v(AF+4*ks,4)}, v{pFR} offset:{ks*32}")
        A(f"ds_read_b128 {v(BF+4*ks,4)}, v{pFR} offset:{21*RS + ks*32}")
    GX, GS, GM = 176, 184, 192
    GL = [f"global_load_dwordx4 {v(GX,4)}, v{pGX0}, s[20:21] sc1", f"global_load_dwordx4 {v(GX+4,4)}, v{pGX1}, s[20:21] sc1",
          f"global_load_dwordx4 {v(GS,4)}, v{pGS0}, s[20:21] sc1", f"global_load_dwordx4 {v(GS+4,4)}, v{pGS1}, s[20:21] sc1"]
    mload = f"global_load_dwordx2 {v(GM,2)}, v{pGM}, s[20:21] sc1"
    A(f"v_add_u32 v{TA+8}, s28, v19")
    for ks in range(8):
        A(f"s_waitcnt lgkmcnt({14-2*ks})")
        A(f"v_mfma_f32_32x32x16_bf16 {v(ACC,16)}, {v(AF+4*ks,4)}, {v(BF+4*ks,4)}, {'0' if ks==0 else v(ACC,16)}")
        A(f"v_and_b32 v{TA+ks}, 0xffff, v{20+ks//2}" if ks % 2 == 0 else f"v_lshrrev_b32 v{TA+ks}, 16, v{20+ks//2}")
        A(f"v_add_u32 v{TA+ks}, s28, v{TA+ks}")
        if GPOS == 0 and ks >= 4: A(GL[ks - 4])
    for r in range(12):
        A(f"ds_write_b32 v{pPW}, v{ACC+r} offset:{((r&3)+8*(r>>2))*RS}")
    if GPOS == 1:
        for g in GL: A(g)
    A(";TP pb2\ns_waitcnt lgkmcnt(0)\ns_barrier\n;TP b2")
    E = 48
    for e in range(9):
        A(f"ds_read2st64_b32 {v(E+4*e,2)}, v{TA+e} offset0:0 offset1:1")
        A(f"ds_read2st64_b32 {v(E+4*e+2,2)}, v{TA+e} offset0:2 offset1:3")
    A(mload)
    for e in range(9):
        A(f"s_waitcnt lgkmcnt({min(15, 16-2*e)})")
        A(f"v_pk_add_f32 {v(E+4*e,2)}, {v(E+4*e,2)}, {v(E+4*e+2,2)}")
        if e == 7: A(f"v_add_f32 v{E+4*e}, v{E+4*e}, v{pDK}")
        A(f"v_add_f32 v{E+4*e}, v{E+4*e}, v{E+4*e+1}")
        if e == 8: A(f"v_cndmask_b32 v{E+32}, v{E+32}, 0, s[30:31]")
        if e & 1: A(f"v_cvt_pk_bf16_f32 v{88+e//2}, v{E+4*e-4}, v{E+4*e}")
        elif e: A(f"v_cvt_pk_bf16_f32 v{92+e//2-1}, v{E+4*e-4}, v{E+4*e}")
        if e == 7: A("ds_write_b128 v17, v[88:91]")
    A(f"ds_write_b128 v17, v[92:95] offset:{KC}")
    A(f"""
s_waitcnt vmcnt(1)
F_chk:
v_xor_b32 v10, {TAG}, v{GX+1}
v_xor_b32 v11, {TAG}, v{GX+3}
v_xor_b32 v12, {TAG}, v{GX+5}
v_xor_b32 v13, {TAG}, v{GX+7}
v_or3_b32 v10, v10, v11, v12
v_xor_b32 v11, {TAG}, v{GS+1}
v_xor_b32 v12, {TAG}, v{GS+3}
v_or3_b32 v10, v10, v11, v12
v_xor_b32 v11, {TAG}, v{GS+5}
v_xor_b32 v12, {TAG}, v{GS+7}
v_or3_b32 v13, v13, v11, v12
v_or_b32 v10, v10, v13
v_cmp_ne_u32 vcc, 0, v10
s_cbranch_vccnz F_rt1
F_ok:
s_mov_b64 exec, -1
""")
    RT = [f"F_rt1:\n{lim('F_ok')}\ns_mov_b64 exec, vcc\n" + "\n".join(GL) + "\ns_waitcnt vmcnt(0)\ns_branch F_chk"]
    XU, ST, H, HP, GA = 32, 48, 56, 64, 40
    for t in range(4): A(f"v_and_b32 v{ST+1+2*t}, 0xffff0000, v{GS+2*t}")
    for t in range(4): A(f"v_rcp_f32 v{ST+1+2*t}, v{ST+1+2*t}")
    for t in range(4): A(f"v_lshlrev_b32 v{ST+2*t}, 16, v{GS+2*t}")
    for t in range(4): A(f"v_lshlrev_b32 v{XU+2*t}, 16, v{GX+2*t}\nv_and_b32 v{XU+2*t+1}, 0xffff0000, v{GX+2*t}")
    for t in range(4): A(f"v_pk_add_f32 {v(H+2*t,2)}, {v(XU+2*t,2)}, {v(ST+2*t,2)} op_sel_hi:[1,0] neg_lo:[0,1] neg_hi:[0,1]")
    for t in range(4): A(f"v_pk_mul_f32 {v(H+2*t,2)}, {v(ST+2*t,2)}, {v(H+2*t,2)} op_sel:[1,0]")
    gaload = f"global_load_dwordx2 {v(GA,2)}, v{pGA}, s[20:21] sc1"
    A(f"""
F_chkm:
s_waitcnt vmcnt(0)
v_cmp_ne_u32 vcc, {TAG}, v{GM+1}
v_add_f32_dpp v10, v{GM}, v{GM} quad_perm:[1,0,3,2] row_mask:0xf bank_mask:0xf
s_cbranch_vccnz F_rt2
F_okm:
v_cvt_pk_bf16_f32 v10, v10, v10
v_and_b32 v10, 0xffff0000, v10
v_add_f32 v11, 1.0, v10
v_cvt_pk_bf16_f32 v11, v11, v11
v_readlane_b32 s30, v10, 0
v_readlane_b32 s31, v10, 2
v_and_b32 v11, 0xffff0000, v11
v_mov_b32 v12, s30
v_readlane_b32 s54, v11, 4
v_readlane_b32 s55, v11, 6
v_mov_b32 v13, s31
s_cmp_lg_u32 s38, 0
""")
    RT.append(f"F_rt2:\n{lim('F_okm')}\n{mload}\ns_branch F_chkm")
    for t in range(4): A(f"v_pk_fma_f32 {v(H+2*t,2)}, {v(H+2*t,2)}, s[54:55], v[12:13]")
    for ch in range(2):
        for j in range(2): A(f"v_cvt_pk_bf16_f32 v{HP+2*ch+j}, v{H+4*j+ch}, v{H+2+4*j+ch}")
        A(f"ds_write_b64 v{pHW}, {v(HP+2*ch,2)} offset:{ch*HS + 512}")
    A(f"""
;TP h
s_cbranch_scc1 F_prep
s_setprio 2
s_waitcnt lgkmcnt(0)
s_barrier
;TP b3
""")
    ACC = 44
    FB = [76, 140]
    def reads(s, buf):
        out = []
        base = FB[buf]
        for c in range(8): out.append(f"ds_read_b128 {v(base+32+4*c,4)}, v{pB} offset:{512*c + 192 - 64*s}")
        for G in range(8):
            o = (512 * (1 - (G & 1)) + 192 - 64 * s) // 4
            out.append(f"ds_read2_b32 {v(base+4*G,2)}, v{pA0+G//2} offset0:{o} offset1:{o+1}")
            out.append(f"ds_read2_b32 {v(base+4*G+2,2)}, v{pA0+G//2} offset0:{o+2} offset1:{o+3}")
        return out
    r0 = reads(0, 0)
    r0 = r0[8:10] + r0[:8] + r0[10:]
    for r in r0: A(r)
    for s in range(4):
        base = FB[s & 1]
        nxt = reads(s + 1, (s + 1) & 1) if s < 3 else [gaload]
        if s > 0: A("s_waitcnt lgkmcnt(0)")
        for G in range(8):
            if s == 0 and G == 1: A("s_waitcnt lgkmcnt(0)")
            for c in range(G, 8):
                first = (s == 0 and G == 0)
                if first and c >= 6: A(f"s_waitcnt lgkmcnt({21 - c})")
                if first and c == 0: A("s_waitcnt lgkmcnt(15)")
                A(f"v_mfma_f32_16x16x32_bf16 {v(ACC+4*c,4)}, {v(base+4*G,4)}, {v(base+32+4*(c-G),4)}, {'0' if first else v(ACC+4*c,4)}")
                if nxt and not first: A(nxt.pop(0))
                if s == 3 and G >= 1 and c == min(G + 1, 7) and G < 7: A(f"ds_write_b128 v{pYW}, {v(ACC+4*(G-1),4)} offset:{1280*(G-1)}")
        assert not nxt
    for c in (6, 7): A(f"ds_write_b128 v{pYW}, {v(ACC+4*c,4)} offset:{1280*c}")
    A(f"""
F_epi:
s_waitcnt vmcnt(0)
F_epi1:
v_cmp_ne_u32 vcc, {TAG}, v{GA+1}
v_add_f32_dpp v42, v{GA}, v{GA} quad_perm:[1,0,3,2] row_mask:0xf bank_mask:0xf
s_cbranch_vccnz F_rt3
F_ok3:
v_cvt_pk_bf16_f32 v42, v42, v42
v_and_b32 v42, 0xffff0000, v42
s_cmp_eq_u32 s33, 6
s_cbranch_scc1 F_gb
F_b4:
v_readlane_b32 s30, v42, 0
v_readlane_b32 s31, v42, 2
s_waitcnt lgkmcnt(0)
s_barrier
;TP b4
""")
    RT.append(f"F_rt3:\n{lim('F_ok3')}\n{gaload}\ns_branch F_epi")
    RT.append(f"""F_gb:
v_lshlrev_b32 v6, 1, v2
s_lshl_b32 s3, s35, 3
s_add_u32 s3, s3, {WS_MOD + 5*448*4 - 8}
v_add_u32 v6, s3, v6
v_mov_b32 v12, {WS_EP}
v_mov_b32 v13, {TAG}
s_mov_b64 exec, 0x50
global_store_dword v6, v42, s[20:21]
s_cmp_lg_u32 s2, 0
s_cbranch_scc1 F_gb1
global_store_dword v12, v13, s[20:21]
F_gb1:
s_mov_b64 exec, -1
s_branch F_b4""")
    YR = 80
    for ch in range(2):
        for hf in range(2):
            A(f"ds_read_b128 {v(YR+8*hf+4*ch,4)}, v{pYR} offset:{(2*ch+hf)*YW}")
    for ch in range(2):
        A(f"s_waitcnt lgkmcnt({2-2*ch})")
        for j in range(2): A(f"v_pk_add_f32 {v(YR+4*ch+2*j,2)}, {v(YR+4*ch+2*j,2)}, {v(YR+8+4*ch+2*j,2)}")
        for j in range(4): A(f"v_fma_f32 v{YR+4*ch+j}, s{30+ch}, v{YR+4*ch+j}, v{XU+2*j+ch}")
        for j in range(2): A(f"v_cvt_pk_bf16_f32 v{76+2*ch+j}, v{YR+4*ch+2*j}, v{YR+4*ch+2*j+1}")
        A(f"global_store_dwordx2 v{pXO}, {v(76+2*ch,2)}, s[20:21] offset:{64*ch} {XST}")
    A("s_endpgm")

    GB = 196
    g2 = f"global_load_dwordx2 {v(GB,2)}, v{pSB0}, s[20:21] sc1\nglobal_load_dwordx2 {v(GB+2,2)}, v{pSB1}, s[20:21] sc1"
    CB, AV, UN, RW, OUT, DO, SC, DA = 48, 56, 64, 96, 112, 128, 136, 168
    A(f"""
F_prep:
s_setprio 0
{g2}
s_mov_b32 s14, 0x05040100
s_mov_b32 s15, 0x07060302
v_cmp_gt_u32 s[56:57], 32, v2
s_waitcnt lgkmcnt(0)
s_barrier
""")
    for i in range(2):
        for jp in range(4): A(f"v_perm_b32 v{DO+4*i+jp}, v{DL+2*jp+1}, v{DL+2*jp}, s{14+i}")
        A(f"global_store_dwordx4 v{pDO}, {v(DO+4*i,4)}, s[20:21] offset:{256*i} {WST}")
    for j in range(8):
        for h in range(2):
            t = UN + 4 * j + 2 * h
            A(f"v_lshlrev_b32 v{t}, 16, v{WL+2*j+h}\nv_and_b32 v{t+1}, 0xffff0000, v{WL+2*j+h}")
    A(f"""
s_waitcnt vmcnt(2)
F_chk2:
v_xor_b32 v24, {TAG}, v{GB+1}
v_xor_b32 v25, {TAG}, v{GB+3}
v_or_b32 v24, v24, v25
v_cmp_ne_u32 vcc, 0, v24
v_add_f32 v24, v{GB}, v{GB+2}
s_cbranch_vccnz F_rt4
F_ok2:
{gaload}
v_cvt_pk_bf16_f32 v24, v24, v24
v_and_b32 v24, 0xffff0000, v24
v_add_f32 v25, 1.0, v24
v_cvt_pk_bf16_f32 v25, v25, v25
v_lshl_add_u32 v26, v2, 1, v{pVW}
v_and_b32 v25, 0xffff0000, v25
ds_write_b16_d16_hi v{pVW}, v24
ds_write_b32 v26, v25 offset:128
ds_read_b128 {v(CB,4)}, v{pVR} offset:256
ds_read_b128 {v(CB+4,4)}, v{pVR} offset:272
ds_read_b128 {v(AV,4)}, v{pAV}
""")
    RT.append(f"F_rt4:\n{lim('F_ok2')}\n{g2}\ns_waitcnt vmcnt(0)\ns_branch F_chk2")
    for i in range(4):
        for jp in range(4): A(f"v_perm_b32 v{RW+4*i+jp}, v{WL+4*jp+2+(i>>1)}, v{WL+4*jp+(i>>1)}, s{14+(i&1)}")
    A("s_waitcnt lgkmcnt(0)")
    for i in range(4):
        for j in range(8): A(f"v_mul_f32 v{SC+8*i+j}, v{CB+j}, v{UN+4*j+i}")
        A(f"v_mfma_f32_16x16x32_bf16 {v(DA+4*i,4)}, {v(AV,4)}, {v(RW+4*i,4)}, 0")
        for jp in range(4): A(f"v_cvt_pk_bf16_f32 v{OUT+4*i+jp}, v{SC+8*i+2*jp}, v{SC+8*i+2*jp+1}")
        A(f"global_store_dwordx4 v{pFO}, {v(OUT+4*i,4)}, s[20:21] offset:{64*i} {WST}")
        A(f"v_mfma_f32_16x16x32_bf16 {v(DA+4*i,4)}, {v(AU,4)}, {v(OUT+4*i,4)}, {v(DA+4*i,4)}")
    A(f"""
v_mov_b32 v24, {L_C}
v_mov_b32 v25, 1
v_lshlrev_b32 v7, 3, v2
v_add_u32 v7, {L_U}, v7
ds_write2_b32 v{pUV}, v{DA}, v{DA+4} offset0:0 offset1:1
ds_write2_b32 v{pUV}, v{DA+8}, v{DA+12} offset0:2 offset1:3
s_mov_b64 exec, 1
ds_add_rtn_u32 v26, v24, v25
s_mov_b64 exec, -1
s_waitcnt lgkmcnt(0)
v_readfirstlane_b32 s3, v26
s_waitcnt vmcnt(4)
s_cmp_lg_u32 s3, 3
s_cbranch_scc1 F_epi1
""")
    for i in range(4): A(f"ds_read_b64 {v(16+2*i,2)}, v7 offset:{512*i}")
    A(f"""
v_bfe_u32 v6, v2, 3, 2
v_mul_u32_u24 v6, {WF_FG}, v6
v_lshrrev_b32 v5, 5, v2
v_lshl_add_u32 v6, v5, 9, v6
v_and_b32 v5, 1, v2
v_lshl_add_u32 v6, v5, 7, v6
v_bfe_u32 v5, v2, 1, 2
v_lshl_add_u32 v6, v5, 4, v6
s_lshl_b32 s3, s26, 2
s_add_u32 s3, s3, {28*1024}
s_add_u32 s3, s3, s59
v_add_u32 v6, s3, v6
s_waitcnt lgkmcnt(0)
v_add_f32 v16, v16, v18
v_add_f32 v17, v17, v19
v_add_f32 v20, v20, v22
v_add_f32 v21, v21, v23
v_add_f32 v16, v16, v20
v_add_f32 v17, v17, v21
v_cvt_pk_bf16_f32 v18, v16, v17
v_lshlrev_b32 v20, 16, v18
v_and_b32 v21, 0xffff0000, v18
v_sub_f32 v16, v16, v20
v_sub_f32 v17, v17, v21
v_cvt_pk_bf16_f32 v16, v20, v16
v_cvt_pk_bf16_f32 v17, v21, v17
global_store_dword v6, v16, s[20:21]
global_store_dword v6, v17, s[20:21] offset:64
s_branch F_epi1
""")
    for r in RT: A(r)

    def tree(n, base):
        regs = [base + i for i in range(n)]
        while len(regs) > 1:
            nx = []
            for i in range(0, len(regs) - 1, 2):
                A(f"v_add_f32 v{regs[i]}, v{regs[i]}, v{regs[i+1]}"); nx.append(regs[i])
            if len(regs) & 1: nx.append(regs[-1])
            regs = nx
    A(f"F_spare:\nv_add_u32 v14, s29, v14\nv_add_u32 v15, 5376, v14\nv_add_u32 v16, {2*5376}, v14\nv_add_u32 v18, {3*5376}, v14")
    gemv(1, 3 + 2)
    A("s_waitcnt lgkmcnt(0)\ns_barrier\n;TP s2")
    gemv(2, 3)
    A("s_waitcnt lgkmcnt(0)\ns_barrier\ns_endpgm")
    A("F_spare7:")
    for p in range(3):
        if p: A("s_barrier")
        for i in range(7): A(f"ds_read_b32 v{72+i}, v26 offset:{LM + 2048*p + 256*i}")
        if p == 0: A(f"ds_read_b128 {v(PB_,4)}, v31\nv_add_u32 v28, 0, v25")
        if p == 1: A(f"v_add_u32 v28, {2688*4}, v25")
        if p == 2: A(f"s_lshl_b32 s29, s29, 2\nv_add_u32 v28, s29, v25")
        A("s_waitcnt lgkmcnt(0)")
        tree(7, 72)
        A(f"v_mov_b32 v32, v72\nglobal_store_dwordx2 v28, v[32:33], s[20:21] sc1\n;TP s{p+2}")
        if p == 0:
            A(f"""
s_mov_b64 exec, 15
global_store_dwordx4 v9, {v(PB_,4)}, s[20:21] sc1
s_mov_b64 exec, -1
s_lshl_b32 s3, s24, 10
s_add_u32 s3, s3, {WS_FL}
v_add_u32 v29, s3, v3
v_mov_b32 v30, 0
global_store_dword v29, v30, s[20:21]
""")
    A("F_end:\ns_endpgm")
    tab = ktable() + [0] * 8
    A(".p2align 4\n.type ktab,@object\nktab:")
    for i in range(0, len(tab), 16): A(".short " + ", ".join(str(t) for t in tab[i:i+16]))
    A(f".size ktab, {2*len(tab)}")
    return kdesc("front_kernel", 256, 64)
```

```python
from common import *
import os
K34_GRID = 224
K34_BLOCK = 512
L_ST = 131072
K34_LDS = L_ST + 4096
PRE = int(os.environ.get("K3PRE", "4"))
RW = 6
XL = 1
SLP = os.environ.get("SLP", "1")
HST = os.environ.get("HST", "sc1")
FLV = int(os.environ.get("FLV", "3"))
MAP = os.environ.get("MAP", "0")

MAPALT = """
s_and_b32 s6, s2, 7
s_lshl_b32 s6, s6, 1
s_bfe_u32 s8, s2, 0x10003
s_add_u32 s6, s6, s8
s_bfe_u32 s30, s2, 0x10004
s_mul_i32 s8, s30, 7
s_add_u32 s7, s31, s8
"""
POLLOFF = ["""v_lshlrev_b32 v20, 2, v20
s_mul_i32 s39, s9, 56
v_add_u32 v20, s39, v20
s_lshl_b32 s39, s12, 2""", """v_lshlrev_b32 v20, 7, v20
s_mul_i32 s39, s9, 1792
v_add_u32 v20, s39, v20
s_lshl_b32 s39, s12, 7""", """s_mul_i32 s39, s9, 14
v_add_u32 v20, s39, v20
v_lshrrev_b32 v20, 3, v20
v_lshlrev_b32 v20, 7, v20
s_lshl_b32 s39, s7, 7""", """v_lshlrev_b32 v20, 7, v20
s_lshl_b32 s39, s7, 7"""]
GRAN = False
V3 = os.environ.get('V3', '1') == '1'
WS_FL2 = 0x1800000
def k34(A):
    A(f""".globl ffn_kernel
.p2align 8
.type ffn_kernel,@function
ffn_kernel:
s_cmp_ge_u32 s2, {K34_GRID}
s_cbranch_scc1 K3_end
s_load_dwordx2 s[4:5], s[0:1], 136
s_load_dwordx2 s[36:37], s[0:1], 120
s_and_b32 s6, s2, 3
s_lshl_b32 s6, s6, 2
s_lshr_b32 s7, s2, 3
s_and_b32 s8, s7, 3
s_add_u32 s6, s6, s8                  ; rb
s_bfe_u32 s30, s2, 0x10002            ; th
s_mul_i32 s8, s30, 7
s_lshr_b32 s31, s7, 2                 ; db
s_add_u32 s7, s31, s8                 ; fb
{MAPALT if MAP == "1" else ""}
v_lshrrev_b32 v1, 6, v0
v_and_b32 v2, 63, v0                  ; lane
v_readfirstlane_b32 s9, v1            ; w
v_lshlrev_b32 v3, 4, v2               ; lane*16
s_and_b32 s27, s9, 3
s_lshr_b32 s28, s9, 2                 ; parity
s_lshl_b32 s10, s6, 2
s_add_u32 s10, s10, s27
s_mul_i32 s11, s10, {TB}
s_lshl_b32 s15, s28, 10
s_add_u32 s11, s11, s15
s_add_u32 s11, s11, {WS_X1T}
s_lshl_b32 s12, s7, 3
s_add_u32 s12, s12, s9                ; fg
s_mul_i32 s13, s12, {WF_FG}
s_add_u32 s13, s13, {WS_WF + 4096}
s_mul_i32 s14, s27, {TB}
s_add_u32 s14, s14, s15
s_mov_b32 m0, s14
s_mul_i32 s38, s9, {14*1024}
s_mul_i32 s20, s31, {2*HF_TT}
s_add_u32 s20, s20, s38
s_add_u32 s20, s20, {WS_WDF + 4096}
s_waitcnt lgkmcnt(0)
s_add_u32 s16, s4, s11
s_addc_u32 s17, s5, 0                 ; x source
s_add_u32 s18, s4, s13
s_addc_u32 s19, s5, 0                 ; W source (+4096)
s_add_u32 s32, s4, s20
s_addc_u32 s33, s5, 0
v_add_u32 v1, {HF_TT}, v3
""")
    Q = []
    WR = lambda s: 112 + 4 * (s % RW)
    def issue(op):
        kind, j = op
        if kind == 'x':
            if j and j % 2 == 0:
                A("s_add_u32 s16, s16, 4096\ns_addc_u32 s17, s17, 0\ns_add_u32 s14, s14, 4096\ns_mov_b32 m0, s14")
            A(f"global_load_lds_dwordx4 v3, s[16:17] offset:{2048*(j%2)}")
        elif kind == 'w':
            if j and j % 8 == 0: A("s_add_u32 s18, s18, 8192\ns_addc_u32 s19, s19, 0")
            A(f"global_load_dwordx4 {a_(WR(j),4)}, v3, s[18:19] offset:{1024*(j%8)-4096}")
        elif kind == 'd':
            if j == 16: A("s_add_u32 s32, s32, 8192\ns_addc_u32 s33, s33, 0")
            A(f"global_load_dwordx4 {a_(4*j,4)}, v{1 if j & 1 else 3}, s[32:33] offset:{1024*((j>>1)%8)-4096}")
        else:
            A(j)
        Q.append(op)
    def wait(op):
        n = len(Q) - 1 - Q.index(op)
        A(f"s_waitcnt vmcnt({n})")
    order = []
    xi = 0
    for s in range(29):
        while xi < 14 and xi <= (s + XL) // 2: order.append(('x', xi)); xi += 1
        order.append(('w', s))
    def issue_upto(s):
        while order and ('w', min(s, 28)) not in Q: issue(order.pop(0))
    issue_upto(PRE - 1)
    A(f"""
v_lshrrev_b32 v4, 5, v2               ; kh
v_bfe_u32 v5, v2, 2, 2                ; e
v_lshl_add_u32 v5, v4, 3, v5
v_lshlrev_b32 v5, 6, v5
v_bfe_u32 v6, v2, 4, 1                ; th
v_lshl_add_u32 v5, v6, 5, v5
v_and_b32 v6, 3, v2
v_lshl_add_u32 v5, v6, 3, v5
""")
    for i in range(4):
        A(f"s_xor_b32 s20, s27, {i}\ns_mul_i32 s21, s20, {TB}\nv_add_u32 v{8+i}, s21, v5")
        A(f"s_lshl_b32 s21, s20, 8\ns_add_u32 s21, s21, {L_ST}\nv_lshl_add_u32 v{12+i}, v2, 2, s21")
        A(f"s_mul_i32 s21, s20, {HF_TT}\nv_add_u32 v{16+i}, s21, v3")
    A(f"""
s_mul_i32 s20, s6, {4*HF_TT}
s_add_u32 s20, s20, {WS_HF}
s_lshl_b32 s21, s12, 10
s_add_u32 s21, s20, s21
s_add_u32 s22, s4, s21
s_addc_u32 s23, s5, 0
s_mul_i32 s21, s30, {2*HF_TT}
s_add_u32 s20, s20, s21
s_add_u32 s20, s20, s38
s_add_u32 s20, s20, 4096
s_add_u32 s34, s4, s20
s_addc_u32 s35, s5, 0
s_lshl_b32 s20, s6, 11
s_add_u32 s20, s20, {WS_FL}
s_add_u32 s24, s4, s20
s_addc_u32 s25, s5, 0
s_mov_b32 s26, {ONES}
v_mov_b32 v20, 0
v_mov_b32 v21, 0
v_mov_b32 v22, 0
v_mov_b32 v23, 0
s_lshl_b32 s20, s9, 8
s_add_u32 s20, s20, {L_ST + 2048}
v_lshl_add_u32 v6, v2, 2, s20
s_xor_b32 s20, s20, 1024
v_lshl_add_u32 v7, v2, 2, s20
s_mov_b32 s29, 0
s_mov_b64 vcc, s[28:29]
""")
    XF = [24, 40]
    ACC = 56
    def reads(s):
        out = []
        for i in range(4):
            for h in range(2):
                out.append(f"ds_read_b64_tr_b16 {v(XF[s&1]+4*i+2*h,2)}, v{8+i} offset:{1024*s+256*h}")
        return out
    BAR = {2 * j: j for j in range(14)}
    wait(('x', 0)); A("s_barrier")
    A(";TS0")
    for r in reads(0): A(r)
    for s in range(28):
        mf = [f"v_mfma_f32_32x32x16_bf16 {v(ACC+16*i,16)}, {a_(WR(s),4)}, {v(XF[s&1]+4*i,4)}, {'0' if s == 0 else v(ACC+16*i,16)}" for i in range(4)]
        dots = []
        for j in range(4):
            x = XF[s & 1] + j
            dots.append(f"v_dot2_f32_bf16 v{20+(j&1)}, v{x}, s26, v{20+(j&1)}")
            dots.append(f"v_dot2_f32_bf16 v{22+(j&1)}, v{x}, v{x}, v{22+(j&1)}")
        nxt = reads(s + 1) if s < 27 else []
        wait(('w', s))
        if s + 1 in BAR:
            wait(('x', BAR[s + 1])); A("s_barrier")
        for i in range(4):
            A(f"s_waitcnt lgkmcnt({6 if nxt else 6 - 2*i})")
            A(mf[i])
            for _ in range(2):
                if nxt: A(nxt.pop(0))
            if i == 0: issue_upto(s + PRE)
            if i == 2: issue(('d', s))
            if i == 1:
                A(f"s_cbranch_vcc{'nz' if s % 2 == 0 else 'z'} K3_sk{s}")
                for d in dots: A(d)
                A(f"K3_sk{s}:")
        assert not nxt
    A(";TS1")
    A(f"""
s_nop 2
v_add_f32 v20, v20, v21
v_add_f32 v22, v22, v23
v_permlane32_swap_b32 v20, v22
v_add_f32 v20, v20, v22
ds_write_b32 v6, v20
s_lshr_b32 s20, s27, 1
s_lshl_b32 s21, s30, 1
s_add_u32 s20, s20, s21
s_mul_i32 s21, s20, {TB}
s_lshl_b32 s39, s31, 12
s_add_u32 s21, s21, s39
s_lshl_b32 s39, s28, 11
s_add_u32 s21, s21, s39
s_and_b32 s39, s27, 1
s_lshl_b32 s40, s39, 5
s_add_u32 s21, s21, s40
v_lshrrev_b32 v4, 4, v2               ; octet
v_bfe_u32 v5, v2, 2, 2
v_lshl_add_u32 v5, v4, 3, v5
v_lshlrev_b32 v5, 6, v5
v_and_b32 v8, 3, v2
v_lshl_add_u32 v5, v8, 3, v5
v_add_u32 v5, s21, v5
ds_read_b64_tr_b16 v[8:9], v5
ds_read_b64_tr_b16 v[10:11], v5 offset:256
s_lshl_b32 s21, s20, 8
s_lshl_b32 s40, s39, 6
s_add_u32 s21, s21, s40
s_add_u32 s21, s21, {L_ST + 128}
v_and_b32 v0, 15, v2
v_lshl_add_u32 v5, v0, 2, s21
s_waitcnt lgkmcnt(0)
s_barrier
ds_read_b32 v22, v7
v_mul_u32_u24 v6, 896, v0
v_lshl_add_u32 v6, v4, 4, v6
s_lshl_b32 s20, s6, 3
s_lshl_b32 s21, s30, 2
s_add_u32 s20, s20, s21
s_add_u32 s20, s20, s27
s_mul_i32 s20, s20, {16*896}
s_lshl_b32 s21, s31, 7
s_add_u32 s20, s20, s21
s_lshl_b32 s21, s28, 6
s_add_u32 s20, s20, s21
s_add_u32 s36, s36, s20
s_addc_u32 s37, s37, 0
s_waitcnt lgkmcnt(0)
v_add_f32 v20, v20, v22
v_mul_f32 v20, {hex(INV448)}, v20
v_mov_b32 v22, v20
v_permlane32_swap_b32 v20, v22
v_fma_f32 v22, -v20, v20, v22
v_max_f32 v22, 0, v22                 ; var
v_cvt_pk_bf16_f32 v22, v22, v22
v_and_b32 v22, 0xffff0000, v22
v_add_f32 v22, {hex(EPS)}, v22
v_cvt_pk_bf16_f32 v22, v22, v22
v_and_b32 v22, 0xffff0000, v22
v_sqrt_f32 v22, v22
v_cvt_pk_bf16_f32 v20, -v20, -v20
v_cmp_gt_u32 vcc, 32, v2
v_cvt_pk_bf16_f32 v22, v22, v22
v_cndmask_b32 v21, v22, v20, vcc
ds_write_b32 v12, v21
s_waitcnt lgkmcnt(0)
s_barrier
""")
    for i in range(4):
        A(f"ds_read2_b32 {v(XF[1]+4*i,2)}, v{12+i} offset0:0 offset1:0")
        if GRAN: A(f"ds_read2_b32 {v(XF[1]+4*i+2,2)}, v{12+i} offset0:0 offset1:0")
    A("ds_read_b32 v7, v5")
    wait(('w', 28))
    for i in range(4):
        A(f"s_waitcnt lgkmcnt({7-2*i if GRAN else 4-i})")
        A(f"v_mfma_f32_32x32x16_bf16 {v(ACC+16*i,16)}, {a_(WR(28),4)}, {v(XF[1]+4*i,4)}, {v(ACC+16*i,16)}")
    for i in range(4):
        G = ACC + 16 * i; U = G + 8
        for r in range(8): A(f"v_max_f32 v{G+r}, 0, v{G+r}")
        for r in range(8): A(f"v_mul_f32 v{G+r}, v{G+r}, v{U+r}")
        for r in range(0, 8, 2): A(f"v_cvt_pk_bf16_f32 v{U+r//2}, v{G+r}, v{G+r+1}")
        A(f"global_store_dwordx4 v{16+i}, {v(U,4)}, s[22:23] {HST}")
    A(";TS2")
    A(f"""
s_lshl_b32 s20, s31, 8
s_lshl_b32 s21, s28, 7
s_add_u32 s20, s20, s21
s_add_u32 s20, s20, {WS_MOD + 5*448*4}
s_add_u32 s20, s4, s20
s_addc_u32 s21, s5, 0
v_lshlrev_b32 v4, 5, v4
v_min_u32 v20, 13, v2
{POLLOFF[FLV]}
v_mov_b32 v21, s39
v_mov_b32 v22, 1
s_waitcnt lgkmcnt(0)
v_and_b32 v7, 0xffff0000, v7
v_mul_f32 v7, v7, v7
v_rcp_f32 v7, v7                      ; r2
s_lshl_b32 s39, s9, 14
v_add_u32 v5, s39, v3
s_lshl_b32 s39, s28, 13
s_lshr_b32 s40, s27, 1
s_lshl_b32 s40, s40, 12
s_add_u32 s39, s39, s40
s_and_b32 s40, s27, 1
s_lshl_b32 s40, s40, 8
s_add_u32 s39, s39, s40
v_lshlrev_b32 v0, 4, v0
v_lshl_add_u32 v0, v4, {4 if V3 else 5}, v0
v_add_u32 v0, s39, v0
s_waitcnt vmcnt(0)
{"s_barrier" if FLV >= 2 else ""}
s_mov_b64 exec, 1
{"s_cmp_lg_u32 s9, 0" if FLV >= 2 else ""}
{"s_cbranch_scc1 K3_nofl" if FLV >= 2 else ""}
global_store_dword v21, v22, s[24:25] {HST}
K3_nofl:
s_mov_b64 exec, -1
global_load_dwordx4 v[12:15], v4, s[20:21]
global_load_dwordx4 v[16:19], v4, s[20:21] offset:16
;TS3
{"s_cbranch_scc1 K3_np" if FLV == 3 else ""}
K3_poll:
{"s_sleep " + SLP if SLP != "0" else ""}
global_load_dword v23, v20, s[24:25] sc1
s_waitcnt vmcnt(0)
v_cmp_eq_u32 vcc, 0, v23
s_cbranch_vccnz K3_poll
K3_np:
{"s_barrier" if FLV == 3 else ""}
;TS4
""")
    def HR(k, tt):
        sl = k % 7
        return v(24 + 8 * sl + 4 * tt, 4) if sl < 4 else a_(112 + 8 * (sl - 4) + 4 * tt, 4)
    Q.clear()
    def issue_h(k):
        if k == 8: A("s_add_u32 s34, s34, 8192\ns_addc_u32 s35, s35, 0")
        for tt in range(2):
            issue(('h', f"global_load_dwordx4 {HR(k,tt)}, v{1 if tt else 3}, s[34:35] offset:{1024*(k%8)-4096} sc1"))
    for k in range(7): issue_h(k)
    for k in range(14):
        for tt in range(2):
            A(f"s_waitcnt vmcnt({len(Q) - 1 - (2*k+tt)})")
            for dt in range(2):
                t = ACC + 16 * (2 * dt + tt)
                A(f"v_mfma_f32_32x32x16_bf16 {v(t,16)}, {a_(8*k+4*dt,4)}, {HR(k,tt)}, {'0' if k == 0 else v(t,16)}")
        if k + 7 < 14: issue_h(k + 7)
    A(";TS5")
    for i in (0, 2, 1, 3):
        for q in range(4): A(f"ds_write_b128 v5, {v(ACC+16*i+4*q,4)} offset:{4096*i+1024*q}")
    A("v_add_u32 v1, 65536, v0")
    A("s_waitcnt lgkmcnt(0)\ns_barrier")
    for src in range(8):
        for h in range(2):
            A(f"ds_read_b128 {v(ACC+8*src+4*h,4)}, v{0 if src < 4 else 1} offset:{16384*(src&3)+(2048 if V3 else 512)*h}")
    XR = 24
    for j in range(4): A(f"v_lshlrev_b32 v{XR+2*j}, 16, v{8+j}\nv_and_b32 v{XR+2*j+1}, 0xffff0000, v{8+j}")
    if V3:
        for r in range(8): A(f"v_mul_f32 v{12+r}, v7, v{12+r}")
    for src in range(1, 8):
        A(f"s_waitcnt lgkmcnt({14-2*src})")
        for r in range(0, 8, 2): A(f"v_pk_add_f32 {v(ACC+r,2)}, {v(ACC+r,2)}, {v(ACC+8*src+r,2)}")
    T = 32
    if V3:
        for j in range(4):
            A(f"v_fma_f32 v{XR+2*j}, v{12+2*j}, v{ACC+j}, v{XR+2*j}\nv_fma_f32 v{XR+2*j+1}, v{13+2*j}, v{ACC+4+j}, v{XR+2*j+1}")
        for j in range(4): A(f"v_cvt_pk_bf16_f32 v{T+j}, v{XR+2*j}, v{XR+2*j+1}")
        A(f"global_store_dwordx4 v6, {v(T,4)}, s[36:37]")
        A("K3_end:\ns_endpgm")
        return kdesc("ffn_kernel", 256, 48, accum=120)
    def rnd():
        for j in range(4): A(f"v_cvt_pk_bf16_f32 v{T+j}, v{ACC+2*j}, v{ACC+2*j+1}")
        for j in range(4): A(f"v_lshlrev_b32 v{ACC+2*j}, 16, v{T+j}\nv_and_b32 v{ACC+2*j+1}, 0xffff0000, v{T+j}")
    for r in range(8): A(f"v_mul_f32 v{ACC+r}, v{ACC+r}, v7")
    rnd()
    for r in range(0, 8, 2): A(f"v_pk_mul_f32 {v(ACC+r,2)}, {v(ACC+r,2)}, {v(12+r,2)}")
    rnd()
    for r in range(0, 8, 2): A(f"v_pk_add_f32 {v(ACC+r,2)}, {v(ACC+r,2)}, {v(XR+r,2)}")
    for j in range(4): A(f"v_cvt_pk_bf16_f32 v{T+j}, v{ACC+2*j}, v{ACC+2*j+1}")
    A(f"global_store_dwordx4 v6, {v(T,4)}, s[36:37]")
    A("K3_end:\ns_endpgm")
    return kdesc("ffn_kernel", 256, 48, accum=120)
```

```python
from common import *
import os
K12_GRID = 256
K12_BLOCK = 512
NCV = 224
KGS = 53 * RS
KC = 4160
YW = 10240
L_K = 2 * KGS
L_H = L_K + 4 * KC
HS = 4608
L_R = L_H + 2 * HS
RSTR = 912
L_U = L_R
L_S = L_R + 8 * RSTR
L_V = L_S + 64
K12_LDS = L_V + 4 * 384
L_C = L_K + 4096 + 32
TAGC = 0x2F4A7C15
XGP = 14336
MGH = 2688 * 8
TAG = 's40'

LIMIT = int(os.environ.get("LIMIT", "20000"))
def lim(lbl): return f"s_add_u32 s43, s43, 1\ns_cmp_gt_u32 s43, {LIMIT}\ns_cbranch_scc1 {lbl}"

GPOS = int(os.environ.get('GPOS', '1'))
WST = os.environ.get('WST', 'sc1')
XST = os.environ.get('XST', 'sc1')
PST = os.environ.get('PST', 'sc1')
BPRIO = os.environ.get('BPRIO', '')
CPF = """s_lshr_b32 s3, s2, 3
s_lshl_b32 s3, s3, 11
v_lshrrev_b32 v3, 5, v0
v_lshl_add_u32 v3, v3, 7, s3
v_min_u32 v3, code_end-front_kernel-4, v3
s_sub_u32 s24, s22, ktab-front_kernel
s_subb_u32 s25, s23, 0
global_load_dword v255, v3, s[24:25]"""

pFR, pPW, pGX0, pGX1, pGS0, pGS1, pGM, pGA, pHW, pYR, pXO, pDK = range(204, 216)
pA0, pA1, pA2, pA3, pB, pYW = range(216, 222)
pWA, pWD, pSB0, pSB1, pDO, pFO, pUV, pVW = range(216, 224)
pVR, pAV = 248, 249
AU = 252

def schedule(items):
    dep = {n: [s for s in srcs if s in dict(items)] for n, srcs in items}
    height = {}
    def h(n):
        if n not in height: height[n] = 1 + max([h(m) for m, _ in items if n in dep[m]], default=0)
        return height[n]
    order, pos = [], {}
    left = [n for n, _ in items]
    while left:
        k = len(order)
        for gap in (3, 2):
            c = [n for n in left if all(s in pos and pos[s] <= k - gap for s in dep[n])]
            if c: break
        if not c: order.append(None); continue
        n = max(c, key=h); order.append(n); pos[n] = k; left.remove(n)
    return order

def k12(A):
    A(f""".globl front_kernel
.p2align 8
.type front_kernel,@function
front_kernel:
s_cmp_ge_u32 s2, {K12_GRID}
s_cbranch_scc1 F_end
s_load_dwordx2 s[36:37], s[0:1], 0
s_load_dwordx2 s[20:21], s[0:1], 136
s_load_dwordx16 s[4:19], s[0:1], 8
s_load_dwordx8 s[44:51], s[0:1], 80
s_load_dwordx2 s[52:53], s[0:1], 112  ; w_mod
s_getpc_b64 s[22:23]
F_pc:
s_add_u32 s22, s22, ktab-F_pc
s_addc_u32 s23, s23, 0
v_and_b32 v17, 255, v0
v_lshlrev_b32 v17, 4, v17             ; n*16
v_lshrrev_b32 v1, 6, v0
v_and_b32 v2, 63, v0                  ; lane
v_readfirstlane_b32 s33, v1           ; w
{CPF}
global_load_dwordx4 v[20:23], v17, s[22:23]
global_load_ushort v19, v17, s[22:23] offset:16
v_lshlrev_b32 v3, 4, v2               ; lane*16
s_and_b32 s34, s2, 1
s_lshl_b32 s3, s2, 3
s_mul_i32 s34, s34, 6
s_sub_u32 s3, s3, s34
s_and_b32 s34, s33, 6
s_add_u32 s3, s3, s33
s_add_u32 s3, s3, s34
s_mul_i32 s3, s3, 896
v_add_u32 v8, s3, v3
v_mov_b32 v4, 0
v_mov_b32 v5, 0
v_mov_b32 v6, 0
v_mov_b32 v7, 0
s_and_b32 s34, s2, 7
s_lshr_b32 s35, s2, 4
s_lshl_b32 s35, s35, 3
s_add_u32 s35, s35, s34
s_lshl_b32 s35, s35, 1
s_bfe_u32 s38, s2, 0x10003
s_add_u32 s35, s35, s38               ; c
s_lshr_b32 s38, s33, 2                ; ch
s_mov_b32 s43, 0
s_mov_b32 s58, {L_R}
s_mov_b32 s42, {ONES}
s_cmp_ge_u32 s2, {NCV}
s_cbranch_scc1 F_spare_loads
s_lshl_b32 s3, s35, 10
v_lshl_add_u32 v1, v0, 1, s3
s_lshl_b32 s3, s35, 2
v_bfe_u32 v10, v0, 5, 1
v_mul_u32_u24 v10, {HS}, v10
v_and_b32 v11, 31, v0
v_lshl_add_u32 v10, v11, 4, v10
v_add_u32 v10, {L_H}, v10
v_bfe_u32 v11, v0, 2, 2
v_mul_u32_u24 v11, {KC}, v11
v_and_b32 v12, 3, v0
v_lshl_add_u32 v11, v12, 4, v11
v_add_u32 v11, {L_K + 4096}, v11
v_cmp_gt_u32 vcc, 64, v0
v_cndmask_b32 v10, v11, v10, vcc
ds_write_b128 v10, v[4:7]
""")
    for r in range(10, 16): A(f"v_mov_b32 v{r}, 0")
    A(f"""
s_mov_b32 exec_hi, 0x00ffffff
s_waitcnt lgkmcnt(0)
global_load_dwordx4 v[4:7], v8, s[36:37]
s_mov_b32 exec_hi, -1
s_load_dword {TAG}, s[20:21], {WS_EP}
s_load_dword s39, s[16:17], s3
s_load_dword s41, s[18:19], s3
s_and_b32 s27, s33, 3
s_lshl_b32 s27, s27, 8
s_mul_i32 s28, s38, {KGS}
s_add_u32 s27, s27, s28
s_mov_b32 m0, s27
v_and_b32 v24, 31, v2
v_lshrrev_b32 v25, 5, v2
v_mul_u32_u24 v{pFR}, {RS}, v24
v_lshl_add_u32 v{pFR}, v25, 4, v{pFR}
v_add_u32 v{pFR}, s27, v{pFR}
v_mul_u32_u24 v{pPW}, {4*RS}, v25
v_lshl_add_u32 v{pPW}, v24, 2, v{pPW}
v_add_u32 v{pPW}, s27, v{pPW}
; granules
v_lshrrev_b32 v{pGX0}, 2, v0
v_mul_u32_u24 v{pGX0}, {2*XGP}, v{pGX0}
v_and_b32 v26, 3, v0
v_lshl_add_u32 v{pGX0}, v26, 4, v{pGX0}
s_lshl_b32 s3, s35, 6
s_add_u32 s3, s3, {WS_XG}
v_add_u32 v{pGX0}, s3, v{pGX0}
v_add_u32 v{pGX1}, {XGP}, v{pGX0}
v_lshlrev_b32 v{pGS0}, 4, v0
v_add_u32 v{pGS0}, {WS_SG}, v{pGS0}
v_add_u32 v{pGS1}, 8192, v{pGS0}
""")
    for i in range(6): A(f"global_load_short_d16_hi v{10+i}, v1, s[{4+2*i}:{5+2*i}]")
    A(f"""
v_and_b32 v27, 1, v0
v_mul_u32_u24 v{pGM}, {MGH}, v27
v_and_b32 v27, 2, v0
v_lshl_add_u32 v{pGM}, v27, 2, v{pGM}
s_lshl_b32 s3, s35, 4
s_add_u32 s3, s3, {WS_MG}
v_add_u32 v{pGM}, s3, v{pGM}
v_bfe_u32 v27, v0, 2, 1
v_mul_u32_u24 v{pGA}, {3*3584}, v27
v_add_u32 v{pGA}, v{pGM}, v{pGA}
v_add_u32 v{pGA}, {2*3584}, v{pGA}
v_mul_u32_u24 v27, 3584, v27
v_add_u32 v{pGM}, v{pGM}, v27
v_lshlrev_b32 v{pHW}, 3, v0
v_add_u32 v{pHW}, {L_H}, v{pHW}
v_lshrrev_b32 v{pXO}, 3, v0
v_mul_u32_u24 v{pXO}, {TB}, v{pXO}
v_and_b32 v27, 7, v0
v_lshl_add_u32 v{pXO}, v27, 3, v{pXO}
s_lshl_b32 s3, s35, 7
s_add_u32 s3, s3, {WS_X1T}
v_add_u32 v{pXO}, s3, v{pXO}
v_mul_u32_u24 v{pYR}, 320, v26
v_bfe_u32 v27, v0, 2, 4
v_lshl_add_u32 v{pYR}, v27, 4, v{pYR}
s_mul_i32 s3, s33, 1280
v_add_u32 v{pYR}, s3, v{pYR}
v_mov_b32 v27, {255*16}
v_cmp_eq_u32 s[30:31], v27, v17
s_mul_i32 s3, s38, {2*KC}
s_add_u32 s3, s3, {L_K}
v_add_u32 v17, s3, v17
v_and_b32 v26, 15, v0                 ; m / p / cq
v_bfe_u32 v27, v0, 4, 2               ; kq
s_cmp_lg_u32 s38, 0
s_cbranch_scc1 F_hb
s_lshr_b32 s3, s33, 1
s_and_b32 s29, s33, 1                 ; half
v_and_b32 v{pA0}, 1, v26
v_xor_b32 v{pA0}, 1, v{pA0}
v_mul_u32_u24 v{pA0}, {KC}, v{pA0}
v_lshrrev_b32 v{pA1}, 1, v26
v_lshlrev_b32 v{pA1}, 2, v{pA1}
v_sub_u32 v{pA0}, v{pA0}, v{pA1}
v_lshl_add_u32 v{pA0}, v27, 4, v{pA0}
s_mul_i32 s24, s3, {2*KC}
s_lshl_b32 s25, s29, 8
s_sub_u32 s24, s24, s25
s_add_u32 s24, s24, {L_K + 4060 - 192 - 512}
v_add_u32 v{pA0}, s24, v{pA0}
v_subrev_u32 v{pA1}, 1024, v{pA0}
v_subrev_u32 v{pA2}, 2048, v{pA0}
v_subrev_u32 v{pA3}, 3072, v{pA0}
v_lshlrev_b32 v{pB}, 5, v26
v_lshl_add_u32 v{pB}, v27, 4, v{pB}
s_mul_i32 s24, s3, {HS}
s_sub_u32 s24, s24, s25
s_add_u32 s24, s24, {L_H + 480 - 192}
v_add_u32 v{pB}, s24, v{pB}
v_mul_u32_u24 v{pYW}, 320, v27
v_lshl_add_u32 v{pYW}, v26, 4, v{pYW}
s_mul_i32 s24, s33, {YW}
v_add_u32 v{pYW}, s24, v{pYW}
v_mov_b32 v222, 0
v_mov_b32 v223, 0
s_branch F_stats
F_hb:
s_lshr_b32 s24, s2, 5
s_lshl_b32 s24, s24, 3
s_add_u32 s24, s24, s34               ; q
s_and_b32 s25, s24, 1                 ; mat
s_lshr_b32 s24, s24, 1                ; cg
s_bfe_u32 s26, s2, 0x20003            ; rq
s_cmp_eq_u32 s25, 0
s_cselect_b32 s44, s44, s46
s_cselect_b32 s45, s45, s47
v_bfe_u32 v28, v0, 4, 4
v_min_u32 v28, 13, v28                ; rgrp 0..13
v_mul_u32_u24 v{pWA}, {8*3584}, v28
v_lshl_add_u32 v{pWA}, v26, 3, v{pWA}
s_mul_i32 s3, s26, {112*3584}
s_lshl_b32 s46, s24, 7
s_add_u32 s3, s3, s46
s_add_u32 s3, s3, 3584
v_add_u32 v{pWA}, s3, v{pWA}
s_lshr_b32 s3, s2, 1
s_lshl_b32 s3, s3, 4
s_and_b32 s46, s2, 1
s_add_u32 s3, s3, s46
s_add_u32 s3, s3, 4
s_mul_i32 s3, s3, 896
v_lshlrev_b32 v{pWD}, 6, v28
v_lshl_add_u32 v{pWD}, v26, 2, v{pWD}
v_add_u32 v{pWD}, s3, v{pWD}          ; row +4
v_mul_u32_u24 v{pDO}, {HF_TT}, v28
v_lshl_add_u32 v{pDO}, v26, 4, v{pDO}
s_lshl_b32 s3, s2, 9
s_add_u32 s3, s3, {WS_WDF}
v_add_u32 v{pDO}, s3, v{pDO}
s_and_b32 s27, s33, 3
s_lshl_b32 s3, s27, 5
v_add_u32 v{pSB0}, s3, v24
v_min_u32 v{pSB0}, 111, v{pSB0}
s_mul_i32 s3, s26, {112*8}
s_add_u32 s3, s3, {WS_MG + 3*3584}
v_lshl_add_u32 v{pSB0}, v{pSB0}, 3, s3
v_mul_u32_u24 v29, 3584, v25
v_add_u32 v{pSB0}, v{pSB0}, v29
v_add_u32 v{pSB1}, {MGH}, v{pSB0}
s_mul_i32 s3, s24, {4*WF_FG}
s_lshl_b32 s46, s25, 8
s_add_u32 s3, s3, s46
s_add_u32 s59, s3, {WS_WF}
v_lshrrev_b32 v{pFO}, 2, v26
v_mul_u32_u24 v{pFO}, {WF_FG}, v{pFO}
v_lshl_add_u32 v{pFO}, v28, 9, v{pFO}
v_and_b32 v29, 3, v26
v_lshl_add_u32 v{pFO}, v29, 4, v{pFO}
s_mul_i32 s3, s26, {14*512}
s_add_u32 s3, s3, s59
v_add_u32 v{pFO}, s3, v{pFO}
s_lshl_b32 s3, s27, 9
s_add_u32 s3, s3, {L_U}
v_lshl_add_u32 v{pUV}, v25, 8, s3
v_lshl_add_u32 v{pUV}, v26, 4, v{pUV}
s_mul_i32 s3, s27, 384
s_add_u32 s3, s3, {L_V}
v_lshl_add_u32 v{pVW}, v2, 1, s3
v_and_b32 v{pVR}, 3, v28
v_lshl_add_u32 v{pVR}, v{pVR}, 5, s3
v_lshl_add_u32 v{pAV}, v27, 4, s3
v_mov_b32 v29, {L_H}
v_cmp_gt_u32 vcc, 480, v0
v_cmp_lt_u32 s[56:57], 7, v26
s_and_b64 s[56:57], s[56:57], vcc
v_cndmask_b32 v{pAV}, v29, v{pAV}, s[56:57]
s_xor_b64 s[56:57], s[56:57], vcc
v_mov_b32 v29, s42
v_cndmask_b32 v{AU}, 0, v29, s[56:57]
v_cndmask_b32 v{AU+1}, 0, v29, s[56:57]
v_cndmask_b32 v{AU+2}, 0, v29, s[56:57]
s_branch F_stats
F_spare_loads:
""")
    for r in list(range(204, 224)) + [248, 249]: A(f"v_mov_b32 v{r}, 0")
    P = [96, 112, 128]
    AC = 64
    LM = 0
    A(f"""
s_sub_u32 s24, s2, {NCV}
s_min_u32 s25, s24, 27
s_and_b32 s26, s25, 1                 ; hf
s_lshr_b32 s25, s25, 1                ; g
v_lshrrev_b32 v12, 3, v0
v_min_u32 v12, 55, v12
v_and_b32 v13, 7, v0                  ; chunk
s_mul_i32 s27, s26, 448
v_lshl_add_u32 v10, v12, 3, s27       ; c offset
v_mul_u32_u24 v14, {4*5376}, v12
v_lshl_add_u32 v14, v13, 4, v14
s_mul_i32 s27, s26, {224*5376}
s_lshl_b32 s28, s25, 7
s_add_u32 s27, s27, s28
v_add_u32 v14, s27, v14
v_add_u32 v15, 5376, v14
v_add_u32 v16, {2*5376}, v14
v_add_u32 v18, {3*5376}, v14
s_cmp_ge_u32 s25, 7
s_cselect_b32 s29, 2, 1
s_mul_i32 s29, s29, 1792
s_mov_b32 exec_hi, 0x00ffffff
s_waitcnt lgkmcnt(0)
global_load_dwordx4 v[4:7], v8, s[36:37]
s_mov_b32 exec_hi, -1
s_load_dword {TAG}, s[20:21], {WS_EP}
s_cmp_eq_u32 s33, 7
s_cbranch_scc1 F_stats0
global_load_dwordx2 v[10:11], v10, s[50:51]
""")
    RA = [14, 15, 16, 18]
    for i in range(4): A(f"global_load_dwordx4 {v(P[0]+4*i,4)}, v{RA[i]}, s[52:53]")
    A(f"""
s_mov_b32 s27, {hex(LOG2E | 0x80000000)}
v_lshrrev_b32 v24, 5, v2
v_lshlrev_b32 v24, 4, v24
v_lshl_add_u32 v24, v13, 5, v24
v_bfe_u32 v25, v2, 4, 1
v_lshl_add_u32 v24, v25, 3, v24
s_lshl_b32 s3, s33, 8
v_add_u32 v24, s3, v24
s_waitcnt vmcnt(4)
v_lshlrev_b32 v44, 16, v10
v_and_b32 v45, 0xffff0000, v10
v_lshlrev_b32 v46, 16, v11
v_and_b32 v47, 0xffff0000, v11
""")
    for i in range(4): A(f"v_mul_f32 v{48+i}, s27, v{44+i}")
    for i in range(4): A(f"v_exp_f32 v{48+i}, v{48+i}")
    for i in range(4): A(f"v_add_f32 v{48+i}, 1.0, v{48+i}")
    for i in range(4): A(f"v_rcp_f32 v{48+i}, v{48+i}")
    for i in range(4): A(f"v_mul_f32 v{44+i}, v{44+i}, v{48+i}")
    A("v_cvt_pk_bf16_f32 v48, v44, v45\nv_cvt_pk_bf16_f32 v49, v46, v47")
    A("v_lshlrev_b32 v44, 16, v48\nv_and_b32 v45, 0xffff0000, v48\nv_lshlrev_b32 v46, 16, v49\nv_and_b32 v47, 0xffff0000, v49")
    def gemv(p, waitbase):
        for i in range(4):
            A(f"s_waitcnt vmcnt({waitbase - i})")
            if i == 3 and p < 2:
                for k in range(4): A(f"global_load_dwordx4 {v(P[p+1]+4*k,4)}, v{RA[k]}, s[52:53]" + (" offset:2688" if p == 0 else ""))
            for j in range(4): A(f"v_lshlrev_b32 v{56+2*j}, 16, v{P[p]+4*i+j}\nv_and_b32 v{57+2*j}, 0xffff0000, v{P[p]+4*i+j}")
            for j in range(8):
                if i == 0: A(f"v_mul_f32 v{AC+j}, v44, v{56+j}")
                else: A(f"v_fmac_f32 v{AC+j}, v{44+i}, v{56+j}")
        for j in range(4): A(f"v_permlane32_swap_b32 v{AC+j}, v{AC+4+j}")
        for j in range(4): A(f"v_add_f32 v{AC+j}, v{AC+j}, v{AC+4+j}")
        for j in range(2): A(f"v_permlane16_swap_b32 v{AC+j}, v{AC+2+j}")
        for j in range(2): A(f"v_add_f32 v{AC+j}, v{AC+j}, v{AC+2+j}")
        for j in range(2): A(f"v_add_f32_dpp v{AC+j}, v{AC+j}, v{AC+j} row_ror:8 row_mask:0xf bank_mask:0xf")
        A(f"ds_write_b64 v24, {v(AC,2)} offset:{LM + 2048*p}")
    gemv(0, 3)
    A(f""";TP s1
s_branch F_stats
F_stats0:
v_lshlrev_b32 v26, 2, v2
s_mul_i32 s3, s26, {MGH}
s_lshl_b32 s28, s25, 9
s_add_u32 s3, s3, s28
s_add_u32 s3, s3, {WS_MG}
v_lshl_add_u32 v25, v2, 3, s3
s_waitcnt vmcnt(0)
F_stats:
""")
    A(f"""
s_mul_i32 s3, s33, {RSTR}
s_add_u32 s3, s3, {L_R}
v_add_u32 v8, s3, v3
v_and_b32 v30, 3, v0
v_mul_u32_u24 v28, {2*RSTR}, v30
v_and_b32 v29, 0x1fc, v0
v_add3_u32 v28, v28, v29, s58
v_add_u32 v31, {L_S}, v3
s_mul_i32 s3, s2, {XGP}
s_add_u32 s3, s3, {WS_XG}
v_lshl_add_u32 v29, v0, 4, s3
v_add_u32 v27, {XGP//2}, v29
s_lshr_b32 s3, s2, 1
s_lshl_b32 s3, s3, 6
s_and_b32 s60, s2, 1
s_lshl_b32 s60, s60, 13
s_add_u32 s3, s3, s60
s_add_u32 s3, s3, {WS_SG}
v_add_u32 v9, s3, v3
s_lshl_b32 s3, s33, 3
s_add_u32 s3, s3, {L_S}
v_mov_b32 v30, s3
s_waitcnt vmcnt(6)
v_dot2_f32_bf16 v42, v4, s42, 0
v_dot2_f32_bf16 v43, v4, v4, 0
s_mov_b32 exec_hi, 0x00ffffff
ds_write_b128 v8, v[4:7]
s_mov_b32 exec_hi, -1
""")
    for j in range(1, 4): A(f"v_dot2_f32_bf16 v42, v{4+j}, s42, v42\nv_dot2_f32_bf16 v43, v{4+j}, v{4+j}, v43")
    A("v_permlane32_swap_b32 v42, v43\nv_add_f32 v42, v42, v43")
    for sh in (8, 4, 2, 1): A(f"v_add_f32_dpp v42, v42, v42 row_ror:{sh} row_mask:0xf bank_mask:0xf")
    PB_ = 160
    A(f"""
v_mov_b32 v43, v42
v_permlane16_swap_b32 v42, v43
v_add_f32 v42, v42, v43
v_mul_f32 v42, {hex(INV448)}, v42
v_mov_b32 v43, v42
v_permlane32_swap_b32 v42, v43        ; v42 mean, v43 E[x^2]
v_fma_f32 v43, -v42, v42, v43
v_max_f32 v43, 0, v43
v_cvt_pk_bf16_f32 v43, v43, v43
v_and_b32 v43, 0xffff0000, v43
v_add_f32 v43, {hex(EPS)}, v43
v_cvt_pk_bf16_f32 v43, v43, v43
v_and_b32 v43, 0xffff0000, v43
v_sqrt_f32 v43, v43
s_waitcnt lgkmcnt(0)
s_add_u32 {TAG}, {TAG}, {hex(TAGC)}
v_mov_b32 v33, {TAG}
v_cvt_pk_bf16_f32 v32, v42, v43
ds_write_b64 v30, v[32:33]
v_mov_b32 v{PB_+1}, {TAG}
v_mov_b32 v{PB_+3}, {TAG}
v_mov_b32 v{PB_+5}, {TAG}
v_mov_b32 v{PB_+7}, {TAG}
s_cmp_ge_u32 s2, {NCV}
s_cbranch_scc1 F_b1
""")
    Z1, Z8, P_ = 34, 36, 38
    T1, T8, TP = 40, 42, 44
    A(f"""
s_lshl_b32 s3, s38, 4
s_lshr_b32 s39, s39, s3
s_lshl_b32 s39, s39, 16
s_lshr_b32 s41, s41, s3
s_lshl_b32 s41, s41, 16
s_mov_b32 s29, {LOG2E}
v_mov_b32 v16, s39
v_mul_f32 v16, s29, v16
v_exp_f32 v16, v16
v_mov_b32 v{pDK}, s41
v_cndmask_b32 v{pDK}, 0, v{pDK}, s[30:31]
v_mov_b32 v{AU+3}, v{AU}
v_cvt_pk_bf16_f32 v16, v16, v16
v_and_b32 v16, 0xffff0000, v16        ; dt
s_waitcnt vmcnt(0)
v_mul_f32 v10, v16, v10
v_mul_f32 v11, v16, v11
v_mul_f32 v10, s29, v10
v_mul_f32 v11, 0.15915494, v11
v_mul_f32 v12, v16, v12               ; dB
v_mul_f32 v13, v16, v13
v_mul_f32 v{T8+1}, {hex(f2u(8.0))}, v11
v_mul_f32 v{TP+1}, {hex(f2u(256.0))}, v11
v_mul_f32 v{T8}, {hex(f2u(8.0))}, v10
v_mul_f32 v{TP}, {hex(f2u(256.0))}, v10
v_fract_f32 v{T8+1}, v{T8+1}
v_fract_f32 v{T1+1}, v11
v_fract_f32 v{TP+1}, v{TP+1}
v_exp_f32 v{T8}, v{T8}
v_cos_f32 v{Z8}, v{T8+1}
v_sin_f32 v{Z8+1}, v{T8+1}
v_exp_f32 v{T1}, v10
v_cos_f32 v{Z1}, v{T1+1}
v_sin_f32 v{Z1+1}, v{T1+1}
v_pk_mul_f32 {v(Z8,2)}, {v(Z8,2)}, {v(T8,2)} op_sel_hi:[1,0]
v_exp_f32 v{TP}, v{TP}
v_cos_f32 v{P_}, v{TP+1}
v_sin_f32 v{P_+1}, v{TP+1}
v_pk_mul_f32 {v(Z1,2)}, {v(Z1,2)}, {v(T1,2)} op_sel_hi:[1,0]
v_mov_b32 v175, 0x3f80
v_pk_mul_f32 {v(P_,2)}, {v(P_,2)}, {v(TP,2)} op_sel_hi:[1,0]
F_b1:
s_cmp_eq_u32 s33, 7
s_waitcnt lgkmcnt(0)
s_barrier
;TP b1
s_cbranch_scc1 F_pub7
""")
    for j in range(4): A(f"ds_read_b32 v{PB_+2*j}, v28 offset:{(j&1)*RSTR + (j>>1)*448}")
    A(f"""
s_cmp_ge_u32 s2, {NCV}
s_waitcnt lgkmcnt(2)
global_store_dwordx4 v29, {v(PB_,4)}, s[20:21] sc1
s_waitcnt lgkmcnt(0)
global_store_dwordx4 v27, {v(PB_+4,4)}, s[20:21] sc1
s_cbranch_scc1 F_spare
s_cmp_eq_u32 s38, 0
s_cbranch_scc1 F_kg
s_branch F_wl
F_pub7:
s_cmp_ge_u32 s2, {NCV}
s_cbranch_scc1 F_spare7
ds_read_b128 {v(PB_,4)}, v31
s_mov_b64 exec, 15
s_waitcnt lgkmcnt(0)
global_store_dwordx4 v9, {v(PB_,4)}, s[20:21] sc1
s_mov_b64 exec, -1
F_wl:
{"s_setprio " + BPRIO if BPRIO else ""}
""")
    WL, DL = 232, 224
    for j in range(8):
        A(f"global_load_dwordx2 {v(WL+2*j,2)}, v{pWA}, s[44:45] offset:{3584*(j%3-1)}")
        if j % 3 == 2: A(f"v_add_u32 v{pWA}, {3*3584}, v{pWA}")
    for e in (0, 4, 1, 5, 2): A(f"global_load_dword v{DL+e}, v{pWD}, s[48:49] offset:{896*(4*(e&3)+2*(e>>2)-4)}")
    A(f"v_add_u32 v{pWD}, {8*896}, v{pWD}")
    for e in (6, 3, 7): A(f"global_load_dword v{DL+e}, v{pWD}, s[48:49] offset:{896*(4*(e&3)+2*(e>>2)-12)}")
    A("F_kg:\n.p2align 3")
    X = lambda i: 48 + 2 * i
    Y = lambda j: Z8 if j == 1 else 96 + 2 * j
    reg = {'C': 14, 'B': 12, 'Z1': Z1, 'P': P_, 'y1': Z8}
    it = [('x0', ('C', 'B'))] + [(f'x{i}', (f'x{i-1}', 'Z1')) for i in range(1, 8)]
    for i, s in ((8, 0), (9, 2), (10, 4), (11, 6), (12, 8), (13, 12), (14, 10), (15, 14), (16, 13), (17, 16), (18, 17), (19, 18), (20, 19)):
        it.append((f'x{i}', (f'x{s}', 'P')))
    it += [('y2', ('y1', 'y1')), ('y3', ('y2', 'y1')), ('y4', ('y2', 'y2'))] + [(f'y{j}', (f'y{j-4}', 'y4')) for j in range(5, 9)]
    it += [(f'y{j}', (f'y{j-8}', 'y8')) for j in range(9, 32)]
    for n, _ in it: reg[n] = X(int(n[1:])) if n[0] == 'x' else Y(int(n[1:]))
    order = schedule(it); src = dict(it)
    TT = 168
    def outs(n, k):
        t = TT + k % 7
        i = int(n[1:])
        if n[0] == 'x': return f"v_cvt_pk_bf16_f32 v{t}, v{X(i)}, -v{X(i)+1}", f"ds_write_addtid_b32 v{t} offset:{i*RS}"
        return f"v_cvt_pk_bf16_f32 v{t}, v{Y(i)}, v{Y(i)+1}", f"ds_write_addtid_b32 v{t} offset:{(21+i)*RS}"
    seq = [None, None, 'y1'] + order
    N = len(seq)
    A(f"ds_write_addtid_b32 v175 offset:{21*RS}")
    for k in range(3, N + 4):
        g = lambda d: seq[k - d] if 0 <= k - d < N else None
        if g(0): A(cmul(A, reg[g(0)], reg[src[g(0)][0]], reg[src[g(0)][1]])[0])
        if g(3): A(outs(g(3), k - 3)[0])
        if g(1) and g(1) != 'y1': A(cmul(A, reg[g(1)], reg[src[g(1)][0]], reg[src[g(1)][1]])[1])
        if g(4): A(outs(g(4), k - 4)[1])
    AF, BF, ACC = 48, 96, 80
    TA = 24
    for ks in range(8):
        A(f"ds_read_b128 {v(AF+4*ks,4)}, v{pFR} offset:{ks*32}")
        A(f"ds_read_b128 {v(BF+4*ks,4)}, v{pFR} offset:{21*RS + ks*32}")
    GX, GS, GM = 176, 184, 192
    GL = [f"global_load_dwordx4 {v(GX,4)}, v{pGX0}, s[20:21] sc1", f"global_load_dwordx4 {v(GX+4,4)}, v{pGX1}, s[20:21] sc1",
          f"global_load_dwordx4 {v(GS,4)}, v{pGS0}, s[20:21] sc1", f"global_load_dwordx4 {v(GS+4,4)}, v{pGS1}, s[20:21] sc1"]
    mload = f"global_load_dwordx2 {v(GM,2)}, v{pGM}, s[20:21] sc1"
    A(f"v_add_u32 v{TA+8}, s28, v19")
    for ks in range(8):
        A(f"s_waitcnt lgkmcnt({14-2*ks})")
        A(f"v_mfma_f32_32x32x16_bf16 {v(ACC,16)}, {v(AF+4*ks,4)}, {v(BF+4*ks,4)}, {'0' if ks==0 else v(ACC,16)}")
        A(f"v_and_b32 v{TA+ks}, 0xffff, v{20+ks//2}" if ks % 2 == 0 else f"v_lshrrev_b32 v{TA+ks}, 16, v{20+ks//2}")
        A(f"v_add_u32 v{TA+ks}, s28, v{TA+ks}")
        if GPOS == 0 and ks >= 4: A(GL[ks - 4])
    for r in range(12):
        A(f"ds_write_b32 v{pPW}, v{ACC+r} offset:{((r&3)+8*(r>>2))*RS}")
    if GPOS == 1:
        for g in GL: A(g)
    A(";TP pb2\ns_waitcnt lgkmcnt(0)\ns_barrier\n;TP b2")
    E = 48
    for e in range(9):
        A(f"ds_read2st64_b32 {v(E+4*e,2)}, v{TA+e} offset0:0 offset1:1")
        A(f"ds_read2st64_b32 {v(E+4*e+2,2)}, v{TA+e} offset0:2 offset1:3")
    A(mload)
    for e in range(9):
        A(f"s_waitcnt lgkmcnt({min(15, 16-2*e)})")
        A(f"v_pk_add_f32 {v(E+4*e,2)}, {v(E+4*e,2)}, {v(E+4*e+2,2)}")
        if e == 7: A(f"v_add_f32 v{E+4*e}, v{E+4*e}, v{pDK}")
        A(f"v_add_f32 v{E+4*e}, v{E+4*e}, v{E+4*e+1}")
        if e == 8: A(f"v_cndmask_b32 v{E+32}, v{E+32}, 0, s[30:31]")
        if e & 1: A(f"v_cvt_pk_bf16_f32 v{88+e//2}, v{E+4*e-4}, v{E+4*e}")
        elif e: A(f"v_cvt_pk_bf16_f32 v{92+e//2-1}, v{E+4*e-4}, v{E+4*e}")
        if e == 7: A("ds_write_b128 v17, v[88:91]")
    A(f"ds_write_b128 v17, v[92:95] offset:{KC}")
    A(f"""
s_waitcnt vmcnt(1)
F_chk:
v_xor_b32 v10, {TAG}, v{GX+1}
v_xor_b32 v11, {TAG}, v{GX+3}
v_xor_b32 v12, {TAG}, v{GX+5}
v_xor_b32 v13, {TAG}, v{GX+7}
v_or3_b32 v10, v10, v11, v12
v_xor_b32 v11, {TAG}, v{GS+1}
v_xor_b32 v12, {TAG}, v{GS+3}
v_or3_b32 v10, v10, v11, v12
v_xor_b32 v11, {TAG}, v{GS+5}
v_xor_b32 v12, {TAG}, v{GS+7}
v_or3_b32 v13, v13, v11, v12
v_or_b32 v10, v10, v13
v_cmp_ne_u32 vcc, 0, v10
s_cbranch_vccnz F_rt1
F_ok:
s_mov_b64 exec, -1
""")
    RT = [f"F_rt1:\n{lim('F_ok')}\ns_mov_b64 exec, vcc\n" + "\n".join(GL) + "\ns_waitcnt vmcnt(0)\ns_branch F_chk"]
    XU, ST, H, HP, GA = 32, 48, 56, 64, 40
    for t in range(4): A(f"v_and_b32 v{ST+1+2*t}, 0xffff0000, v{GS+2*t}")
    for t in range(4): A(f"v_rcp_f32 v{ST+1+2*t}, v{ST+1+2*t}")
    for t in range(4): A(f"v_lshlrev_b32 v{ST+2*t}, 16, v{GS+2*t}")
    for t in range(4): A(f"v_lshlrev_b32 v{XU+2*t}, 16, v{GX+2*t}\nv_and_b32 v{XU+2*t+1}, 0xffff0000, v{GX+2*t}")
    for t in range(4): A(f"v_pk_add_f32 {v(H+2*t,2)}, {v(XU+2*t,2)}, {v(ST+2*t,2)} op_sel_hi:[1,0] neg_lo:[0,1] neg_hi:[0,1]")
    for t in range(4): A(f"v_pk_mul_f32 {v(H+2*t,2)}, {v(ST+2*t,2)}, {v(H+2*t,2)} op_sel:[1,0]")
    gaload = f"global_load_dwordx2 {v(GA,2)}, v{pGA}, s[20:21] sc1"
    A(f"""
F_chkm:
s_waitcnt vmcnt(0)
v_cmp_ne_u32 vcc, {TAG}, v{GM+1}
v_add_f32_dpp v10, v{GM}, v{GM} quad_perm:[1,0,3,2] row_mask:0xf bank_mask:0xf
s_cbranch_vccnz F_rt2
F_okm:
v_cvt_pk_bf16_f32 v10, v10, v10
v_and_b32 v10, 0xffff0000, v10
v_add_f32 v11, 1.0, v10
v_cvt_pk_bf16_f32 v11, v11, v11
v_readlane_b32 s30, v10, 0
v_readlane_b32 s31, v10, 2
v_and_b32 v11, 0xffff0000, v11
v_mov_b32 v12, s30
v_readlane_b32 s54, v11, 4
v_readlane_b32 s55, v11, 6
v_mov_b32 v13, s31
s_cmp_lg_u32 s38, 0
""")
    RT.append(f"F_rt2:\n{lim('F_okm')}\n{mload}\ns_branch F_chkm")
    for t in range(4): A(f"v_pk_fma_f32 {v(H+2*t,2)}, {v(H+2*t,2)}, s[54:55], v[12:13]")
    for ch in range(2):
        for j in range(2): A(f"v_cvt_pk_bf16_f32 v{HP+2*ch+j}, v{H+4*j+ch}, v{H+2+4*j+ch}")
        A(f"ds_write_b64 v{pHW}, {v(HP+2*ch,2)} offset:{ch*HS + 512}")
    A(f"""
;TP h
s_cbranch_scc1 F_prep
s_setprio 2
s_waitcnt lgkmcnt(0)
s_barrier
;TP b3
""")
    ACC = 44
    FB = [76, 140]
    def reads(s, buf):
        out = []
        base = FB[buf]
        for c in range(8): out.append(f"ds_read_b128 {v(base+32+4*c,4)}, v{pB} offset:{512*c + 192 - 64*s}")
        for G in range(8):
            o = (512 * (1 - (G & 1)) + 192 - 64 * s) // 4
            out.append(f"ds_read2_b32 {v(base+4*G,2)}, v{pA0+G//2} offset0:{o} offset1:{o+1}")
            out.append(f"ds_read2_b32 {v(base+4*G+2,2)}, v{pA0+G//2} offset0:{o+2} offset1:{o+3}")
        return out
    r0 = reads(0, 0)
    r0 = r0[8:10] + r0[:8] + r0[10:]
    for r in r0: A(r)
    for s in range(4):
        base = FB[s & 1]
        nxt = reads(s + 1, (s + 1) & 1) if s < 3 else [gaload]
        if s > 0: A("s_waitcnt lgkmcnt(0)")
        for G in range(8):
            if s == 0 and G == 1: A("s_waitcnt lgkmcnt(0)")
            for c in range(G, 8):
                first = (s == 0 and G == 0)
                if first and c >= 6: A(f"s_waitcnt lgkmcnt({21 - c})")
                if first and c == 0: A("s_waitcnt lgkmcnt(15)")
                A(f"v_mfma_f32_16x16x32_bf16 {v(ACC+4*c,4)}, {v(base+4*G,4)}, {v(base+32+4*(c-G),4)}, {'0' if first else v(ACC+4*c,4)}")
                if nxt and not first: A(nxt.pop(0))
                if s == 3 and G >= 1 and c == min(G + 1, 7) and G < 7: A(f"ds_write_b128 v{pYW}, {v(ACC+4*(G-1),4)} offset:{1280*(G-1)}")
        assert not nxt
    for c in (6, 7): A(f"ds_write_b128 v{pYW}, {v(ACC+4*c,4)} offset:{1280*c}")
    A(f"""
F_epi:
s_waitcnt vmcnt(0)
F_epi1:
v_cmp_ne_u32 vcc, {TAG}, v{GA+1}
v_add_f32_dpp v42, v{GA}, v{GA} quad_perm:[1,0,3,2] row_mask:0xf bank_mask:0xf
s_cbranch_vccnz F_rt3
F_ok3:
v_cvt_pk_bf16_f32 v42, v42, v42
v_and_b32 v42, 0xffff0000, v42
s_cmp_eq_u32 s33, 6
s_cbranch_scc1 F_gb
F_b4:
v_readlane_b32 s30, v42, 0
v_readlane_b32 s31, v42, 2
s_waitcnt lgkmcnt(0)
s_barrier
;TP b4
""")
    RT.append(f"F_rt3:\n{lim('F_ok3')}\n{gaload}\ns_branch F_epi")
    RT.append(f"""F_gb:
v_lshlrev_b32 v6, 1, v2
s_lshl_b32 s3, s35, 3
s_add_u32 s3, s3, {WS_MOD + 5*448*4 - 8}
v_add_u32 v6, s3, v6
v_mov_b32 v12, {WS_EP}
v_mov_b32 v13, {TAG}
s_mov_b64 exec, 0x50
global_store_dword v6, v42, s[20:21]
s_cmp_lg_u32 s2, 0
s_cbranch_scc1 F_gb1
global_store_dword v12, v13, s[20:21]
F_gb1:
s_mov_b64 exec, -1
s_branch F_b4""")
    YR = 80
    for ch in range(2):
        for hf in range(2):
            A(f"ds_read_b128 {v(YR+8*hf+4*ch,4)}, v{pYR} offset:{(2*ch+hf)*YW}")
    for ch in range(2):
        A(f"s_waitcnt lgkmcnt({2-2*ch})")
        for j in range(2): A(f"v_pk_add_f32 {v(YR+4*ch+2*j,2)}, {v(YR+4*ch+2*j,2)}, {v(YR+8+4*ch+2*j,2)}")
        for j in range(4): A(f"v_fma_f32 v{YR+4*ch+j}, s{30+ch}, v{YR+4*ch+j}, v{XU+2*j+ch}")
        for j in range(2): A(f"v_cvt_pk_bf16_f32 v{76+2*ch+j}, v{YR+4*ch+2*j}, v{YR+4*ch+2*j+1}")
        A(f"global_store_dwordx2 v{pXO}, {v(76+2*ch,2)}, s[20:21] offset:{64*ch} {XST}")
    A("s_endpgm")

    GB = 196
    g2 = f"global_load_dwordx2 {v(GB,2)}, v{pSB0}, s[20:21] sc1\nglobal_load_dwordx2 {v(GB+2,2)}, v{pSB1}, s[20:21] sc1"
    CB, AV, UN, RW, OUT, DO, SC, DA = 48, 56, 64, 96, 112, 128, 136, 168
    A(f"""
F_prep:
s_setprio 0
{g2}
s_mov_b32 s14, 0x05040100
s_mov_b32 s15, 0x07060302
v_cmp_gt_u32 s[56:57], 32, v2
s_waitcnt lgkmcnt(0)
s_barrier
""")
    for i in range(2):
        for jp in range(4): A(f"v_perm_b32 v{DO+4*i+jp}, v{DL+2*jp+1}, v{DL+2*jp}, s{14+i}")
        A(f"global_store_dwordx4 v{pDO}, {v(DO+4*i,4)}, s[20:21] offset:{256*i} {WST}")
    for j in range(8):
        for h in range(2):
            t = UN + 4 * j + 2 * h
            A(f"v_lshlrev_b32 v{t}, 16, v{WL+2*j+h}\nv_and_b32 v{t+1}, 0xffff0000, v{WL+2*j+h}")
    A(f"""
s_waitcnt vmcnt(2)
F_chk2:
v_xor_b32 v24, {TAG}, v{GB+1}
v_xor_b32 v25, {TAG}, v{GB+3}
v_or_b32 v24, v24, v25
v_cmp_ne_u32 vcc, 0, v24
v_add_f32 v24, v{GB}, v{GB+2}
s_cbranch_vccnz F_rt4
F_ok2:
{gaload}
v_cvt_pk_bf16_f32 v24, v24, v24
v_and_b32 v24, 0xffff0000, v24
v_add_f32 v25, 1.0, v24
v_cvt_pk_bf16_f32 v25, v25, v25
v_lshl_add_u32 v26, v2, 1, v{pVW}
v_and_b32 v25, 0xffff0000, v25
ds_write_b16_d16_hi v{pVW}, v24
ds_write_b32 v26, v25 offset:128
ds_read_b128 {v(CB,4)}, v{pVR} offset:256
ds_read_b128 {v(CB+4,4)}, v{pVR} offset:272
ds_read_b128 {v(AV,4)}, v{pAV}
""")
    RT.append(f"F_rt4:\n{lim('F_ok2')}\n{g2}\ns_waitcnt vmcnt(0)\ns_branch F_chk2")
    for i in range(4):
        for jp in range(4): A(f"v_perm_b32 v{RW+4*i+jp}, v{WL+4*jp+2+(i>>1)}, v{WL+4*jp+(i>>1)}, s{14+(i&1)}")
    A("s_waitcnt lgkmcnt(0)")
    for i in range(4):
        for j in range(8): A(f"v_mul_f32 v{SC+8*i+j}, v{CB+j}, v{UN+4*j+i}")
        A(f"v_mfma_f32_16x16x32_bf16 {v(DA+4*i,4)}, {v(AV,4)}, {v(RW+4*i,4)}, 0")
        for jp in range(4): A(f"v_cvt_pk_bf16_f32 v{OUT+4*i+jp}, v{SC+8*i+2*jp}, v{SC+8*i+2*jp+1}")
        A(f"global_store_dwordx4 v{pFO}, {v(OUT+4*i,4)}, s[20:21] offset:{64*i} {WST}")
        A(f"v_mfma_f32_16x16x32_bf16 {v(DA+4*i,4)}, {v(AU,4)}, {v(OUT+4*i,4)}, {v(DA+4*i,4)}")
    A(f"""
v_mov_b32 v24, {L_C}
v_mov_b32 v25, 1
v_lshlrev_b32 v7, 3, v2
v_add_u32 v7, {L_U}, v7
ds_write2_b32 v{pUV}, v{DA}, v{DA+4} offset0:0 offset1:1
ds_write2_b32 v{pUV}, v{DA+8}, v{DA+12} offset0:2 offset1:3
s_mov_b64 exec, 1
ds_add_rtn_u32 v26, v24, v25
s_mov_b64 exec, -1
s_waitcnt lgkmcnt(0)
v_readfirstlane_b32 s3, v26
s_waitcnt vmcnt(4)
s_cmp_lg_u32 s3, 3
s_cbranch_scc1 F_epi1
""")
    for i in range(4): A(f"ds_read_b64 {v(16+2*i,2)}, v7 offset:{512*i}")
    A(f"""
v_bfe_u32 v6, v2, 3, 2
v_mul_u32_u24 v6, {WF_FG}, v6
v_lshrrev_b32 v5, 5, v2
v_lshl_add_u32 v6, v5, 9, v6
v_and_b32 v5, 1, v2
v_lshl_add_u32 v6, v5, 7, v6
v_bfe_u32 v5, v2, 1, 2
v_lshl_add_u32 v6, v5, 4, v6
s_lshl_b32 s3, s26, 2
s_add_u32 s3, s3, {28*1024}
s_add_u32 s3, s3, s59
v_add_u32 v6, s3, v6
s_waitcnt lgkmcnt(0)
v_add_f32 v16, v16, v18
v_add_f32 v17, v17, v19
v_add_f32 v20, v20, v22
v_add_f32 v21, v21, v23
v_add_f32 v16, v16, v20
v_add_f32 v17, v17, v21
v_cvt_pk_bf16_f32 v18, v16, v17
v_lshlrev_b32 v20, 16, v18
v_and_b32 v21, 0xffff0000, v18
v_sub_f32 v16, v16, v20
v_sub_f32 v17, v17, v21
v_cvt_pk_bf16_f32 v16, v20, v16
v_cvt_pk_bf16_f32 v17, v21, v17
global_store_dword v6, v16, s[20:21]
global_store_dword v6, v17, s[20:21] offset:64
s_branch F_epi1
""")
    for r in RT: A(r)

    def tree(n, base):
        regs = [base + i for i in range(n)]
        while len(regs) > 1:
            nx = []
            for i in range(0, len(regs) - 1, 2):
                A(f"v_add_f32 v{regs[i]}, v{regs[i]}, v{regs[i+1]}"); nx.append(regs[i])
            if len(regs) & 1: nx.append(regs[-1])
            regs = nx
    A(f"F_spare:\nv_add_u32 v14, s29, v14\nv_add_u32 v15, 5376, v14\nv_add_u32 v16, {2*5376}, v14\nv_add_u32 v18, {3*5376}, v14")
    gemv(1, 3 + 2)
    A("s_waitcnt lgkmcnt(0)\ns_barrier\n;TP s2")
    gemv(2, 3)
    A("s_waitcnt lgkmcnt(0)\ns_barrier\ns_endpgm")
    A("F_spare7:")
    for p in range(3):
        if p: A("s_barrier")
        for i in range(7): A(f"ds_read_b32 v{72+i}, v26 offset:{LM + 2048*p + 256*i}")
        if p == 0: A(f"ds_read_b128 {v(PB_,4)}, v31\nv_add_u32 v28, 0, v25")
        if p == 1: A(f"v_add_u32 v28, {2688*4}, v25")
        if p == 2: A(f"s_lshl_b32 s29, s29, 2\nv_add_u32 v28, s29, v25")
        A("s_waitcnt lgkmcnt(0)")
        tree(7, 72)
        A(f"v_mov_b32 v32, v72\nglobal_store_dwordx2 v28, v[32:33], s[20:21] sc1\n;TP s{p+2}")
        if p == 0:
            A(f"""
s_mov_b64 exec, 15
global_store_dwordx4 v9, {v(PB_,4)}, s[20:21] sc1
s_mov_b64 exec, -1
s_lshl_b32 s3, s24, 10
s_add_u32 s3, s3, {WS_FL}
v_add_u32 v29, s3, v3
v_mov_b32 v30, 0
global_store_dword v29, v30, s[20:21]
""")
    A("F_end:\ns_endpgm")
    tab = ktable() + [0] * 8
    A(".p2align 4\n.type ktab,@object\nktab:")
    for i in range(0, len(tab), 16): A(".short " + ", ".join(str(t) for t in tab[i:i+16]))
    A(f".size ktab, {2*len(tab)}")
    return kdesc("front_kernel", 256, 64)
```

```python
from common import *
import os
K34_GRID = 224
K34_BLOCK = 512
L_X = 8192
L_ST = 131072
L_SD = L_ST + 2048
K34_LDS = L_SD + 1024
E = lambda n, d: int(os.environ.get(n, d))
PRE = E("K3PRE", 6)
SB1, SB2 = E("SB1", 13), E("SB2", 24)
NDA, HB2, GO, PL = E("NDA", 4), E("HB2", 5), E("GO", 14), E("PL", 11)
EW = E("EW", 0)
SLP = os.environ.get("SLP", "1")
OST = os.environ.get("OST", "")
GRAN = True

def k34(A):
    XF = [24, 32]; STT = 40; CF = 44; R = [52, 84]
    W = lambda k: 116 + 4 * k
    WD = lambda j: 232 + 4 * j if j < 6 else W(j - 6)
    RING = [STT, W(28), CF, CF + 4] + [W(k) for k in range(22, 28)] + [24 + 4 * i for i in range(4)]
    A(f""".globl ffn_kernel
.p2align 8
.type ffn_kernel,@function
ffn_kernel:
s_cmp_ge_u32 s2, {K34_GRID}
s_cbranch_scc1 K3_end
s_load_dwordx2 s[4:5], s[0:1], 136
s_load_dwordx2 s[36:37], s[0:1], 120
s_and_b32 s6, s2, 3
s_lshl_b32 s6, s6, 2
s_lshr_b32 s7, s2, 3
s_and_b32 s8, s7, 3
s_add_u32 s6, s6, s8                  ; rb
s_bfe_u32 s30, s2, 0x10002            ; th
s_mul_i32 s8, s30, 7
s_lshr_b32 s31, s7, 2                 ; db
s_add_u32 s7, s31, s8                 ; fb
v_lshrrev_b32 v1, 6, v0
v_and_b32 v2, 63, v0                  ; lane
v_readfirstlane_b32 s9, v1            ; w
v_lshlrev_b32 v3, 4, v2               ; lane*16
s_and_b32 s10, s9, 3
s_lshr_b32 s28, s9, 2
s_mul_i32 s14, s10, {TB}
s_lshl_b32 s15, s28, 10
s_add_u32 s14, s14, s15
s_mul_i32 s11, s6, {4*TB}
s_add_u32 s11, s11, s14
s_add_u32 s11, s11, {WS_X1T}
v_add_u32 v4, s11, v3
s_add_u32 s14, s14, {L_X}
s_mov_b32 m0, s14
s_lshl_b32 s12, s7, 3
s_add_u32 s12, s12, s9                ; fg
s_mul_i32 s13, s12, {WF_FG}
s_add_u32 s13, s13, {WS_WF + 4096}
s_waitcnt lgkmcnt(0)
s_add_u32 s18, s4, s13
s_addc_u32 s19, s5, 0                 ; W source (+4096)
""")
    Q = []
    def issue(op):
        kind, j = op
        if kind == 'x':
            if j and j % 2 == 0: A("s_add_u32 m0, m0, 4096\nv_add_u32 v4, 4096, v4")
            A(f"global_load_lds_dwordx4 v4, s[4:5] offset:{2048*(j%2)}")
        elif kind == 'w' and j == 28:
            A(f"global_load_dwordx4 {v(W(j),4)}, v3, s[44:45]")
        elif kind == 'w':
            if j and j % 8 == 0: A("s_add_u32 s18, s18, 8192\ns_addc_u32 s19, s19, 0")
            A(f"global_load_dwordx4 {v(W(j),4)}, v3, s[18:19] offset:{1024*(j%8)-4096}")
        elif kind == 'd':
            if j == 16: A("s_add_u32 s32, s32, 8192\ns_addc_u32 s33, s33, 0")
            A(f"global_load_dwordx4 {v(WD(j),4)}, v{1 if j & 1 else 3}, s[32:33] offset:{1024*((j>>1)%8)-4096}")
        else:
            A(j)
        Q.append(op)
    def wait(op, extra=""):
        n = len(Q) - 1 - Q.index(op)
        A(f"s_waitcnt vmcnt({n}){extra}")
    order = []
    for s in range(29):
        if s < 14: order.append(('x', s))
        order.append(('w', s))
    order += [('d', j) for j in range(28)]
    full = list(order)
    def slot():
        if order: issue(order.pop(0))
    def ahead(s):
        k = min(full.index(('w', s + 1)) + PRE, full.index(('d', 6)))
        while len(full) - len(order) < k: slot()
    ahead(-1)
    A(f"""
v_lshrrev_b32 v6, 5, v2               ; kh
v_bfe_u32 v5, v2, 2, 2                ; e
v_lshl_add_u32 v5, v6, 3, v5
v_lshlrev_b32 v5, 6, v5
v_bfe_u32 v6, v2, 4, 1                ; th
v_lshl_add_u32 v5, v6, 5, v5
v_and_b32 v6, 3, v2
v_lshl_add_u32 v5, v6, 3, v5
v_add_u32 v12, {L_X}, v5
v_add_u32 v13, {L_X + TB}, v5
v_add_u32 v14, s14, v5
s_add_u32 s13, s13, {28*1024 - 4096}
s_add_u32 s44, s4, s13
s_addc_u32 s45, s5, 0
s_mul_i32 s38, s9, {14*1024}
s_mul_i32 s20, s31, {2*HF_TT}
s_add_u32 s20, s20, s38
s_add_u32 s20, s20, {WS_WDF + 4096}
s_add_u32 s32, s4, s20
s_addc_u32 s33, s5, 0
v_add_u32 v1, {HF_TT}, v3
s_mul_i32 s20, s6, {4*HF_TT}
s_add_u32 s20, s20, {WS_HF}
s_lshl_b32 s21, s12, 10
s_add_u32 s21, s20, s21
s_add_u32 s22, s4, s21
s_addc_u32 s23, s5, 0
s_mul_i32 s21, s30, {HF_TT}
s_add_u32 s20, s20, s21
s_add_u32 s20, s20, s38
s_add_u32 s20, s20, 4096
s_add_u32 s34, s4, s20
s_addc_u32 s35, s5, 0
s_add_u32 s16, s34, 8192
s_addc_u32 s17, s35, 0
s_lshl_b32 s20, s6, 11
s_add_u32 s20, s20, {WS_FL}
s_add_u32 s24, s4, s20
s_addc_u32 s25, s5, 0
s_mov_b32 s26, {ONES}
s_lshl_b32 s20, s9, 8
s_add_u32 s20, s20, {L_ST}
v_lshl_add_u32 v15, v2, 2, s20
v_xor_b32 v10, 1024, v15
s_lshl_b32 s20, s10, 8
s_add_u32 s20, s20, {L_SD}
v_lshl_add_u32 v11, v2, 2, s20
v_lshlrev_b32 v16, 2, v2
v_add_u32 v16, {L_SD}, v16
v_cmp_gt_u32 s[40:41], 32, v2
v_min_u32 v17, 13, v2
s_mul_i32 s39, s9, 14
v_add_u32 v17, s39, v17
v_lshrrev_b32 v17, 3, v17
v_lshlrev_b32 v17, 7, v17
s_lshl_b32 s39, s7, 7
v_mov_b32 v18, s39
v_mov_b32 v19, 1
s_and_b32 s27, s9, 1
s_and_b32 s20, s9, 2
s_add_u32 s20, s20, s30
s_mul_i32 s21, s20, {TB}
s_lshl_b32 s39, s31, 12
s_add_u32 s21, s21, s39
s_lshl_b32 s39, s28, 11
s_add_u32 s21, s21, s39
s_lshl_b32 s39, s27, 5
s_add_u32 s21, s21, s39
s_add_u32 s21, s21, {L_X}
v_lshrrev_b32 v9, 4, v2               ; octet
v_bfe_u32 v5, v2, 2, 2
v_lshl_add_u32 v5, v9, 3, v5
v_lshlrev_b32 v5, 6, v5
v_lshl_add_u32 v5, v6, 3, v5
v_add_u32 v8, s21, v5
s_lshl_b32 s21, s20, 8
s_lshl_b32 s39, s27, 6
s_add_u32 s21, s21, s39
s_add_u32 s21, s21, {L_SD + 128}
v_and_b32 v0, 15, v2
v_lshl_add_u32 v7, v0, 2, s21
v_mul_u32_u24 v6, 896, v0
v_lshl_add_u32 v6, v9, 4, v6
s_lshl_b32 s21, s6, 2
s_add_u32 s20, s20, s21
s_lshl_b32 s20, s20, 1
s_add_u32 s20, s20, s27
s_mul_i32 s20, s20, {16*896}
s_lshl_b32 s21, s31, 7
s_add_u32 s20, s20, s21
s_lshl_b32 s21, s28, 6
s_add_u32 s20, s20, s21
s_add_u32 s36, s36, s20
s_addc_u32 s37, s37, 0
s_lshl_b32 s20, s31, 8
s_lshl_b32 s21, s28, 7
s_add_u32 s20, s20, s21
s_add_u32 s20, s20, {WS_MOD + 5*448*4}
s_add_u32 s20, s4, s20
s_addc_u32 s21, s5, 0                 ; gb
s_lshl_b32 s39, s28, 12
s_lshl_b32 s42, s27, 8
s_add_u32 s39, s39, s42
s_and_b32 s42, s9, 2
s_lshl_b32 s42, s42, 15
s_add_u32 s39, s39, s42
v_lshlrev_b32 v0, 4, v0
v_lshl_add_u32 v0, v9, 9, v0
v_add_u32 v0, s39, v0
v_add_u32 v5, {2*HF_TT}, v3
s_lshl_b32 s39, s9, 13
""")
    def reads(g):
        return [f"ds_read_b64_tr_b16 {v(XF[g&1]+4*i+2*h,2)}, v{12+i} offset:{1024*(g%28)+256*h}" for i in range(2) for h in range(2)]
    SR = lambda j: STT if j & 1 else CF
    def sreads(j): return [f"ds_read_b64_tr_b16 {v(SR(j)+2*h,2)}, v14 offset:{2048*j+256*h}" for h in range(2)]
    def dots(j):
        o = []
        for q in range(4):
            z = j == 0 and q < 2
            o.append(f"v_dot2_f32_bf16 v{20+(q&1)}, v{SR(j)+q}, s26, {'0' if z else 'v%d' % (20+(q&1))}")
            o.append(f"v_dot2_f32_bf16 v{22+(q&1)}, v{SR(j)+q}, v{SR(j)+q}, {'0' if z else 'v%d' % (22+(q&1))}")
        return o
    partial = ["v_add_f32 v20, v20, v21", "v_add_f32 v22, v22, v23", "v_permlane32_swap_b32 v20, v22", "v_add_f32 v20, v20, v22", "ds_write_b32 v15, v20"]
    stat = f"""v_add_f32 v20, v20, v22
v_mul_f32 v20, {hex(INV448)}, v20
v_mov_b32 v22, v20
v_permlane32_swap_b32 v20, v22
v_fma_f32 v22, -v20, v20, v22
v_max_f32 v22, 0, v22
v_cvt_pk_bf16_f32 v22, v22, v22
v_and_b32 v22, 0xffff0000, v22
v_add_f32 v22, {hex(EPS)}, v22
v_cvt_pk_bf16_f32 v22, v22, v22
v_and_b32 v22, 0xffff0000, v22
v_sqrt_f32 v22, v22
v_cvt_pk_bf16_f32 v20, -v20, -v20
v_cvt_pk_bf16_f32 v22, v22, v22
v_cndmask_b32 v21, v22, v20, s[40:41]
ds_write_b32 v11, v21""".split("\n")
    cread = lambda p: [f"ds_read2st64_b32 {v(CF+4*i+2*h,2)}, v16 offset0:{2*p+i} offset1:{2*p+i}" for i in range(2) for h in range(2)]
    def corr(p, z):
        for i in range(2): A(f"v_mfma_f32_32x32x16_bf16 {v(R[p]+16*i,16)}, {v(W(28),4)}, {v(CF+4*i,4)}, {'0' if z else v(R[p]+16*i,16)}")
    ST = lambda p, i: ('s', f"global_store_dwordx4 v{1 if i else 3}, {v(R[p]+16*i+8,4)}, s[22:23] sc1")
    def epilogue(p):
        o = []
        for i in range(2):
            G = R[p] + 16 * i; U = G + 8
            o += [f"v_max_f32 v{G+r}, 0, v{G+r}" for r in range(8)]
            o += [f"v_mul_f32 v{G+r}, v{G+r}, v{U+r}" for r in range(8)]
            o += [f"v_cvt_pk_bf16_f32 v{U+r//2}, v{G+r}, v{G+r+1}" for r in range(0, 8, 2)]
            o.append(lambda i=i: issue(ST(p, i)))
        return o
    def run(l):
        for f in l: f() if callable(f) else A(f)
    def flag(off, lbl):
        A(f"s_barrier\ns_cmp_lg_u32 s9, 3\ns_cbranch_scc1 {lbl}\ns_mov_b64 exec, 1\nglobal_store_dword v18, v19, s[24:25] offset:{off} sc1\ns_mov_b64 exec, -1\n{lbl}:")
    fill, pre = {g: [] for g in range(56)}, {}
    def spread(l, lo, hi):
        n = hi - lo
        for k in range(n): fill[lo + k] += l[len(l) * k // n:len(l) * (k + 1) // n]
    dsq = []
    def ds(ins, tag): A(ins); dsq.append(tag)
    def lg(tag): return f"lgkmcnt({min(15, len(dsq) - 1 - max(i for i, t in enumerate(dsq) if t == tag))})"
    for l in (order, full): l.remove(('w', 28)); l.insert(l.index(('w', 20)), ('w', 28))
    for j in range(14):
        fill[j] = sreads(j) + fill[j]
        fill[j + 1] += [f"need:s{j}"] + dots(j)
    fill[14] += partial
    for s in (1, 3, 7): pre[s] = "bar"
    pre[15] = "lbar"
    fill[15] += ["ds_read_b32 v22, v10", "v_lshlrev_b32 v4, 5, v9"]
    spread(["need:f"] + stat, 16, 20)
    pre[20] = "lbar"
    fill[20] += cread(1) + ["ds_read_b32 v7, v7", "ds_read_b64_tr_b16 v[10:11], v8 offset:256", "ds_read_b64_tr_b16 v[8:9], v8"]
    fill[21] += ["need:f", lambda: corr(1, True)]
    fill[22] += cread(0) + ["v_add_u32 v16, s39, v3", "v_and_b32 v7, 0xffff0000, v7", "v_mul_f32 v7, v7, v7", "v_rcp_f32 v7, v7"]
    fill[23] += ["need:f", lambda: corr(0, False)]
    fill[26] += [f"v_add_u32 v{r}, {2*TB}, v{r}" for r in (12, 13)]
    BS = []
    def ab():
        A(";TP k1")
        nb = len(order) - NDA
        BS.extend(1 + (k * 27) // nb for k in range(nb))
    pre[28] = ab
    hl = lambda n: f"global_load_dwordx4 {v(RING[n%14],4)}, v{5 if n >= 14 else 3}, s[{34 if n%14 < 8 else 16}:{35 if n%14 < 8 else 17}] offset:{1024*(n%14%8)-4096} sc1"
    spread(epilogue(0) + [f"s_add_u32 s22, s22, {2*HF_TT}\ns_addc_u32 s23, s23, 0"], 28, 28 + E("EPS", 4))
    pre[28 + SB1] = lambda: (wait(ST(0, 1)), flag(0, "K3_fa"))
    PA = ('p', "global_load_dword v15, v17, s[24:25] sc1"); PB = ('p', "global_load_dword v2, v17, s[24:25] offset:64 sc1")
    pre[28 + SB2] = lambda: (issue(PA), issue(('g', "global_load_dwordx4 v[20:23], v4, s[20:21]")))
    wait(('x', 0)); A("s_barrier\n;TP k0")
    for i, r in enumerate(reads(0)): ds(r, (0, i // 2))
    for g in range(56):
        p, s = divmod(g, 28)
        fl = list(fill[g])
        pr = pre.get(g)
        if callable(pr): pr()
        nxt = reads(g + 1) if g < 55 else []
        for i in range(2):
            if i == 0 and p == 0:
                if pr == "bar": wait(('w', s)); A(f"s_barrier\ns_waitcnt {lg((g, i))}")
                elif pr == "lbar": wait(('w', s), " lgkmcnt(0)"); A("s_barrier")
                else: wait(('w', s), " " + lg((g, i)))
            else: A(f"s_waitcnt {lg((g, i))}")
            if i == 0: A(f";TP {'ae'[p]}{s}")
            if os.environ.get("M16"):
                for z in range(2):
                    c = R[p] + 16 * i + 8 * z + 4 * (s & 1)
                    A(f"v_mfma_f32_16x16x32_bf16 {v(c,4)}, {v(W(max(s-z,0) if p == 0 else (s+z)%28),4)}, {v(XF[g&1]+4*i,4)}, {'0' if g < 2 else v(c,4)}")
            else: A(f"v_mfma_f32_32x32x16_bf16 {v(R[p]+16*i,16)}, {v(W(s),4)}, {v(XF[g&1]+4*i,4)}, {'0' if g == 0 else v(R[p]+16*i,16)}")
            for h in range(2):
                if nxt: ds(nxt.pop(0), (g + 1, i))
            if i == 0 and p == 0 and s < 27: ahead(s)
            if p == 1 and BS.count(s) > 1 - i:
                assert order[0][0] == 'd' and order[0][1] - 6 < s
                slot()
            n = (len(fl) + 1) // 2 if i == 0 else len(fl)
            if fl and fl[-1].__class__ is str and fl[-1].startswith("v_add_u32 v13"): n = 0 if i == 0 else n
            for _ in range(n):
                f = fl.pop(0)
                if callable(f): f()
                elif f.startswith("need:"): A(f"s_waitcnt {lg(f[5:])}")
                elif f.startswith("ds_"): ds(f, f's{g}' if "v14" in f else 'f')
                else: A(f)
    A(";TP k2")
    run(epilogue(1))
    A(";TP k3")
    wait(PA)
    A("K3_pc:\nv_cmp_eq_u32 vcc, 0, v15\ns_cbranch_vccnz K3_pr")
    issue(('g', "global_load_dwordx4 v[12:15], v4, s[20:21] offset:16"))
    stream = []
    for n in range(28):
        while order and order[0][1] <= 2 * n + 1: stream.append(order.pop(0))
        stream.append(('h', hl(n)))
    hb0 = stream.index(('h', hl(14)))
    pos = [0]
    def feed(k):
        while pos[0] < k: issue(stream[pos[0]]); pos[0] += 1
    feed(HB2)
    wait(ST(1, 1))
    flag(64, "K3_fb")
    A(";TP k4")
    feed(hb0)
    wr = lambda tt, dt, q: f"ds_write_b128 v16, {v(R[tt]+16*dt+4*q,4)} offset:{4096*dt+1024*q}"
    early = [wr(0, dt, q) for dt in range(2) for q in range(4)] + ["v_add_u32 v16, 65536, v16"]
    for n in range(28):
        tt, k = divmod(n, 14)
        if n == 14 and GO == 14:
            run(early[:EW]); early = early[EW:]
        if n == GO:
            wait(PB); A(";TP g0\nK3_qc:\nv_cmp_eq_u32 vcc, 0, v2\ns_cbranch_vccnz K3_qr\n;TP g1")
        if n >= GO: feed(min(len(stream), hb0 + n))
        if n == 14: run(early); early = []
        wait(('h', hl(n)))
        if n == PL: issue(PB)
        for dt in range(2):
            t = R[tt] + 16 * dt
            if os.environ.get("M16") == "2":
                for z in range(2):
                    c = t + 8 * z + 4 * (k & 1)
                    A(f"v_mfma_f32_16x16x32_bf16 {v(c,4)}, {v(WD(max(2*(k-z)+dt,dt)),4)}, {v(RING[k],4)}, {'0' if k < 2 else v(c,4)}")
            else: A(f"v_mfma_f32_32x32x16_bf16 {v(t,16)}, {v(WD(2*k+dt),4)}, {v(RING[k],4)}, {'0' if k == 0 else v(t,16)}")
    A(";TP k5")
    for dt in range(2):
        for q in range(4): A(wr(1, dt, q))
    B = [116 + 4 * i for i in range(16)]
    XR, T, GB = 232, 240, [20, 21, 22, 23, 12, 13, 14, 15]
    for j in range(4): A(f"v_lshlrev_b32 v{XR+2*j}, 16, v{8+j}\nv_and_b32 v{XR+2*j+1}, 0xffff0000, v{8+j}")
    for r in range(8): A(f"v_mul_f32 v{GB[r]}, v7, v{GB[r]}")
    A("s_waitcnt lgkmcnt(0)\n;TP w1\ns_barrier\n;TP x1")
    for src in range(8):
        for h in range(2): A(f"ds_read_b128 {v(B[2*src+h],4)}, v0 offset:{8192*src+2048*h}")
    for src in range(1, 8):
        A(f"s_waitcnt lgkmcnt({14-2*src})")
        for h in range(2):
            for r in (0, 2): A(f"v_pk_add_f32 {v(B[h]+r,2)}, {v(B[h]+r,2)}, {v(B[2*src+h]+r,2)}")
    for j in range(4):
        A(f"v_fma_f32 v{XR+2*j}, v{GB[2*j]}, v{B[0]+j}, v{XR+2*j}\nv_fma_f32 v{XR+2*j+1}, v{GB[2*j+1]}, v{B[1]+j}, v{XR+2*j+1}")
    for j in range(4): A(f"v_cvt_pk_bf16_f32 v{T+j}, v{XR+2*j}, v{XR+2*j+1}")
    A(f"global_store_dwordx4 v6, {v(T,4)}, s[36:37] {OST}")
    A(f"""K3_end:
s_endpgm
K3_pr:
global_load_dword v15, v17, s[24:25] sc1
s_waitcnt vmcnt(0)
s_branch K3_pc
K3_qr:
{"s_sleep " + SLP if SLP != "0" else ""}
global_load_dword v2, v17, s[24:25] offset:64 sc1
s_waitcnt vmcnt(0)
s_branch K3_qc""")
    return kdesc("ffn_kernel", 256, 48)
```

```python
import sys, struct
import numpy as np
from asmlib import Asm, v, a_, s_, kdesc

NAME = "adaLN_cond__ssm_conv_s4__glu_gated_reglu__prompt"
L, D, N, F = 2048, 448, 256, 1792

WS_XT   = 0x000000
WS_STM  = 0x1C0000
WS_STR  = 0x1C2000
WS_MOD  = 0x1C4000
WS_R2   = 0x1C8000
WS_FL   = 0x1D0000
WS_SG   = 0x1C0000
WS_MG   = 0x001000
WS_EP   = 0x000100
WS_XG   = 0x1400000
WS_KG   = 0x200000
WS_X1T  = 0x400000
WS_WF   = 0x600000
WS_WDF  = 0xA00000
WS_HF   = 0xC00000
WS_XS   = 0x400000
WS_X1   = 0x200000
WS_UV   = 0x1E0000
WS_ST2  = 0x1C8000
WS_F0   = 0x1D8000
WS_FP   = 0x010000
TB = 28672
WF_FT = 29 * 2048
WF_FG = 29 * 1024
HF_TT = 112 * 1024

LOG2E = 0x3fb8aa3b
INV448 = 0x3b124925
EPS = 0x3727c5ac
ONES = 0x3f803f80

def f2u(x): return struct.unpack('<I', struct.pack('<f', x))[0]

def bf16_round_int(l):
    u = f2u(float(l))
    u = (u + 0x7fff + ((u >> 16) & 1)) & 0xffff0000
    return int(struct.unpack('<f', struct.pack('<I', u))[0])

XROWS = [0, 1, 2, 3, 4, 5, 6, 7, 256, 258, 260, 262, 512, 768, 516, 772, 1024, 1280, 1536, 1792, 2048]
RS = 1040

def ktable():
    tab = {}
    for i, o in enumerate(XROWS):
        for j in range(32):
            tab.setdefault(o + 8 * j, (i, j))
    out = []
    for x in range(2048):
        i, j = tab[bf16_round_int(2047 - x)]
        out.append(i * RS + j * 4)
    return out

def add64(A, dst, src, imm):
    A(f"s_add_u32 s{dst}, s{src}, {imm}\ns_addc_u32 s{dst+1}, s{src+1}, 0")

def cmul(A, d, a, b):
    return [f"v_pk_mul_f32 {v(d,2)}, {v(a,2)}, {v(b,2)} op_sel_hi:[1,0]",
            f"v_pk_fma_f32 {v(d,2)}, {v(a,2)}, {v(b,2)}, {v(d,2)} op_sel:[1,1,0] op_sel_hi:[0,1,1] neg_lo:[1,0,0]"]
```

```python
from common import *
import os
KF_GRID = 256
KF_BLOCK = 512
KN = os.environ.get('KN', 'fused_kernel')
NCV = 224
KGS = 53 * RS
KC = 4160
YW = 10240
L_K = 2 * KGS
L_H = L_K + 4 * KC
HS = 4608
L_R = L_H + 2 * HS
RSTR = 912
L_U = L_R
L_S = L_R + 8 * RSTR
L_V = L_S + 64
L_X = 4 * YW
KF_LDS = L_X + 4 * TB
L_G = L_K + 4096 + 48
L_C = L_K + 4096 + 32
TAGC = 0x2F4A7C15
XGP = 14336
MGH = 2688 * 8
TAG = 's40'

LIMIT = int(os.environ.get("LIMIT", "20000"))
def lim(lbl): return f"s_add_u32 s43, s43, 1\ns_cmp_gt_u32 s43, {LIMIT}\ns_cbranch_scc1 {lbl}"

GPOS = int(os.environ.get('GPOS', '1'))
WST = os.environ.get('WST', 'sc1')
XST = os.environ.get('XST', 'sc1')
PST = os.environ.get('PST', 'sc1')
BPRIO = os.environ.get('BPRIO', '')
CPF = f"""s_lshr_b32 s3, s2, 3
s_lshl_b32 s3, s3, 11
v_lshrrev_b32 v3, 5, v0
v_lshl_add_u32 v3, v3, 7, s3
v_min_u32 v3, code_end-{KN}-4, v3
s_sub_u32 s24, s22, ktab-{KN}
s_subb_u32 s25, s23, 0
global_load_dword v255, v3, s[24:25]"""

pFR, pPW, pGX0, pGX1, pGS0, pGS1, pGM, pGA, pHW, pYR, pXO, pDK = range(204, 216)
pA0, pA1, pA2, pA3, pB, pYW, pDO = range(216, 223)
pSB0, pSB1, pFO, pUV, pVW, pAV = range(216, 222)
pF0, pFP = 223, 222
WPOS = int(os.environ.get('WPOS', '1'))
pWA = pWD = 199
WL = DL = 224
DO, RW = 232, 240
EV = lambda n, d: int(os.environ.get(n, d))
KREL = EV('KREL', 50)
POIS = EV('POIS', 1)

def schedule(items):
    dep = {n: [s for s in srcs if s in dict(items)] for n, srcs in items}
    height = {}
    def h(n):
        if n not in height: height[n] = 1 + max([h(m) for m, _ in items if n in dep[m]], default=0)
        return height[n]
    order, pos = [], {}
    left = [n for n, _ in items]
    while left:
        k = len(order)
        for gap in (3, 2):
            c = [n for n in left if all(s in pos and pos[s] <= k - gap for s in dep[n])]
            if c: break
        if not c: order.append(None); continue
        n = max(c, key=h); order.append(n); pos[n] = k; left.remove(n)
    return order

SB1, SB2 = EV("SB1", 13), EV("SB2", 24)
NDA, HB2, GO, PL = EV("NDA", 4), EV("HB2", 3), EV("GO", 14), EV("PL", 11)
SLP = os.environ.get("SLP", "1")
SC0, SBK, SCK, SCF, SCC, SD0 = EV("SC0", 10), EV("SBK", 3), EV("SCK", 21), EV("SCF", 19), EV("SCC", 25), EV("SD0", 18)
NW1, NWB = EV("NW1", 6), EV("NWB", 4)

ROLE = [l for l in f"""; FFN role.  x = wg&7 : rb = 4*(x&3) + (i&3), fb = 7*(x>>2) + (i>>2), i = wg>>3 ; phase 2: th = x>>2, db = i>>2
s_and_b32 s66, s2, 3
s_lshl_b32 s66, s66, 2
s_bfe_u32 s3, s2, 0x20003
s_add_u32 s66, s66, s3                ; rb
s_bfe_u32 s67, s2, 0x10002            ; th
s_lshr_b32 s68, s2, 5                 ; db
s_mul_i32 s69, s67, 7
s_add_u32 s69, s69, s68               ; fb
s_lshl_b32 s70, s69, 3
s_add_u32 s70, s70, s33               ; fg
s_mul_i32 s3, s70, {WF_FG}
s_add_u32 s3, s3, {WS_WF + 4096}
s_add_u32 s64, s20, s3
s_addc_u32 s65, s21, 0                ; W source (+4096)
""".split("\n") if l and l[0] != ";"]

F0ADDR = f"""
s_lshl_b32 s3, s69, 2
s_and_b32 s3, s3, 4
s_lshr_b32 s44, s69, 1
s_lshl_b32 s44, s44, 5
s_add_u32 s3, s3, s44
v_and_b32 v20, 3, v2
v_and_b32 v21, 12, v2
v_lshl_add_u32 v20, v21, 1, v20
v_add_u32 v20, s3, v20
v_lshlrev_b32 v{pF0}, 7, v20
v_add_u32 v{pF0}, {WS_F0}, v{pF0}
s_mul_i32 s44, s33, {56*128}
s_add_u32 s44, s44, {WS_FP - 224*128}
v_min_u32 v21, 55, v2
v_lshl_add_u32 v{pFP}, v21, 7, s44
"""

def ffn_pro(A, mid=()):
    A(f"""
s_mul_i32 s44, s66, {4*TB}
s_add_u32 s44, s44, {WS_XS - L_X}
s_and_b32 s45, s33, 1
s_mul_i32 s46, s45, {TB}
s_add_u32 s46, s46, {L_X}
s_lshr_b32 s47, s33, 1
s_lshl_b32 s26, s47, 10
s_add_u32 s26, s26, s46
s_add_u32 s27, s26, s44
s_mul_i32 s28, s47, 7168
s_add_u32 s28, s28, s46
s_add_u32 s28, s28, {2*TB}
s_add_u32 s29, s28, s44
v_add_u32 v14, s26, v3
v_lshrrev_b32 v6, 5, v2
v_lshlrev_b32 v5, 9, v6
v_bfe_u32 v7, v2, 3, 1
v_lshl_add_u32 v5, v7, 7, v5
v_bfe_u32 v8, v2, 4, 1
v_lshl_add_u32 v5, v8, 6, v5
v_and_b32 v7, 3, v2
v_lshl_add_u32 v5, v7, 4, v5
v_and_b32 v9, 4, v2
v_lshl_add_u32 v5, v9, 1, v5
v_add_u32 v12, {L_X}, v5
v_add_u32 v13, {L_X + TB}, v5
v_lshlrev_b32 v15, 9, v8
v_lshl_add_u32 v15, v6, 8, v15
v_lshl_add_u32 v15, v7, 4, v15
v_and_b32 v9, 12, v2
v_add_u32 v15, v15, v9
s_lshr_b32 s44, s70, 2
s_lshl_b32 s44, s44, 10
s_and_b32 s46, s70, 3
s_lshl_b32 s46, s46, 6
s_add_u32 s44, s44, s46
s_add_u32 s44, s44, {WS_UV}
v_add_u32 v15, s44, v15
v_lshlrev_b32 v16, 3, v2
s_lshl_b32 s44, s66, 11
s_add_u32 s46, s44, {WS_ST2}
s_add_u32 s22, s20, s46
s_addc_u32 s23, s21, 0
s_add_u32 s44, s44, {WS_FL}
s_add_u32 s12, s20, s44
s_addc_u32 s13, s21, 0
s_mul_i32 s48, s33, {14*1024}
s_mul_i32 s44, s68, {2*HF_TT}
s_add_u32 s44, s44, s48
s_add_u32 s44, s44, {WS_WDF + 4096}
s_add_u32 s4, s20, s44
s_addc_u32 s5, s21, 0
v_add_u32 v1, {HF_TT}, v3
s_mul_i32 s44, s66, {4*HF_TT}
s_add_u32 s44, s44, {WS_HF}
s_lshl_b32 s46, s70, 10
s_add_u32 s46, s44, s46
s_add_u32 s6, s20, s46
s_addc_u32 s7, s21, 0
s_mul_i32 s46, s67, {HF_TT}
s_add_u32 s44, s44, s46
s_add_u32 s44, s44, s48
s_add_u32 s44, s44, 4096
s_add_u32 s8, s20, s44
s_addc_u32 s9, s21, 0
s_add_u32 s10, s8, 8192
s_addc_u32 s11, s9, 0
v_min_u32 v17, 13, v2
s_mul_i32 s44, s33, 14
v_add_u32 v17, s44, v17
v_lshrrev_b32 v17, 3, v17
v_lshlrev_b32 v17, 7, v17
s_lshl_b32 s44, s69, 7
v_mov_b32 v18, s44
v_mov_b32 v19, {TAG}
{chr(10).join(mid)}
;TP p4
s_and_b32 s44, s33, 2
s_add_u32 s44, s44, s67
v_lshrrev_b32 v9, 4, v2               ; octet
v_and_b32 v0, 15, v2
s_lshl_b32 s46, s44, 9
s_lshl_b32 s47, s45, 7
s_add_u32 s46, s46, s47
s_add_u32 s46, s46, 256
v_lshl_add_u32 v7, v0, 3, s46
s_lshl_b32 s46, s66, 2
s_add_u32 s44, s44, s46               ; t block
s_mul_i32 s46, s44, {TB}
s_lshl_b32 s47, s68, 12
s_add_u32 s46, s46, s47
s_lshl_b32 s47, s38, 11
s_add_u32 s46, s46, s47
s_lshl_b32 s47, s45, 6
s_add_u32 s46, s46, s47
s_add_u32 s46, s46, {WS_X1}
v_lshl_add_u32 v8, v9, 9, s46
v_lshl_add_u32 v8, v0, 2, v8
v_mul_u32_u24 v6, 896, v0
v_lshl_add_u32 v6, v9, 4, v6
s_lshl_b32 s44, s44, 1
s_add_u32 s44, s44, s45
s_mul_i32 s44, s44, {16*896}
s_lshl_b32 s46, s68, 7
s_lshl_b32 s47, s38, 6
s_add_u32 s46, s46, s47
s_add_u32 s44, s44, s46
s_add_u32 s62, s62, s44
s_addc_u32 s63, s63, 0
s_lshl_b32 s46, s46, 1
s_add_u32 s46, s46, {WS_MOD}
s_add_u32 s16, s20, s46
s_addc_u32 s17, s21, 0                ; gb
s_lshl_b32 s44, s38, 12
s_lshl_b32 s46, s45, 8
s_add_u32 s44, s44, s46
s_and_b32 s46, s33, 2
s_lshl_b32 s46, s46, 15
s_add_u32 s44, s44, s46
v_lshlrev_b32 v0, 4, v0
v_lshl_add_u32 v0, v9, 9, v0
v_add_u32 v0, s44, v0
v_add_u32 v5, {2*HF_TT}, v3
s_lshl_b32 s49, s33, 13
""")

def ffn(A, W, RT, wload):
    XF = [24, 32]; STT = 40; CF = 44; R = [52, 84]
    WD = lambda j: 200 + 4 * j if j < 6 else W(j - 6)
    RING = [STT, W(28), CF, CF + 4] + [W(k) for k in range(22, 28)] + [24 + 4 * i for i in range(4)]
    T = R[1]
    def dma(j, stride, vo):
        n = 4096 // stride
        o = f"s_add_u32 m0, m0, 4096\nv_add_u32 v{vo}, 4096, v{vo}\n" if j and j % n == 0 else ""
        return o + f"global_load_lds_dwordx4 v{vo}, s[20:21] offset:{stride*(j%n)} sc1"
    def probe(t, lo, hi, stride):
        return [f"ds_read2st64_b32 {v(t+j-lo,2)}, v14 offset0:{j*stride//256} offset1:{min(j+1,hi-1)*stride//256}" for j in range(lo, hi, 2)]
    def fold(t, n):
        o = [f"v_max3_u32 v{t}, v{t}, v{t+j}, v{t+j+1}" if j + 1 < n else f"v_max_u32 v{t}, v{t}, v{t+j}" for j in range(1, n, 2)]
        return o + [f"v_cmp_eq_u32 vcc, -1, v{t}"]
    nl = "\n".join
    A(f"""
G_xa:
s_mov_b32 m0, s26
v_add_u32 v4, s27, v3
{nl(dma(j, 4096, 4) for j in range(7))}
s_mov_b64 exec, -1
s_waitcnt vmcnt(5)
{nl(probe(T, 0, 2, 4096))}
s_waitcnt lgkmcnt(0)
{nl(fold(T, 2))}
s_cbranch_vccnz G_xs
""")
    RT.append(f"""G_xs:
{lim('G_go')}
s_waitcnt vmcnt(0)
{nl(probe(T + 2, 2, 7, 4096))}
s_waitcnt lgkmcnt(0)
{nl(fold(T, 7))}
s_mov_b64 exec, vcc
s_branch G_xa""")
    Q = []
    done = [0]
    def issue(op):
        kind, j = op
        if kind == 'd':
            if j == 16: A("s_add_u32 s4, s4, 8192\ns_addc_u32 s5, s5, 0")
            A(f"global_load_dwordx4 {v(WD(j),4)}, v{1 if j & 1 else 3}, s[4:5] offset:{1024*((j>>1)%8)-4096} sc1")
        else:
            A(j)
        Q.append(op)
    def wait(op, extra=""):
        n = len(Q) - 1 - Q.index(op) if op else len(Q)
        done[0] = max(done[0], len(Q) - n)
        A(f"s_waitcnt vmcnt({n}){extra}")
    order = [('d', j) for j in range(28)]
    def slot():
        if order: issue(order.pop(0))
    def reads(g):
        return [f"ds_read_b64_tr_b16 {v(XF[g&1]+4*i+2*h,2)}, v{12+i} offset:{1024*(g%28)+256*h}" for i in range(2) for h in range(2)]
    def corr(p, z):
        for i in range(2): A(f"v_mfma_f32_32x32x16_bf16 {v(R[p]+16*i,16)}, {v(W(28),4)}, {v(CF+4*i,4)}, {'0' if z else v(R[p]+16*i,16)}")
    ST = lambda p, i: ('s', f"global_store_dwordx4 v{1 if i else 3}, {v(R[p]+16*i+8,4)}, s[6:7] sc1")
    def epilogue(p):
        o = []
        for i in range(2):
            G = R[p] + 16 * i; U = G + 8
            o += [f"v_max_f32 v{G+r}, 0, v{G+r}" for r in range(8)]
            o += [f"v_mul_f32 v{G+r}, v{G+r}, v{U+r}" for r in range(8)]
            o += [f"v_cvt_pk_bf16_f32 v{U+r//2}, v{G+r}, v{G+r+1}" for r in range(0, 8, 2)]
            o.append(lambda i=i: issue(ST(p, i)))
        return o
    def run(l):
        for f in l: f() if callable(f) else A(f)
    def flag(off, lbl):
        A(f"s_barrier\ns_cmp_lg_u32 s33, 3\ns_cbranch_scc1 {lbl}\ns_mov_b64 exec, 1\nglobal_store_dword v18, v19, s[12:13] offset:{off} sc1\ns_mov_b64 exec, -1\n{lbl}:")
    fill, pre = {g: [] for g in range(56)}, {}
    def spread(l, lo, hi):
        n = hi - lo
        for k in range(n): fill[lo + k] += l[len(l) * k // n:len(l) * (k + 1) // n]
    dsq = []
    def ds(ins, tag): A(ins); dsq.append(tag)
    def lg(tag): return f"lgkmcnt({min(15, len(dsq) - 1 - max(i for i, t in enumerate(dsq) if t == tag))})"
    I = lambda op: (lambda: issue(op))
    Wt = lambda op: (lambda: wait(op))
    fill[SBK] += [Wt(None)] + probe(T, 2, 7, 4096)
    fill[SBK + 1] += ["need:f"] + fold(T, 5) + ["s_cbranch_vccnz G_br\nG_bo:"]
    RT.append(f"""G_br:
{lim('G_bo')}
s_add_u32 m0, s26, 4096
s_mov_b64 exec, vcc
v_add_u32 v4, s27, v3
v_add_u32 v4, 4096, v4
{nl(dma(j, 4096, 4) for j in range(2, 7))}
s_mov_b64 exec, -1
s_waitcnt vmcnt(0)
{nl(probe(T, 2, 7, 4096))}
s_waitcnt lgkmcnt(0)
{nl(fold(T, 5))}
s_cbranch_vccnz G_br
s_branch G_bo""")
    WL_ = {j: ('w', wload(j)) for j in range(NW1, 28)}
    spread([I(WL_[j]) for j in range(NW1, 28)], 0, EV("SW1", 10))
    XC = [('x', dma(j, 1024, 4)) for j in range(7)]
    assert SC0 > SBK + 1
    fill[SC0] += ["s_mov_b32 m0, s28", "v_add_u32 v4, s29, v3"]
    for j in range(7): fill[SC0 + j].append(I(XC[j]))
    pre[7] = lambda: A("s_barrier")
    UV = [('u', f"global_load_dword v{W(28)+q}, v15, s[20:21] sc1" + (f"\nv_add_u32 v15, {28*1024}, v15" if q < 3 else "")) for q in range(4)]
    spread([I(u) for u in UV], EV("SUV", 14), EV("SUV", 14) + 4)
    fill[8].append("v_add_u32 v14, s28, v3")
    spread([slot] * 6, SD0, SD0 + 6)
    fill[SCK] += [Wt(XC[6])] + probe(T, 0, 7, 1024)
    fill[SCK + 1] += ["need:f"] + fold(T, 7) + ["s_cbranch_vccnz G_cr\nG_co:"]
    RT.append(f"""G_cr:
{lim('G_co')}
s_mov_b32 m0, s28
s_mov_b64 exec, vcc
v_add_u32 v4, s29, v3
{nl(dma(j, 1024, 4) for j in range(7))}
s_mov_b64 exec, -1
s_waitcnt vmcnt(0)
{nl(probe(T, 0, 7, 1024))}
s_waitcnt lgkmcnt(0)
{nl(fold(T, 7))}
s_cbranch_vccnz G_cr
s_branch G_co""")
    SR = [STT, STT + 2, CF, CF + 4]
    SL = [('c', f"global_load_dwordx2 {v(SR[i],2)}, v16, s[22:23] offset:{512*i} sc1") for i in range(4)]
    spread([I(s) for s in SL], SCF, SCF + 2)
    assert SCK + 1 < SCC
    fill[32] += ["v_and_b32 v4, 0x30, v2", "v_lshlrev_b32 v4, 1, v4"]
    sc = [f"v_xor_b32 v{20+i}, {TAG}, v{SR[i]+1}" for i in range(4)] + ["v_or3_b32 v20, v20, v21, v22", "v_or_b32 v20, v20, v23", "v_cmp_ne_u32 vcc, 0, v20"]
    fill[SCC - 1] += [Wt(SL[3])] + sc + ["s_cbranch_vccnz G_sr\nG_so:\n;TP sok"]
    RT.append(f"G_sr:\n{lim('G_so')}\n{nl(s[1] for s in SL)}\ns_waitcnt vmcnt(0)\n{nl(sc)}\ns_cbranch_vccnz G_sr\ns_branch G_so")
    fill[SCC] += [f"v_mov_b32 v{CF+4*i+r}, v{CF+4*i}" for i in range(2) for r in (1, 2, 3)] + [lambda: corr(1, True)]
    fill[SCC + 1] += [f"v_mov_b32 v{CF+4*i+r}, v{STT+2*i}" for i in range(2) for r in range(4)]
    fill[SCC + 2] += [lambda: corr(0, False), "v_add_u32 v16, s49, v3"]
    fill[26] += [f"v_add_u32 v{r}, {2*TB}, v{r}" for r in (12, 13)]
    pre[27] = lambda: A("s_barrier")
    BS = []
    def ab():
        A(";TP k1")
        nb = len(order) - NDA
        BS.extend(1 + (k * 27) // nb for k in range(nb))
    pre[28] = ab
    hl = lambda n: f"global_load_dwordx4 {v(RING[n%14],4)}, v{5 if n >= 14 else 3}, s[{8 if n%14 < 8 else 10}:{9 if n%14 < 8 else 11}] offset:{1024*(n%14%8)-4096} sc1"
    spread(epilogue(0) + [f"s_add_u32 s6, s6, {2*HF_TT}\ns_addc_u32 s7, s7, 0"], 28, 28 + EV("EPS", 4))
    RL = [('r', "global_load_dword v7, v7, s[22:23] sc1")] + [('r', f"global_load_dword v{8+j}, v8, s[20:21] offset:{128*j} sc1") for j in (3, 2, 1, 0)]
    spread([I(r) for r in RL], 28 + SB1, 28 + SB1 + 5)
    pre[28 + SB1] = lambda: (wait(ST(0, 1)), flag(0, "K3_fa"))
    PA = ('p', "global_load_dword v15, v17, s[12:13] sc1"); PB = ('p', "global_load_dword v2, v17, s[12:13] offset:64 sc1")
    pre[28 + SB2] = lambda: (issue(PA), issue(('g', "global_load_dwordx4 v[20:23], v4, s[16:17] sc1")))
    A("G_go:\ns_barrier\n;TP k0")
    for i, r in enumerate(reads(0)): ds(r, (0, i // 2))
    for g in range(56):
        p, s = divmod(g, 28)
        fl = list(fill[g])
        pr = pre.get(g)
        if pr: pr()
        nxt = reads(g + 1) if g < 55 else []
        for i in range(2):
            if i == 0 and g in WL_ and Q.index(WL_[g]) >= done[0]: wait(WL_[g], " " + lg((g, i)))
            else: A(f"s_waitcnt {lg((g, i))}")
            if i == 0: A(f";TP {'ae'[p]}{s}")
            A(f"v_mfma_f32_32x32x16_bf16 {v(R[p]+16*i,16)}, {v(W(s),4)}, {v(XF[g&1]+4*i,4)}, {'0' if g == 0 else v(R[p]+16*i,16)}")
            for h in range(2):
                if nxt: ds(nxt.pop(0), (g + 1, i))
            if p == 1 and BS.count(s) > 1 - i:
                assert order[0][0] == 'd' and order[0][1] - 6 < s
                slot()
            n = (len(fl) + 1) // 2 if i == 0 else len(fl)
            if i == 0 and g == 26: n = min(n, len(fl) - 2)
            for _ in range(n):
                f = fl.pop(0)
                if callable(f): f()
                elif f.startswith("need:"): A(f"s_waitcnt {lg(f[5:])}")
                elif f.startswith("ds_"): ds(f, 'f')
                else: A(f)
    A(";TP k2")
    run(epilogue(1))
    A(";TP k3")
    wait(PA)
    A(f"K3_pc:\nv_cmp_ne_u32 vcc, {TAG}, v15\ns_cbranch_vccnz K3_pr\nK3_po:")
    issue(('g', "global_load_dwordx4 v[12:15], v4, s[16:17] offset:16 sc1"))
    stream = []
    for n in range(28):
        while order and order[0][1] <= 2 * n + 1: stream.append(order.pop(0))
        stream.append(('h', hl(n)))
    hb0 = stream.index(('h', hl(14)))
    pos = [0]
    def feed(k):
        while pos[0] < k: issue(stream[pos[0]]); pos[0] += 1
    feed(HB2)
    A("v_and_b32 v7, 0xffff0000, v7\nv_mul_f32 v7, v7, v7\nv_rcp_f32 v7, v7")
    wait(ST(1, 1))
    flag(64, "K3_fb")
    A(";TP k4")
    feed(hb0)
    wr = lambda tt, dt, q: f"ds_write_b128 v16, {v(R[tt]+16*dt+4*q,4)} offset:{4096*dt+1024*q}"
    early = [wr(0, dt, q) for dt in range(2) for q in range(4)] + ["v_add_u32 v16, 65536, v16"]
    for n in range(28):
        tt, k = divmod(n, 14)
        if n == GO:
            wait(PB); A(f";TP g0\nK3_qc:\nv_cmp_ne_u32 vcc, {TAG}, v2\ns_cbranch_vccnz K3_qr\nK3_qo:\n;TP g1")
        if n >= GO: feed(min(len(stream), hb0 + n))
        if n == 14: run(early); early = []
        wait(('h', hl(n)))
        if n == PL: issue(PB)
        for dt in range(2):
            t = R[tt] + 16 * dt
            A(f"v_mfma_f32_32x32x16_bf16 {v(t,16)}, {v(WD(2*k+dt),4)}, {v(RING[k],4)}, {'0' if k == 0 else v(t,16)}")
    A(";TP k5")
    for dt in range(2):
        for q in range(4): A(wr(1, dt, q))
    B = [116 + 4 * i for i in range(16)]
    XR, TO, GB = 232, 240, [20, 21, 22, 23, 12, 13, 14, 15]
    for j in range(4): A(f"v_lshlrev_b32 v{XR+2*j}, 16, v{8+j}\nv_and_b32 v{XR+2*j+1}, 0xffff0000, v{8+j}")
    gc = [f"v_xor_b32 v{GB[2*j+1]}, {TAG}, v{GB[2*j+1]}" for j in range(4)] + ["v_or3_b32 v21, v21, v23, v13", "v_or_b32 v21, v21, v15", "v_cmp_ne_u32 vcc, 0, v21"]
    A(nl(gc) + "\ns_cbranch_vccnz G_gr\nG_gok:")
    RT.append(f"G_gr:\n{lim('G_gok')}\nglobal_load_dwordx4 v[20:23], v4, s[16:17] sc1\nglobal_load_dwordx4 v[12:15], v4, s[16:17] offset:16 sc1\ns_waitcnt vmcnt(0)\n{nl(gc)}\ns_cbranch_vccnz G_gr\ns_branch G_gok")
    for j in range(4): A(f"v_and_b32 v{GB[2*j+1]}, 0xffff0000, v{GB[2*j]}\nv_lshlrev_b32 v{GB[2*j]}, 16, v{GB[2*j]}")
    for r in range(8): A(f"v_mul_f32 v{GB[r]}, v7, v{GB[r]}")
    A("s_waitcnt lgkmcnt(0)\n;TP w1\ns_barrier\n;TP x1")
    for src in range(8):
        for h in range(2): A(f"ds_read_b128 {v(B[2*src+h],4)}, v0 offset:{8192*src+2048*h}")
    for src in range(1, 8):
        A(f"s_waitcnt lgkmcnt({14-2*src})")
        for h in range(2):
            for r in (0, 2): A(f"v_pk_add_f32 {v(B[h]+r,2)}, {v(B[h]+r,2)}, {v(B[2*src+h]+r,2)}")
    for j in range(4):
        A(f"v_fma_f32 v{XR+2*j}, v{GB[2*j]}, v{B[0]+j}, v{XR+2*j}\nv_fma_f32 v{XR+2*j+1}, v{GB[2*j+1]}, v{B[1]+j}, v{XR+2*j+1}")
    for j in range(4): A(f"v_cvt_pk_bf16_f32 v{TO+j}, v{XR+2*j}, v{XR+2*j+1}")
    A(f"global_store_dwordx4 v6, {v(TO,4)}, s[62:63]\ns_endpgm")
    RT.append(f"""K3_pr:
{lim('K3_po')}
global_load_dword v15, v17, s[12:13] sc1
s_waitcnt vmcnt(0)
s_branch K3_pc
K3_qr:
{lim('K3_qo')}
{"s_sleep " + SLP if SLP != "0" else ""}
global_load_dword v2, v17, s[12:13] offset:64 sc1
s_waitcnt vmcnt(0)
s_branch K3_qc""")

def kf(A):
    A(f""".globl {KN}
.p2align 8
.type {KN},@function
{KN}:
s_cmp_ge_u32 s2, {KF_GRID}
s_cbranch_scc1 F_end
s_load_dwordx2 s[36:37], s[0:1], 0
s_load_dwordx2 s[20:21], s[0:1], 136
s_load_dwordx16 s[4:19], s[0:1], 8
s_load_dwordx8 s[44:51], s[0:1], 80
s_load_dwordx2 s[52:53], s[0:1], 112  ; w_mod
s_load_dwordx2 s[62:63], s[0:1], 120  ; out
s_getpc_b64 s[22:23]
F_pc:
s_add_u32 s22, s22, ktab-F_pc
s_addc_u32 s23, s23, 0
v_and_b32 v17, 255, v0
v_lshlrev_b32 v17, 4, v17             ; n*16
v_lshrrev_b32 v1, 6, v0
v_and_b32 v2, 63, v0                  ; lane
v_readfirstlane_b32 s33, v1           ; w
{CPF}
global_load_dwordx4 v[20:23], v17, s[22:23]
global_load_ushort v19, v17, s[22:23] offset:16
v_lshlrev_b32 v3, 4, v2               ; lane*16
s_and_b32 s34, s2, 1
s_lshl_b32 s3, s2, 3
s_mul_i32 s34, s34, 6
s_sub_u32 s3, s3, s34
s_and_b32 s34, s33, 6
s_add_u32 s3, s3, s33
s_add_u32 s3, s3, s34
s_mul_i32 s3, s3, 896
v_add_u32 v8, s3, v3
v_mov_b32 v4, 0
v_mov_b32 v5, 0
v_mov_b32 v6, 0
v_mov_b32 v7, 0
s_and_b32 s34, s2, 7
s_lshr_b32 s35, s2, 4
s_lshl_b32 s35, s35, 3
s_add_u32 s35, s35, s34
s_lshl_b32 s35, s35, 1
s_bfe_u32 s38, s2, 0x10003
s_add_u32 s35, s35, s38               ; c
s_lshr_b32 s38, s33, 2                ; ch
s_mov_b32 s43, 0
s_mov_b32 s58, {L_R}
s_mov_b32 s42, {ONES}
s_cmp_ge_u32 s2, {NCV}
s_cbranch_scc1 F_spare_loads
s_lshl_b32 s3, s35, 10
v_lshl_add_u32 v1, v0, 1, s3
s_lshl_b32 s3, s35, 2
v_bfe_u32 v10, v0, 5, 1
v_mul_u32_u24 v10, {HS}, v10
v_and_b32 v11, 31, v0
v_lshl_add_u32 v10, v11, 4, v10
v_add_u32 v10, {L_H}, v10
v_bfe_u32 v11, v0, 2, 2
v_mul_u32_u24 v11, {KC}, v11
v_and_b32 v12, 3, v0
v_lshl_add_u32 v11, v12, 4, v11
v_add_u32 v11, {L_K + 4096}, v11
v_cmp_gt_u32 vcc, 64, v0
v_cndmask_b32 v10, v11, v10, vcc
ds_write_b128 v10, v[4:7]
""")
    for r in range(10, 16): A(f"v_mov_b32 v{r}, 0")
    A(f"""
s_mov_b32 exec_hi, 0x00ffffff
s_waitcnt lgkmcnt(0)
global_load_dwordx4 v[4:7], v8, s[36:37]
s_mov_b32 exec_hi, -1
s_load_dword {TAG}, s[20:21], {WS_EP}
s_load_dword s39, s[16:17], s3
s_load_dword s41, s[18:19], s3
s_and_b32 s27, s33, 3
s_lshl_b32 s27, s27, 8
s_mul_i32 s28, s38, {KGS}
s_add_u32 s27, s27, s28
s_mov_b32 m0, s27
v_and_b32 v24, 31, v2
v_lshrrev_b32 v25, 5, v2
v_mul_u32_u24 v{pFR}, {RS}, v24
v_lshl_add_u32 v{pFR}, v25, 4, v{pFR}
v_add_u32 v{pFR}, s27, v{pFR}
v_mul_u32_u24 v{pPW}, {4*RS}, v25
v_lshl_add_u32 v{pPW}, v24, 2, v{pPW}
v_add_u32 v{pPW}, s27, v{pPW}
; granules
v_lshrrev_b32 v{pGX0}, 2, v0
v_mul_u32_u24 v{pGX0}, {2*XGP}, v{pGX0}
v_and_b32 v26, 3, v0
v_lshl_add_u32 v{pGX0}, v26, 4, v{pGX0}
s_lshl_b32 s3, s35, 6
s_add_u32 s3, s3, {WS_XG}
v_add_u32 v{pGX0}, s3, v{pGX0}
v_add_u32 v{pGX1}, {XGP}, v{pGX0}
v_lshlrev_b32 v{pGS0}, 4, v0
v_add_u32 v{pGS0}, {WS_SG}, v{pGS0}
v_add_u32 v{pGS1}, 8192, v{pGS0}
""")
    for i in range(6): A(f"global_load_short_d16_hi v{10+i}, v1, s[{4+2*i}:{5+2*i}]")
    POI = f"global_store_dwordx4 v{pXO}, v[200:203], s[74:75] sc1\nglobal_store_dwordx4 v{pXO}, v[200:203], s[20:21] sc1"
    A(f"""
v_and_b32 v29, 15, v0                 ; m / p / cq
v_bfe_u32 v27, v0, 4, 2               ; kq
v_bfe_u32 v28, v0, 4, 4
v_min_u32 v28, 13, v28                ; rgrp 0..13
s_cmp_lg_u32 s38, 0
s_cbranch_scc1 F_hb
s_lshr_b32 s3, s2, 1
s_lshl_b32 s3, s3, 4
s_and_b32 s46, s2, 1
s_add_u32 s3, s3, s46
s_add_u32 s3, s3, 4
s_mul_i32 s3, s3, 896
v_lshlrev_b32 v{pWD}, 6, v28
v_lshl_add_u32 v{pWD}, v29, 2, v{pWD}
v_add_u32 v{pWD}, s3, v{pWD}          ; row +4
""")
    def rawD():
        for e in (0, 4, 1, 5, 2): A(f"global_load_dword v{DL+e}, v{pWD}, s[48:49] offset:{896*(4*(e&3)+2*(e>>2)-4)}")
        A(f"v_add_u32 v{pWD}, {8*896}, v{pWD}")
        for e in (6, 3, 7): A(f"global_load_dword v{DL+e}, v{pWD}, s[48:49] offset:{896*(4*(e&3)+2*(e>>2)-12)}")
    def rawW():
        for j in range(8):
            A(f"global_load_dwordx2 {v(WL+2*j,2)}, v{pWA}, s[44:45] offset:{3584*(j%3-1)}")
            if j % 3 == 2: A(f"v_add_u32 v{pWA}, {3*3584}, v{pWA}")
    if WPOS == 0: rawD()
    A(f"""
v_mul_u32_u24 v{pDO}, {HF_TT}, v28
v_lshl_add_u32 v{pDO}, v29, 4, v{pDO}
s_lshl_b32 s3, s2, 9
s_add_u32 s3, s3, {WS_WDF}
v_add_u32 v{pDO}, s3, v{pDO}
s_lshr_b32 s3, s33, 1
s_and_b32 s29, s33, 1                 ; half
v_and_b32 v{pA0}, 1, v29
v_xor_b32 v{pA0}, 1, v{pA0}
v_mul_u32_u24 v{pA0}, {KC}, v{pA0}
v_lshrrev_b32 v{pA1}, 1, v29
v_lshlrev_b32 v{pA1}, 2, v{pA1}
v_sub_u32 v{pA0}, v{pA0}, v{pA1}
v_lshl_add_u32 v{pA0}, v27, 4, v{pA0}
s_mul_i32 s24, s3, {2*KC}
s_lshl_b32 s25, s29, 8
s_sub_u32 s24, s24, s25
s_add_u32 s24, s24, {L_K + 4060 - 192 - 512}
v_add_u32 v{pA0}, s24, v{pA0}
v_subrev_u32 v{pA1}, 1024, v{pA0}
v_subrev_u32 v{pA2}, 2048, v{pA0}
v_subrev_u32 v{pA3}, 3072, v{pA0}
v_lshlrev_b32 v{pB}, 5, v29
v_lshl_add_u32 v{pB}, v27, 4, v{pB}
s_mul_i32 s24, s3, {HS}
s_sub_u32 s24, s24, s25
s_add_u32 s24, s24, {L_H + 480 - 192}
v_add_u32 v{pB}, s24, v{pB}
v_mul_u32_u24 v{pYW}, 320, v27
v_lshl_add_u32 v{pYW}, v29, 4, v{pYW}
s_mul_i32 s24, s33, {YW}
v_add_u32 v{pYW}, s24, v{pYW}
F_com:
v_lshrrev_b32 v{pXO}, 3, v0
v_mul_u32_u24 v{pXO}, {TB}, v{pXO}
v_and_b32 v27, 7, v0
v_lshl_add_u32 v{pXO}, v27, 4, v{pXO}
s_lshl_b32 s3, s35, 7
s_add_u32 s3, s3, {WS_X1}
v_add_u32 v{pXO}, s3, v{pXO}
s_add_u32 s74, s20, {WS_XS - WS_X1}
s_addc_u32 s75, s21, 0
v_mov_b32 v200, -1
v_mov_b32 v201, -1
v_mov_b32 v202, -1
v_mov_b32 v203, -1
{POI if POIS == 0 else ""}
v_and_b32 v27, 1, v0
v_mul_u32_u24 v{pGM}, {MGH}, v27
v_and_b32 v27, 2, v0
v_lshl_add_u32 v{pGM}, v27, 2, v{pGM}
s_lshl_b32 s3, s35, 4
s_add_u32 s3, s3, {WS_MG}
v_add_u32 v{pGM}, s3, v{pGM}
v_bfe_u32 v27, v0, 2, 1
v_bfe_u32 v28, v0, 3, 1
v_mad_u32_u24 v{pGA}, v27, 3, 2
v_lshl_add_u32 v{pGA}, v28, 1, v{pGA}
v_min_u32 v{pGA}, 5, v{pGA}
v_mul_u32_u24 v{pGA}, 3584, v{pGA}
v_add_u32 v{pGA}, v{pGM}, v{pGA}
v_mul_u32_u24 v27, 3584, v27
v_add_u32 v{pGM}, v{pGM}, v27
v_lshlrev_b32 v{pHW}, 3, v0
v_add_u32 v{pHW}, {L_H}, v{pHW}
v_mul_u32_u24 v{pYR}, 320, v26
v_bfe_u32 v27, v0, 2, 4
v_lshl_add_u32 v{pYR}, v27, 4, v{pYR}
s_mul_i32 s3, s33, 1280
v_add_u32 v{pYR}, s3, v{pYR}
v_mov_b32 v27, {255*16}
v_cmp_eq_u32 s[30:31], v27, v17
s_mul_i32 s3, s38, {2*KC}
s_add_u32 s3, s3, {L_K}
v_add_u32 v17, s3, v17
s_mov_b32 s14, 0x05040100
s_mov_b32 s15, 0x07060302
s_branch F_stats
F_hb:
s_lshr_b32 s24, s2, 5
s_lshl_b32 s24, s24, 3
s_add_u32 s24, s24, s34               ; q
s_lshl_b32 s59, s24, 9
s_and_b32 s25, s24, 1                 ; mat
s_lshr_b32 s24, s24, 1                ; cg
s_bfe_u32 s26, s2, 0x20003            ; rq
s_cmp_eq_u32 s25, 0
s_cselect_b32 s44, s44, s46
s_cselect_b32 s45, s45, s47
v_mul_u32_u24 v{pWA}, {8*3584}, v28
v_lshl_add_u32 v{pWA}, v29, 3, v{pWA}
s_mul_i32 s3, s26, {112*3584}
s_lshl_b32 s46, s24, 7
s_add_u32 s3, s3, s46
s_add_u32 s3, s3, 3584
v_add_u32 v{pWA}, s3, v{pWA}
""")
    if WPOS == 0: rawW()
    A(f"""
s_and_b32 s27, s33, 3
s_lshl_b32 s3, s27, 5
v_add_u32 v{pSB0}, s3, v24
v_min_u32 v{pSB0}, 111, v{pSB0}
s_mul_i32 s3, s26, {112*8}
s_add_u32 s3, s3, {WS_MG + 3*3584}
v_lshl_add_u32 v{pSB0}, v{pSB0}, 3, s3
v_mul_u32_u24 v31, 3584, v25
v_add_u32 v{pSB0}, v{pSB0}, v31
v_add_u32 v{pSB1}, {MGH}, v{pSB0}
s_mul_i32 s3, s26, {28*1024}
s_add_u32 s59, s59, s3
s_add_u32 s59, s59, {WS_UV}
s_mul_i32 s3, s24, {4*WF_FG}
s_lshl_b32 s46, s25, 8
s_add_u32 s3, s3, s46
s_mul_i32 s46, s26, {14*512}
s_add_u32 s3, s3, s46
s_add_u32 s3, s3, {WS_WF}
v_lshrrev_b32 v{pFO}, 2, v29
v_mul_u32_u24 v{pFO}, {WF_FG}, v{pFO}
v_lshl_add_u32 v{pFO}, v28, 9, v{pFO}
v_lshl_add_u32 v{pFO}, v26, 4, v{pFO}
v_add_u32 v{pFO}, s3, v{pFO}
s_lshl_b32 s3, s27, 9
s_add_u32 s3, s3, {L_U}
v_lshl_add_u32 v{pUV}, v25, 8, s3
v_lshl_add_u32 v{pUV}, v29, 4, v{pUV}
s_lshl_b32 s3, s27, 7
s_add_u32 s3, s3, {L_V}
v_lshl_add_u32 v{pVW}, v2, 1, s3
v_lshl_add_u32 v{pAV}, v27, 4, s3
v_and_b32 v31, 8, v29
v_xor_b32 v31, 8, v31
v_lshl_add_u32 v{pAV}, v31, 3, v{pAV}
v_mov_b32 v31, {L_H}
v_cmp_gt_u32 vcc, 480, v0
v_cndmask_b32 v{pAV}, v31, v{pAV}, vcc
v_mov_b32 v{pDO}, 0
s_branch F_com
F_spare_loads:
""")
    for r in [199] + list(range(204, 224)): A(f"v_mov_b32 v{r}, 0")
    P = [96, 112, 128]
    AC = 64
    LM = 0
    A(f"""
s_sub_u32 s24, s2, {NCV}
s_min_u32 s25, s24, 27
s_and_b32 s26, s25, 1                 ; hf
s_lshr_b32 s25, s25, 1                ; g
v_lshrrev_b32 v12, 3, v0
v_min_u32 v12, 55, v12
v_and_b32 v13, 7, v0                  ; chunk
s_mul_i32 s27, s26, 448
v_lshl_add_u32 v10, v12, 3, s27       ; c offset
v_mul_u32_u24 v14, {4*5376}, v12
v_lshl_add_u32 v14, v13, 4, v14
s_mul_i32 s27, s26, {224*5376}
s_lshl_b32 s28, s25, 7
s_add_u32 s27, s27, s28
v_add_u32 v14, s27, v14
v_add_u32 v15, 5376, v14
v_add_u32 v16, {2*5376}, v14
v_add_u32 v18, {3*5376}, v14
s_cmp_ge_u32 s25, 7
s_cselect_b32 s29, 2, 1
s_mul_i32 s29, s29, 1792
s_mov_b32 exec_hi, 0x00ffffff
s_waitcnt lgkmcnt(0)
global_load_dwordx4 v[4:7], v8, s[36:37]
s_mov_b32 exec_hi, -1
s_load_dword {TAG}, s[20:21], {WS_EP}
s_cmp_eq_u32 s33, 7
s_cbranch_scc1 F_stats0
global_load_dwordx2 v[10:11], v10, s[50:51]
""")
    RA = [14, 15, 16, 18]
    for i in range(4): A(f"global_load_dwordx4 {v(P[0]+4*i,4)}, v{RA[i]}, s[52:53]")
    A(f"""
s_mov_b32 s27, {hex(LOG2E | 0x80000000)}
v_lshrrev_b32 v24, 5, v2
v_lshlrev_b32 v24, 4, v24
v_lshl_add_u32 v24, v13, 5, v24
v_bfe_u32 v25, v2, 4, 1
v_lshl_add_u32 v24, v25, 3, v24
s_lshl_b32 s3, s33, 8
v_add_u32 v24, s3, v24
s_waitcnt vmcnt(4)
v_lshlrev_b32 v44, 16, v10
v_and_b32 v45, 0xffff0000, v10
v_lshlrev_b32 v46, 16, v11
v_and_b32 v47, 0xffff0000, v11
""")
    for i in range(4): A(f"v_mul_f32 v{48+i}, s27, v{44+i}")
    for i in range(4): A(f"v_exp_f32 v{48+i}, v{48+i}")
    for i in range(4): A(f"v_add_f32 v{48+i}, 1.0, v{48+i}")
    for i in range(4): A(f"v_rcp_f32 v{48+i}, v{48+i}")
    for i in range(4): A(f"v_mul_f32 v{44+i}, v{44+i}, v{48+i}")
    A("v_cvt_pk_bf16_f32 v48, v44, v45\nv_cvt_pk_bf16_f32 v49, v46, v47")
    A("v_lshlrev_b32 v44, 16, v48\nv_and_b32 v45, 0xffff0000, v48\nv_lshlrev_b32 v46, 16, v49\nv_and_b32 v47, 0xffff0000, v49")
    def gemv(p, waitbase):
        for i in range(4):
            A(f"s_waitcnt vmcnt({waitbase - i})")
            if i == 3 and p < 2:
                for k in range(4): A(f"global_load_dwordx4 {v(P[p+1]+4*k,4)}, v{RA[k]}, s[52:53]" + (" offset:2688" if p == 0 else ""))
            for j in range(4): A(f"v_lshlrev_b32 v{56+2*j}, 16, v{P[p]+4*i+j}\nv_and_b32 v{57+2*j}, 0xffff0000, v{P[p]+4*i+j}")
            for j in range(8):
                if i == 0: A(f"v_mul_f32 v{AC+j}, v44, v{56+j}")
                else: A(f"v_fmac_f32 v{AC+j}, v{44+i}, v{56+j}")
        for j in range(4): A(f"v_permlane32_swap_b32 v{AC+j}, v{AC+4+j}")
        for j in range(4): A(f"v_add_f32 v{AC+j}, v{AC+j}, v{AC+4+j}")
        for j in range(2): A(f"v_permlane16_swap_b32 v{AC+j}, v{AC+2+j}")
        for j in range(2): A(f"v_add_f32 v{AC+j}, v{AC+j}, v{AC+2+j}")
        for j in range(2): A(f"v_add_f32_dpp v{AC+j}, v{AC+j}, v{AC+j} row_ror:8 row_mask:0xf bank_mask:0xf")
        A(f"ds_write_b64 v24, {v(AC,2)} offset:{LM + 2048*p}")
    gemv(0, 3)
    A(f""";TP s1
s_branch F_stats
F_stats0:
v_lshlrev_b32 v26, 2, v2
s_mul_i32 s3, s26, {MGH}
s_lshl_b32 s28, s25, 9
s_add_u32 s3, s3, s28
s_add_u32 s3, s3, {WS_MG}
v_lshl_add_u32 v25, v2, 3, s3
s_waitcnt vmcnt(0)
F_stats:
""")
    A(f"""
s_mul_i32 s3, s33, {RSTR}
s_add_u32 s3, s3, {L_R}
v_add_u32 v8, s3, v3
v_and_b32 v30, 3, v0
v_mul_u32_u24 v28, {2*RSTR}, v30
v_and_b32 v29, 0x1fc, v0
v_add3_u32 v28, v28, v29, s58
v_add_u32 v31, {L_S}, v3
s_mul_i32 s3, s2, {XGP}
s_add_u32 s3, s3, {WS_XG}
v_lshl_add_u32 v29, v0, 4, s3
v_add_u32 v27, {XGP//2}, v29
s_lshr_b32 s3, s2, 1
s_lshl_b32 s3, s3, 6
s_and_b32 s60, s2, 1
s_lshl_b32 s60, s60, 13
s_add_u32 s3, s3, s60
s_add_u32 s3, s3, {WS_SG}
v_add_u32 v9, s3, v3
s_lshl_b32 s3, s33, 3
s_add_u32 s3, s3, {L_S}
v_mov_b32 v30, s3
s_waitcnt vmcnt({6 + 8 * (WPOS == 0) + 2 * (POIS == 0)})
v_dot2_f32_bf16 v42, v4, s42, 0
v_dot2_f32_bf16 v43, v4, v4, 0
s_mov_b32 exec_hi, 0x00ffffff
ds_write_b128 v8, v[4:7]
s_mov_b32 exec_hi, -1
""")
    for j in range(1, 4): A(f"v_dot2_f32_bf16 v42, v{4+j}, s42, v42\nv_dot2_f32_bf16 v43, v{4+j}, v{4+j}, v43")
    A("v_permlane32_swap_b32 v42, v43\nv_add_f32 v42, v42, v43")
    for sh in (8, 4, 2, 1): A(f"v_add_f32_dpp v42, v42, v42 row_ror:{sh} row_mask:0xf bank_mask:0xf")
    PB_ = 160
    A(f"""
v_mov_b32 v43, v42
v_permlane16_swap_b32 v42, v43
v_add_f32 v42, v42, v43
v_mul_f32 v42, {hex(INV448)}, v42
v_mov_b32 v43, v42
v_permlane32_swap_b32 v42, v43        ; v42 mean, v43 E[x^2]
v_fma_f32 v43, -v42, v42, v43
v_max_f32 v43, 0, v43
v_cvt_pk_bf16_f32 v43, v43, v43
v_and_b32 v43, 0xffff0000, v43
v_add_f32 v43, {hex(EPS)}, v43
v_cvt_pk_bf16_f32 v43, v43, v43
v_and_b32 v43, 0xffff0000, v43
v_sqrt_f32 v43, v43
s_waitcnt lgkmcnt(0)
s_add_u32 {TAG}, {TAG}, {hex(TAGC)}
v_mov_b32 v33, {TAG}
v_cvt_pk_bf16_f32 v32, v42, v43
ds_write_b64 v30, v[32:33]
v_mov_b32 v{PB_+1}, {TAG}
v_mov_b32 v{PB_+3}, {TAG}
v_mov_b32 v{PB_+5}, {TAG}
v_mov_b32 v{PB_+7}, {TAG}
s_cmp_ge_u32 s2, {NCV}
s_cbranch_scc1 F_b1
""")
    Z1, Z8, P_ = 34, 36, 38
    T1, T8, TP = 40, 42, 44
    A(f"""
s_lshl_b32 s3, s38, 4
s_lshr_b32 s39, s39, s3
s_lshl_b32 s39, s39, 16
s_lshr_b32 s41, s41, s3
s_lshl_b32 s41, s41, 16
s_mov_b32 s29, {LOG2E}
v_mov_b32 v16, s39
v_mul_f32 v16, s29, v16
v_exp_f32 v16, v16
v_mov_b32 v{pDK}, s41
v_cndmask_b32 v{pDK}, 0, v{pDK}, s[30:31]
v_cvt_pk_bf16_f32 v16, v16, v16
v_and_b32 v16, 0xffff0000, v16        ; dt
s_waitcnt vmcnt({8 * (WPOS == 0) + 2 * (POIS == 0)})
v_mul_f32 v10, v16, v10
v_mul_f32 v11, v16, v11
v_mul_f32 v10, s29, v10
v_mul_f32 v11, 0.15915494, v11
v_mul_f32 v12, v16, v12               ; dB
v_mul_f32 v13, v16, v13
v_mul_f32 v{T8+1}, {hex(f2u(8.0))}, v11
v_mul_f32 v{TP+1}, {hex(f2u(256.0))}, v11
v_mul_f32 v{T8}, {hex(f2u(8.0))}, v10
v_mul_f32 v{TP}, {hex(f2u(256.0))}, v10
v_fract_f32 v{T8+1}, v{T8+1}
v_fract_f32 v{T1+1}, v11
v_fract_f32 v{TP+1}, v{TP+1}
v_exp_f32 v{T8}, v{T8}
v_cos_f32 v{Z8}, v{T8+1}
v_sin_f32 v{Z8+1}, v{T8+1}
v_exp_f32 v{T1}, v10
v_cos_f32 v{Z1}, v{T1+1}
v_sin_f32 v{Z1+1}, v{T1+1}
v_pk_mul_f32 {v(Z8,2)}, {v(Z8,2)}, {v(T8,2)} op_sel_hi:[1,0]
v_exp_f32 v{TP}, v{TP}
v_cos_f32 v{P_}, v{TP+1}
v_sin_f32 v{P_+1}, v{TP+1}
v_pk_mul_f32 {v(Z1,2)}, {v(Z1,2)}, {v(T1,2)} op_sel_hi:[1,0]
v_mov_b32 v175, 0x3f80
v_pk_mul_f32 {v(P_,2)}, {v(P_,2)}, {v(TP,2)} op_sel_hi:[1,0]
F_b1:
s_cmp_eq_u32 s33, 7
s_waitcnt lgkmcnt(0)
s_barrier
;TP b1
s_cbranch_scc1 F_pub7
""")
    for j in range(4): A(f"ds_read_b32 v{PB_+2*j}, v28 offset:{(j&1)*RSTR + (j>>1)*448}")
    A(f"""
s_cmp_ge_u32 s2, {NCV}
s_waitcnt lgkmcnt(2)
global_store_dwordx4 v29, {v(PB_,4)}, s[20:21] sc1
s_waitcnt lgkmcnt(0)
global_store_dwordx4 v27, {v(PB_+4,4)}, s[20:21] sc1
s_cbranch_scc1 F_spare
""")
    if WPOS:
        A("s_cmp_lg_u32 s38, 0\ns_cbranch_scc1 F_wl"); rawD()
    A(f"""
s_branch F_kg
F_pub7:
s_cmp_ge_u32 s2, {NCV}
s_cbranch_scc1 F_spare7
ds_read_b128 {v(PB_,4)}, v31
s_mov_b64 exec, 15
s_waitcnt lgkmcnt(0)
global_store_dwordx4 v9, {v(PB_,4)}, s[20:21] sc1
s_mov_b64 exec, -1
F_wl:
""")
    if WPOS: rawW()
    A("F_kg:\n.p2align 3")
    X = lambda i: 48 + 2 * i
    Y = lambda j: Z8 if j == 1 else 96 + 2 * j
    reg = {'C': 14, 'B': 12, 'Z1': Z1, 'P': P_, 'y1': Z8}
    it = [('x0', ('C', 'B'))] + [(f'x{i}', (f'x{i-1}', 'Z1')) for i in range(1, 8)]
    for i, s in ((8, 0), (9, 2), (10, 4), (11, 6), (12, 8), (13, 12), (14, 10), (15, 14), (16, 13), (17, 16), (18, 17), (19, 18), (20, 19)):
        it.append((f'x{i}', (f'x{s}', 'P')))
    it += [('y2', ('y1', 'y1')), ('y3', ('y2', 'y1')), ('y4', ('y2', 'y2'))] + [(f'y{j}', (f'y{j-4}', 'y4')) for j in range(5, 9)]
    it += [(f'y{j}', (f'y{j-8}', 'y8')) for j in range(9, 32)]
    for n, _ in it: reg[n] = X(int(n[1:])) if n[0] == 'x' else Y(int(n[1:]))
    order = schedule(it); src = dict(it)
    TT = 168
    def outs(n, k):
        t = TT + k % 7
        i = int(n[1:])
        if n[0] == 'x': return f"v_cvt_pk_bf16_f32 v{t}, v{X(i)}, -v{X(i)+1}", f"ds_write_addtid_b32 v{t} offset:{i*RS}"
        return f"v_cvt_pk_bf16_f32 v{t}, v{Y(i)}, v{Y(i)+1}", f"ds_write_addtid_b32 v{t} offset:{(21+i)*RS}"
    seq = [None, None, 'y1'] + order
    N = len(seq)
    A(f"ds_write_addtid_b32 v175 offset:{21*RS}")
    RT = []
    for k in range(3, N + 4):
        if k == KREL and POIS == 1: A(POI)
        g = lambda d: seq[k - d] if 0 <= k - d < N else None
        if g(0): A(cmul(A, reg[g(0)], reg[src[g(0)][0]], reg[src[g(0)][1]])[0])
        if g(3): A(outs(g(3), k - 3)[0])
        if g(1) and g(1) != 'y1': A(cmul(A, reg[g(1)], reg[src[g(1)][0]], reg[src[g(1)][1]])[1])
        if g(4): A(outs(g(4), k - 4)[1])
    AF, BF, ACC = 48, 96, 80
    TA = 24
    for ks in range(8):
        A(f"ds_read_b128 {v(AF+4*ks,4)}, v{pFR} offset:{ks*32}")
        A(f"ds_read_b128 {v(BF+4*ks,4)}, v{pFR} offset:{21*RS + ks*32}")
    GX, GS, GM = 176, 184, 192
    GL = [f"global_load_dwordx4 {v(GX,4)}, v{pGX0}, s[20:21] sc1", f"global_load_dwordx4 {v(GX+4,4)}, v{pGX1}, s[20:21] sc1",
          f"global_load_dwordx4 {v(GS,4)}, v{pGS0}, s[20:21] sc1", f"global_load_dwordx4 {v(GS+4,4)}, v{pGS1}, s[20:21] sc1"]
    mload = f"global_load_dwordx2 {v(GM,2)}, v{pGM}, s[20:21] sc1"
    A(f"v_add_u32 v{TA+8}, s28, v19")
    for ks in range(8):
        A(f"s_waitcnt lgkmcnt({14-2*ks})")
        A(f"v_mfma_f32_32x32x16_bf16 {v(ACC,16)}, {v(AF+4*ks,4)}, {v(BF+4*ks,4)}, {'0' if ks==0 else v(ACC,16)}")
        A(f"v_and_b32 v{TA+ks}, 0xffff, v{20+ks//2}" if ks % 2 == 0 else f"v_lshrrev_b32 v{TA+ks}, 16, v{20+ks//2}")
        A(f"v_add_u32 v{TA+ks}, s28, v{TA+ks}")
        if GPOS == 0 and ks >= 4: A(GL[ks - 4])
    for r in range(12):
        A(f"ds_write_b32 v{pPW}, v{ACC+r} offset:{((r&3)+8*(r>>2))*RS}")
    if GPOS == 1:
        for g in GL: A(g)
    A(f";TP pb2\ns_waitcnt lgkmcnt(0)\ns_barrier\n;TP b2")
    E = 48
    for e in range(9):
        A(f"ds_read2st64_b32 {v(E+4*e,2)}, v{TA+e} offset0:0 offset1:1")
        A(f"ds_read2st64_b32 {v(E+4*e+2,2)}, v{TA+e} offset0:2 offset1:3")
    A(mload)
    for e in range(9):
        A(f"s_waitcnt lgkmcnt({min(15, 16-2*e)})")
        A(f"v_pk_add_f32 {v(E+4*e,2)}, {v(E+4*e,2)}, {v(E+4*e+2,2)}")
        if e == 7: A(f"v_add_f32 v{E+4*e}, v{E+4*e}, v{pDK}")
        A(f"v_add_f32 v{E+4*e}, v{E+4*e}, v{E+4*e+1}")
        if e == 8: A(f"v_cndmask_b32 v{E+32}, v{E+32}, 0, s[30:31]")
        if e & 1: A(f"v_cvt_pk_bf16_f32 v{88+e//2}, v{E+4*e-4}, v{E+4*e}")
        elif e: A(f"v_cvt_pk_bf16_f32 v{92+e//2-1}, v{E+4*e-4}, v{E+4*e}")
        if e == 7: A("ds_write_b128 v17, v[88:91]")
    A(f"ds_write_b128 v17, v[92:95] offset:{KC}")
    A(f"""
s_waitcnt vmcnt(1)
F_chk:
v_xor_b32 v10, {TAG}, v{GX+1}
v_xor_b32 v11, {TAG}, v{GX+3}
v_xor_b32 v12, {TAG}, v{GX+5}
v_xor_b32 v13, {TAG}, v{GX+7}
v_or3_b32 v10, v10, v11, v12
v_xor_b32 v11, {TAG}, v{GS+1}
v_xor_b32 v12, {TAG}, v{GS+3}
v_or3_b32 v10, v10, v11, v12
v_xor_b32 v11, {TAG}, v{GS+5}
v_xor_b32 v12, {TAG}, v{GS+7}
v_or3_b32 v13, v13, v11, v12
v_or_b32 v10, v10, v13
v_cmp_ne_u32 vcc, 0, v10
s_cbranch_vccnz F_rt1
F_ok:
s_mov_b64 exec, -1
""")
    RT += [f"F_rt1:\n{lim('F_ok')}\ns_mov_b64 exec, vcc\n" + "\n".join(GL) + "\ns_waitcnt vmcnt(0)\ns_branch F_chk"]
    XU, ST, H, HP, GA = 32, 48, 56, 64, 40
    for t in range(4): A(f"v_and_b32 v{ST+1+2*t}, 0xffff0000, v{GS+2*t}")
    for t in range(4): A(f"v_rcp_f32 v{ST+1+2*t}, v{ST+1+2*t}")
    for t in range(4): A(f"v_lshlrev_b32 v{ST+2*t}, 16, v{GS+2*t}")
    for t in range(4): A(f"v_lshlrev_b32 v{XU+2*t}, 16, v{GX+2*t}\nv_and_b32 v{XU+2*t+1}, 0xffff0000, v{GX+2*t}")
    for t in range(4): A(f"v_pk_add_f32 {v(H+2*t,2)}, {v(XU+2*t,2)}, {v(ST+2*t,2)} op_sel_hi:[1,0] neg_lo:[0,1] neg_hi:[0,1]")
    for t in range(4): A(f"v_pk_mul_f32 {v(H+2*t,2)}, {v(ST+2*t,2)}, {v(H+2*t,2)} op_sel:[1,0]")
    gaload = f"global_load_dwordx2 {v(GA,2)}, v{pGA}, s[20:21] sc1"
    A(f"""
s_waitcnt vmcnt(0)
F_chkm:
v_cmp_ne_u32 vcc, {TAG}, v{GM+1}
v_add_f32_dpp v10, v{GM}, v{GM} quad_perm:[1,0,3,2] row_mask:0xf bank_mask:0xf
s_cbranch_vccnz F_rt2
F_okm:
v_cvt_pk_bf16_f32 v10, v10, v10
v_and_b32 v10, 0xffff0000, v10
v_add_f32 v11, 1.0, v10
v_cvt_pk_bf16_f32 v11, v11, v11
v_readlane_b32 s30, v10, 0
v_readlane_b32 s31, v10, 2
v_and_b32 v11, 0xffff0000, v11
v_mov_b32 v12, s30
v_readlane_b32 s54, v11, 4
v_readlane_b32 s55, v11, 6
v_mov_b32 v13, s31
s_cmp_lg_u32 s38, 0
""")
    RT.append(f"F_rt2:\n{lim('F_okm')}\n{mload}\ns_waitcnt vmcnt(0)\ns_branch F_chkm")
    for t in range(4): A(f"v_pk_fma_f32 {v(H+2*t,2)}, {v(H+2*t,2)}, s[54:55], v[12:13]")
    for ch in range(2):
        for j in range(2): A(f"v_cvt_pk_bf16_f32 v{HP+2*ch+j}, v{H+4*j+ch}, v{H+2+4*j+ch}")
        A(f"ds_write_b64 v{pHW}, {v(HP+2*ch,2)} offset:{ch*HS + 512}")
    relD = []
    for i in range(2):
        relD += [f"v_perm_b32 v{DO+4*i+jp}, v{DL+2*jp+1}, v{DL+2*jp}, s{14+i}" for jp in range(4)]
        relD.append(f"global_store_dwordx4 v{pDO}, {v(DO+4*i,4)}, s[20:21] offset:{256*i} sc1")
    RELD = EV('RELD', 0)
    nlc = '\n'
    A(f"""
;TP h
s_cbranch_scc1 F_prep
{nlc.join(relD) if RELD == 0 else ""}
s_setprio {EV('CPRIO', 2)}
s_waitcnt lgkmcnt(0)
s_barrier
;TP b3
""")
    ACC = 44
    FB = [76, 140]
    W = lambda k: 224 + 4 * k if k < 8 else 84 + 4 * k
    def wload(j):
        o = "s_add_u32 s64, s64, 8192\ns_addc_u32 s65, s65, 0\n" if j and j % 8 == 0 else ""
        return o + f"global_load_dwordx4 {v(W(j),4)}, v3, s[64:65] offset:{1024*(j%8)-4096} sc1"
    f0load = f"global_load_dword v23, v{pF0}, s[20:21] sc1"
    fpload = f"global_load_dword v22, v{pFP}, s[20:21] sc1"
    def reads(s, buf):
        out = []
        base = FB[buf]
        for c in range(8): out.append(f"ds_read_b128 {v(base+32+4*c,4)}, v{pB} offset:{512*c + 192 - 64*s}")
        for G in range(8):
            o = (512 * (1 - (G & 1)) + 192 - 64 * s) // 4
            out.append(f"ds_read2_b32 {v(base+4*G,2)}, v{pA0+G//2} offset0:{o} offset1:{o+1}")
            out.append(f"ds_read2_b32 {v(base+4*G+2,2)}, v{pA0+G//2} offset0:{o+2} offset1:{o+3}")
        return out
    r0 = reads(0, 0)
    r0 = r0[8:10] + r0[:8] + r0[10:]
    for r in r0: A(r)
    for s in range(4):
        base = FB[s & 1]
        nxt = reads(s + 1, (s + 1) & 1) if s < 3 else list(ROLE)
        if s == 1 and RELD == 1: nxt += relD
        if s > 0: A("s_waitcnt lgkmcnt(0)")
        for G in range(8):
            if s == 0 and G == 1: A("s_waitcnt lgkmcnt(0)")
            for c in range(G, 8):
                first = (s == 0 and G == 0)
                if first and c >= 6: A(f"s_waitcnt lgkmcnt({21 - c})")
                if first and c == 0: A("s_waitcnt lgkmcnt(15)")
                A(f"v_mfma_f32_16x16x32_bf16 {v(ACC+4*c,4)}, {v(base+4*G,4)}, {v(base+32+4*(c-G),4)}, {'0' if first else v(ACC+4*c,4)}")
                if nxt and not first: A(nxt.pop(0))
                if s == 3 and G >= 1 and c == min(G + 1, 7) and G < 7: A(f"ds_write_b128 v{pYW}, {v(ACC+4*(G-1),4)} offset:{1280*(G-1)}")
        assert not nxt
    for c in (6, 7): A(f"ds_write_b128 v{pYW}, {v(ACC+4*c,4)} offset:{1280*c}")
    A(f"""
v_mov_b32 v27, {L_C}
s_waitcnt vmcnt(0)
F_b4:
s_waitcnt lgkmcnt(0)
s_barrier
;TP b4
""")
    YR, XS, XO, GG = 80, 96, 76, 40
    A(f"ds_read_b128 {v(GG,4)}, v27 offset:{L_G - L_C}")
    for ch in range(2):
        for hf in range(2):
            A(f"ds_read_b128 {v(YR+8*hf+4*ch,4)}, v{pYR} offset:{(2*ch+hf)*YW}")
    A("s_cmp_lg_u32 s38, 0")
    for ch in range(2):
        A(f"s_waitcnt lgkmcnt({2-2*ch})")
        for j in range(2): A(f"v_pk_add_f32 {v(YR+4*ch+2*j,2)}, {v(YR+4*ch+2*j,2)}, {v(YR+8+4*ch+2*j,2)}")
        for j in range(4): A(f"v_fma_f32 v{YR+4*ch+j}, v{GG+ch}, v{YR+4*ch+j}, v{XU+2*j+ch}")
        for j in range(2): A(f"v_pk_mul_f32 {v(XS+2*j,2)}, {v(GG+2,2)}, {v(YR+4*ch+2*j,2)} " + ("op_sel:[1,0]" if ch else "op_sel_hi:[0,1]"))
        for j in range(2): A(f"v_cvt_pk_bf16_f32 v{XO+2*ch+j}, v{XS+2*j}, v{XS+2*j+1}")
        if ch == 0: A(f"v_min_u32 v{XO}, -2, v{XO}")
    A(f"global_store_dwordx4 v{pXO}, {v(XO,4)}, s[74:75] sc1")
    for j in range(4): A(f"v_cvt_pk_bf16_f32 v{XS+j}, v{YR+j}, v{YR+4+j}")
    A(f"v_min_u32 v{XS}, -2, v{XS}\nglobal_store_dwordx4 v{pXO}, {v(XS,4)}, s[20:21] sc1\ns_setprio 0\ns_barrier\ns_cbranch_scc1 G_xb")
    for j in range(NW1): A(wload(j))
    ffn_pro(A)
    XACK = EV('XACK', 2)
    A(f";TP np\ns_waitcnt vmcnt({NW1 + 2 - XACK})\nG_xr:\n;TP xak")
    RT.append("G_xb:\n" + nlc.join(wload(j) for j in range(NWB, NW1)) + f"\ns_waitcnt vmcnt({NW1 - NWB + 2 - XACK})\ns_branch G_xr")
    ffn(A, W, RT, wload)

    GB = 196
    g2 = f"global_load_dwordx2 {v(GB,2)}, v{pSB0}, s[20:21] sc1\nglobal_load_dwordx2 {v(GB+2,2)}, v{pSB1}, s[20:21] sc1"
    AV, DA = 56, 60
    A(f"""
F_prep:
{g2}
v_cmp_gt_u32 s[56:57], 32, v2
s_lshl_b32 s3, s2, 7
s_add_u32 s3, s3, {WS_FP}
v_mov_b32 v10, s3
v_mov_b32 v11, {TAG}
s_cmp_eq_u32 s33, 5
s_cselect_b64 exec, 1, 0
s_waitcnt lgkmcnt(0)
s_barrier
global_store_dword v10, v11, s[20:21] sc1
s_mov_b64 exec, -1
""")
    for i in range(4):
        for jp in range(4): A(f"v_perm_b32 v{RW+4*i+jp}, v{WL+4*jp+2+(i>>1)}, v{WL+4*jp+(i>>1)}, s{14+(i&1)}")
        A(f"global_store_dwordx4 v{pFO}, {v(RW+4*i,4)}, s[20:21] offset:{64*i} sc1")
    A(f"""
v_mov_b32 v27, {L_C}
v_mov_b32 v28, 1
v_lshlrev_b32 v29, 3, v2
v_add_u32 v30, s59, v29
v_add_u32 v29, {L_U}, v29
v_add_u32 v10, {WS_F0 - WS_FP}, v10
s_setprio {EV('UPRIO', 3)}
s_waitcnt vmcnt(5)
F_chk2:
v_xor_b32 v24, {TAG}, v{GB+1}
v_xor_b32 v25, {TAG}, v{GB+3}
v_or_b32 v24, v24, v25
v_cmp_ne_u32 vcc, 0, v24
v_add_f32 v24, v{GB}, v{GB+2}
s_cbranch_vccnz F_rt4
F_ok2:
v_cvt_pk_bf16_f32 v24, v24, v24
v_and_b32 v24, 0xffff0000, v24
v_add_f32 v25, 1.0, v24
v_cvt_pk_bf16_f32 v25, v25, v25
v_cndmask_b32 v24, v25, v24, s[56:57]
ds_write_b16_d16_hi v{pVW}, v24
ds_read_b128 {v(AV,4)}, v{pAV}
s_waitcnt lgkmcnt(0)
""")
    RT.append(f"F_rt4:\n{lim('F_ok2')}\n{g2}\ns_waitcnt vmcnt(0)\ns_branch F_chk2")
    for i in range(4): A(f"v_mfma_f32_16x16x32_bf16 {v(DA+4*i,4)}, {v(AV,4)}, {v(RW+4*i,4)}, 0")
    A(f"""
ds_write2_b32 v{pUV}, v{DA}, v{DA+4} offset0:0 offset1:1
ds_write2_b32 v{pUV}, v{DA+8}, v{DA+12} offset0:2 offset1:3
s_mov_b64 exec, 1
ds_add_rtn_u32 v26, v27, v28
s_mov_b64 exec, -1
s_waitcnt lgkmcnt(0)
v_readfirstlane_b32 s3, v26
s_cmp_lg_u32 s3, 3
s_cbranch_scc1 F_pw
""")
    RT.append(f"""F_gb:
v_readlane_b32 s44, v42, 4
v_readlane_b32 s45, v42, 6
s_lshl_b32 s3, s35, 3
s_add_u32 s3, s3, {WS_MOD}
v_mov_b32 v20, s3
s_lshr_b32 s44, s44, 16
s_or_b32 s44, s44, s45
v_mov_b32 v10, s44
v_mov_b32 v21, {WS_EP}
s_mov_b64 exec, 1
global_store_dwordx2 v20, v[10:11], s[20:21] sc1
s_cmp_lg_u32 s2, 0
s_cbranch_scc1 F_gb1
global_store_dword v21, v11, s[20:21]
F_gb1:
s_mov_b64 exec, -1
s_branch F_gb2""")
    U = 60
    for i in range(4): A(f"ds_read_b64 {v(U+2*i,2)}, v29 offset:{512*i}")
    A(f"""
s_waitcnt lgkmcnt(0)
v_add_f32 v{U}, v{U}, v{U+2}
v_add_f32 v{U+1}, v{U+1}, v{U+3}
v_add_f32 v{U+4}, v{U+4}, v{U+6}
v_add_f32 v{U+5}, v{U+5}, v{U+7}
v_add_f32 v{U}, v{U}, v{U+4}
v_add_f32 v{U+1}, v{U+1}, v{U+5}
v_cvt_pk_bf16_f32 v{U+2}, v{U}, v{U+1}
v_lshlrev_b32 v{U+4}, 16, v{U+2}
v_and_b32 v{U+5}, 0xffff0000, v{U+2}
v_sub_f32 v{U}, v{U}, v{U+4}
v_sub_f32 v{U+1}, v{U+1}, v{U+5}
v_cvt_pk_bf16_f32 v{U}, v{U+4}, v{U}
v_cvt_pk_bf16_f32 v{U+1}, v{U+5}, v{U+1}
global_store_dwordx2 v30, {v(U,2)}, s[20:21] sc1
s_branch F_pw2
F_pw:
{gaload}
F_pw2:
;TP p2
{gaload}
s_setprio 0
{nlc.join(ROLE)}
{F0ADDR}
;TP p3
""")
    ffn_pro(A)
    A(f"""
s_mov_b64 exec, 1
s_waitcnt vmcnt(2)
ds_add_rtn_u32 v26, v27, v28 offset:4
s_waitcnt lgkmcnt(0)
v_cmp_eq_u32 vcc, 3, v26
s_mov_b64 exec, vcc
global_store_dword v10, v11, s[20:21] sc1
s_mov_b64 exec, -1
s_waitcnt vmcnt(1)
""")
    A(f"""
F_chk3:
v_add_f32_dpp v42, v{GA}, v{GA} quad_perm:[1,0,3,2] row_mask:0xf bank_mask:0xf
v_cmp_ne_u32 vcc, {TAG}, v{GA+1}
v_cvt_pk_bf16_f32 v42, v42, v42
s_cbranch_vccnz F_rt3
F_ok3:
{fpload}
v_and_b32 v42, 0xffff0000, v42
v_add_f32 v43, 1.0, v42
v_cvt_pk_bf16_f32 v43, v43, v43
v_and_b32 v43, 0xffff0000, v43
v_cmp_gt_u32 vcc, 8, v2
v_cndmask_b32 v43, v43, v42, vcc
v_and_b32 v20, 2, v2
v_and_b32 v21, 8, v2
v_lshl_add_u32 v20, v20, 1, v21
s_mov_b64 exec, 0x505
v_add_u32 v20, v20, v27
ds_write_b32 v20, v43 offset:{L_G - L_C}
s_mov_b64 exec, -1
s_cmp_eq_u32 s33, 6
s_waitcnt vmcnt(0)
s_cbranch_scc1 F_gb
F_gb2:
v_cmp_ne_u32 vcc, {TAG}, v22
s_cbranch_vccnz F_rt6
F_ok6:
s_mov_b64 exec, 0xffff
F_p0:
{f0load}
s_waitcnt vmcnt(0)
v_cmp_ne_u32 vcc, {TAG}, v23
s_cbranch_vccnz F_rt5
F_ok5:
s_mov_b64 exec, -1
""")
    RT.append(f"F_rt3:\n{lim('F_ok3')}\n{gaload}\ns_waitcnt vmcnt(0)\ns_branch F_chk3")
    RT.append(f"F_rt5:\n{lim('F_ok5')}\ns_mov_b64 exec, vcc\ns_sleep {EV('FSL', 2)}\ns_branch F_p0")
    RT.append(f"F_rt6:\n{lim('F_ok6')}\ns_mov_b64 exec, vcc\ns_sleep {EV('FSL', 2)}\n{fpload}\ns_waitcnt vmcnt(0)\ns_branch F_gb2")
    for j in range(NWB): A(wload(j))
    A(";TP pdone\ns_branch F_b4")
    for r in RT: A(r)

    def tree(n, base):
        regs = [base + i for i in range(n)]
        while len(regs) > 1:
            nx = []
            for i in range(0, len(regs) - 1, 2):
                A(f"v_add_f32 v{regs[i]}, v{regs[i]}, v{regs[i+1]}"); nx.append(regs[i])
            if len(regs) & 1: nx.append(regs[-1])
            regs = nx
    A(f"F_spare:\nv_add_u32 v14, s29, v14\nv_add_u32 v15, 5376, v14\nv_add_u32 v16, {2*5376}, v14\nv_add_u32 v18, {3*5376}, v14")
    gemv(1, 3 + 2)
    A("s_waitcnt lgkmcnt(0)\ns_barrier\n;TP s2")
    gemv(2, 3)
    A("s_waitcnt lgkmcnt(0)\ns_barrier\ns_branch F_sst")
    A("F_spare7:")
    for p in range(3):
        if p: A("s_barrier")
        for i in range(7): A(f"ds_read_b32 v{72+i}, v26 offset:{LM + 2048*p + 256*i}")
        if p == 0: A(f"ds_read_b128 {v(PB_,4)}, v31\nv_add_u32 v28, 0, v25")
        if p == 1: A(f"v_add_u32 v28, {2688*4}, v25")
        if p == 2: A(f"s_lshl_b32 s29, s29, 2\nv_add_u32 v28, s29, v25")
        A("s_waitcnt lgkmcnt(0)")
        tree(7, 72)
        A(f"v_mov_b32 v32, v72\nglobal_store_dwordx2 v28, v[32:33], s[20:21] sc1\n;TP s{p+2}")
        if p == 0:
            A(f"""
s_mov_b64 exec, 15
global_store_dwordx4 v9, {v(PB_,4)}, s[20:21] sc1
s_mov_b64 exec, -1
""")
    XR = 96
    xl = lambda i: f"global_load_dwordx4 {v(XR+4*i,4)}, v5, s[20:21] offset:{1024*i-3072} sc1"
    A(f"""
F_sst:
v_min_u32 v4, 27, v2
s_mul_i32 s3, s33, 28
v_add_u32 v4, s3, v4
v_lshlrev_b32 v4, 7, v4
v_add_u32 v4, {WS_FP}, v4
s_lshl_b32 s24, s24, 1
s_add_u32 s24, s24, s38               ; tb
s_mul_i32 s3, s24, {TB}
s_and_b32 s25, s33, 3
s_mul_i32 s26, s25, 7168
s_add_u32 s3, s3, s26
s_add_u32 s3, s3, {WS_X1 + 3072}
v_add_u32 v5, s3, v3
v_lshrrev_b32 v7, 5, v2
v_lshlrev_b32 v7, 4, v7
v_and_b32 v8, 7, v2
v_lshl_add_u32 v24, v8, 5, v7
v_bfe_u32 v8, v2, 4, 1
v_lshl_add_u32 v24, v8, 3, v24
s_lshl_b32 s3, s33, 8
s_add_u32 s3, s3, 8192
v_add_u32 v24, s3, v24
v_bfe_u32 v8, v2, 2, 3
v_lshl_add_u32 v7, v8, 5, v7
v_and_b32 v8, 3, v2
v_lshl_add_u32 v7, v8, 2, v7
v_add_u32 v7, s3, v7
s_lshl_b32 s3, s24, 9
s_add_u32 s3, s3, {WS_ST2}
v_lshl_add_u32 v6, v2, 3, s3
v_cmp_gt_u32 s[56:57], 32, v2
F_s0:
{lim('F_s1')}
s_sleep 16
global_load_dword v10, v4, s[20:21] sc1
s_waitcnt vmcnt(0)
v_cmp_ne_u32 vcc, {TAG}, v10
s_mov_b64 exec, vcc
s_cbranch_vccnz F_s0
F_s1:
s_mov_b64 exec, -1
s_barrier
""")
    if EV('SPOLL', 1): A(f"""
F_s2:
{lim('F_s3')}
s_sleep {EV('SSL', 2)}
{xl(6)}
s_waitcnt vmcnt(0)
v_cmp_eq_u32 vcc, -1, v{XR+24}
s_cbranch_vccnz F_s2
""")
    A(f"F_s3:\n{lim('F_s4')}")
    for i in range(7): A(xl(i))
    A(f"""
s_waitcnt vmcnt(0)
v_max3_u32 v10, v{XR}, v{XR+4}, v{XR+8}
v_max3_u32 v11, v{XR+12}, v{XR+16}, v{XR+20}
v_max3_u32 v10, v10, v11, v{XR+24}
v_cmp_eq_u32 vcc, -1, v10
s_mov_b64 exec, vcc
s_cbranch_vccnz F_s3
F_s4:
s_mov_b64 exec, -1
;TP s5
""")
    for i in range(7):
        for q in range(4):
            A(f"v_dot2_f32_bf16 v{AC+q}, v{XR+4*i+q}, s42, {'v%d' % (AC+q) if i else 0}")
            A(f"v_dot2_f32_bf16 v{AC+4+q}, v{XR+4*i+q}, v{XR+4*i+q}, {'v%d' % (AC+4+q) if i else 0}")
    for j in range(4): A(f"v_permlane32_swap_b32 v{AC+j}, v{AC+4+j}")
    for j in range(4): A(f"v_add_f32 v{AC+j}, v{AC+j}, v{AC+4+j}")
    for j in range(2): A(f"v_permlane16_swap_b32 v{AC+j}, v{AC+2+j}")
    for j in range(2): A(f"v_add_f32 v{AC+j}, v{AC+j}, v{AC+2+j}")
    for j in range(2): A(f"v_add_f32_dpp v{AC+j}, v{AC+j}, v{AC+j} row_ror:8 row_mask:0xf bank_mask:0xf")
    A(f"""
ds_write_b64 v24, {v(AC,2)}
s_cmp_lg_u32 s25, 0
s_waitcnt lgkmcnt(0)
s_barrier
s_cbranch_scc1 F_end
ds_read2st64_b32 v[20:21], v7 offset0:0 offset1:1
ds_read2st64_b32 v[22:23], v7 offset0:2 offset1:3
s_waitcnt lgkmcnt(0)
v_add_f32 v20, v20, v21
v_add_f32 v22, v22, v23
v_add_f32 v20, v20, v22
v_mul_f32 v20, {hex(INV448)}, v20
v_mov_b32 v22, v20
v_permlane32_swap_b32 v20, v22
v_fma_f32 v22, -v20, v20, v22
v_max_f32 v22, 0, v22
v_cvt_pk_bf16_f32 v22, v22, v22
v_and_b32 v22, 0xffff0000, v22
v_add_f32 v22, {hex(EPS)}, v22
v_cvt_pk_bf16_f32 v22, v22, v22
v_and_b32 v22, 0xffff0000, v22
v_sqrt_f32 v22, v22
v_cvt_pk_bf16_f32 v20, -v20, -v20
v_cvt_pk_bf16_f32 v22, v22, v22
v_cndmask_b32 v32, v22, v20, s[56:57]
global_store_dwordx2 v6, v[32:33], s[20:21] sc1
;TP s6
""")
    A("F_end:\ns_endpgm")
    tab = ktable() + [0] * 8
    A(".p2align 4\n.type ktab,@object\nktab:")
    for i in range(0, len(tab), 16): A(".short " + ", ".join(str(t) for t in tab[i:i+16]))
    A(f".size ktab, {2*len(tab)}")
    return kdesc(KN, 256, 80)
```

```python
from common import *
import os
KR_GRID = 256
KR_BLOCK = 512
KN = os.environ.get('KN', 'fusedr_kernel')
NCV = 224
KGS = 53 * RS
KC = 4160
YW = 8192
NSL = 25
RGB = NSL * 1024
L_Y = 102528
XS0 = 11
L_E = 118784
L_R = 2 * KGS
RSTR = 912
L_S = L_R + 8 * RSTR
L_K = L_Y + 4 * YW
L_H = L_K + 4 * KC
HS = 4608
L_GS = L_H + 2 * HS
KR_LDS = L_GS + 3 * 896
L_G = L_K + 4096 + 48
assert 4 * RGB + 32 <= L_Y and L_Y + 2 * TB <= L_GS and KR_LDS <= 163840
TAGC = 0x2F4A7C15
XGP = 14336
MGH = 2688 * 8
TAG = 's40'

LIMIT = int(os.environ.get("LIMIT", "20000"))
def lim(lbl): return f"s_add_u32 s43, s43, 1\ns_cmp_gt_u32 s43, {LIMIT}\ns_cbranch_scc1 {lbl}"

GPOS = int(os.environ.get('GPOS', '1'))
WST = os.environ.get('WST', 'sc1')
XST = os.environ.get('XST', 'sc1')
PST = os.environ.get('PST', 'sc1')
BPRIO = os.environ.get('BPRIO', '')
CPF = f"""s_lshr_b32 s3, s2, 3
s_lshl_b32 s3, s3, 11
v_lshrrev_b32 v3, 5, v0
v_lshl_add_u32 v3, v3, 7, s3
v_min_u32 v3, code_end-{KN}-4, v3
s_sub_u32 s24, s22, ktab-{KN}
s_subb_u32 s25, s23, 0
global_load_dword v255, v3, s[24:25]"""

pFR, pPW, pGX0, pGX1, pGS0, pGS1, pGM, pGA, pHW, pYR, pXO, pDK = range(204, 216)
pA0, pA1, pA2, pA3, pB, pYW, pDO = range(216, 223)
pSB0, pSB1, pWS, pGW = range(216, 220)
pFP = 22
pES, pER, pEO = 196, 197, 198
EF = 240
pWR, pPT = 20, 21
pWD = 199
DL = 224
DO = 232
EV = lambda n, d: int(os.environ.get(n, d))
PFW, KPF = EV('PFW', 2), EV('KPF', 0)
KREL = EV('KREL', 50)
POIS = EV('POIS', 1)

def schedule(items):
    dep = {n: [s for s in srcs if s in dict(items)] for n, srcs in items}
    height = {}
    def h(n):
        if n not in height: height[n] = 1 + max([h(m) for m, _ in items if n in dep[m]], default=0)
        return height[n]
    order, pos = [], {}
    left = [n for n, _ in items]
    while left:
        k = len(order)
        for gap in (3, 2):
            c = [n for n in left if all(s in pos and pos[s] <= k - gap for s in dep[n])]
            if c: break
        if not c: order.append(None); continue
        n = max(c, key=h); order.append(n); pos[n] = k; left.remove(n)
    return order

SB1, SB2 = EV("SB1", 13), EV("SB2", 24)
NDA, HB2, GO, PL = EV("NDA", 4), EV("HB2", 3), EV("GO", 14), EV("PL", 11)
SLP = os.environ.get("SLP", "1")
SC0, SBK, SCK, SCF, SCC, SD0 = EV("SC0", 5), EV("SBK", 3), EV("SCK", 21), EV("SCF", 24), EV("SCC", 29), EV("SD0", 18)
NR, GAI, SW0, SW1 = EV("NR", 17), EV("GAI", 14), EV("SW0", 7), EV("SW1", 14)
def lines(t):
    o = []
    for l in t.split("\n"):
        if not l or l[0] == ";": continue
        if l.startswith(("s_addc", "v_cndmask")): o[-1] += "\n" + l
        else: o.append(l)
    return o

ROLE = lines(f"""; FFN role.  x = wg&7 : rb = 4*(x&3) + (i&3), fb = 7*(x>>2) + (i>>2), i = wg>>3 ; phase 2: th = x>>2, db = i>>2
s_and_b32 s66, s2, 3
s_lshl_b32 s66, s66, 2
s_bfe_u32 s3, s2, 0x20003
s_add_u32 s66, s66, s3                ; rb
s_bfe_u32 s67, s2, 0x10002            ; th
s_lshr_b32 s68, s2, 5                 ; db
s_mul_i32 s69, s67, 7
s_add_u32 s69, s69, s68               ; fb
s_lshl_b32 s70, s69, 3
s_add_u32 s70, s70, s33               ; fg
""")
ROLE2 = lines(f"""; weight fragment address, lane = kh mat e q : ring(mat, w>>1&1) + 64(8kh + e) + 32(w&1) + 8*swap(q)
s_bfe_u32 s3, s33, 0x10001
s_mul_i32 s3, s3, {RGB}
s_and_b32 s71, s33, 1
s_lshl_b32 s71, s71, 5
s_add_u32 s3, s3, s71
s_lshl_b32 s71, s38, 10
s_add_u32 s3, s3, s71
v_lshrrev_b32 v24, 5, v2
v_lshl_add_u32 v{pWR}, v24, 9, s3
v_and_b32 v25, 12, v2
v_lshl_add_u32 v{pWR}, v25, 4, v{pWR}
v_and_b32 v25, 1, v2
v_lshl_add_u32 v{pWR}, v25, 4, v{pWR}
v_and_b32 v25, 2, v2
v_lshl_add_u32 v{pWR}, v25, 2, v{pWR}
v_bfe_u32 v25, v2, 4, 1
v_mul_u32_u24 v30, {2*RGB+EV("SH", 32)}, v25
v_add_u32 v{pWR}, v{pWR}, v30
v_bfe_u32 v30, v2, 2, 1
v_bfe_u32 v31, v2, 3, 1
v_mad_u32_u24 v31, v31, 56, v24
v_subrev_u32 v31, 112, v31
v_cmp_eq_u32 vcc, v25, v30
v_cndmask_b32 v31, 0, v31, vcc
v_lshlrev_b32 v31, 4, v31
v_add_u32 v{pPT}, {L_GS + 1792}, v31
v_mov_b32 v27, {L_G}
""")

FPADDR = lines(f"""; poison flags of the producers of the k steps 4j + (w>>1)
v_min_u32 v24, 55, v2
v_and_b32 v25, 7, v24
v_and_b32 v24, 56, v24
v_lshl_add_u32 v24, v24, 2, v25
s_lshr_b32 s3, s33, 1
s_lshl_b32 s3, s3, 10
s_add_u32 s3, s3, {WS_FP}
v_lshl_add_u32 v{pFP}, v24, 7, s3
""")

def ffn_pro():
    return lines(f"""
s_mul_i32 s44, s66, {4*TB}
s_add_u32 s44, s44, {WS_XS - L_Y}
s_and_b32 s45, s33, 1
s_mul_i32 s46, s45, {TB}
s_lshr_b32 s47, s33, 1
s_mul_i32 s28, s47, 7168
s_add_u32 s29, s28, s46
s_add_u32 s29, s29, s44
s_add_u32 s29, s29, {2*TB + L_Y}
s_lshl_b32 s26, s47, 10
s_add_u32 s26, s26, s46
s_add_u32 s26, s26, {L_Y}
s_add_u32 s27, s26, s44
s_mul_i32 s46, s45, {2*RGB + 32}
s_add_u32 s28, s28, s46
s_mul_i32 s46, s38, {RGB - 14336}
s_add_u32 s28, s28, s46
s_add_u32 s28, s28, {1024*XS0}
s_lshl_b32 s46, s70, 14
s_add_u32 s46, s46, {WS_WF + 4096}
s_add_u32 s30, s20, s46
s_addc_u32 s31, s21, 0
v_add_u32 v14, s26, v3
v_lshrrev_b32 v6, 5, v2
v_lshlrev_b32 v5, 9, v6
v_bfe_u32 v7, v2, 3, 1
v_lshl_add_u32 v5, v7, 7, v5
v_bfe_u32 v8, v2, 4, 1
v_lshl_add_u32 v5, v8, 6, v5
v_and_b32 v7, 3, v2
v_lshl_add_u32 v5, v7, 4, v5
v_and_b32 v9, 4, v2
v_lshl_add_u32 v5, v9, 1, v5
v_add_u32 v12, {L_Y}, v5
v_add_u32 v13, {L_Y + TB}, v5
s_lshl_b32 s44, s68, 1
s_add_u32 s44, s44, s45
s_mul_i32 s44, s44, {HF_TT}
s_and_b32 s46, s66, 3
s_lshl_b32 s46, s46, 2
s_add_u32 s46, s46, s47
s_mul_i32 s46, s46, 7168
s_add_u32 s44, s44, s46
s_add_u32 s44, s44, {WS_WDF}
v_min_u32 v15, 55, v2
v_lshl_add_u32 v15, v15, 7, s44
v_lshlrev_b32 v16, 3, v2
s_lshl_b32 s44, s66, 11
s_add_u32 s46, s44, {WS_ST2}
s_add_u32 s22, s20, s46
s_addc_u32 s23, s21, 0
s_add_u32 s44, s44, {WS_FL}
s_add_u32 s12, s20, s44
s_addc_u32 s13, s21, 0
s_mul_i32 s48, s33, {14*1024}
s_mul_i32 s44, s68, {2*HF_TT}
s_add_u32 s44, s44, s48
s_add_u32 s44, s44, {WS_WDF + 4096}
s_add_u32 s4, s20, s44
s_addc_u32 s5, s21, 0
v_add_u32 v1, {HF_TT}, v3
s_mul_i32 s44, s66, {4*HF_TT}
s_add_u32 s44, s44, {WS_HF}
s_lshl_b32 s46, s70, 10
s_add_u32 s46, s44, s46
s_add_u32 s6, s20, s46
s_addc_u32 s7, s21, 0
s_mul_i32 s46, s67, {HF_TT}
s_add_u32 s44, s44, s46
s_add_u32 s44, s44, s48
s_add_u32 s44, s44, 4096
s_add_u32 s8, s20, s44
s_addc_u32 s9, s21, 0
s_add_u32 s10, s8, 8192
s_addc_u32 s11, s9, 0
v_min_u32 v17, 13, v2
s_mul_i32 s44, s33, 14
v_add_u32 v17, s44, v17
v_lshrrev_b32 v17, 3, v17
v_lshlrev_b32 v17, 7, v17
s_lshl_b32 s44, s69, 7
v_mov_b32 v18, s44
v_mov_b32 v19, {TAG}
s_and_b32 s44, s33, 2
s_add_u32 s44, s44, s67
v_lshrrev_b32 v9, 4, v2               ; octet
v_and_b32 v0, 15, v2
s_lshl_b32 s46, s44, 9
s_lshl_b32 s47, s45, 7
s_add_u32 s46, s46, s47
s_add_u32 s46, s46, 256
v_lshl_add_u32 v7, v0, 3, s46
s_lshl_b32 s46, s66, 2
s_add_u32 s44, s44, s46               ; t block
s_mul_i32 s46, s44, {TB}
s_lshl_b32 s47, s68, 12
s_add_u32 s46, s46, s47
s_lshl_b32 s47, s38, 11
s_add_u32 s46, s46, s47
s_lshl_b32 s47, s45, 6
s_add_u32 s46, s46, s47
s_add_u32 s46, s46, {WS_X1}
v_lshl_add_u32 v8, v9, 9, s46
v_lshl_add_u32 v8, v0, 2, v8
v_mul_u32_u24 v6, 896, v0
v_lshl_add_u32 v6, v9, 4, v6
s_lshl_b32 s44, s44, 1
s_add_u32 s44, s44, s45
s_mul_i32 s44, s44, {16*896}
s_lshl_b32 s46, s68, 7
s_lshl_b32 s47, s38, 6
s_add_u32 s46, s46, s47
s_add_u32 s44, s44, s46
s_add_u32 s62, s62, s44
s_addc_u32 s63, s63, 0
s_lshl_b32 s46, s46, 1
s_add_u32 s46, s46, {WS_MOD}
s_add_u32 s16, s20, s46
s_addc_u32 s17, s21, 0                ; gb
s_lshl_b32 s44, s38, 12
s_lshl_b32 s46, s45, 8
s_add_u32 s44, s44, s46
s_and_b32 s46, s33, 2
s_lshl_b32 s46, s46, 15
s_add_u32 s44, s44, s46
v_lshlrev_b32 v0, 4, v0
v_lshl_add_u32 v0, v9, 9, v0
v_add_u32 v0, s44, v0
v_add_u32 v5, {2*HF_TT}, v3
s_lshl_b32 s49, s33, 13
""")

def ffn(A, W, RT, wrd, uvm, uvr, uvfin):
    XF = [24, 32]; STT = 40; CF = 44; R = [52, 84]
    WD = lambda j: 200 + 4 * j if j < 6 else W(j - 6)
    RING = [STT, W(28), CF, CF + 4] + [W(k) for k in range(22, 28)] + [24 + 4 * i for i in range(4)]
    T = R[1]
    def dmac(j):
        return ("v_add_u32 v4, s29, v3\n" if j == 0 else "v_add_u32 v4, 4096, v4\n" if j == 4 else "") + f"s_add_u32 m0, s28, {4096*(j//4)}\nglobal_load_lds_dwordx4 v4, s[20:21] offset:{1024*(j%4)} sc1"
    def dmax(lo):
        o = ["v_add_u32 v4, s27, v3"] + ([f"v_add_u32 v4, {4096*lo}, v4"] if lo else [])
        for j in range(lo, 7):
            o.append(f"s_add_u32 m0, s26, {4096*j}\nglobal_load_lds_dwordx4 v4, s[20:21] sc1")
            if j < 6: o.append(f"v_add_u32 v4, 4096, v4")
        return o
    def probe(t, lo, hi):
        return [f"ds_read2st64_b32 {v(t+j-lo,2)}, v14 offset0:{j*4} offset1:{min(j+1,hi-1)*4}" for j in range(lo, hi, 2)]
    def probex(t, lo, hi):
        return [f"ds_read2st64_b32 {v(t+j-lo,2)}, v14 offset0:{j*16} offset1:{min(j+1,hi-1)*16}" for j in range(lo, hi, 2)]
    def fold(t, n):
        o = [f"v_max3_u32 v{t}, v{t}, v{t+j}, v{t+j+1}" if j + 1 < n else f"v_max_u32 v{t}, v{t}, v{t+j}" for j in range(1, n, 2)]
        return o + [f"v_cmp_eq_u32 vcc, -1, v{t}"]
    nl = "\n".join
    A(f"""
G_xa:
{nl(dmax(0))}
s_mov_b64 exec, -1
s_waitcnt vmcnt(5)
{nl(probex(T, 0, 2))}
s_waitcnt lgkmcnt(0)
{nl(fold(T, 2))}
s_cbranch_vccnz G_xs
""")
    RT.append(f"""G_xs:
{lim('G_go')}
s_waitcnt vmcnt(0)
{nl(probex(T + 2, 2, 7))}
s_waitcnt lgkmcnt(0)
{nl(fold(T, 7))}
s_mov_b64 exec, vcc
s_branch G_xa""")
    Qs, Ds = [[]], [[]]
    def issue(op):
        kind, j = op
        if kind == 'd':
            if j == 16: A("s_add_u32 s4, s4, 8192\ns_addc_u32 s5, s5, 0")
            A(f"global_load_dwordx4 {v(WD(j),4)}, v{1 if j & 1 else 3}, s[4:5] offset:{1024*((j>>1)%8)-4096} sc1")
        else:
            A(j)
        for Q in Qs: Q.append(op)
    done = [0]
    def wait(op, extra=""):
        Q = Qs[0]
        n = len(Q) - 1 - Q.index(op) if op else len(Q)
        done[0] = max(done[0], len(Q) - n)
        A(f"s_waitcnt vmcnt({n}){extra}")
    order = [('d', j) for j in range(28)]
    def slot():
        if order: issue(order.pop(0))
    def reads(g):
        return [f"ds_read_b64_tr_b16 {v(XF[g&1]+4*i+2*h,2)}, v{12+i} offset:{1024*(g%28)+256*h+(RGB-14336)*(g >= 42)}" for i in range(2) for h in range(2)]
    def corr(p, z):
        for i in range(2): A(f"v_mfma_f32_32x32x16_bf16 {v(R[p]+16*i,16)}, {v(W(28),4)}, {v(CF+4*i,4)}, {'0' if z else v(R[p]+16*i,16)}")
    ST = lambda p, i: ('s', f"global_store_dwordx4 v{1 if i else 3}, {v(R[p]+16*i+8,4)}, s[6:7] sc1")
    def epilogue(p):
        o = []
        for i in range(2):
            G = R[p] + 16 * i; U = G + 8
            o += [f"v_max_f32 v{G+r}, 0, v{G+r}" for r in range(8)]
            o += [f"v_mul_f32 v{G+r}, v{G+r}, v{U+r}" for r in range(8)]
            o += [f"v_cvt_pk_bf16_f32 v{U+r//2}, v{G+r}, v{G+r+1}" for r in range(0, 8, 2)]
            o.append(lambda i=i: issue(ST(p, i)))
        return o
    def run(l):
        for f in l: f() if callable(f) else A(f)
    def flag(off, lbl):
        A(f"s_barrier\ns_cmp_lg_u32 s33, 3\ns_cbranch_scc1 {lbl}\ns_mov_b64 exec, 1\nglobal_store_dword v18, v19, s[12:13] offset:{off} sc1\ns_mov_b64 exec, -1\n{lbl}:")
    fill, pre = {g: [] for g in range(56)}, {}
    def spread(l, lo, hi, fill=fill):
        n = hi - lo
        for k in range(n): fill[lo + k] += l[len(l) * k // n:len(l) * (k + 1) // n]
    def ds(ins, tag):
        A(ins)
        for D_ in Ds: D_.append(tag)
    def lg(*tags): return f"lgkmcnt({min([15] + [len(D_) - 1 - max(i for i, t in enumerate(D_) if t == tag) for D_ in Ds for tag in tags if tag in D_])})"
    I = lambda op: (lambda: issue(op))
    Wt = lambda op: (lambda: wait(op))
    Dd = lambda ins, tag: (lambda: ds(ins, tag))
    Nd = lambda *tags: (lambda: A(f"s_waitcnt {lg(*tags)}"))
    WR = lambda lo, hi: [Dd(r, ('w', k)) for k in range(lo, hi) for r in wrd(k)]
    spread(WR(12, NR), 0, 3)
    fill[SBK] += [Wt(None)] + probex(T, 2, 7)
    fill[SBK + 1] += ["need:f"] + fold(T, 5) + ["s_cbranch_vccnz G_br\nG_bo:"]
    RT.append(f"""G_br:
{lim('G_bo')}
s_mov_b64 exec, vcc
{nl(dmax(2))}
s_mov_b64 exec, -1
s_waitcnt vmcnt(0)
{nl(probex(T, 2, 7))}
s_waitcnt lgkmcnt(0)
{nl(fold(T, 5))}
s_cbranch_vccnz G_br
s_branch G_bo""")
    WL_ = {k: ('w', ("s_add_u32 s30, s30, 8192\ns_addc_u32 s31, s31, 0\n" if k == max(20, NR) else "") + f"global_load_dwordx4 {v(W(k),4)}, v3, s[30:31] offset:{1024*((k-12)%8)-4096} sc1") for k in range(NR, 28)}
    spread([I(WL_[k]) for k in range(NR, 28)], SW0, SW1)
    for k in range(12, 28):
        fill[k - 1].append(Dd(uvr(k), ('u', k)))
        fill[k] += [Nd(('u', k)), uvm(k)]
    fill[28].append(uvfin)
    assert SW0 >= 7 and SCC > 28 and SC0 > SBK + 1 and 12 <= NR <= 17
    if EV("PFD", 0): fill[EV("SPF", 0)].append(I(('q', "global_load_dword v15, v15, s[20:21] sc1")))
    XC = [('x', dmac(j)) for j in range(7)]
    for j in range(7): fill[SC0 + j].append(I(XC[j]))
    pre[7] = lambda: A("s_barrier")
    fill[SBK + 2].append("v_add_u32 v14, s28, v3")
    spread([slot] * 6, SD0, SD0 + 6)
    fill[SCK] += [Wt(XC[6])] + probe(T, 0, 7)
    fill[SCK + 1] += ["need:f"] + fold(T, 7) + ["s_cbranch_vccnz G_cr\nG_co:"]
    RT.append(f"""G_cr:
{lim('G_co')}
s_mov_b64 exec, vcc
{nl(dmac(j) for j in range(7))}
s_mov_b64 exec, -1
s_waitcnt vmcnt(0)
{nl(probe(T, 0, 7))}
s_waitcnt lgkmcnt(0)
{nl(fold(T, 7))}
s_cbranch_vccnz G_cr
s_branch G_co""")
    SR = [STT, STT + 2, CF, CF + 4]
    SL = [('c', f"global_load_dwordx2 {v(SR[i],2)}, v16, s[22:23] offset:{512*i} sc1") for i in range(4)]
    spread([I(s) for s in SL], SCF, SCF + 2)
    assert SCK + 1 < min(SCC, 27) and SD0 >= 7
    ZI = SCC < 28
    fill[32] += ["v_and_b32 v4, 0x30, v2", "v_lshlrev_b32 v4, 1, v4"]
    sc = [f"v_xor_b32 v{20+i}, {TAG}, v{SR[i]+1}" for i in range(4)] + ["v_or3_b32 v20, v20, v21, v22", "v_or_b32 v20, v20, v23", "v_cmp_ne_u32 vcc, 0, v20"]
    fill[SCC - 1] += [Wt(SL[3])] + sc + ["s_cbranch_vccnz G_sr\nG_so:\n;TP sok"]
    RT.append(f"G_sr:\n{lim('G_so')}\n{nl(s[1] for s in SL)}\ns_waitcnt vmcnt(0)\n{nl(sc)}\ns_cbranch_vccnz G_sr\ns_branch G_so")
    fill[SCC] += [f"v_mov_b32 v{CF+4*i+r}, 0" for i in range(2) for r in (1, 2, 3)] + [lambda: corr(1, ZI)]
    fill[SCC + 1] += [f"v_mov_b32 v{CF+4*i}, v{STT+2*i}" for i in range(2)]
    fill[SCC + 2] += [lambda: corr(0, False), "v_add_u32 v16, s49, v3"]
    fill[26] += [f"v_subrev_u32 v12, {L_Y - 1024*XS0}, v12", f"v_subrev_u32 v13, {L_Y + TB - 1024*XS0 - 2*RGB - 32}, v13"]
    pre[27] = lambda: A("s_barrier")
    BS = []
    def ab():
        A(";TP k1")
        nb = len(order) - NDA
        BS.extend(1 + (k * 27) // nb for k in range(nb))
    pre[28] = ab
    hl = lambda n: f"global_load_dwordx4 {v(RING[n%14],4)}, v{5 if n >= 14 else 3}, s[{8 if n%14 < 8 else 10}:{9 if n%14 < 8 else 11}] offset:{1024*(n%14%8)-4096} sc1"
    spread(epilogue(0) + [f"s_add_u32 s6, s6, {2*HF_TT}\ns_addc_u32 s7, s7, 0"], max(28, SCC + 3), max(28, SCC + 3) + EV("EPS", 4))
    RL = [('r', "global_load_dword v7, v7, s[22:23] sc1")] + [('r', f"global_load_dword v{8+j}, v8, s[20:21] offset:{128*j} sc1") for j in (3, 2, 1, 0)]
    spread([I(r) for r in RL], 28 + SB1, 28 + SB1 + 5)
    pre[28 + SB1] = lambda: (wait(ST(0, 1)), flag(0, "K3_fa"))
    PA = ('p', "global_load_dword v15, v17, s[12:13] sc1"); PB = ('p', "global_load_dword v2, v17, s[12:13] offset:64 sc1")
    pre[28 + SB2] = lambda: (issue(PA), issue(('g', "global_load_dwordx4 v[20:23], v4, s[16:17] sc1")))
    A("G_go:\ns_barrier\n;TP k0")
    for i, r in enumerate(reads(0)): ds(r, (0, i // 2))
    for g in range(56):
        p, s = divmod(g, 28)
        fl = list(fill[g])
        pr = pre.get(g)
        if pr: pr()
        nxt = reads(g + 1) if g < 55 else []
        for i in range(2):
            if i == 0 and g in WL_ and Qs[0].index(WL_[g]) >= done[0]: wait(WL_[g], " " + lg((g, i)))
            else: A(f"s_waitcnt {lg((g, i), ('w', g))}")
            if i == 0: A(f";TP {'ae'[p]}{s}")
            A(f"v_mfma_f32_32x32x16_bf16 {v(R[p]+16*i,16)}, {v(W(s),4)}, {v(XF[g&1]+4*i,4)}, {'0' if g == 0 or (g == 28 and not ZI) else v(R[p]+16*i,16)}")
            for h in range(2):
                if nxt: ds(nxt.pop(0), (g + 1, i))
            if p == 1 and BS.count(s) > 1 - i:
                assert order[0][0] == 'd' and order[0][1] - 6 < s
                slot()
            n = (len(fl) + 1) // 2 if i == 0 else len(fl)
            if i == 0 and g == 26: n = min(n, len(fl) - 2)
            for _ in range(n):
                f = fl.pop(0)
                if callable(f): f()
                elif f.startswith("need:"): A(f"s_waitcnt {lg(f[5:])}")
                elif f.startswith("ds_"): ds(f, 'f')
                else: A(f)
    A(";TP k2")
    run(epilogue(1))
    A(";TP k3")
    wait(PA)
    A(f"K3_pc:\nv_cmp_ne_u32 vcc, {TAG}, v15\ns_cbranch_vccnz K3_pr\nK3_po:")
    issue(('g', "global_load_dwordx4 v[12:15], v4, s[16:17] offset:16 sc1"))
    stream = []
    for n in range(28):
        while order and order[0][1] <= 2 * n + 1: stream.append(order.pop(0))
        stream.append(('h', hl(n)))
    hb0 = stream.index(('h', hl(14)))
    pos = [0]
    def feed(k):
        while pos[0] < k: issue(stream[pos[0]]); pos[0] += 1
    feed(HB2)
    A("v_and_b32 v7, 0xffff0000, v7\nv_mul_f32 v7, v7, v7\nv_rcp_f32 v7, v7")
    wait(ST(1, 1))
    flag(64, "K3_fb")
    A(";TP k4")
    feed(hb0)
    wr = lambda tt, dt, q: f"ds_write_b128 v16, {v(R[tt]+16*dt+4*q,4)} offset:{4096*dt+1024*q}"
    early = [wr(0, dt, q) for dt in range(2) for q in range(4)] + ["v_add_u32 v16, 65536, v16"]
    for n in range(28):
        tt, k = divmod(n, 14)
        if n == GO:
            wait(PB); A(f";TP g0\nK3_qc:\nv_cmp_ne_u32 vcc, {TAG}, v2\ns_cbranch_vccnz K3_qr\nK3_qo:\n;TP g1")
        if n >= GO: feed(min(len(stream), hb0 + n))
        if n == 14: run(early); early = []
        wait(('h', hl(n)))
        if n == PL: issue(PB)
        for dt in range(2):
            t = R[tt] + 16 * dt
            A(f"v_mfma_f32_32x32x16_bf16 {v(t,16)}, {v(WD(2*k+dt),4)}, {v(RING[k],4)}, {'0' if k == 0 else v(t,16)}")
    A(";TP k5")
    for dt in range(2):
        for q in range(4): A(wr(1, dt, q))
    B = [116 + 4 * i for i in range(16)]
    XR, TO, GB = 232, 240, [20, 21, 22, 23, 12, 13, 14, 15]
    for j in range(4): A(f"v_lshlrev_b32 v{XR+2*j}, 16, v{8+j}\nv_and_b32 v{XR+2*j+1}, 0xffff0000, v{8+j}")
    gc = [f"v_xor_b32 v{GB[2*j+1]}, {TAG}, v{GB[2*j+1]}" for j in range(4)] + ["v_or3_b32 v21, v21, v23, v13", "v_or_b32 v21, v21, v15", "v_cmp_ne_u32 vcc, 0, v21"]
    A(nl(gc) + "\ns_cbranch_vccnz G_gr\nG_gok:")
    RT.append(f"G_gr:\n{lim('G_gok')}\nglobal_load_dwordx4 v[20:23], v4, s[16:17] sc1\nglobal_load_dwordx4 v[12:15], v4, s[16:17] offset:16 sc1\ns_waitcnt vmcnt(0)\n{nl(gc)}\ns_cbranch_vccnz G_gr\ns_branch G_gok")
    for j in range(4): A(f"v_and_b32 v{GB[2*j+1]}, 0xffff0000, v{GB[2*j]}\nv_lshlrev_b32 v{GB[2*j]}, 16, v{GB[2*j]}")
    for r in range(8): A(f"v_mul_f32 v{GB[r]}, v7, v{GB[r]}")
    A("s_waitcnt lgkmcnt(0)\n;TP w1\ns_barrier\n;TP x1")
    for src in range(8):
        for h in range(2): A(f"ds_read_b128 {v(B[2*src+h],4)}, v0 offset:{8192*src+2048*h}")
    for src in range(1, 8):
        A(f"s_waitcnt lgkmcnt({14-2*src})")
        for h in range(2):
            for r in (0, 2): A(f"v_pk_add_f32 {v(B[h]+r,2)}, {v(B[h]+r,2)}, {v(B[2*src+h]+r,2)}")
    for j in range(4):
        A(f"v_fma_f32 v{XR+2*j}, v{GB[2*j]}, v{B[0]+j}, v{XR+2*j}\nv_fma_f32 v{XR+2*j+1}, v{GB[2*j+1]}, v{B[1]+j}, v{XR+2*j+1}")
    for j in range(4): A(f"v_cvt_pk_bf16_f32 v{TO+j}, v{XR+2*j}, v{XR+2*j+1}")
    A(f"global_store_dwordx4 v6, {v(TO,4)}, s[62:63]\ns_endpgm")
    RT.append(f"""K3_pr:
{lim('K3_po')}
global_load_dword v15, v17, s[12:13] sc1
s_waitcnt vmcnt(0)
s_branch K3_pc
K3_qr:
{lim('K3_qo')}
{"s_sleep " + SLP if SLP != "0" else ""}
global_load_dword v2, v17, s[12:13] offset:64 sc1
s_waitcnt vmcnt(0)
s_branch K3_qc""")

def kr(A):
    A(f""".globl {KN}
.p2align 8
.type {KN},@function
{KN}:
s_cmp_ge_u32 s2, {KR_GRID}
s_cbranch_scc1 F_end
s_load_dwordx2 s[36:37], s[0:1], 0
s_load_dwordx2 s[20:21], s[0:1], 136
s_load_dwordx16 s[4:19], s[0:1], 8
s_load_dwordx8 s[44:51], s[0:1], 80
s_load_dwordx2 s[52:53], s[0:1], 112  ; w_mod
s_load_dwordx2 s[62:63], s[0:1], 120  ; out
s_load_dwordx2 s[64:65], s[0:1], 80
s_getpc_b64 s[22:23]
F_pc:
s_add_u32 s22, s22, ktab-F_pc
s_addc_u32 s23, s23, 0
v_and_b32 v17, 255, v0
v_lshlrev_b32 v17, 4, v17             ; n*16
v_lshrrev_b32 v1, 6, v0
v_and_b32 v2, 63, v0                  ; lane
v_readfirstlane_b32 s33, v1           ; w
{CPF}
global_load_dwordx4 v[20:23], v17, s[22:23]
global_load_ushort v19, v17, s[22:23] offset:16
v_lshlrev_b32 v3, 4, v2               ; lane*16
s_and_b32 s34, s2, 1
s_lshl_b32 s3, s2, 3
s_mul_i32 s34, s34, 6
s_sub_u32 s3, s3, s34
s_and_b32 s34, s33, 6
s_add_u32 s3, s3, s33
s_add_u32 s3, s3, s34
s_mul_i32 s3, s3, 896
v_add_u32 v8, s3, v3
v_mov_b32 v4, 0
v_mov_b32 v5, 0
v_mov_b32 v6, 0
v_mov_b32 v7, 0
s_and_b32 s34, s2, 7
s_lshr_b32 s35, s2, 4
s_lshl_b32 s35, s35, 3
s_add_u32 s35, s35, s34
s_lshl_b32 s35, s35, 1
s_bfe_u32 s38, s2, 0x10003
s_add_u32 s35, s35, s38               ; c
s_lshr_b32 s38, s33, 2                ; ch
s_mov_b32 s43, 0
s_mov_b32 s58, {L_R}
s_mov_b32 s42, {ONES}
s_cmp_ge_u32 s2, {NCV}
s_cbranch_scc1 F_spare_loads
s_lshl_b32 s3, s35, 10
v_lshl_add_u32 v1, v0, 1, s3
s_lshl_b32 s3, s35, 2
v_bfe_u32 v10, v0, 5, 1
v_mul_u32_u24 v10, {HS}, v10
v_and_b32 v11, 31, v0
v_lshl_add_u32 v10, v11, 4, v10
v_add_u32 v10, {L_H}, v10
v_bfe_u32 v11, v0, 2, 2
v_mul_u32_u24 v11, {KC}, v11
v_and_b32 v12, 3, v0
v_lshl_add_u32 v11, v12, 4, v11
v_add_u32 v11, {L_K + 4096}, v11
v_cmp_gt_u32 vcc, 64, v0
v_cndmask_b32 v10, v11, v10, vcc
v_add_u32 v11, {L_GS + 1792 - 128}, v3
v_cmp_lt_u32 vcc, 455, v0
v_cndmask_b32 v10, v10, v11, vcc
ds_write_b128 v10, v[4:7]
""")
    for r in range(10, 16): A(f"v_mov_b32 v{r}, 0")
    A(f"""
s_mov_b32 exec_hi, 0x00ffffff
s_waitcnt lgkmcnt(0)
global_load_dwordx4 v[4:7], v8, s[36:37]
s_mov_b32 exec_hi, -1
s_load_dword {TAG}, s[20:21], {WS_EP}
s_load_dword s39, s[16:17], s3
s_load_dword s41, s[18:19], s3
s_and_b32 s27, s33, 3
s_lshl_b32 s27, s27, 8
s_mul_i32 s28, s38, {KGS}
s_add_u32 s27, s27, s28
s_mov_b32 m0, s27
v_and_b32 v24, 31, v2
v_lshrrev_b32 v25, 5, v2
v_mul_u32_u24 v{pFR}, {RS}, v24
v_lshl_add_u32 v{pFR}, v25, 4, v{pFR}
v_add_u32 v{pFR}, s27, v{pFR}
v_mul_u32_u24 v{pPW}, {4*RS}, v25
v_lshl_add_u32 v{pPW}, v24, 2, v{pPW}
v_add_u32 v{pPW}, s27, v{pPW}
; granules
v_lshrrev_b32 v{pGX0}, 2, v0
v_mul_u32_u24 v{pGX0}, {2*XGP}, v{pGX0}
v_and_b32 v26, 3, v0
v_lshl_add_u32 v{pGX0}, v26, 4, v{pGX0}
s_lshl_b32 s3, s35, 6
s_add_u32 s3, s3, {WS_XG}
v_add_u32 v{pGX0}, s3, v{pGX0}
v_add_u32 v{pGX1}, {XGP}, v{pGX0}
v_lshlrev_b32 v{pGS0}, 4, v0
v_add_u32 v{pGS0}, {WS_SG}, v{pGS0}
v_add_u32 v{pGS1}, 8192, v{pGS0}
""")
    for i in range(6): A(f"global_load_short_d16_hi v{10+i}, v1, s[{4+2*i}:{5+2*i}]")
    POI = f"global_store_dwordx4 v{pXO}, v[200:203], s[74:75] sc1\nglobal_store_dwordx4 v{pXO}, v[200:203], s[20:21] sc1"
    A(f"""
v_and_b32 v29, 15, v0                 ; m / p / cq
v_bfe_u32 v27, v0, 4, 2               ; kq
v_bfe_u32 v28, v0, 4, 4
v_min_u32 v28, 13, v28                ; rgrp 0..13
s_cmp_lg_u32 s38, 0
s_cbranch_scc1 F_hb
s_mul_i32 s3, s2, {8*896}
s_add_u32 s3, s3, {4*896}
v_lshlrev_b32 v{pWD}, 6, v28
v_lshl_add_u32 v{pWD}, v29, 2, v{pWD}
v_add_u32 v{pWD}, s3, v{pWD}          ; row +4
""")
    def rawD():
        for e in range(8): A(f"global_load_dword v{DL+e}, v{pWD}, s[48:49] offset:{896*(e-4)}")
    def rawW():
        if PFW: A(f"global_load_dword v{DL}, v{pWD}, s[64:65]")
        if PFW > 1: A(f"v_add_u32 v{pWD}, {28*3584}, v{pWD}\nglobal_load_dword v{DL+1}, v{pWD}, s[64:65]")
    A(f"""
v_mul_u32_u24 v{pDO}, {HF_TT}, v28
v_lshl_add_u32 v{pDO}, v29, 4, v{pDO}
s_lshl_b32 s3, s2, 9
s_add_u32 s3, s3, {WS_WDF}
v_add_u32 v{pDO}, s3, v{pDO}
s_lshr_b32 s3, s33, 1
s_and_b32 s29, s33, 1                 ; half
v_and_b32 v{pA0}, 1, v29
v_xor_b32 v{pA0}, 1, v{pA0}
v_mul_u32_u24 v{pA0}, {KC}, v{pA0}
v_lshrrev_b32 v{pA1}, 1, v29
v_lshlrev_b32 v{pA1}, 2, v{pA1}
v_sub_u32 v{pA0}, v{pA0}, v{pA1}
v_lshl_add_u32 v{pA0}, v27, 4, v{pA0}
s_mul_i32 s24, s3, {2*KC}
s_lshl_b32 s25, s29, 8
s_sub_u32 s24, s24, s25
s_add_u32 s24, s24, {L_K + 4060 - 192 - 512}
v_add_u32 v{pA0}, s24, v{pA0}
v_subrev_u32 v{pA1}, 1024, v{pA0}
v_subrev_u32 v{pA2}, 2048, v{pA0}
v_subrev_u32 v{pA3}, 3072, v{pA0}
v_lshlrev_b32 v{pB}, 5, v29
v_lshl_add_u32 v{pB}, v27, 4, v{pB}
s_mul_i32 s24, s3, {HS}
s_sub_u32 s24, s24, s25
s_add_u32 s24, s24, {L_H + 480 - 192}
v_add_u32 v{pB}, s24, v{pB}
v_lshl_add_u32 v{pYW}, v27, 2, v29
v_and_b32 v{pYW}, 15, v{pYW}
v_lshlrev_b32 v{pYW}, 4, v{pYW}
v_lshl_add_u32 v{pYW}, v27, 8, v{pYW}
s_mul_i32 s24, s33, {YW}
s_add_u32 s24, s24, {L_Y}
v_add_u32 v{pYW}, s24, v{pYW}
F_com:
v_lshrrev_b32 v{pXO}, 3, v0
v_mul_u32_u24 v{pXO}, {TB}, v{pXO}
v_and_b32 v27, 7, v0
v_lshl_add_u32 v{pXO}, v27, 4, v{pXO}
s_lshl_b32 s3, s35, 7
s_add_u32 s3, s3, {WS_X1}
v_add_u32 v{pXO}, s3, v{pXO}
s_add_u32 s74, s20, {WS_XS - WS_X1}
s_addc_u32 s75, s21, 0
v_mov_b32 v200, -1
v_mov_b32 v201, -1
v_mov_b32 v202, -1
v_mov_b32 v203, -1
{POI if POIS == 0 else ""}
v_and_b32 v27, 1, v0
v_mul_u32_u24 v{pGM}, {MGH}, v27
v_and_b32 v27, 2, v0
v_lshl_add_u32 v{pGM}, v27, 2, v{pGM}
s_lshl_b32 s3, s35, 4
s_add_u32 s3, s3, {WS_MG}
v_add_u32 v{pGM}, s3, v{pGM}
v_bfe_u32 v27, v0, 2, 1
v_bfe_u32 v28, v0, 3, 1
v_mad_u32_u24 v{pGA}, v27, 3, 2
v_lshl_add_u32 v{pGA}, v28, 1, v{pGA}
v_min_u32 v{pGA}, 5, v{pGA}
v_mul_u32_u24 v{pGA}, 3584, v{pGA}
v_add_u32 v{pGA}, v{pGM}, v{pGA}
v_mul_u32_u24 v27, 3584, v27
v_add_u32 v{pGM}, v{pGM}, v27
v_lshlrev_b32 v{pHW}, 3, v0
v_add_u32 v{pHW}, {L_H}, v{pHW}
v_lshl_add_u32 v27, v0, 4, v0
v_and_b32 v27, 60, v27
v_lshlrev_b32 v{pYR}, 2, v27
v_lshl_add_u32 v{pYR}, v26, 8, v{pYR}
s_lshl_b32 s3, s33, 10
s_add_u32 s3, s3, {L_Y}
v_add_u32 v{pYR}, s3, v{pYR}
v_mov_b32 v27, {255*16}
v_cmp_eq_u32 s[30:31], v27, v17
s_mul_i32 s3, s38, {2*KC}
s_add_u32 s3, s3, {L_K}
v_add_u32 v17, s3, v17
s_mov_b32 s14, 0x05040100
s_mov_b32 s15, 0x07060302
s_branch F_stats
F_hb:
{chr(10).join(ROLE)}
s_bitcmp1_b32 s33, 0
s_cselect_b32 s44, s46, s44
s_cselect_b32 s45, s47, s45
s_lshl_b32 s46, s69, 8
s_add_u32 s64, s44, s46
s_addc_u32 s65, s45, 0                ; W + 256 fb
s_bfe_u32 s46, s33, 0x10001
s_lshl_b32 s3, {'s3' if PFW == 2 else 's66'}, 1
s_add_u32 s3, s3, s46
s_mul_i32 s3, s3, {(56 if PFW == 2 else 14)*3584}
v_min_u32 v31, {55 if PFW == 2 else 27}, v2
v_lshrrev_b32 v{pWD}, 1, v31
v_mul_u32_u24 v{pWD}, 3584, v{pWD}
v_and_b32 v31, 1, v31
v_lshl_add_u32 v{pWD}, v31, 7, v{pWD}
v_add_u32 v{pWD}, s3, v{pWD}
v_lshrrev_b32 v{pWS}, 2, v2
v_mul_u32_u24 v{pWS}, 3584, v{pWS}
v_lshl_add_u32 v{pWS}, v26, 4, v{pWS}
s_lshl_b32 s3, s46, 6
s_add_u32 s3, s3, 128
v_add_u32 v{pWS}, s3, v{pWS}
s_mul_i32 s72, s46, {RGB}
s_and_b32 s3, s33, 1
s_mul_i32 s3, s3, {2*RGB+EV("SH", 32)}
s_add_u32 s72, s72, s3                ; ring
v_subrev_u32 v31, 256, v0
v_min_u32 v31, 223, v31
v_lshlrev_b32 v{pSB0}, 4, v31
v_add_u32 v{pSB0}, {WS_MG + 3*3584}, v{pSB0}
v_add_u32 v{pSB1}, {MGH}, v{pSB0}
v_lshlrev_b32 v{pGW}, 2, v31
v_add_u32 v{pGW}, {L_GS}, v{pGW}
v_mov_b32 v220, 0
v_mov_b32 v221, 0
v_mov_b32 v{pDO}, 0
s_branch F_com
F_spare_loads:
""")
    for r in [199] + list(range(204, 224)): A(f"v_mov_b32 v{r}, 0")
    P = [96, 112, 128]
    AC = 64
    LM = 0
    A(f"""
s_sub_u32 s24, s2, {NCV}
s_min_u32 s25, s24, 27
s_and_b32 s26, s25, 1                 ; hf
s_lshr_b32 s25, s25, 1                ; g
v_lshrrev_b32 v12, 3, v0
v_min_u32 v12, 55, v12
v_and_b32 v13, 7, v0                  ; chunk
s_mul_i32 s27, s26, 448
v_lshl_add_u32 v10, v12, 3, s27       ; c offset
v_mul_u32_u24 v14, {4*5376}, v12
v_lshl_add_u32 v14, v13, 4, v14
s_mul_i32 s27, s26, {224*5376}
s_lshl_b32 s28, s25, 7
s_add_u32 s27, s27, s28
v_add_u32 v14, s27, v14
v_add_u32 v15, 5376, v14
v_add_u32 v16, {2*5376}, v14
v_add_u32 v18, {3*5376}, v14
s_cmp_ge_u32 s25, 7
s_cselect_b32 s29, 2, 1
s_mul_i32 s29, s29, 1792
s_mov_b32 exec_hi, 0x00ffffff
s_waitcnt lgkmcnt(0)
global_load_dwordx4 v[4:7], v8, s[36:37]
s_mov_b32 exec_hi, -1
s_load_dword {TAG}, s[20:21], {WS_EP}
s_cmp_eq_u32 s33, 7
s_cbranch_scc1 F_stats0
global_load_dwordx2 v[10:11], v10, s[50:51]
""")
    RA = [14, 15, 16, 18]
    for i in range(4): A(f"global_load_dwordx4 {v(P[0]+4*i,4)}, v{RA[i]}, s[52:53]")
    A(f"""
s_mov_b32 s27, {hex(LOG2E | 0x80000000)}
v_lshrrev_b32 v24, 5, v2
v_lshlrev_b32 v24, 4, v24
v_lshl_add_u32 v24, v13, 5, v24
v_bfe_u32 v25, v2, 4, 1
v_lshl_add_u32 v24, v25, 3, v24
s_lshl_b32 s3, s33, 8
v_add_u32 v24, s3, v24
s_waitcnt vmcnt(4)
v_lshlrev_b32 v44, 16, v10
v_and_b32 v45, 0xffff0000, v10
v_lshlrev_b32 v46, 16, v11
v_and_b32 v47, 0xffff0000, v11
""")
    for i in range(4): A(f"v_mul_f32 v{48+i}, s27, v{44+i}")
    for i in range(4): A(f"v_exp_f32 v{48+i}, v{48+i}")
    for i in range(4): A(f"v_add_f32 v{48+i}, 1.0, v{48+i}")
    for i in range(4): A(f"v_rcp_f32 v{48+i}, v{48+i}")
    for i in range(4): A(f"v_mul_f32 v{44+i}, v{44+i}, v{48+i}")
    A("v_cvt_pk_bf16_f32 v48, v44, v45\nv_cvt_pk_bf16_f32 v49, v46, v47")
    A("v_lshlrev_b32 v44, 16, v48\nv_and_b32 v45, 0xffff0000, v48\nv_lshlrev_b32 v46, 16, v49\nv_and_b32 v47, 0xffff0000, v49")
    def gemv(p, waitbase):
        for i in range(4):
            A(f"s_waitcnt vmcnt({waitbase - i})")
            if i == 3 and p < 2:
                for k in range(4): A(f"global_load_dwordx4 {v(P[p+1]+4*k,4)}, v{RA[k]}, s[52:53]" + (" offset:2688" if p == 0 else ""))
            for j in range(4): A(f"v_lshlrev_b32 v{56+2*j}, 16, v{P[p]+4*i+j}\nv_and_b32 v{57+2*j}, 0xffff0000, v{P[p]+4*i+j}")
            for j in range(8):
                if i == 0: A(f"v_mul_f32 v{AC+j}, v44, v{56+j}")
                else: A(f"v_fmac_f32 v{AC+j}, v{44+i}, v{56+j}")
        for j in range(4): A(f"v_permlane32_swap_b32 v{AC+j}, v{AC+4+j}")
        for j in range(4): A(f"v_add_f32 v{AC+j}, v{AC+j}, v{AC+4+j}")
        for j in range(2): A(f"v_permlane16_swap_b32 v{AC+j}, v{AC+2+j}")
        for j in range(2): A(f"v_add_f32 v{AC+j}, v{AC+j}, v{AC+2+j}")
        for j in range(2): A(f"v_add_f32_dpp v{AC+j}, v{AC+j}, v{AC+j} row_ror:8 row_mask:0xf bank_mask:0xf")
        A(f"ds_write_b64 v24, {v(AC,2)} offset:{LM + 2048*p}")
    gemv(0, 3)
    A(f""";TP s1
s_branch F_stats
F_stats0:
v_lshlrev_b32 v26, 2, v2
s_mul_i32 s3, s26, {MGH}
s_lshl_b32 s28, s25, 9
s_add_u32 s3, s3, s28
s_add_u32 s3, s3, {WS_MG}
v_lshl_add_u32 v25, v2, 3, s3
s_waitcnt vmcnt(0)
F_stats:
""")
    A(f"""
s_mul_i32 s3, s33, {RSTR}
s_add_u32 s3, s3, {L_R}
v_add_u32 v8, s3, v3
v_and_b32 v30, 3, v0
v_mul_u32_u24 v28, {2*RSTR}, v30
v_and_b32 v29, 0x1fc, v0
v_add3_u32 v28, v28, v29, s58
v_add_u32 v31, {L_S}, v3
s_mul_i32 s3, s2, {XGP}
s_add_u32 s3, s3, {WS_XG}
v_lshl_add_u32 v29, v0, 4, s3
v_add_u32 v27, {XGP//2}, v29
s_lshr_b32 s3, s2, 1
s_lshl_b32 s3, s3, 6
s_and_b32 s60, s2, 1
s_lshl_b32 s60, s60, 13
s_add_u32 s3, s3, s60
s_add_u32 s3, s3, {WS_SG}
v_add_u32 v9, s3, v3
s_lshl_b32 s3, s33, 3
s_add_u32 s3, s3, {L_S}
v_mov_b32 v30, s3
s_waitcnt vmcnt({6 + 2 * (POIS == 0)})
v_dot2_f32_bf16 v42, v4, s42, 0
v_dot2_f32_bf16 v43, v4, v4, 0
s_mov_b32 exec_hi, 0x00ffffff
ds_write_b128 v8, v[4:7]
s_mov_b32 exec_hi, -1
""")
    for j in range(1, 4): A(f"v_dot2_f32_bf16 v42, v{4+j}, s42, v42\nv_dot2_f32_bf16 v43, v{4+j}, v{4+j}, v43")
    A("v_permlane32_swap_b32 v42, v43\nv_add_f32 v42, v42, v43")
    for sh in (8, 4, 2, 1): A(f"v_add_f32_dpp v42, v42, v42 row_ror:{sh} row_mask:0xf bank_mask:0xf")
    PB_ = 160
    A(f"""
v_mov_b32 v43, v42
v_permlane16_swap_b32 v42, v43
v_add_f32 v42, v42, v43
v_mul_f32 v42, {hex(INV448)}, v42
v_mov_b32 v43, v42
v_permlane32_swap_b32 v42, v43        ; v42 mean, v43 E[x^2]
v_fma_f32 v43, -v42, v42, v43
v_max_f32 v43, 0, v43
v_cvt_pk_bf16_f32 v43, v43, v43
v_and_b32 v43, 0xffff0000, v43
v_add_f32 v43, {hex(EPS)}, v43
v_cvt_pk_bf16_f32 v43, v43, v43
v_and_b32 v43, 0xffff0000, v43
v_sqrt_f32 v43, v43
s_waitcnt lgkmcnt(0)
s_add_u32 {TAG}, {TAG}, {hex(TAGC)}
v_mov_b32 v33, {TAG}
v_cvt_pk_bf16_f32 v32, v42, v43
ds_write_b64 v30, v[32:33]
v_mov_b32 v{PB_+1}, {TAG}
v_mov_b32 v{PB_+3}, {TAG}
v_mov_b32 v{PB_+5}, {TAG}
v_mov_b32 v{PB_+7}, {TAG}
s_cmp_ge_u32 s2, {NCV}
s_cbranch_scc1 F_b1
""")
    Z1, Z8, P_ = 34, 36, 38
    T1, T8, TP = 40, 42, 44
    A(f"""
s_lshl_b32 s3, s38, 4
s_lshr_b32 s39, s39, s3
s_lshl_b32 s39, s39, 16
s_lshr_b32 s41, s41, s3
s_lshl_b32 s41, s41, 16
s_mov_b32 s29, {LOG2E}
v_mov_b32 v16, s39
v_mul_f32 v16, s29, v16
v_exp_f32 v16, v16
v_mov_b32 v{pDK}, s41
v_cndmask_b32 v{pDK}, 0, v{pDK}, s[30:31]
v_cvt_pk_bf16_f32 v16, v16, v16
v_and_b32 v16, 0xffff0000, v16        ; dt
s_waitcnt vmcnt({2 * (POIS == 0)})
v_mul_f32 v10, v16, v10
v_mul_f32 v11, v16, v11
v_mul_f32 v10, s29, v10
v_mul_f32 v11, 0.15915494, v11
v_mul_f32 v12, v16, v12               ; dB
v_mul_f32 v13, v16, v13
v_mul_f32 v{T8+1}, {hex(f2u(8.0))}, v11
v_mul_f32 v{TP+1}, {hex(f2u(256.0))}, v11
v_mul_f32 v{T8}, {hex(f2u(8.0))}, v10
v_mul_f32 v{TP}, {hex(f2u(256.0))}, v10
v_fract_f32 v{T8+1}, v{T8+1}
v_fract_f32 v{T1+1}, v11
v_fract_f32 v{TP+1}, v{TP+1}
v_exp_f32 v{T8}, v{T8}
v_cos_f32 v{Z8}, v{T8+1}
v_sin_f32 v{Z8+1}, v{T8+1}
v_exp_f32 v{T1}, v10
v_cos_f32 v{Z1}, v{T1+1}
v_sin_f32 v{Z1+1}, v{T1+1}
v_pk_mul_f32 {v(Z8,2)}, {v(Z8,2)}, {v(T8,2)} op_sel_hi:[1,0]
v_exp_f32 v{TP}, v{TP}
v_cos_f32 v{P_}, v{TP+1}
v_sin_f32 v{P_+1}, v{TP+1}
v_pk_mul_f32 {v(Z1,2)}, {v(Z1,2)}, {v(T1,2)} op_sel_hi:[1,0]
v_mov_b32 v175, 0x3f80
v_pk_mul_f32 {v(P_,2)}, {v(P_,2)}, {v(TP,2)} op_sel_hi:[1,0]
F_b1:
s_cmp_eq_u32 s33, 7
s_waitcnt lgkmcnt(0)
s_barrier
;TP b1
s_cbranch_scc1 F_pub7
""")
    for j in range(4): A(f"ds_read_b32 v{PB_+2*j}, v28 offset:{(j&1)*RSTR + (j>>1)*448}")
    A(f"""
s_cmp_ge_u32 s2, {NCV}
s_waitcnt lgkmcnt(2)
global_store_dwordx4 v29, {v(PB_,4)}, s[20:21] sc1
s_waitcnt lgkmcnt(0)
global_store_dwordx4 v27, {v(PB_+4,4)}, s[20:21] sc1
s_cbranch_scc1 F_spare
""")
    A("s_cmp_lg_u32 s38, 0\ns_cbranch_scc1 F_wl"); rawD()
    A(f"""
s_branch F_kg
F_pub7:
s_cmp_ge_u32 s2, {NCV}
s_cbranch_scc1 F_spare7
ds_read_b128 {v(PB_,4)}, v31
s_mov_b64 exec, 15
s_waitcnt lgkmcnt(0)
global_store_dwordx4 v9, {v(PB_,4)}, s[20:21] sc1
s_mov_b64 exec, -1
F_wl:
""")
    if KPF == 0: rawW()
    A("F_kg:\n.p2align 3")
    X = lambda i: 48 + 2 * i
    Y = lambda j: Z8 if j == 1 else 96 + 2 * j
    reg = {'C': 14, 'B': 12, 'Z1': Z1, 'P': P_, 'y1': Z8}
    it = [('x0', ('C', 'B'))] + [(f'x{i}', (f'x{i-1}', 'Z1')) for i in range(1, 8)]
    for i, s in ((8, 0), (9, 2), (10, 4), (11, 6), (12, 8), (13, 12), (14, 10), (15, 14), (16, 13), (17, 16), (18, 17), (19, 18), (20, 19)):
        it.append((f'x{i}', (f'x{s}', 'P')))
    it += [('y2', ('y1', 'y1')), ('y3', ('y2', 'y1')), ('y4', ('y2', 'y2'))] + [(f'y{j}', (f'y{j-4}', 'y4')) for j in range(5, 9)]
    it += [(f'y{j}', (f'y{j-8}', 'y8')) for j in range(9, 32)]
    for n, _ in it: reg[n] = X(int(n[1:])) if n[0] == 'x' else Y(int(n[1:]))
    order = schedule(it); src = dict(it)
    TT = 168
    def outs(n, k):
        t = TT + k % 7
        i = int(n[1:])
        if n[0] == 'x': return f"v_cvt_pk_bf16_f32 v{t}, v{X(i)}, -v{X(i)+1}", f"ds_write_addtid_b32 v{t} offset:{i*RS}"
        return f"v_cvt_pk_bf16_f32 v{t}, v{Y(i)}, v{Y(i)+1}", f"ds_write_addtid_b32 v{t} offset:{(21+i)*RS}"
    seq = [None, None, 'y1'] + order
    N = len(seq)
    A(f"ds_write_addtid_b32 v175 offset:{21*RS}")
    RT = []
    for k in range(3, N + 4):
        if k == KREL and POIS == 1: A(POI)
        if k == KPF:
            A('s_cmp_eq_u32 s38, 0\ns_cbranch_scc1 F_npf'); rawW(); A('F_npf:')
        g = lambda d: seq[k - d] if 0 <= k - d < N else None
        if g(0): A(cmul(A, reg[g(0)], reg[src[g(0)][0]], reg[src[g(0)][1]])[0])
        if g(3): A(outs(g(3), k - 3)[0])
        if g(1) and g(1) != 'y1': A(cmul(A, reg[g(1)], reg[src[g(1)][0]], reg[src[g(1)][1]])[1])
        if g(4): A(outs(g(4), k - 4)[1])
    AF, BF, ACC = 48, 96, 80
    TA = 24
    for ks in range(8):
        A(f"ds_read_b128 {v(AF+4*ks,4)}, v{pFR} offset:{ks*32}")
        A(f"ds_read_b128 {v(BF+4*ks,4)}, v{pFR} offset:{21*RS + ks*32}")
    GX, GS, GM = 176, 184, 192
    GL = [f"global_load_dwordx4 {v(GX,4)}, v{pGX0}, s[20:21] sc1", f"global_load_dwordx4 {v(GX+4,4)}, v{pGX1}, s[20:21] sc1",
          f"global_load_dwordx4 {v(GS,4)}, v{pGS0}, s[20:21] sc1", f"global_load_dwordx4 {v(GS+4,4)}, v{pGS1}, s[20:21] sc1"]
    mload = f"global_load_dwordx2 {v(GM,2)}, v{pGM}, s[20:21] sc1"
    A(f"v_add_u32 v{TA+8}, s28, v19")
    for ks in range(8):
        A(f"s_waitcnt lgkmcnt({14-2*ks})")
        A(f"v_mfma_f32_32x32x16_bf16 {v(ACC,16)}, {v(AF+4*ks,4)}, {v(BF+4*ks,4)}, {'0' if ks==0 else v(ACC,16)}")
        A(f"v_and_b32 v{TA+ks}, 0xffff, v{20+ks//2}" if ks % 2 == 0 else f"v_lshrrev_b32 v{TA+ks}, 16, v{20+ks//2}")
        A(f"v_add_u32 v{TA+ks}, s28, v{TA+ks}")
        if GPOS == 0 and ks >= 4: A(GL[ks - 4])
    for r in range(12):
        A(f"ds_write_b32 v{pPW}, v{ACC+r} offset:{((r&3)+8*(r>>2))*RS}")
    if GPOS == 1:
        for g in GL: A(g)
    A(f";TP pb2\ns_waitcnt lgkmcnt(0)\ns_barrier\n;TP b2")
    E = 48
    for e in range(9):
        A(f"ds_read2st64_b32 {v(E+4*e,2)}, v{TA+e} offset0:0 offset1:1")
        A(f"ds_read2st64_b32 {v(E+4*e+2,2)}, v{TA+e} offset0:2 offset1:3")
    A(mload)
    for e in range(9):
        A(f"s_waitcnt lgkmcnt({min(15, 16-2*e)})")
        A(f"v_pk_add_f32 {v(E+4*e,2)}, {v(E+4*e,2)}, {v(E+4*e+2,2)}")
        if e == 7: A(f"v_add_f32 v{E+4*e}, v{E+4*e}, v{pDK}")
        A(f"v_add_f32 v{E+4*e}, v{E+4*e}, v{E+4*e+1}")
        if e == 8: A(f"v_cndmask_b32 v{E+32}, v{E+32}, 0, s[30:31]")
        if e & 1: A(f"v_cvt_pk_bf16_f32 v{88+e//2}, v{E+4*e-4}, v{E+4*e}")
        elif e: A(f"v_cvt_pk_bf16_f32 v{92+e//2-1}, v{E+4*e-4}, v{E+4*e}")
        if e == 7: A("ds_write_b128 v17, v[88:91]")
    A(f"ds_write_b128 v17, v[92:95] offset:{KC}")
    A(f"""
s_waitcnt vmcnt(1)
F_chk:
v_xor_b32 v10, {TAG}, v{GX+1}
v_xor_b32 v11, {TAG}, v{GX+3}
v_xor_b32 v12, {TAG}, v{GX+5}
v_xor_b32 v13, {TAG}, v{GX+7}
v_or3_b32 v10, v10, v11, v12
v_xor_b32 v11, {TAG}, v{GS+1}
v_xor_b32 v12, {TAG}, v{GS+3}
v_or3_b32 v10, v10, v11, v12
v_xor_b32 v11, {TAG}, v{GS+5}
v_xor_b32 v12, {TAG}, v{GS+7}
v_or3_b32 v13, v13, v11, v12
v_or_b32 v10, v10, v13
v_cmp_ne_u32 vcc, 0, v10
s_cbranch_vccnz F_rt1
F_ok:
s_mov_b64 exec, -1
""")
    RT += [f"F_rt1:\n{lim('F_ok')}\ns_mov_b64 exec, vcc\n" + "\n".join(GL) + "\ns_waitcnt vmcnt(0)\ns_branch F_chk"]
    XU, ST, H, HP, GA = 32, 48, 56, 64, 40
    for t in range(4): A(f"v_and_b32 v{ST+1+2*t}, 0xffff0000, v{GS+2*t}")
    for t in range(4): A(f"v_rcp_f32 v{ST+1+2*t}, v{ST+1+2*t}")
    for t in range(4): A(f"v_lshlrev_b32 v{ST+2*t}, 16, v{GS+2*t}")
    for t in range(4): A(f"v_lshlrev_b32 v{XU+2*t}, 16, v{GX+2*t}\nv_and_b32 v{XU+2*t+1}, 0xffff0000, v{GX+2*t}")
    for t in range(4): A(f"v_pk_add_f32 {v(H+2*t,2)}, {v(XU+2*t,2)}, {v(ST+2*t,2)} op_sel_hi:[1,0] neg_lo:[0,1] neg_hi:[0,1]")
    for t in range(4): A(f"v_pk_mul_f32 {v(H+2*t,2)}, {v(ST+2*t,2)}, {v(H+2*t,2)} op_sel:[1,0]")
    gaload = f"global_load_dwordx2 {v(GA,2)}, v{pGA}, s[20:21] sc1"
    A(f"""
s_waitcnt vmcnt(0)
F_chkm:
v_cmp_ne_u32 vcc, {TAG}, v{GM+1}
v_add_f32_dpp v10, v{GM}, v{GM} quad_perm:[1,0,3,2] row_mask:0xf bank_mask:0xf
s_cbranch_vccnz F_rt2
F_okm:
v_cvt_pk_bf16_f32 v10, v10, v10
v_and_b32 v10, 0xffff0000, v10
v_add_f32 v11, 1.0, v10
v_cvt_pk_bf16_f32 v11, v11, v11
v_readlane_b32 s30, v10, 0
v_readlane_b32 s31, v10, 2
v_and_b32 v11, 0xffff0000, v11
v_mov_b32 v12, s30
v_readlane_b32 s54, v11, 4
v_readlane_b32 s55, v11, 6
v_mov_b32 v13, s31
s_cmp_lg_u32 s38, 0
""")
    RT.append(f"F_rt2:\n{lim('F_okm')}\n{mload}\ns_waitcnt vmcnt(0)\ns_branch F_chkm")
    for t in range(4): A(f"v_pk_fma_f32 {v(H+2*t,2)}, {v(H+2*t,2)}, s[54:55], v[12:13]")
    for ch in range(2):
        for j in range(2): A(f"v_cvt_pk_bf16_f32 v{HP+2*ch+j}, v{H+4*j+ch}, v{H+2+4*j+ch}")
        A(f"ds_write_b64 v{pHW}, {v(HP+2*ch,2)} offset:{ch*HS + 512}")
    relD = []
    for i in range(2):
        relD += [f"v_perm_b32 v{DO+4*i+jp}, v{DL+2*jp+1}, v{DL+2*jp}, s{14+i}" for jp in range(4)]
        relD.append(f"global_store_dwordx4 v{pDO}, {v(DO+4*i,4)}, s[20:21] offset:{256*i} sc1")
    RELD = EV('RELD', 1)
    nlc = '\n'
    A(f"""
;TP h
s_cbranch_scc1 F_prep
{nlc.join(relD) if RELD == 0 else ""}
s_setprio {EV('CPRIO', 2)}
s_waitcnt lgkmcnt(0)
s_barrier
;TP b3
""")
    ACC = 44
    FB = [76, 140]
    W = lambda k: 224 + 4 * k if k < 8 else 84 + 4 * k
    fpload = f"global_load_dword v23, v{pFP}, s[20:21] sc1"
    def reads(s, buf):
        out = []
        base = FB[buf]
        for c in range(8): out.append(f"ds_read_b128 {v(base+32+4*c,4)}, v{pB} offset:{512*c + 192 - 64*s}")
        for G in range(8):
            o = (512 * (1 - (G & 1)) + 192 - 64 * s) // 4
            out.append(f"ds_read2_b32 {v(base+4*G,2)}, v{pA0+G//2} offset0:{o} offset1:{o+1}")
            out.append(f"ds_read2_b32 {v(base+4*G+2,2)}, v{pA0+G//2} offset0:{o+2} offset1:{o+3}")
        return out
    r0 = reads(0, 0)
    r0 = r0[8:10] + r0[:8] + r0[10:]
    for r in r0: A(r)
    for s in range(4):
        base = FB[s & 1]
        nxt = reads(s + 1, (s + 1) & 1) if s < 3 else ROLE + ROLE2[:23]
        if EV('NOCR', 0) and s < 3: nxt = []
        if s == 1 and RELD == 1: nxt += relD
        if s == 2: nxt += FPADDR + ROLE2[-1:]
        if s > 0: A("s_waitcnt lgkmcnt(0)")
        for G in range(8):
            if s == 0 and G == 1: A("s_waitcnt lgkmcnt(0)")
            for c in range(G, 8):
                first = (s == 0 and G == 0)
                if first and c >= 6: A(f"s_waitcnt lgkmcnt({21 - c})")
                if first and c == 0: A("s_waitcnt lgkmcnt(15)")
                A(f"v_mfma_f32_16x16x32_bf16 {v(ACC+4*c,4)}, {v(base+4*G,4)}, {v(base+32+4*(c-G),4)}, {'0' if first else v(ACC+4*c,4)}")
                if nxt and not first: A(nxt.pop(0))
                if s == 3 and G >= 1 and c == min(G + 1, 7) and G < 7: A(f"ds_write_b128 v{pYW}, {v(ACC+4*(G-1),4)} offset:{1024*(G-1)}")
        assert not nxt
    for c in (6, 7): A(f"ds_write_b128 v{pYW}, {v(ACC+4*c,4)} offset:{1024*c}")
    A(f"""
s_waitcnt vmcnt(0)
F_b4:
s_waitcnt lgkmcnt(0)
s_barrier
;TP b4
""")
    YR, XS, XO, GG = 80, 96, 76, 40
    A(f"ds_read_b128 {v(GG,4)}, v27")
    for ch in range(2):
        for hf in range(2):
            A(f"ds_read_b128 {v(YR+8*hf+4*ch,4)}, v{pYR} offset:{(2*ch+hf)*YW}")
    A("s_cmp_lg_u32 s38, 0")
    for ch in range(2):
        A(f"s_waitcnt lgkmcnt({2-2*ch})")
        for j in range(2): A(f"v_pk_add_f32 {v(YR+4*ch+2*j,2)}, {v(YR+4*ch+2*j,2)}, {v(YR+8+4*ch+2*j,2)}")
        for j in range(4): A(f"v_fma_f32 v{YR+4*ch+j}, v{GG+ch}, v{YR+4*ch+j}, v{XU+2*j+ch}")
        for j in range(2): A(f"v_pk_mul_f32 {v(XS+2*j,2)}, {v(GG+2,2)}, {v(YR+4*ch+2*j,2)} " + ("op_sel:[1,0]" if ch else "op_sel_hi:[0,1]"))
        for j in range(2): A(f"v_cvt_pk_bf16_f32 v{XO+2*ch+j}, v{XS+2*j}, v{XS+2*j+1}")
        if ch == 0: A(f"v_min_u32 v{XO}, -2, v{XO}")
    A(f"global_store_dwordx4 v{pXO}, {v(XO,4)}, s[74:75] sc1")
    for j in range(4): A(f"v_cvt_pk_bf16_f32 v{XS+j}, v{YR+j}, v{YR+4+j}")
    A(f"v_min_u32 v{XS}, -2, v{XS}\nglobal_store_dwordx4 v{pXO}, {v(XS,4)}, s[20:21] sc1\ns_setprio 0\ns_barrier\ns_cbranch_scc1 G_xb")
    def item(n):
        o = f"s_add_u32 m0, s72, {1024*(n % NSL)}\nglobal_load_lds_dwordx4 v{pW2}, s[64:65]   ; item {n}"
        if n < 55: o += f"\nv_add_u32 v{pW2}, {57344 if n != 27 else (-27*57344 - 128) & 0xffffffff}, v{pW2}"
        return o
    wrd = lambda n: [f"ds_read_b64_tr_b16 {v(W(n % 28)+2*h,2)}, v{pWR} offset:{1024*(n % NSL)+256*h}" for h in range(2)]
    PT = [100 + 4 * i for i in range(4)]
    uvr = lambda k: f"ds_read_b128 {v(PT[k % 4],4)}, v{pPT} offset:{32*k}"
    uvm = lambda k: f"v_mfma_f32_16x16x32_bf16 {v(W(28),4)}, {v(PT[k % 4],4)}, {v(W(k),4)}, {v(W(28),4) if k else 0}"
    U = W(28)
    uvfin = f"""v_cvt_pk_bf16_f32 v{U+1}, v{U}, v{U}
v_and_b32 v{U+1}, 0xffff0000, v{U+1}
v_sub_f32 v{U}, v{U}, v{U+1}
v_cvt_pk_bf16_f32 v{U}, v{U+1}, v{U}
v_mov_b32 v{U+1}, 0
v_mov_b32 v{U+2}, 0
v_mov_b32 v{U+3}, 0"""
    def check(lbl, tgt, own=0):
        RT.append(f"{lbl}r:\n{lim(lbl + 'o')}\nds_read_b32 v26, v29\ns_waitcnt lgkmcnt(0)\nv_readfirstlane_b32 s3, v26\ns_cmp_lt_u32 s3, {tgt + own}\ns_cbranch_scc1 {lbl}r\ns_branch {lbl}o")
        return f"v_readfirstlane_b32 s3, v26\ns_cmp_lt_u32 s3, {tgt}\ns_cbranch_scc1 {lbl}r\n{lbl}o:"
    signal = "s_mov_b64 exec, 1\nds_add_u32 v29, v28\ns_mov_b64 exec, -1"
    RP = [n for n in range(3 + LAG, NPI - 1, 4)]
    assert len(RP) >= 8 and LAG < NSL - 15 and 28 + NA0 <= NPI <= 28 + NSL
    A(fpload + "\n" + nlc.join(ffn_pro()) + f"""
;TP np
s_waitcnt vmcnt(0)
G_fc:
v_cmp_ne_u32 vcc, {TAG}, v23
s_cbranch_vccnz G_fr
G_fo:
s_mov_b64 exec, -1
;TP xak""")
    RT.append(f"""G_fr:
{lim('G_fo')}
s_mov_b64 exec, vcc
s_sleep {EV('FSL', 2)}
{fpload}
s_waitcnt vmcnt(0)
s_branch G_fc""")

    GB = 100
    g2 = nlc.join(f"global_load_dwordx4 {v(GB+8*m+4*hf,4)}, v{pSB1 if hf else pSB0}, s[20:21] offset:{3584*m} sc1" for m in range(2) for hf in range(2))
    gc = [f"v_xor_b32 v{44+i}, {TAG}, v{GB+1+2*i}" for i in range(3)] + ["v_or3_b32 v44, v44, v45, v46"]
    gc += [f"v_xor_b32 v{45+i}, {TAG}, v{GB+7+2*i}" for i in range(3)] + ["v_or3_b32 v45, v45, v46, v47"]
    gc += [f"v_xor_b32 v{46+i}, {TAG}, v{GB+13+2*i}" for i in range(2)] + ["v_or3_b32 v44, v44, v45, v46", "v_or_b32 v44, v44, v47", "v_cmp_ne_u32 vcc, 0, v44"]
    RT.append(f"F_rt4:\n{lim('F_ok2')}\n{g2}\ns_waitcnt vmcnt(0)\ns_branch F_chk2")
    RT.append(f"""F_gb:
v_readlane_b32 s56, v42, 4
v_readlane_b32 s57, v42, 6
s_lshl_b32 s3, s35, 3
s_add_u32 s3, s3, {WS_MOD}
v_mov_b32 v44, s3
s_lshr_b32 s56, s56, 16
s_or_b32 s56, s56, s57
v_mov_b32 v10, s56
v_mov_b32 v45, {WS_EP}
s_mov_b64 exec, 1
global_store_dwordx2 v44, v[10:11], s[20:21] sc1
s_cmp_lg_u32 s2, 0
s_cbranch_scc1 F_gb1
global_store_dword v45, v11, s[20:21]
F_gb1:
s_mov_b64 exec, -1
s_branch F_gb2""")
    RT.append(f"F_rt3:\n{lim('F_ok3')}\n{gaload}\ns_waitcnt vmcnt(0)\ns_branch F_chk3")
    def bpre(A):
        A(f"""
F_prep:
{g2}
s_lshl_b32 s3, s35, 7
s_add_u32 s3, s3, {WS_FP}
v_mov_b32 v10, s3
v_mov_b32 v11, {TAG}
v_mov_b32 v{pW2}, v{pWS}
s_cmp_eq_u32 s33, 5
s_cselect_b64 exec, 1, 0
s_setprio {EV('UPRIO', 0)}
s_waitcnt lgkmcnt(0)
s_barrier
global_store_dword v10, v11, s[20:21] sc1
s_mov_b64 exec, -1
""")
        Q = ['g2']
        vm = lambda op: len(Q) - 1 - Q.index(op)
        def gsum():
            A(f"s_waitcnt vmcnt({vm('g2')})\nF_chk2:\n{nlc.join(gc)}\ns_cbranch_vccnz F_rt4\nF_ok2:\n;TP gok2")
            for m in range(2):
                for j in range(2): A(f"v_add_f32 v{GB+8*m+2*j}, v{GB+8*m+2*j}, v{GB+8*m+4+2*j}")
            A(f"""v_cvt_pk_bf16_f32 v{GB}, v{GB}, v{GB+2}
v_cvt_pk_bf16_f32 v{GB+8}, v{GB+8}, v{GB+10}
ds_write_b32 v{pGW}, v{GB} offset:896
v_lshlrev_b32 v{GB+9}, 16, v{GB+8}
v_and_b32 v{GB+8}, 0xffff0000, v{GB+8}
v_add_f32 v{GB+9}, 1.0, v{GB+9}
v_add_f32 v{GB+8}, 1.0, v{GB+8}
v_cvt_pk_bf16_f32 v{GB+8}, v{GB+9}, v{GB+8}
ds_write_b32 v{pGW}, v{GB+8}""")
        def gaproc():
            A(f"""
s_waitcnt vmcnt({vm('ga')})
F_chk3:
v_add_f32_dpp v42, v{GA}, v{GA} quad_perm:[1,0,3,2] row_mask:0xf bank_mask:0xf
v_cmp_ne_u32 vcc, {TAG}, v{GA+1}
v_cvt_pk_bf16_f32 v42, v42, v42
s_cbranch_vccnz F_rt3
F_ok3:
v_and_b32 v42, 0xffff0000, v42
v_add_f32 v43, 1.0, v42
v_cvt_pk_bf16_f32 v43, v43, v43
v_and_b32 v43, 0xffff0000, v43
v_cmp_gt_u32 vcc, 8, v2
v_cndmask_b32 v43, v43, v42, vcc
v_and_b32 v44, 2, v2
v_and_b32 v45, 8, v2
v_lshl_add_u32 v44, v44, 1, v45
s_mov_b64 exec, 0x505
v_add_u32 v44, v44, v27
ds_write_b32 v44, v43
s_mov_b64 exec, -1
s_cmp_eq_u32 s33, 6
s_cbranch_scc1 F_gb
F_gb2:
""")
        wk = {n: [] for n in range(NPI)}
        def put(l, lo, hi):
            for k in range(hi - lo): wk[lo + k] += l[len(l) * k // (hi - lo):len(l) * (k + 1) // (hi - lo)]
        put(ROLE2, 1, RP[0] - 2)
        put(ffn_pro(), EV('WK0', NAB), EV('WK1', NPI))
        rd = []; ok = 0; nu = 0
        def uvs(cnt):
            nonlocal nu
            for _ in range(cnt):
                if nu >= ok: break
                A(f"s_waitcnt lgkmcnt({min(2, 27 - nu)})\n{uvm(nu)}")
                if nu + 3 < 28: A(uvr(nu + 3))
                nu += 1
        for n in range(NPI):
            A(item(n)); Q.append(('i', item(n)))
            A(nlc.join(wk[n]))
            if n == EV('GSI', 8): gsum()
            if n == GAI: A(gaload); Q.append('ga')
            if n in RP:
                r = RP.index(n)
                A(f";TP w{r}a\ns_waitcnt vmcnt({vm(('i', item(4 * r + 3)))}) lgkmcnt(0)\n;TP w{r}b")
                ok = max(0, min(28, 4 * r - 4))
                if r < len(RP) - 1: A(signal)
                if r: A(check(f'F_y{r}', 2 * r, int(r < len(RP) - 1)) + f"\n;TP y{r}")
                if 1 <= r <= 7: rd += sum((wrd(k) for k in range(4 * r - 4, 4 * r)), [])
            if n >= NAB: uvs(EV('UPI', 2))
            if n + EV('CRD', 2) in RP[1:]: A("ds_read_b32 v26, v29")
            A(nlc.join(rd[:4])); rd = rd[4:]
            if n == NAB - 2: gaproc()
            if n == NAB - 1:
                A(";TP pdone\ns_branch F_b4\nG_xb:"); Q += ['x0', 'x1']
                for k in range(3): A(uvr(k))
        assert not rd
        if ok < 28: A("s_waitcnt lgkmcnt(0)"); ok = 28
        uvs(28)
        A(uvfin + f"\n;TP lat\ns_waitcnt vmcnt({vm(('i', item(27 + NA0)))})")
        return Q
    ffn(A, W, RT, item, wrd, uvm, uvr, uvfin, bpre)
    for r in RT: A(r)

    def tree(n, base):
        regs = [base + i for i in range(n)]
        while len(regs) > 1:
            nx = []
            for i in range(0, len(regs) - 1, 2):
                A(f"v_add_f32 v{regs[i]}, v{regs[i]}, v{regs[i+1]}"); nx.append(regs[i])
            if len(regs) & 1: nx.append(regs[-1])
            regs = nx
    A(f"F_spare:\nv_add_u32 v14, s29, v14\nv_add_u32 v15, 5376, v14\nv_add_u32 v16, {2*5376}, v14\nv_add_u32 v18, {3*5376}, v14")
    gemv(1, 3 + 2)
    A("s_waitcnt lgkmcnt(0)\ns_barrier\n;TP s2")
    gemv(2, 3)
    A("s_waitcnt lgkmcnt(0)\ns_barrier\ns_branch F_sst")
    A("F_spare7:")
    for p in range(3):
        if p: A("s_barrier")
        for i in range(7): A(f"ds_read_b32 v{72+i}, v26 offset:{LM + 2048*p + 256*i}")
        if p == 0: A(f"ds_read_b128 {v(PB_,4)}, v31\nv_add_u32 v28, 0, v25")
        if p == 1: A(f"v_add_u32 v28, {2688*4}, v25")
        if p == 2: A(f"s_lshl_b32 s29, s29, 2\nv_add_u32 v28, s29, v25")
        A("s_waitcnt lgkmcnt(0)")
        tree(7, 72)
        A(f"v_mov_b32 v32, v72\nglobal_store_dwordx2 v28, v[32:33], s[20:21] sc1\n;TP s{p+2}")
        if p == 0:
            A(f"""
s_mov_b64 exec, 15
global_store_dwordx4 v9, {v(PB_,4)}, s[20:21] sc1
s_mov_b64 exec, -1
""")
    XR = 96
    xl = lambda i: f"global_load_dwordx4 {v(XR+4*i,4)}, v5, s[20:21] offset:{1024*i-3072} sc1"
    A(f"""
F_sst:
v_min_u32 v4, 27, v2
s_mul_i32 s3, s33, 28
v_add_u32 v4, s3, v4
v_lshlrev_b32 v4, 7, v4
v_add_u32 v4, {WS_FP}, v4
s_lshl_b32 s24, s24, 1
s_add_u32 s24, s24, s38               ; tb
s_mul_i32 s3, s24, {TB}
s_and_b32 s25, s33, 3
s_mul_i32 s26, s25, 7168
s_add_u32 s3, s3, s26
s_add_u32 s3, s3, {WS_X1 + 3072}
v_add_u32 v5, s3, v3
v_lshrrev_b32 v7, 5, v2
v_lshlrev_b32 v7, 4, v7
v_and_b32 v8, 7, v2
v_lshl_add_u32 v24, v8, 5, v7
v_bfe_u32 v8, v2, 4, 1
v_lshl_add_u32 v24, v8, 3, v24
s_lshl_b32 s3, s33, 8
s_add_u32 s3, s3, 8192
v_add_u32 v24, s3, v24
v_bfe_u32 v8, v2, 2, 3
v_lshl_add_u32 v7, v8, 5, v7
v_and_b32 v8, 3, v2
v_lshl_add_u32 v7, v8, 2, v7
v_add_u32 v7, s3, v7
s_lshl_b32 s3, s24, 9
s_add_u32 s3, s3, {WS_ST2}
v_lshl_add_u32 v6, v2, 3, s3
v_cmp_gt_u32 s[56:57], 32, v2
F_s0:
{lim('F_s1')}
s_sleep 16
global_load_dword v10, v4, s[20:21] sc1
s_waitcnt vmcnt(0)
v_cmp_ne_u32 vcc, {TAG}, v10
s_mov_b64 exec, vcc
s_cbranch_vccnz F_s0
F_s1:
s_mov_b64 exec, -1
s_barrier
""")
    if EV('SPOLL', 1): A(f"""
F_s2:
{lim('F_s3')}
s_sleep {EV('SSL', 2)}
{xl(6)}
s_waitcnt vmcnt(0)
v_cmp_eq_u32 vcc, -1, v{XR+24}
s_cbranch_vccnz F_s2
""")
    A(f"F_s3:\n{lim('F_s4')}")
    for i in range(7): A(xl(i))
    A(f"""
s_waitcnt vmcnt(0)
v_max3_u32 v10, v{XR}, v{XR+4}, v{XR+8}
v_max3_u32 v11, v{XR+12}, v{XR+16}, v{XR+20}
v_max3_u32 v10, v10, v11, v{XR+24}
v_cmp_eq_u32 vcc, -1, v10
s_mov_b64 exec, vcc
s_cbranch_vccnz F_s3
F_s4:
s_mov_b64 exec, -1
;TP s5
""")
    for i in range(7):
        for q in range(4):
            A(f"v_dot2_f32_bf16 v{AC+q}, v{XR+4*i+q}, s42, {'v%d' % (AC+q) if i else 0}")
            A(f"v_dot2_f32_bf16 v{AC+4+q}, v{XR+4*i+q}, v{XR+4*i+q}, {'v%d' % (AC+4+q) if i else 0}")
    for j in range(4): A(f"v_permlane32_swap_b32 v{AC+j}, v{AC+4+j}")
    for j in range(4): A(f"v_add_f32 v{AC+j}, v{AC+j}, v{AC+4+j}")
    for j in range(2): A(f"v_permlane16_swap_b32 v{AC+j}, v{AC+2+j}")
    for j in range(2): A(f"v_add_f32 v{AC+j}, v{AC+j}, v{AC+2+j}")
    for j in range(2): A(f"v_add_f32_dpp v{AC+j}, v{AC+j}, v{AC+j} row_ror:8 row_mask:0xf bank_mask:0xf")
    A(f"""
ds_write_b64 v24, {v(AC,2)}
s_cmp_lg_u32 s25, 0
s_waitcnt lgkmcnt(0)
s_barrier
s_cbranch_scc1 F_end
ds_read2st64_b32 v[20:21], v7 offset0:0 offset1:1
ds_read2st64_b32 v[22:23], v7 offset0:2 offset1:3
s_waitcnt lgkmcnt(0)
v_add_f32 v20, v20, v21
v_add_f32 v22, v22, v23
v_add_f32 v20, v20, v22
v_mul_f32 v20, {hex(INV448)}, v20
v_mov_b32 v22, v20
v_permlane32_swap_b32 v20, v22
v_fma_f32 v22, -v20, v20, v22
v_max_f32 v22, 0, v22
v_cvt_pk_bf16_f32 v22, v22, v22
v_and_b32 v22, 0xffff0000, v22
v_add_f32 v22, {hex(EPS)}, v22
v_cvt_pk_bf16_f32 v22, v22, v22
v_and_b32 v22, 0xffff0000, v22
v_sqrt_f32 v22, v22
v_cvt_pk_bf16_f32 v20, -v20, -v20
v_cvt_pk_bf16_f32 v22, v22, v22
v_cndmask_b32 v32, v22, v20, s[56:57]
global_store_dwordx2 v6, v[32:33], s[20:21] sc1
;TP s6
""")
    A("F_end:\ns_endpgm")
    tab = ktable() + [0] * 8
    A(".p2align 4\n.type ktab,@object\nktab:")
    for i in range(0, len(tab), 16): A(".short " + ", ".join(str(t) for t in tab[i:i+16]))
    A(f".size ktab, {2*len(tab)}")
    return kdesc(KN, 256, 80)
```

```python
import sys, os
import re
from common import *
from k1 import *
from k2 import *
from k3 import *
from k4 import *
import k34 as k34m
from k34 import k34, K34_GRID, K34_LDS, K34_BLOCK
from k12 import k12, K12_GRID, K12_LDS, K12_BLOCK
from kf import kf, KF_GRID, KF_LDS, KF_BLOCK, KN
import kr as krm

def ke(A):
    A(""".globl empty_kernel
.p2align 8
.type empty_kernel,@function
empty_kernel:
s_endpgm""")
    return kdesc("empty_kernel", 8, 16)

def kz(A):
    a, b = [int(x) for x in os.environ["ZQ"].split(",")]
    A(f""".globl z_kernel
.p2align 8
.type z_kernel,@function
z_kernel:
s_cmp_lg_u32 s2, 0
s_cbranch_scc1 Zend
s_memrealtime s[10:11]
s_load_dwordx2 s[4:5], s[0:1], 128
v_mov_b32 v1, 0
s_waitcnt lgkmcnt(0)
global_load_dword v2, v1, s[4:5] offset:{16*a} sc1
global_load_dword v3, v1, s[4:5] offset:{16*b+4} sc1
s_waitcnt vmcnt(0)
v_readfirstlane_b32 s6, v2
v_readfirstlane_b32 s7, v3
s_nop 3
s_not_b32 s6, s6
s_sub_u32 s6, s7, s6
s_min_u32 s6, s6, 10000
s_lshl_b32 s6, s6, 2
Zl:
s_memrealtime s[12:13]
s_waitcnt lgkmcnt(0)
s_sub_u32 s8, s12, s10
s_cmp_lt_u32 s8, s6
s_cbranch_scc1 Zl
Zend:
s_endpgm""")
    return kdesc("z_kernel", 8, 16)

KS = {'u': (KN, KF_GRID, KF_LDS, kf), 'r': (krm.KN, krm.KR_GRID, krm.KR_LDS, krm.kr), 'g': ("front_kernel", K12_GRID, K12_LDS, k12), 'f': ("ffn_kernel", K34_GRID, K34_LDS, k34), 'z': ("z_kernel", 1, 0, kz),'1': ("prep_kernel", K1_GRID, K1_LDS, k1), '2': ("conv_kernel", K2_GRID, K2_LDS, k2),
      '3': ("ffn1_kernel", K3_GRID, K3_LDS, k3), '4': ("ffn2_kernel", K4_GRID, K4_LDS, k4),
      'e': ("empty_kernel", 1, 0, ke)}

BLK = {'u': KF_BLOCK, 'r': 512, '3': K3_BLOCK, 'f': K34_BLOCK, 'g': K12_BLOCK}
WS_TS = 0x2000000
def add_stamps(A, names):
    out = []
    for ln in A.lines:
        t = ln.strip()
        if t[:-1] in names and t.endswith(':'):
            ki = names.index(t[:-1])
            out.append(ln)
            out += ["  " + x for x in f"""s_memrealtime s[90:91]
s_memtime s[80:81]
s_load_dwordx2 s[92:93], s[0:1], 136
v_lshrrev_b32 v1, 6, v0
s_nop 1
v_readfirstlane_b32 s94, v1
s_lshl_b32 s95, s2, 3
s_add_u32 s94, s94, s95
s_lshl_b32 s94, s94, 6
s_add_u32 s94, s94, {WS_TS + ki * 0x80000}
s_mov_b32 s82, 0
s_mov_b32 s84, 0
s_mov_b32 s86, 0
s_mov_b32 s88, 0
s_mov_b32 s76, 0
s_mov_b32 s78, 0
s_waitcnt lgkmcnt(0)""".split("\n")]
        elif t.startswith(";TP "):
            sel = os.environ.get("TP", "row,pub,chain,kcopy,b3,b4").split(",")
            sel2 = os.environ.get("TPS", "row,pub,s1,s2,s3,s4").split(",")
            sel3 = os.environ.get('TPK', 'k0,k1,k2,k3,k4,k5').split(',')
            for sl in ((sel, sel2, sel3) if sys.argv[2] not in 'ur' else (sel, sel2)):
                if t[4:] in sl:
                    r = [82, 84, 86, 88, 76, 78][sl.index(t[4:])]
                    out.append(f"  s_memtime s[{r}:{r+1}]"); break
        elif t.startswith(";TS"):
            i = int(t[3:]); r = [82, 84, 86, 88, 76, 78][i]
            out.append(f"  s_memtime s[{r}:{r+1}]")
        elif t == "s_endpgm":
            out += ["  " + x for x in """s_waitcnt vmcnt(0) lgkmcnt(0)
s_memrealtime s[96:97]
s_memtime s[98:99]
s_getreg_b32 s100, hwreg(HW_REG_HW_ID)
s_getreg_b32 s101, hwreg(HW_REG_XCC_ID)
s_mov_b64 exec, 1
s_waitcnt lgkmcnt(0)
v_mov_b32 v0, s90
v_mov_b32 v1, s96
v_mov_b32 v2, s100
v_mov_b32 v3, s101
v_mov_b32 v4, s80
v_mov_b32 v5, s82
v_mov_b32 v6, s84
v_mov_b32 v7, s86
v_mov_b32 v8, s88
v_mov_b32 v9, s76
v_mov_b32 v10, s78
v_mov_b32 v11, s98
v_mov_b32 v12, s94
global_store_dwordx4 v12, v[0:3], s[92:93]
global_store_dwordx4 v12, v[4:7], s[92:93] offset:16
global_store_dwordx4 v12, v[8:11], s[92:93] offset:32
s_endpgm""".split("\n")]
        else: out.append(ln)
    if os.environ["TS"] == "2": out = [l.replace("s_memtime", "s_memrealtime") for l in out]
    A.lines = out

def strip(A, name, pred):
    out = []; on = False
    for ln in A.lines:
        t = ln.strip()
        if t.endswith("_kernel:"): on = t == name + ":"
        if on and pred(t): continue
        out.append(ln)
    A.lines = out

def add_dbg(A, names):
    out = []; n = 0
    NL = len(sys.argv[2]); inz = False
    for ln in A.lines:
        t = ln.strip()
        if t in ("z_kernel:", "empty_kernel:"): inz = True
        if inz: out.append(ln); continue
        if t[:-1] in names and t.endswith(':'):
            ki = names.index(t[:-1])
            out.append(ln)
            out += ["  " + x for x in f"""s_memrealtime s[90:91]
s_load_dwordx2 s[92:93], s[0:1], 128
v_lshrrev_b32 v1, 6, v0
s_nop 1
v_readfirstlane_b32 s94, v1
s_lshr_b32 s95, s2, 3
s_xor_b32 s95, s95, s2
s_and_b32 s95, s95, 7
s_or_b32 s94, s94, s95
s_waitcnt lgkmcnt(0)
s_add_u32 s92, s92, {(NL - 1 - ki) * 512 + ki * 16}
s_addc_u32 s93, s93, 0""".split("\n")]
        elif t == "s_endpgm":
            n += 1
            out += ["  " + x for x in f"""s_cmp_lg_u32 s94, 0
s_cbranch_scc1 DBGE{n}
s_waitcnt vmcnt(0) lgkmcnt(0)
s_memrealtime s[96:97]
s_mov_b64 exec, 1
s_not_b32 s90, s90
s_waitcnt lgkmcnt(0)
v_mov_b32 v0, s90
v_mov_b32 v1, s96
v_mov_b32 v2, 0
global_atomic_umax v2, v0, s[92:93]
global_atomic_umax v2, v1, s[92:93] offset:4
DBGE{n}:
s_endpgm""".split("\n")]
        else: out.append(ln)
    A.lines = out

def main():
    A = Asm()
    which = sys.argv[2] if len(sys.argv) > 2 else "12f"
    hdr = []
    k34m.GRAN = 'g' in which
    descs = []
    A('.amdgcn_target "amdgcn-amd-amdhsa--gfx950"\n.text')
    seen = set()
    for ch in which:
        name, grid, lds, fn = KS[ch]
        hdr.append(f"; @launch {'' if name == NAME + '_kernel' else 'kernel=' + name + ' '}grid=({grid},1,1) block=({BLK.get(ch, 256)},1,1) lds={lds}")
        if ch not in seen: descs.append(fn(A)); seen.add(ch)
    A("code_end:")
    for kn in os.environ.get("NOMF", ""): strip(A, KS[kn][0], lambda t: t.startswith("v_mfma"))
    for kn in os.environ.get("NOLD", ""): strip(A, KS[kn][0], lambda t: t.startswith("global_load"))
    for kn in os.environ.get("NODS", ""): strip(A, KS[kn][0], lambda t: t.startswith("ds_read"))
    if os.environ.get("DBG"): add_dbg(A, [KS[ch][0] for ch in which if ch not in "ez"])
    if os.environ.get("TS"): add_stamps(A, [KS[ch][0] for ch in which if ch not in "ez"])
    txt = "; generated by dev/gen.py (hand-written generator); see comments there\n" + "\n".join(hdr) + "\n" + A.text() + '.section .rodata,"a"\n' + ("".join(descs) if not (os.environ.get("TS") or os.environ.get("DBG")) else re.sub(r"next_free_sgpr \d+", "next_free_sgpr 102", "".join(descs)))
    open(sys.argv[1], "w").write(txt)

if __name__ == "__main__":
    main()
```

```python
import sys, os
import re
from common import *
from k1 import *
from k2 import *
from k3 import *
from k4 import *
import k34 as k34m
from k34 import k34, K34_GRID, K34_LDS, K34_BLOCK
from k12 import k12, K12_GRID, K12_LDS, K12_BLOCK
from kf import kf, KF_GRID, KF_LDS, KF_BLOCK, KN
import kr as krm

def ke(A):
    A(""".globl empty_kernel
.p2align 8
.type empty_kernel,@function
empty_kernel:
s_endpgm""")
    return kdesc("empty_kernel", 8, 16)

def kz(A):
    a, b = [int(x) for x in os.environ["ZQ"].split(",")]
    A(f""".globl z_kernel
.p2align 8
.type z_kernel,@function
z_kernel:
s_cmp_lg_u32 s2, 0
s_cbranch_scc1 Zend
s_memrealtime s[10:11]
s_load_dwordx2 s[4:5], s[0:1], 128
v_mov_b32 v1, 0
s_waitcnt lgkmcnt(0)
global_load_dword v2, v1, s[4:5] offset:{16*a} sc1
global_load_dword v3, v1, s[4:5] offset:{16*b+4} sc1
s_waitcnt vmcnt(0)
v_readfirstlane_b32 s6, v2
v_readfirstlane_b32 s7, v3
s_nop 3
s_not_b32 s6, s6
{"s_sub_u32 s6, s10, s7" if os.environ.get("ZE") else "s_sub_u32 s6, s7, s6"}
s_min_u32 s6, s6, 10000
s_max_u32 s6, s6, {os.environ.get("ZO", "0")}
s_sub_u32 s6, s6, {os.environ.get("ZO", "0")}
s_lshl_b32 s6, s6, {os.environ.get("ZS", "2")}
Zl:
s_memrealtime s[12:13]
s_waitcnt lgkmcnt(0)
s_sub_u32 s8, s12, s10
s_cmp_lt_u32 s8, s6
s_cbranch_scc1 Zl
Zend:
s_endpgm""")
    return kdesc("z_kernel", 8, 16)

KS = {'u': (KN, KF_GRID, KF_LDS, kf), 'r': (krm.KN, krm.KR_GRID, krm.KR_LDS, krm.kr), 'g': ("front_kernel", K12_GRID, K12_LDS, k12), 'f': ("ffn_kernel", K34_GRID, K34_LDS, k34), 'z': ("z_kernel", 1, 0, kz),'1': ("prep_kernel", K1_GRID, K1_LDS, k1), '2': ("conv_kernel", K2_GRID, K2_LDS, k2),
      '3': ("ffn1_kernel", K3_GRID, K3_LDS, k3), '4': ("ffn2_kernel", K4_GRID, K4_LDS, k4),
      'e': ("empty_kernel", 1, 0, ke)}

BLK = {'u': KF_BLOCK, 'r': 512, '3': K3_BLOCK, 'f': K34_BLOCK, 'g': K12_BLOCK}
WS_TS = 0x2000000
def add_stamps(A, names):
    out = []
    for ln in A.lines:
        t = ln.strip()
        if t[:-1] in names and t.endswith(':'):
            ki = names.index(t[:-1])
            out.append(ln)
            out += ["  " + x for x in f"""s_memrealtime s[90:91]
s_memtime s[80:81]
s_load_dwordx2 s[92:93], s[0:1], 136
v_lshrrev_b32 v1, 6, v0
s_nop 1
v_readfirstlane_b32 s94, v1
s_lshl_b32 s95, s2, 3
s_add_u32 s94, s94, s95
s_lshl_b32 s94, s94, 6
s_add_u32 s94, s94, {WS_TS + ki * 0x80000}
s_mov_b32 s82, 0
s_mov_b32 s84, 0
s_mov_b32 s86, 0
s_mov_b32 s88, 0
s_mov_b32 s76, 0
s_mov_b32 s78, 0
s_waitcnt lgkmcnt(0)""".split("\n")]
        elif t.startswith(";TP "):
            sel = os.environ.get("TP", "row,pub,chain,kcopy,b3,b4").split(",")
            sel2 = os.environ.get("TPS", "row,pub,s1,s2,s3,s4").split(",")
            sel3 = os.environ.get('TPK', 'k0,k1,k2,k3,k4,k5').split(',')
            for sl in ((sel, sel2, sel3) if sys.argv[2] not in 'ur' else (sel, sel2)):
                if t[4:] in sl:
                    r = [82, 84, 86, 88, 76, 78][sl.index(t[4:])]
                    out.append(f"  s_memtime s[{r}:{r+1}]"); break
        elif t.startswith(";TS"):
            i = int(t[3:]); r = [82, 84, 86, 88, 76, 78][i]
            out.append(f"  s_memtime s[{r}:{r+1}]")
        elif t == "s_endpgm":
            out += ["  " + x for x in """s_waitcnt vmcnt(0) lgkmcnt(0)
s_memrealtime s[96:97]
s_memtime s[98:99]
s_getreg_b32 s100, hwreg(HW_REG_HW_ID)
s_getreg_b32 s101, hwreg(HW_REG_XCC_ID)
s_mov_b64 exec, 1
s_waitcnt lgkmcnt(0)
v_mov_b32 v0, s90
v_mov_b32 v1, s96
v_mov_b32 v2, s100
v_mov_b32 v3, s101
v_mov_b32 v4, s80
v_mov_b32 v5, s82
v_mov_b32 v6, s84
v_mov_b32 v7, s86
v_mov_b32 v8, s88
v_mov_b32 v9, s76
v_mov_b32 v10, s78
v_mov_b32 v11, s98
v_mov_b32 v12, s94
global_store_dwordx4 v12, v[0:3], s[92:93]
global_store_dwordx4 v12, v[4:7], s[92:93] offset:16
global_store_dwordx4 v12, v[8:11], s[92:93] offset:32
s_endpgm""".split("\n")]
        else: out.append(ln)
    if os.environ["TS"] == "2": out = [l.replace("s_memtime", "s_memrealtime") for l in out]
    A.lines = out

def strip(A, name, pred):
    out = []; on = False
    for ln in A.lines:
        t = ln.strip()
        if t.endswith("_kernel:"): on = t == name + ":"
        if on and pred(t): continue
        out.append(ln)
    A.lines = out

def add_dbg(A, names):
    out = []; n = 0
    NL = len(sys.argv[2]); inz = False
    for ln in A.lines:
        t = ln.strip()
        if t in ("z_kernel:", "empty_kernel:"): inz = True
        if inz: out.append(ln); continue
        if t[:-1] in names and t.endswith(':'):
            ki = names.index(t[:-1])
            out.append(ln)
            out += ["  " + x for x in f"""s_memrealtime s[90:91]
s_load_dwordx2 s[92:93], s[0:1], 128
v_lshrrev_b32 v1, 6, v0
s_nop 1
v_readfirstlane_b32 s94, v1
s_lshr_b32 s95, s2, 3
s_xor_b32 s95, s95, s2
s_and_b32 s95, s95, 7
s_or_b32 s94, s94, s95
s_waitcnt lgkmcnt(0)
s_add_u32 s92, s92, {(NL - 1 - ki) * 512 + ki * 16}
s_addc_u32 s93, s93, 0""".split("\n")]
        elif t == "s_endpgm":
            n += 1
            out += ["  " + x for x in f"""s_cmp_lg_u32 s94, 0
s_cbranch_scc1 DBGE{n}
s_waitcnt vmcnt(0) lgkmcnt(0)
s_memrealtime s[96:97]
s_mov_b64 exec, 1
s_not_b32 s90, s90
s_waitcnt lgkmcnt(0)
v_mov_b32 v0, s90
v_mov_b32 v1, s96
v_mov_b32 v2, 0
global_atomic_umax v2, v0, s[92:93]
global_atomic_umax v2, v1, s[92:93] offset:4
DBGE{n}:
s_endpgm""".split("\n")]
        else: out.append(ln)
    A.lines = out

def main():
    A = Asm()
    which = sys.argv[2] if len(sys.argv) > 2 else "12f"
    hdr = []
    k34m.GRAN = 'g' in which
    descs = []
    A('.amdgcn_target "amdgcn-amd-amdhsa--gfx950"\n.text')
    seen = set()
    for ch in which:
        name, grid, lds, fn = KS[ch]
        hdr.append(f"; @launch {'' if name == NAME + '_kernel' else 'kernel=' + name + ' '}grid=({grid},1,1) block=({BLK.get(ch, 256)},1,1) lds={lds}")
        if ch not in seen: descs.append(fn(A)); seen.add(ch)
    A("code_end:")
    for kn in os.environ.get("NOMF", ""): strip(A, KS[kn][0], lambda t: t.startswith("v_mfma"))
    for kn in os.environ.get("NOLD", ""): strip(A, KS[kn][0], lambda t: t.startswith("global_load"))
    for kn in os.environ.get("NODS", ""): strip(A, KS[kn][0], lambda t: t.startswith("ds_read"))
    if os.environ.get("DBG"): add_dbg(A, [KS[ch][0] for ch in which if ch not in "ez"])
    if os.environ.get("TS"): add_stamps(A, [KS[ch][0] for ch in which if ch not in "ez"])
    txt = "; generated by dev/gen.py (hand-written generator); see comments there\n" + "\n".join(hdr) + "\n" + A.text() + '.section .rodata,"a"\n' + ("".join(descs) if not (os.environ.get("TS") or os.environ.get("DBG")) else re.sub(r"next_free_sgpr \d+", "next_free_sgpr 102", "".join(descs)))
    open(sys.argv[1], "w").write(txt)

if __name__ == "__main__":
    main()
```

```python
from common import *
import os
KD_GRID = 256
KN = os.environ.get('KN', 'fusedd_kernel')
NCV = 224
KGS = 53 * RS
KC = 4160
YW = 10240
L_K = 2 * KGS
L_H = L_K + 4 * KC
HS = 4608
L_R = L_H + 2 * HS
RSTR = 912
L_S = L_R + 8 * RSTR
L_X = 4 * YW
L_GS = L_X + 4 * TB
KD_LDS = L_GS + 3 * 896
L_G = L_K + 4096 + 48
TAGC = 0x2F4A7C15
XGP = 14336
MGH = 2688 * 8
TAG = 's40'

LIMIT = int(os.environ.get("LIMIT", "20000"))
def lim(lbl): return f"s_add_u32 s43, s43, 1\ns_cmp_gt_u32 s43, {LIMIT}\ns_cbranch_scc1 {lbl}"

GPOS = int(os.environ.get('GPOS', '1'))
WST = os.environ.get('WST', 'sc1')
XST = os.environ.get('XST', 'sc1')
PST = os.environ.get('PST', 'sc1')
BPRIO = os.environ.get('BPRIO', '')
CPF = f"""s_lshr_b32 s3, s2, 3
s_lshl_b32 s3, s3, 11
v_lshrrev_b32 v3, 5, v0
v_lshl_add_u32 v3, v3, 7, s3
v_min_u32 v3, code_end-{KN}-4, v3
s_sub_u32 s24, s22, ktab-{KN}
s_subb_u32 s25, s23, 0
global_load_dword v255, v3, s[24:25]"""

pFR, pPW, pGX0, pGX1, pGS0, pGS1, pGM, pGA, pHW, pYR, pXO, pDK = range(204, 216)
pA0, pA1, pA2, pA3, pB, pYW = range(216, 222)
pSB0, pSB1, pGW, pPF = range(220, 224)
pPT, pFP, pWS = 21, 22, 217
pWD = 199
pDO = 216
DL = 160
DO = 48
EV = lambda n, d: int(os.environ.get(n, d))
KREL = EV('KREL', 50)
POIS = EV('POIS', 1)

def schedule(items):
    dep = {n: [s for s in srcs if s in dict(items)] for n, srcs in items}
    height = {}
    def h(n):
        if n not in height: height[n] = 1 + max([h(m) for m, _ in items if n in dep[m]], default=0)
        return height[n]
    order, pos = [], {}
    left = [n for n, _ in items]
    while left:
        k = len(order)
        for gap in (3, 2):
            c = [n for n in left if all(s in pos and pos[s] <= k - gap for s in dep[n])]
            if c: break
        if not c: order.append(None); continue
        n = max(c, key=h); order.append(n); pos[n] = k; left.remove(n)
    return order

SB1, SB2 = EV("SB1", 13), EV("SB2", 24)
NDA, HB2, GO, PL = EV("NDA", 4), EV("HB2", 3), EV("GO", 14), EV("PL", 11)
SLP = os.environ.get("SLP", "1")
SC0, SBK, SCK, SCF, SCC, SD0 = EV("SC0", 0), EV("SBK", 3), EV("SCK", 21), EV("SCF", 19), EV("SCC", 25), EV("SD0", 7)
FPS, FQA, FQB = 7, EV("FQA", 5), EV("FQB", 0)
EJ, EK0, EK1, RLJ = EV("EJ", 4), EV("EK0", 3), EV("EK1", 45), EV("RLJ", 0)
PFP, PFM, NL = EV("PFP", 0), EV("PFM", 3), EV("NL", 0)
NBP, LAGB, LAGA, GSI, GAI = EV("NBP", 14), EV("LAGB", 7), EV("LAGA", 7), EV("GSI", 10), EV("GAI", 9)
E0, E2, E3 = EV("E0", 1), EV("E2", 1), EV("E3", 1)
W = lambda k: 196 if k == 0 else 220 + 4 * k if k <= 8 else 80 + 4 * k
ew = [f"global_load_dword v{W(2*J+1+(e&1))+e//2}, v{pPF}, s[64:65] offset:{3584*(e%3-1)}" + (f"\ns_add_u32 s64, s64, {(26 if e == 7 else 3)*3584}\ns_addc_u32 s65, s65, 0" if e in (2, 5, 7) else "")
      for J in range(EJ) for e in range(8)]
ew0, ew, ew2, ew3 = ew[:8*E0], ew[8*E0:8*(EJ-E2-E3)], ew[8*(EJ-E2-E3):8*(EJ-E3)], ew[8*(EJ-E3):]
def lines(t):
    o = []
    for l in t.split("\n"):
        if not l or l[0] == ";": continue
        if l.startswith(("s_addc", "v_cndmask", "s_cselect")): o[-1] += "\n" + l
        else: o.append(l)
    return o

ROLE = lines(f"""; FFN role.  x = wg&7 : rb = 4*(x&3) + (i&3), fb = 7*(x>>2) + (i>>2), i = wg>>3 ; phase 2: th = x>>2, db = i>>2
s_and_b32 s66, s2, 3
s_lshl_b32 s66, s66, 2
s_bfe_u32 s3, s2, 0x20003
s_add_u32 s66, s66, s3                ; rb
s_bfe_u32 s67, s2, 0x10002            ; th
s_lshr_b32 s68, s2, 5                 ; db
s_mul_i32 s69, s67, 7
s_add_u32 s69, s69, s68               ; fb
s_lshl_b32 s70, s69, 2
s_and_b32 s3, s33, 3
s_add_u32 s70, s70, s3
s_lshl_b32 s3, s70, 6
s_add_u32 s3, s3, 3584
s_add_u32 s64, s64, s3
s_addc_u32 s65, s65, 0
""")
WSADDR = lambda p: lines(f"""; lane = kh, step bit, column pair : row 16 sb + 8 kh
v_lshrrev_b32 v{p+1}, 5, v2
v_bfe_u32 v{p+2}, v2, 4, 1
v_lshl_add_u32 v{p+1}, v{p+2}, 1, v{p+1}
v_mul_u32_u24 v{p}, {8*3584}, v{p+1}
v_and_b32 v{p+1}, 15, v2
v_lshl_add_u32 v{p}, v{p+1}, 2, v{p}
v_add_u32 v{p+1}, {3*3584}, v{p}
v_add_u32 v{p+2}, {6*3584}, v{p}
""")
ROLE2 = lines(f"""; pattern rows: g (b3 = 0) / sb on the k groups of row half b2, zero elsewhere
v_lshrrev_b32 v24, 5, v2
v_bfe_u32 v25, v2, 4, 1
v_bfe_u32 v26, v2, 2, 1
v_bfe_u32 v31, v2, 3, 1
v_mad_u32_u24 v31, v31, 56, v24
v_subrev_u32 v31, 112, v31
v_cmp_eq_u32 vcc, v25, v26
v_cndmask_b32 v31, 0, v31, vcc
v_lshlrev_b32 v31, 4, v31
v_add_u32 v{pPT}, {L_GS + 1792}, v31
""")
FPADDR = lines(f"""; "every slot is poisoned" flag of spare WG wg&31
s_and_b32 s3, s2, 31
s_lshl_b32 s3, s3, 7
s_add_u32 s3, s3, {WS_F0}
v_mov_b32 v{pFP}, s3
v_mov_b32 v27, {L_G}
""")
PFADDR = f"""; line prefetch: rows 112rq + 28cg + lane>>1, half lane&1
s_and_b32 s3, s66, 3
s_lshl_b32 s3, s3, 2
s_and_b32 s24, s33, 3
s_add_u32 s3, s3, s24
s_mul_i32 s3, s3, {28*3584}
s_lshl_b32 s24, s24, 6
s_sub_u32 s3, s3, s24
v_min_u32 v31, 55, v2
v_lshrrev_b32 v{pPF}, 1, v31
v_mul_u32_u24 v{pPF}, 3584, v{pPF}
v_and_b32 v31, 1, v31
v_lshl_add_u32 v{pPF}, v31, 7, v{pPF}
v_add_u32 v{pPF}, s3, v{pPF}
"""
PFLOAD = f"global_load_dword v{pPF}, v{pPF}, s[64:65] offset:-3584"

def ffn_pro():
    return lines(f"""
s_mul_i32 s44, s66, {4*TB}
s_add_u32 s44, s44, {WS_XS - L_X}
s_and_b32 s45, s33, 1
s_mul_i32 s46, s45, {TB}
s_add_u32 s46, s46, {L_X}
s_lshr_b32 s47, s33, 1
s_lshl_b32 s26, s47, 10
s_add_u32 s26, s26, s46
s_add_u32 s27, s26, s44
s_mul_i32 s28, s47, 7168
s_add_u32 s28, s28, s46
s_add_u32 s28, s28, {2*TB}
s_add_u32 s29, s28, s44
v_add_u32 v14, s26, v3
v_lshrrev_b32 v6, 5, v2
v_lshlrev_b32 v5, 9, v6
v_bfe_u32 v7, v2, 3, 1
v_lshl_add_u32 v5, v7, 7, v5
v_bfe_u32 v8, v2, 4, 1
v_lshl_add_u32 v5, v8, 6, v5
v_and_b32 v7, 3, v2
v_lshl_add_u32 v5, v7, 4, v5
v_and_b32 v9, 4, v2
v_lshl_add_u32 v5, v9, 1, v5
s_mul_i32 s44, s38, {TB}
s_add_u32 s46, s44, {L_X}
v_add_u32 v12, s46, v5
s_sub_u32 s46, {L_X + TB}, s44
v_add_u32 v13, s46, v5
s_lshl_b32 s44, s38, 9
v_lshl_add_u32 v16, v2, 3, s44
s_cmp_eq_u32 s38, 0
s_cselect_b32 s71, 0, 0xff800000
s_cselect_b32 s72, 0, 0x80008000
s_lshl_b32 s44, s66, 11
s_add_u32 s46, s44, {WS_ST2}
s_add_u32 s22, s20, s46
s_addc_u32 s23, s21, 0
s_add_u32 s44, s44, {WS_FL}
s_add_u32 s12, s20, s44
s_addc_u32 s13, s21, 0
s_mul_i32 s48, s33, {14*1024}
s_mul_i32 s44, s68, {2*HF_TT}
s_add_u32 s44, s44, s48
s_add_u32 s44, s44, {WS_WDF + 4096}
s_add_u32 s4, s20, s44
s_addc_u32 s5, s21, 0
v_add_u32 v1, {HF_TT}, v3
s_mul_i32 s44, s66, {4*HF_TT}
s_add_u32 s44, s44, {WS_HF}
s_lshl_b32 s46, s70, 11
s_add_u32 s46, s44, s46
s_mul_i32 s47, s38, {HF_TT}
s_add_u32 s46, s46, s47
s_add_u32 s6, s20, s46
s_addc_u32 s7, s21, 0
s_mul_i32 s46, s67, {HF_TT}
s_add_u32 s44, s44, s46
s_add_u32 s44, s44, s48
s_add_u32 s44, s44, 4096
s_add_u32 s8, s20, s44
s_addc_u32 s9, s21, 0
s_add_u32 s10, s8, 8192
s_addc_u32 s11, s9, 0
v_min_u32 v17, 13, v2
s_mul_i32 s44, s33, 14
v_add_u32 v17, s44, v17
v_lshrrev_b32 v17, 3, v17
v_lshlrev_b32 v17, 7, v17
s_lshl_b32 s44, s69, 7
v_mov_b32 v18, s44
v_mov_b32 v19, {TAG}
s_and_b32 s44, s33, 2
s_add_u32 s44, s44, s67
v_lshrrev_b32 v9, 4, v2               ; octet
v_and_b32 v0, 15, v2
s_lshl_b32 s46, s44, 9
s_lshl_b32 s47, s45, 7
s_add_u32 s46, s46, s47
s_add_u32 s46, s46, 256
v_lshl_add_u32 v7, v0, 3, s46
s_lshl_b32 s46, s66, 2
s_add_u32 s44, s44, s46               ; t block
s_mul_i32 s46, s44, {TB}
s_lshl_b32 s47, s68, 12
s_add_u32 s46, s46, s47
s_lshl_b32 s47, s38, 11
s_add_u32 s46, s46, s47
s_lshl_b32 s47, s45, 6
s_add_u32 s46, s46, s47
s_add_u32 s46, s46, {WS_X1}
v_lshl_add_u32 v8, v9, 9, s46
v_lshl_add_u32 v8, v0, 2, v8
v_mul_u32_u24 v6, 896, v0
v_lshl_add_u32 v6, v9, 4, v6
s_lshl_b32 s44, s44, 1
s_add_u32 s44, s44, s45
s_mul_i32 s44, s44, {16*896}
s_lshl_b32 s46, s68, 7
s_lshl_b32 s47, s38, 6
s_add_u32 s46, s46, s47
s_add_u32 s44, s44, s46
s_add_u32 s62, s62, s44
s_addc_u32 s63, s63, 0
s_lshl_b32 s46, s46, 1
s_add_u32 s46, s46, {WS_MOD}
s_add_u32 s16, s20, s46
s_addc_u32 s17, s21, 0                ; gb
s_lshl_b32 s44, s38, 12
s_lshl_b32 s46, s45, 8
s_add_u32 s44, s44, s46
s_and_b32 s46, s33, 2
s_lshl_b32 s46, s46, 15
s_add_u32 s44, s44, s46
v_lshlrev_b32 v0, 4, v0
v_lshl_add_u32 v0, v9, 9, v0
v_add_u32 v0, s44, v0
v_add_u32 v5, {2*HF_TT}, v3
s_lshl_b32 s49, s33, 13
""")

def xdma(j, stride, vo):
    n = 4096 // stride
    o = f"s_add_u32 m0, m0, 4096\nv_add_u32 v{vo}, 4096, v{vo}\n" if j and j % n == 0 else ""
    return o + f"global_load_lds_dwordx4 v{vo}, s[20:21] offset:{stride*(j%n)} sc1"
XDMA = "s_mov_b32 m0, s26\nv_add_u32 v4, s27, v3\n" + "\n".join(xdma(j, 4096, 4) for j in range(7))

def ffn(A, W, RT, wl, wp, uvr, uvm, uvfin):
    XF = [24, 32]; STT = 40; CF = 44; R = [52, 84]
    WD = lambda j: 200 + 4 * j if j < 6 else W(j - 6)
    RING = [STT, W(28), CF, CF + 4] + [W(k) for k in range(22, 28)] + [24 + 4 * i for i in range(4)]
    T = R[1]
    dma = xdma
    def dmac(j):
        return ("v_add_u32 v15, s29, v3\n" if j == 0 else "v_add_u32 v15, 4096, v15\n" if j == 4 else "") + f"s_add_u32 m0, s28, {4096*(j//4)}\nglobal_load_lds_dwordx4 v15, s[20:21] offset:{1024*(j%4)} sc1"
    def probe(t, lo, hi, stride):
        return [f"ds_read2st64_b32 {v(t+j-lo,2)}, v14 offset0:{j*stride//256} offset1:{min(j+1,hi-1)*stride//256}" for j in range(lo, hi, 2)]
    def fold(t, n):
        o = [f"v_max3_u32 v{t}, v{t}, v{t+j}, v{t+j+1}" if j + 1 < n else f"v_max_u32 v{t}, v{t}, v{t+j}" for j in range(1, n, 2)]
        return o + [f"v_cmp_eq_u32 vcc, -1, v{t}"]
    nl = "\n".join
    A(f"""
G_xw:
s_waitcnt vmcnt(5)
{nl(probe(T, 0, 2, 4096))}
s_waitcnt lgkmcnt(0)
{nl(fold(T, 2))}
s_cbranch_vccnz G_xs
""")
    RT.append(f"""G_xs:
{lim('G_go')}
s_waitcnt vmcnt(0)
{nl(probe(T + 2, 2, 7, 4096))}
s_waitcnt lgkmcnt(0)
{nl(fold(T, 7))}
s_mov_b64 exec, vcc
{XDMA}
s_mov_b64 exec, -1
s_branch G_xw""")
    Q = []
    done = [0]
    def issue(op):
        kind, j = op
        if kind == 'd':
            if j == 16: A("s_add_u32 s4, s4, 8192\ns_addc_u32 s5, s5, 0")
            A(f"global_load_dwordx4 {v(WD(j),4)}, v{1 if j & 1 else 3}, s[4:5] offset:{1024*((j>>1)%8)-4096} sc1")
        else:
            A(j)
        Q.append(op)
    def wait(op, extra=""):
        n = len(Q) - 1 - Q.index(op) if op else len(Q)
        done[0] = max(done[0], len(Q) - n)
        A(f"s_waitcnt vmcnt({min(n, 63)}){extra}")
    order = [('d', j) for j in range(28)]
    def slot():
        if order: issue(order.pop(0))
    def reads(g):
        return [f"ds_read_b64_tr_b16 {v(XF[g&1]+4*i+2*h,2)}, v{12+i} offset:{1024*(g%28)+256*h}" for i in range(2) for h in range(2)]
    def corr(p, z):
        for i in range(2): A(f"v_mfma_f32_32x32x16_bf16 {v(R[p]+16*i,16)}, {v(W(28),4)}, {v(CF+4*i,4)}, {'0' if z else v(R[p]+16*i,16)}")
    ST = lambda p, q: ('s', f"global_store_dwordx4 v3, {v(R[p]+8*q,4)}, s[6:7] offset:{1024*q} sc1")
    def send(p):
        K = R[p]; S = K + 16
        o = []
        for q in range(2):
            o += [f"v_cvt_pk_bf16_f32 v{S+j}, v{S+2*j}, v{S+2*j+1}" for j in range(4*q, 4*q+4)]
            o += [f"v_pk_max_i16 v{S+j}, s72, v{S+j}" for j in range(4*q, 4*q+4)]
            o.append(f"ds_write_b128 v16, {v(S+4*q,4)} offset:{2048*p+1024*q}")
        return o, [f"v_max_f32 v{K+r}, s71, v{K+r}" for r in range(16)]
    def recv(p):
        K = R[p]; S = K + 16
        o = []
        for q in range(2):
            for j in range(4): o += [f"v_lshlrev_b32 v{S+2*j}, 16, v{S+8+4*q+j}", f"v_and_b32 v{S+2*j+1}, 0xffff0000, v{S+8+4*q+j}"]
            o += [f"v_pk_mul_f32 {v(K+8*q+2*j,2)}, {v(K+8*q+2*j,2)}, {v(S+2*j,2)}" for j in range(4)]
            o += [f"v_cvt_pk_bf16_f32 v{K+8*q+j}, v{K+8*q+2*j}, v{K+8*q+2*j+1}" for j in range(4)]
            o.append(lambda q=q: issue(ST(p, q)))
        return [f"ds_read_b128 {v(S+8+4*q,4)}, v14 offset:{2048*p+1024*q}" for q in range(2)], o
    def run(l):
        for f in l: f() if callable(f) else A(f)
    def flag(off, lbl):
        A(f"s_barrier\ns_cmp_lg_u32 s33, 3\ns_cbranch_scc1 {lbl}\ns_mov_b64 exec, 1\nglobal_store_dword v18, v19, s[12:13] offset:{off} sc1\ns_mov_b64 exec, -1\n{lbl}:")
    fill, pre = {g: [] for g in range(56)}, {}
    def spread(l, lo, hi):
        n = hi - lo
        for k in range(n): fill[lo + k] += l[len(l) * k // n:len(l) * (k + 1) // n]
    dsq = []
    def ds(ins, tag): A(ins); dsq.append(tag)
    def lg(tag): return f"lgkmcnt({min(15, len(dsq) - 1 - max(i for i, t in enumerate(dsq) if t == tag))})"
    I = lambda op: (lambda: issue(op))
    Wt = lambda op: (lambda: wait(op))
    fill[SBK] += [Wt(None)] + probe(T, 2, 7, 4096)
    fill[SBK + 1] += ["need:f"] + fold(T, 5) + ["s_cbranch_vccnz G_br\nG_bo:"]
    RT.append(f"""G_br:
{lim('G_bo')}
s_add_u32 m0, s26, 4096
s_mov_b64 exec, vcc
v_add_u32 v4, s27, v3
v_add_u32 v4, 4096, v4
{nl(dma(j, 4096, 4) for j in range(2, 7))}
s_mov_b64 exec, -1
s_waitcnt vmcnt(0)
{nl(probe(T, 2, 7, 4096))}
s_waitcnt lgkmcnt(0)
{nl(fold(T, 5))}
s_cbranch_vccnz G_br
s_branch G_bo""")
    NE = 14 - NL
    Dd = lambda ins, tag: (lambda: ds(ins, tag))
    Nd = lambda tag: (lambda: A(f"s_waitcnt {lg(tag)}") if tag in dsq else None)
    for J in range(NE, 14):
        lw = [('w', l) for l in wl(J, pWS)]
        g0 = (J - NE) * EV("LS", 1)
        spread([I(l) for l in lw], g0, g0 + EV("LS", 1))
        g1 = min(g0 + EV("LD", 8), 2 * J - 2)
        spread([Wt(lw[7])] + wp(J), g1, g1 + 2)
        fill[g1 + 2] += [Nd(('u', J)), uvm(2 * J), uvm(2 * J + 1)] + ([Dd(uvr(2 * J + 4 + h), ('u', J + 2)) for h in range(2)] if J < 12 else [])
        if J == 13: fill[g1 + 3].append(uvfin); assert g1 + 3 < SCC - 1 and SD0 + 4 >= g0 + EV("LS", 1)
    XC = [('x', dmac(j)) for j in range(7)]
    spread([I(x) for x in XC], SC0, SC0 + EV("SCN", 4))
    pre[7] = lambda: A("s_barrier")
    fill[8].append("v_add_u32 v14, s28, v3")
    spread([slot] * 6, SD0, SD0 + 6)
    fill[SCK] += [Wt(XC[6])] + probe(T, 0, 7, 1024)
    fill[SCK + 1] += ["need:f"] + fold(T, 7) + ["s_cbranch_vccnz G_cr\nG_co:"]
    RT.append(f"""G_cr:
{lim('G_co')}
s_mov_b64 exec, vcc
{nl(dmac(j) for j in range(7))}
s_mov_b64 exec, -1
s_waitcnt vmcnt(0)
{nl(probe(T, 0, 7, 1024))}
s_waitcnt lgkmcnt(0)
{nl(fold(T, 7))}
s_cbranch_vccnz G_cr
s_branch G_co""")
    SR = [STT, STT + 2, CF, CF + 4]
    SL = [('c', f"global_load_dwordx2 {v(SR[i],2)}, v{11 if i & 1 else 16}, s[22:23] offset:{1024*(i>>1)} sc1") for i in range(4)]
    fill[9].append("v_xor_b32 v11, 512, v16")
    spread([I(s) for s in SL], SCF, SCF + 2)
    assert SCK + 1 < min(SCC, 27) and SD0 >= 7 and SCF > 9
    ZI = SCC < 28
    fill[32] += ["v_and_b32 v4, 0x30, v2", "v_lshlrev_b32 v4, 1, v4"]
    sc = [f"v_xor_b32 v{20+i}, {TAG}, v{SR[i]+1}" for i in range(4)] + ["v_or3_b32 v20, v20, v21, v22", "v_or_b32 v20, v20, v23", "v_cmp_ne_u32 vcc, 0, v20"]
    fill[SCC - 1] += [Wt(SL[3])] + sc + ["s_cbranch_vccnz G_sr\nG_so:\n;TP sok"]
    RT.append(f"G_sr:\n{lim('G_so')}\n{nl(s[1] for s in SL)}\ns_waitcnt vmcnt(0)\n{nl(sc)}\ns_cbranch_vccnz G_sr\ns_branch G_so")
    fill[SCC] += [f"v_mov_b32 v{CF+4*i+r}, 0" for i in range(2) for r in (1, 2, 3)] + [lambda: corr(1, ZI)]
    fill[SCC + 1] += [f"v_mov_b32 v{CF+4*i}, v{STT+2*i}" for i in range(2)]
    fill[SCC + 2] += [lambda: corr(0, False), "v_add_u32 v16, s49, v3", "v_xor_b32 v14, 32768, v16"]
    fill[26] += [f"v_add_u32 v{r}, {2*TB}, v{r}" for r in (12, 13)]
    pre[27] = lambda: A("s_barrier")
    BS = []
    def ab():
        A(";TP k1")
        nb = len(order) - NDA
        BS.extend(1 + (k * 27) // nb for k in range(nb))
    pre[28] = ab
    hl = lambda n: f"global_load_dwordx4 {v(RING[n%14],4)}, v{5 if n >= 14 else 3}, s[{8 if n%14 < 8 else 10}:{9 if n%14 < 8 else 11}] offset:{1024*(n%14%8)-4096} sc1"
    E0 = max(28, SCC + 3); EXB = E0 + EV("EP1", 3); E1 = EXB + 1 + EV("EP2", 3)
    spread(send(0)[0] + send(0)[1][:8], E0, EXB)
    pre[EXB] = lambda: A(f"s_waitcnt {lg('f')}\ns_barrier")
    fill[EXB] += recv(0)[0] + send(0)[1][8:]
    spread(["need:f"] + recv(0)[1] + [f"s_add_u32 s6, s6, {2*HF_TT}\ns_addc_u32 s7, s7, 0"], EXB + 1, E1)
    assert E1 <= 28 + SB1 and EXB > 28
    RL = [('r', "global_load_dword v7, v7, s[22:23] sc1")] + [('r', f"global_load_dword v{8+j}, v8, s[20:21] offset:{128*j} sc1") for j in (3, 2, 1, 0)]
    spread([I(r) for r in RL], 28 + SB1, 28 + SB1 + 5)
    pre[28 + SB1] = lambda: (wait(ST(0, 1)), flag(0, "K3_fa"))
    PA = ('p', "global_load_dword v15, v17, s[12:13] sc1"); PB = ('p', "global_load_dword v2, v17, s[12:13] offset:64 sc1")
    pre[28 + SB2] = lambda: (issue(PA), issue(('g', "global_load_dwordx4 v[20:23], v4, s[16:17] sc1")))
    A("G_go:\ns_barrier\n;TP k0")
    for i, r in enumerate(reads(0)): ds(r, (0, i // 2))
    for g in range(56):
        p, s = divmod(g, 28)
        fl = list(fill[g])
        pr = pre.get(g)
        if pr: pr()
        nxt = reads(g + 1) if g < 55 else []
        for i in range(2):
            A(f"s_waitcnt {lg((g, i))}")
            if i == 0: A(f";TP {'ae'[p]}{s}")
            A(f"v_mfma_f32_32x32x16_bf16 {v(R[p]+16*i,16)}, {v(W(s),4)}, {v(XF[g&1]+4*i,4)}, {'0' if g == 0 or (g == 28 and not ZI) else v(R[p]+16*i,16)}")
            for h in range(2):
                if nxt: ds(nxt.pop(0), (g + 1, i))
            if p == 1 and BS.count(s) > 1 - i:
                assert order[0][0] == 'd' and order[0][1] - 6 < s
                slot()
            n = (len(fl) + 1) // 2 if i == 0 else len(fl)
            if i == 0 and g == 26: n = min(n, len(fl) - 2)
            for _ in range(n):
                f = fl.pop(0)
                if callable(f): f()
                elif f.startswith("need:"): A(f"s_waitcnt {lg(f[5:])}")
                elif f.startswith("ds_"): ds(f, 'f')
                else: A(f)
    A(";TP k2")
    stream = []
    for n in range(28):
        while order and order[0][1] <= 2 * n + 1: stream.append(order.pop(0))
        stream.append(('h', hl(n)))
    hb0 = stream.index(('h', hl(14)))
    pos = [0]
    def feed(k):
        while pos[0] < k: issue(stream[pos[0]]); pos[0] += 1
    def pachk():
        wait(PA)
        A(f"K3_pc:\nv_cmp_ne_u32 vcc, {TAG}, v15\ns_cbranch_vccnz K3_pr\nK3_po:\n;TP pa")
    HB1, HP1 = EV("HB1", 0), EV("HP1", 1)
    if HB1 and HP1 == 0: pachk(); feed(HB1)
    run(send(1)[1][:8] + send(1)[0])
    if HB1 and HP1 == 1: pachk(); feed(HB1)
    run(send(1)[1][8:])
    A("s_waitcnt lgkmcnt(0)\ns_barrier\n;TP ex")
    run(recv(1)[0])
    A("s_waitcnt lgkmcnt(1)")
    run(recv(1)[1][:17])
    A("s_waitcnt lgkmcnt(0)")
    run(recv(1)[1][17:])
    A(";TP k3")
    if not HB1: pachk()
    if EV("HBB", 0): A("s_barrier")
    issue(('g', "global_load_dwordx4 v[12:15], v4, s[16:17] offset:16 sc1"))
    feed(min(HB2, hb0))
    A("v_and_b32 v7, 0xffff0000, v7\nv_mul_f32 v7, v7, v7\nv_rcp_f32 v7, v7")
    wr = lambda tt, dt, q: f"ds_write_b128 v16, {v(R[tt]+16*dt+4*q,4)} offset:{4096*dt+1024*q}"
    early = [wr(0, dt, q) for dt in range(2) for q in range(4)] + ["v_add_u32 v16, 65536, v16"]
    for n in range(28):
        tt, k = divmod(n, 14)
        if n == HB1:
            wait(ST(1, 1))
            flag(64, "K3_fb")
            A(";TP k4")
            feed(hb0)
        if n == 14 and EV("EW", 1): run(early); early = []
        if n == GO:
            wait(PB); A(f";TP g0\nK3_qc:\nv_cmp_ne_u32 vcc, {TAG}, v2\ns_cbranch_vccnz K3_qr\nK3_qo:\n;TP g1")
        if n >= GO: feed(min(len(stream), hb0 + n))
        if n == 14: run(early); early = []
        wait(('h', hl(n)))
        if n == PL: issue(PB)
        for dt in range(2):
            t = R[tt] + 16 * dt
            A(f"v_mfma_f32_32x32x16_bf16 {v(t,16)}, {v(WD(2*k+dt),4)}, {v(RING[k],4)}, {'0' if k == 0 else v(t,16)}")
    A(";TP k5")
    for dt in range(2):
        for q in range(4): A(wr(1, dt, q))
    B = [116 + 4 * i for i in range(16)]
    XR, TO, GB = 232, 240, [20, 21, 22, 23, 12, 13, 14, 15]
    for j in range(4): A(f"v_lshlrev_b32 v{XR+2*j}, 16, v{8+j}\nv_and_b32 v{XR+2*j+1}, 0xffff0000, v{8+j}")
    gc = [f"v_xor_b32 v{GB[2*j+1]}, {TAG}, v{GB[2*j+1]}" for j in range(4)] + ["v_or3_b32 v21, v21, v23, v13", "v_or_b32 v21, v21, v15", "v_cmp_ne_u32 vcc, 0, v21"]
    A(nl(gc) + "\ns_cbranch_vccnz G_gr\nG_gok:")
    RT.append(f"G_gr:\n{lim('G_gok')}\nglobal_load_dwordx4 v[20:23], v4, s[16:17] sc1\nglobal_load_dwordx4 v[12:15], v4, s[16:17] offset:16 sc1\ns_waitcnt vmcnt(0)\n{nl(gc)}\ns_cbranch_vccnz G_gr\ns_branch G_gok")
    for j in range(4): A(f"v_and_b32 v{GB[2*j+1]}, 0xffff0000, v{GB[2*j]}\nv_lshlrev_b32 v{GB[2*j]}, 16, v{GB[2*j]}")
    for r in range(8): A(f"v_mul_f32 v{GB[r]}, v7, v{GB[r]}")
    A("s_waitcnt lgkmcnt(0)\n;TP w1\ns_barrier\n;TP x1")
    for src in range(8):
        for h in range(2): A(f"ds_read_b128 {v(B[2*src+h],4)}, v0 offset:{8192*src+2048*h}")
    for src in range(1, 8):
        A(f"s_waitcnt lgkmcnt({14-2*src})")
        for h in range(2):
            for r in (0, 2): A(f"v_pk_add_f32 {v(B[h]+r,2)}, {v(B[h]+r,2)}, {v(B[2*src+h]+r,2)}")
    for j in range(4):
        A(f"v_fma_f32 v{XR+2*j}, v{GB[2*j]}, v{B[0]+j}, v{XR+2*j}\nv_fma_f32 v{XR+2*j+1}, v{GB[2*j+1]}, v{B[1]+j}, v{XR+2*j+1}")
    for j in range(4): A(f"v_cvt_pk_bf16_f32 v{TO+j}, v{XR+2*j}, v{XR+2*j+1}")
    A(f"global_store_dwordx4 v6, {v(TO,4)}, s[62:63]\ns_endpgm")
    RT.append(f"""K3_pr:
{lim('K3_po')}
global_load_dword v15, v17, s[12:13] sc1
s_waitcnt vmcnt(0)
s_branch K3_pc
K3_qr:
{lim('K3_qo')}
{"s_sleep " + SLP if SLP != "0" else ""}
global_load_dword v2, v17, s[12:13] offset:64 sc1
s_waitcnt vmcnt(0)
s_branch K3_qc""")

def kd(A):
    A(f""".globl {KN}
.p2align 8
.type {KN},@function
{KN}:
s_cmp_ge_u32 s2, {KD_GRID}
s_cbranch_scc1 F_end
s_load_dwordx2 s[36:37], s[0:1], 0
s_load_dwordx2 s[20:21], s[0:1], 136
s_load_dwordx16 s[4:19], s[0:1], 8
s_load_dwordx8 s[44:51], s[0:1], 80
s_load_dwordx2 s[52:53], s[0:1], 112  ; w_mod
s_load_dwordx2 s[62:63], s[0:1], 120  ; out
s_load_dwordx2 s[64:65], s[0:1], 80
s_getpc_b64 s[22:23]
F_pc:
s_add_u32 s22, s22, ktab-F_pc
s_addc_u32 s23, s23, 0
v_and_b32 v17, 255, v0
v_lshlrev_b32 v17, 4, v17             ; n*16
v_lshrrev_b32 v1, 6, v0
v_and_b32 v2, 63, v0                  ; lane
v_readfirstlane_b32 s33, v1           ; w
{CPF}
global_load_dwordx4 v[20:23], v17, s[22:23]
global_load_ushort v19, v17, s[22:23] offset:16
v_lshlrev_b32 v3, 4, v2               ; lane*16
s_and_b32 s34, s2, 1
s_lshl_b32 s3, s2, 3
s_mul_i32 s34, s34, 6
s_sub_u32 s3, s3, s34
s_and_b32 s34, s33, 6
s_add_u32 s3, s3, s33
s_add_u32 s3, s3, s34
s_mul_i32 s3, s3, 896
v_add_u32 v8, s3, v3
v_mov_b32 v4, 0
v_mov_b32 v5, 0
v_mov_b32 v6, 0
v_mov_b32 v7, 0
s_and_b32 s34, s2, 7
s_lshr_b32 s35, s2, 4
s_lshl_b32 s35, s35, 3
s_add_u32 s35, s35, s34
s_lshl_b32 s35, s35, 1
s_bfe_u32 s38, s2, 0x10003
s_add_u32 s35, s35, s38               ; c
s_lshr_b32 s38, s33, 2                ; ch
s_mov_b32 s43, 0
s_mov_b32 s58, {L_R}
s_mov_b32 s42, {ONES}
s_cmp_ge_u32 s2, {NCV}
s_cbranch_scc1 F_spare_loads
s_lshl_b32 s3, s35, 10
v_lshl_add_u32 v1, v0, 1, s3
s_lshl_b32 s3, s35, 2
v_bfe_u32 v10, v0, 5, 1
v_mul_u32_u24 v10, {HS}, v10
v_and_b32 v11, 31, v0
v_lshl_add_u32 v10, v11, 4, v10
v_add_u32 v10, {L_H}, v10
v_bfe_u32 v11, v0, 2, 2
v_mul_u32_u24 v11, {KC}, v11
v_and_b32 v12, 3, v0
v_lshl_add_u32 v11, v12, 4, v11
v_add_u32 v11, {L_K + 4096}, v11
v_cmp_gt_u32 vcc, 64, v0
v_cndmask_b32 v10, v11, v10, vcc
v_add_u32 v11, {L_GS + 1792 - 128}, v3
v_cmp_lt_u32 vcc, 455, v0
v_cndmask_b32 v10, v10, v11, vcc
ds_write_b128 v10, v[4:7]
""")
    for r in range(10, 16): A(f"v_mov_b32 v{r}, 0")
    A(f"""
s_mov_b32 exec_hi, 0x00ffffff
s_waitcnt lgkmcnt(0)
global_load_dwordx4 v[4:7], v8, s[36:37]
s_mov_b32 exec_hi, -1
s_load_dword {TAG}, s[20:21], {WS_EP}
s_load_dword s39, s[16:17], s3
s_load_dword s41, s[18:19], s3
s_and_b32 s27, s33, 3
s_lshl_b32 s27, s27, 8
s_mul_i32 s28, s38, {KGS}
s_add_u32 s27, s27, s28
s_mov_b32 m0, s27
v_and_b32 v24, 31, v2
v_lshrrev_b32 v25, 5, v2
v_mul_u32_u24 v{pFR}, {RS}, v24
v_lshl_add_u32 v{pFR}, v25, 4, v{pFR}
v_add_u32 v{pFR}, s27, v{pFR}
v_mul_u32_u24 v{pPW}, {4*RS}, v25
v_lshl_add_u32 v{pPW}, v24, 2, v{pPW}
v_add_u32 v{pPW}, s27, v{pPW}
; granules
v_lshrrev_b32 v{pGX0}, 2, v0
v_mul_u32_u24 v{pGX0}, {2*XGP}, v{pGX0}
v_and_b32 v26, 3, v0
v_lshl_add_u32 v{pGX0}, v26, 4, v{pGX0}
s_lshl_b32 s3, s35, 6
s_add_u32 s3, s3, {WS_XG}
v_add_u32 v{pGX0}, s3, v{pGX0}
v_add_u32 v{pGX1}, {XGP}, v{pGX0}
v_lshlrev_b32 v{pGS0}, 4, v0
v_add_u32 v{pGS0}, {WS_SG}, v{pGS0}
v_add_u32 v{pGS1}, 8192, v{pGS0}
""")
    for i in range(6): A(f"global_load_short_d16_hi v{10+i}, v1, s[{4+2*i}:{5+2*i}]")
    PFZ = "" if PFM == 3 or PFP < 2 else f"s_cmp_eq_u32 s38, {PFM - 1}\ns_cselect_b32 s3, 1, 0\nv_mul_u32_u24 v{pPF}, s3, v{pPF}"
    POI = f"global_store_dwordx4 v{pXO}, v[200:203], s[74:75] sc1\nglobal_store_dwordx4 v{pXO}, v[200:203], s[20:21] sc1"
    A(f"""
v_and_b32 v29, 15, v0                 ; m / p / cq
v_bfe_u32 v27, v0, 4, 2               ; kq
v_bfe_u32 v28, v0, 4, 4
v_min_u32 v28, 13, v28                ; rgrp 0..13
s_cmp_lg_u32 s38, 0
s_cbranch_scc1 F_hb
""")
    def rawD():
        for e in range(8):
            if e == 4: A(f"v_add_u32 v{pWD}, {16*896}, v{pWD}")
            A(f"global_load_dword v{DL+e}, v{pWD}, s[48:49] offset:{896*(2*(e&3)-4)}")
    A(f"""
v_mov_b32 v{pWD}, 0
v_mov_b32 v222, 0
s_lshr_b32 s3, s33, 1
s_and_b32 s29, s33, 1                 ; half
v_and_b32 v{pA0}, 1, v29
v_xor_b32 v{pA0}, 1, v{pA0}
v_mul_u32_u24 v{pA0}, {KC}, v{pA0}
v_lshrrev_b32 v{pA1}, 1, v29
v_lshlrev_b32 v{pA1}, 2, v{pA1}
v_sub_u32 v{pA0}, v{pA0}, v{pA1}
v_lshl_add_u32 v{pA0}, v27, 4, v{pA0}
s_mul_i32 s24, s3, {2*KC}
s_lshl_b32 s25, s29, 8
s_sub_u32 s24, s24, s25
s_add_u32 s24, s24, {L_K + 4060 - 192 - 512}
v_add_u32 v{pA0}, s24, v{pA0}
v_subrev_u32 v{pA1}, 1024, v{pA0}
v_subrev_u32 v{pA2}, 2048, v{pA0}
v_subrev_u32 v{pA3}, 3072, v{pA0}
v_lshlrev_b32 v{pB}, 5, v29
v_lshl_add_u32 v{pB}, v27, 4, v{pB}
s_mul_i32 s24, s3, {HS}
s_sub_u32 s24, s24, s25
s_add_u32 s24, s24, {L_H + 480 - 192}
v_add_u32 v{pB}, s24, v{pB}
v_mul_u32_u24 v{pYW}, 320, v27
v_lshl_add_u32 v{pYW}, v29, 4, v{pYW}
s_mul_i32 s24, s33, {YW}
v_add_u32 v{pYW}, s24, v{pYW}
F_com:
{chr(10).join(ROLE)}
{PFADDR if PFP else chr(10).join(WSADDR(29)[:6]) + chr(10) + 'v_mov_b32 v%d, v29' % pPF}
{PFZ}
{chr(10).join(ew0)}
v_lshrrev_b32 v{pXO}, 3, v0
v_mul_u32_u24 v{pXO}, {TB}, v{pXO}
v_and_b32 v27, 7, v0
v_lshl_add_u32 v{pXO}, v27, 4, v{pXO}
s_lshl_b32 s3, s35, 7
s_add_u32 s3, s3, {WS_X1}
v_add_u32 v{pXO}, s3, v{pXO}
s_add_u32 s74, s20, {WS_XS - WS_X1}
s_addc_u32 s75, s21, 0
v_mov_b32 v200, -1
v_mov_b32 v201, -1
v_mov_b32 v202, -1
v_mov_b32 v203, -1
{POI if POIS == 0 else ""}
v_and_b32 v27, 1, v0
v_mul_u32_u24 v{pGM}, {MGH}, v27
v_and_b32 v27, 2, v0
v_lshl_add_u32 v{pGM}, v27, 2, v{pGM}
s_lshl_b32 s3, s35, 4
s_add_u32 s3, s3, {WS_MG}
v_add_u32 v{pGM}, s3, v{pGM}
v_bfe_u32 v27, v0, 2, 1
v_bfe_u32 v28, v0, 3, 1
v_mad_u32_u24 v{pGA}, v27, 3, 2
v_lshl_add_u32 v{pGA}, v28, 1, v{pGA}
v_min_u32 v{pGA}, 5, v{pGA}
v_mul_u32_u24 v{pGA}, 3584, v{pGA}
v_add_u32 v{pGA}, v{pGM}, v{pGA}
v_mul_u32_u24 v27, 3584, v27
v_add_u32 v{pGM}, v{pGM}, v27
v_lshlrev_b32 v{pHW}, 3, v0
v_add_u32 v{pHW}, {L_H}, v{pHW}
v_mul_u32_u24 v{pYR}, 320, v26
v_bfe_u32 v27, v0, 2, 4
v_lshl_add_u32 v{pYR}, v27, 4, v{pYR}
s_mul_i32 s3, s33, 1280
v_add_u32 v{pYR}, s3, v{pYR}
v_mov_b32 v27, {255*16}
v_cmp_eq_u32 s[30:31], v27, v17
s_mul_i32 s3, s38, {2*KC}
s_add_u32 s3, s3, {L_K}
v_add_u32 v17, s3, v17
s_mov_b32 s14, 0x05040100
s_mov_b32 s15, 0x07060302
s_branch F_stats
F_hb:
s_mov_b64 s[64:65], s[46:47]
{chr(10).join(WSADDR(pWS))}
s_lshr_b32 s3, s2, 2
s_lshl_b32 s3, s3, 2
s_and_b32 s46, s2, 1
s_add_u32 s3, s3, s46
s_lshl_b32 s3, s3, 3
s_bfe_u32 s46, s2, 0x10001
s_add_u32 s3, s3, s46
s_add_u32 s3, s3, 4
s_mul_i32 s3, s3, 896
v_lshlrev_b32 v{pWD}, 6, v28
v_lshl_add_u32 v{pWD}, v29, 2, v{pWD}
v_add_u32 v{pWD}, s3, v{pWD}          ; row +4
v_mul_u32_u24 v{pDO}, {HF_TT}, v28
v_lshl_add_u32 v{pDO}, v29, 4, v{pDO}
s_lshl_b32 s3, s2, 9
s_add_u32 s3, s3, {WS_WDF}
v_add_u32 v{pDO}, s3, v{pDO}
v_subrev_u32 v31, 256, v0
v_min_u32 v31, 223, v31
v_lshlrev_b32 v{pSB0}, 4, v31
v_add_u32 v{pSB0}, {WS_MG + 3*3584}, v{pSB0}
v_add_u32 v{pSB1}, {MGH}, v{pSB0}
v_lshlrev_b32 v{pGW}, 2, v31
v_add_u32 v{pGW}, {L_GS}, v{pGW}
s_branch F_com
F_spare_loads:
""")
    for r in [199] + list(range(204, 224)): A(f"v_mov_b32 v{r}, 0")
    P = [96, 112, 128]
    AC = 64
    LM = 0
    A(f"""
s_sub_u32 s24, s2, {NCV}
s_min_u32 s25, s24, 27
s_and_b32 s26, s25, 1                 ; hf
s_lshr_b32 s25, s25, 1                ; g
v_lshrrev_b32 v12, 3, v0
v_min_u32 v12, 55, v12
v_and_b32 v13, 7, v0                  ; chunk
s_mul_i32 s27, s26, 448
v_lshl_add_u32 v10, v12, 3, s27       ; c offset
v_mul_u32_u24 v14, {4*5376}, v12
v_lshl_add_u32 v14, v13, 4, v14
s_mul_i32 s27, s26, {224*5376}
s_lshl_b32 s28, s25, 7
s_add_u32 s27, s27, s28
v_add_u32 v14, s27, v14
v_add_u32 v15, 5376, v14
v_add_u32 v16, {2*5376}, v14
v_add_u32 v18, {3*5376}, v14
s_cmp_ge_u32 s25, 7
s_cselect_b32 s29, 2, 1
s_mul_i32 s29, s29, 1792
s_mov_b32 exec_hi, 0x00ffffff
s_waitcnt lgkmcnt(0)
global_load_dwordx4 v[4:7], v8, s[36:37]
s_mov_b32 exec_hi, -1
s_load_dword {TAG}, s[20:21], {WS_EP}
s_cmp_eq_u32 s33, 7
s_cbranch_scc1 F_stats0
global_load_dwordx2 v[10:11], v10, s[50:51]
""")
    RA = [14, 15, 16, 18]
    for i in range(4): A(f"global_load_dwordx4 {v(P[0]+4*i,4)}, v{RA[i]}, s[52:53]")
    A(f"""
s_mov_b32 s27, {hex(LOG2E | 0x80000000)}
v_lshrrev_b32 v24, 5, v2
v_lshlrev_b32 v24, 4, v24
v_lshl_add_u32 v24, v13, 5, v24
v_bfe_u32 v25, v2, 4, 1
v_lshl_add_u32 v24, v25, 3, v24
s_lshl_b32 s3, s33, 8
v_add_u32 v24, s3, v24
s_waitcnt vmcnt(4)
v_lshlrev_b32 v44, 16, v10
v_and_b32 v45, 0xffff0000, v10
v_lshlrev_b32 v46, 16, v11
v_and_b32 v47, 0xffff0000, v11
""")
    for i in range(4): A(f"v_mul_f32 v{48+i}, s27, v{44+i}")
    for i in range(4): A(f"v_exp_f32 v{48+i}, v{48+i}")
    for i in range(4): A(f"v_add_f32 v{48+i}, 1.0, v{48+i}")
    for i in range(4): A(f"v_rcp_f32 v{48+i}, v{48+i}")
    for i in range(4): A(f"v_mul_f32 v{44+i}, v{44+i}, v{48+i}")
    A("v_cvt_pk_bf16_f32 v48, v44, v45\nv_cvt_pk_bf16_f32 v49, v46, v47")
    A("v_lshlrev_b32 v44, 16, v48\nv_and_b32 v45, 0xffff0000, v48\nv_lshlrev_b32 v46, 16, v49\nv_and_b32 v47, 0xffff0000, v49")
    def gemv(p, waitbase):
        for i in range(4):
            A(f"s_waitcnt vmcnt({waitbase - i})")
            if i == 3 and p < 2:
                for k in range(4): A(f"global_load_dwordx4 {v(P[p+1]+4*k,4)}, v{RA[k]}, s[52:53]" + (" offset:2688" if p == 0 else ""))
            for j in range(4): A(f"v_lshlrev_b32 v{56+2*j}, 16, v{P[p]+4*i+j}\nv_and_b32 v{57+2*j}, 0xffff0000, v{P[p]+4*i+j}")
            for j in range(8):
                if i == 0: A(f"v_mul_f32 v{AC+j}, v44, v{56+j}")
                else: A(f"v_fmac_f32 v{AC+j}, v{44+i}, v{56+j}")
        for j in range(4): A(f"v_permlane32_swap_b32 v{AC+j}, v{AC+4+j}")
        for j in range(4): A(f"v_add_f32 v{AC+j}, v{AC+j}, v{AC+4+j}")
        for j in range(2): A(f"v_permlane16_swap_b32 v{AC+j}, v{AC+2+j}")
        for j in range(2): A(f"v_add_f32 v{AC+j}, v{AC+j}, v{AC+2+j}")
        for j in range(2): A(f"v_add_f32_dpp v{AC+j}, v{AC+j}, v{AC+j} row_ror:8 row_mask:0xf bank_mask:0xf")
        A(f"ds_write_b64 v24, {v(AC,2)} offset:{LM + 2048*p}")
    gemv(0, 3)
    A(f""";TP s1
s_branch F_stats
F_stats0:
v_lshlrev_b32 v26, 2, v2
s_mul_i32 s3, s26, {MGH}
s_lshl_b32 s28, s25, 9
s_add_u32 s3, s3, s28
s_add_u32 s3, s3, {WS_MG}
v_lshl_add_u32 v25, v2, 3, s3
s_waitcnt vmcnt(0)
F_stats:
""")
    A(f"""
s_mul_i32 s3, s33, {RSTR}
s_add_u32 s3, s3, {L_R}
v_add_u32 v8, s3, v3
v_and_b32 v30, 3, v0
v_mul_u32_u24 v28, {2*RSTR}, v30
v_and_b32 v29, 0x1fc, v0
v_add3_u32 v28, v28, v29, s58
v_add_u32 v31, {L_S}, v3
s_mul_i32 s3, s2, {XGP}
s_add_u32 s3, s3, {WS_XG}
v_lshl_add_u32 v29, v0, 4, s3
v_add_u32 v27, {XGP//2}, v29
s_lshr_b32 s3, s2, 1
s_lshl_b32 s3, s3, 6
s_and_b32 s60, s2, 1
s_lshl_b32 s60, s60, 13
s_add_u32 s3, s3, s60
s_add_u32 s3, s3, {WS_SG}
v_add_u32 v9, s3, v3
s_lshl_b32 s3, s33, 3
s_add_u32 s3, s3, {L_S}
v_mov_b32 v30, s3
s_waitcnt vmcnt({6 + 8 * E0 + 2 * (POIS == 0)})
v_dot2_f32_bf16 v42, v4, s42, 0
v_dot2_f32_bf16 v43, v4, v4, 0
s_mov_b32 exec_hi, 0x00ffffff
ds_write_b128 v8, v[4:7]
s_mov_b32 exec_hi, -1
""")
    for j in range(1, 4): A(f"v_dot2_f32_bf16 v42, v{4+j}, s42, v42\nv_dot2_f32_bf16 v43, v{4+j}, v{4+j}, v43")
    A("v_permlane32_swap_b32 v42, v43\nv_add_f32 v42, v42, v43")
    for sh in (8, 4, 2, 1): A(f"v_add_f32_dpp v42, v42, v42 row_ror:{sh} row_mask:0xf bank_mask:0xf")
    PB_ = 160
    A(f"""
v_mov_b32 v43, v42
v_permlane16_swap_b32 v42, v43
v_add_f32 v42, v42, v43
v_mul_f32 v42, {hex(INV448)}, v42
v_mov_b32 v43, v42
v_permlane32_swap_b32 v42, v43        ; v42 mean, v43 E[x^2]
v_fma_f32 v43, -v42, v42, v43
v_max_f32 v43, 0, v43
v_cvt_pk_bf16_f32 v43, v43, v43
v_and_b32 v43, 0xffff0000, v43
v_add_f32 v43, {hex(EPS)}, v43
v_cvt_pk_bf16_f32 v43, v43, v43
v_and_b32 v43, 0xffff0000, v43
v_sqrt_f32 v43, v43
s_waitcnt lgkmcnt(0)
s_add_u32 {TAG}, {TAG}, {hex(TAGC)}
v_mov_b32 v33, {TAG}
v_cvt_pk_bf16_f32 v32, v42, v43
ds_write_b64 v30, v[32:33]
v_mov_b32 v{PB_+1}, {TAG}
v_mov_b32 v{PB_+3}, {TAG}
v_mov_b32 v{PB_+5}, {TAG}
v_mov_b32 v{PB_+7}, {TAG}
s_cmp_ge_u32 s2, {NCV}
s_cbranch_scc1 F_b1
""")
    Z1, Z8, P_ = 34, 36, 38
    T1, T8, TP = 40, 42, 44
    A(f"""
s_lshl_b32 s3, s38, 4
s_lshr_b32 s39, s39, s3
s_lshl_b32 s39, s39, 16
s_lshr_b32 s41, s41, s3
s_lshl_b32 s41, s41, 16
s_mov_b32 s29, {LOG2E}
v_mov_b32 v16, s39
v_mul_f32 v16, s29, v16
v_exp_f32 v16, v16
v_mov_b32 v{pDK}, s41
v_cndmask_b32 v{pDK}, 0, v{pDK}, s[30:31]
v_cvt_pk_bf16_f32 v16, v16, v16
v_and_b32 v16, 0xffff0000, v16        ; dt
s_waitcnt vmcnt({8 * E0 + 2 * (POIS == 0)})
v_mul_f32 v10, v16, v10
v_mul_f32 v11, v16, v11
v_mul_f32 v10, s29, v10
v_mul_f32 v11, 0.15915494, v11
v_mul_f32 v12, v16, v12               ; dB
v_mul_f32 v13, v16, v13
v_mul_f32 v{T8+1}, {hex(f2u(8.0))}, v11
v_mul_f32 v{TP+1}, {hex(f2u(256.0))}, v11
v_mul_f32 v{T8}, {hex(f2u(8.0))}, v10
v_mul_f32 v{TP}, {hex(f2u(256.0))}, v10
v_fract_f32 v{T8+1}, v{T8+1}
v_fract_f32 v{T1+1}, v11
v_fract_f32 v{TP+1}, v{TP+1}
v_exp_f32 v{T8}, v{T8}
v_cos_f32 v{Z8}, v{T8+1}
v_sin_f32 v{Z8+1}, v{T8+1}
v_exp_f32 v{T1}, v10
v_cos_f32 v{Z1}, v{T1+1}
v_sin_f32 v{Z1+1}, v{T1+1}
v_pk_mul_f32 {v(Z8,2)}, {v(Z8,2)}, {v(T8,2)} op_sel_hi:[1,0]
v_exp_f32 v{TP}, v{TP}
v_cos_f32 v{P_}, v{TP+1}
v_sin_f32 v{P_+1}, v{TP+1}
v_pk_mul_f32 {v(Z1,2)}, {v(Z1,2)}, {v(T1,2)} op_sel_hi:[1,0]
v_mov_b32 v175, 0x3f80
v_pk_mul_f32 {v(P_,2)}, {v(P_,2)}, {v(TP,2)} op_sel_hi:[1,0]
F_b1:
s_cmp_eq_u32 s33, 7
s_waitcnt lgkmcnt(0)
s_barrier
;TP b1
s_cbranch_scc1 F_pub7
""")
    for j in range(4): A(f"ds_read_b32 v{PB_+2*j}, v28 offset:{(j&1)*RSTR + (j>>1)*448}")
    A(f"""
s_cmp_ge_u32 s2, {NCV}
s_waitcnt lgkmcnt(2)
global_store_dwordx4 v29, {v(PB_,4)}, s[20:21] sc1
s_waitcnt lgkmcnt(0)
global_store_dwordx4 v27, {v(PB_+4,4)}, s[20:21] sc1
s_cbranch_scc1 F_spare
""")
    A(f"""
s_cmp_eq_u32 s38, 0
s_cbranch_scc1 F_kg
s_branch F_wl
F_pub7:
s_cmp_ge_u32 s2, {NCV}
s_cbranch_scc1 F_spare7
ds_read_b128 {v(PB_,4)}, v31
s_mov_b64 exec, 15
s_waitcnt lgkmcnt(0)
global_store_dwordx4 v9, {v(PB_,4)}, s[20:21] sc1
s_mov_b64 exec, -1
""")
    A("F_wl:"); rawD()
    A("F_kg:\n.p2align 3")
    X = lambda i: 48 + 2 * i
    Y = lambda j: Z8 if j == 1 else 96 + 2 * j
    reg = {'C': 14, 'B': 12, 'Z1': Z1, 'P': P_, 'y1': Z8}
    it = [('x0', ('C', 'B'))] + [(f'x{i}', (f'x{i-1}', 'Z1')) for i in range(1, 8)]
    for i, s in ((8, 0), (9, 2), (10, 4), (11, 6), (12, 8), (13, 12), (14, 10), (15, 14), (16, 13), (17, 16), (18, 17), (19, 18), (20, 19)):
        it.append((f'x{i}', (f'x{s}', 'P')))
    it += [('y2', ('y1', 'y1')), ('y3', ('y2', 'y1')), ('y4', ('y2', 'y2'))] + [(f'y{j}', (f'y{j-4}', 'y4')) for j in range(5, 9)]
    it += [(f'y{j}', (f'y{j-8}', 'y8')) for j in range(9, 32)]
    for n, _ in it: reg[n] = X(int(n[1:])) if n[0] == 'x' else Y(int(n[1:]))
    order = schedule(it); src = dict(it)
    TT = 168
    def outs(n, k):
        t = TT + k % 7
        i = int(n[1:])
        if n[0] == 'x': return f"v_cvt_pk_bf16_f32 v{t}, v{X(i)}, -v{X(i)+1}", f"ds_write_addtid_b32 v{t} offset:{i*RS}"
        return f"v_cvt_pk_bf16_f32 v{t}, v{Y(i)}, v{Y(i)+1}", f"ds_write_addtid_b32 v{t} offset:{(21+i)*RS}"
    seq = [None, None, 'y1'] + order
    N = len(seq)
    A(f"ds_write_addtid_b32 v175 offset:{21*RS}")
    RT = []
    assert not (EJ and PFP)
    for k in range(3, N + 4):
        if EK0 <= k < EK1: A("\n".join(ew[len(ew) * (k - EK0) // (EK1 - EK0):len(ew) * (k + 1 - EK0) // (EK1 - EK0)]))
        if k == KREL and POIS == 1: A(POI)
        g = lambda d: seq[k - d] if 0 <= k - d < N else None
        if g(0): A(cmul(A, reg[g(0)], reg[src[g(0)][0]], reg[src[g(0)][1]])[0])
        if g(3): A(outs(g(3), k - 3)[0])
        if g(1) and g(1) != 'y1': A(cmul(A, reg[g(1)], reg[src[g(1)][0]], reg[src[g(1)][1]])[1])
        if g(4): A(outs(g(4), k - 4)[1])
    AF, BF, ACC = 48, 96, 80
    TA = 24
    for ks in range(8):
        A(f"ds_read_b128 {v(AF+4*ks,4)}, v{pFR} offset:{ks*32}")
        A(f"ds_read_b128 {v(BF+4*ks,4)}, v{pFR} offset:{21*RS + ks*32}")
    GX, GS, GM = 176, 184, 192
    GL = [f"global_load_dwordx4 {v(GX,4)}, v{pGX0}, s[20:21] sc1", f"global_load_dwordx4 {v(GX+4,4)}, v{pGX1}, s[20:21] sc1",
          f"global_load_dwordx4 {v(GS,4)}, v{pGS0}, s[20:21] sc1", f"global_load_dwordx4 {v(GS+4,4)}, v{pGS1}, s[20:21] sc1"]
    mload = f"global_load_dwordx2 {v(GM,2)}, v{pGM}, s[20:21] sc1"
    A(f"v_add_u32 v{TA+8}, s28, v19")
    for ks in range(8):
        A(f"s_waitcnt lgkmcnt({14-2*ks})")
        A(f"v_mfma_f32_32x32x16_bf16 {v(ACC,16)}, {v(AF+4*ks,4)}, {v(BF+4*ks,4)}, {'0' if ks==0 else v(ACC,16)}")
        A(f"v_and_b32 v{TA+ks}, 0xffff, v{20+ks//2}" if ks % 2 == 0 else f"v_lshrrev_b32 v{TA+ks}, 16, v{20+ks//2}")
        A(f"v_add_u32 v{TA+ks}, s28, v{TA+ks}")
        if GPOS == 0 and ks >= 4: A(GL[ks - 4])
    for r in range(12):
        A(f"ds_write_b32 v{pPW}, v{ACC+r} offset:{((r&3)+8*(r>>2))*RS}")
    if GPOS == 1:
        for g in GL: A(g)
    A(f";TP pb2\ns_waitcnt lgkmcnt(0)\ns_barrier\n;TP b2")
    E = 48
    for e in range(9):
        A(f"ds_read2st64_b32 {v(E+4*e,2)}, v{TA+e} offset0:0 offset1:1")
        A(f"ds_read2st64_b32 {v(E+4*e+2,2)}, v{TA+e} offset0:2 offset1:3")
    A(mload)
    if PFP == 3: A(PFLOAD)
    e2 = list(ew2)
    for e in range(9):
        A(f"s_waitcnt lgkmcnt({min(15, 16-2*e)})")
        A(f"v_pk_add_f32 {v(E+4*e,2)}, {v(E+4*e,2)}, {v(E+4*e+2,2)}")
        if e == 7: A(f"v_add_f32 v{E+4*e}, v{E+4*e}, v{pDK}")
        A(f"v_add_f32 v{E+4*e}, v{E+4*e}, v{E+4*e+1}")
        if e == 8: A(f"v_cndmask_b32 v{E+32}, v{E+32}, 0, s[30:31]")
        if e & 1: A(f"v_cvt_pk_bf16_f32 v{88+e//2}, v{E+4*e-4}, v{E+4*e}")
        elif e: A(f"v_cvt_pk_bf16_f32 v{92+e//2-1}, v{E+4*e-4}, v{E+4*e}")
        if e == 7: A("ds_write_b128 v17, v[88:91]")
        A("\n".join(ew2[len(ew2) * e // 9:len(ew2) * (e + 1) // 9]))
    A(f"ds_write_b128 v17, v[92:95] offset:{KC}")
    A(f"""
s_waitcnt vmcnt({1 + (PFP == 3) + 8 * E2})
F_chk:
v_xor_b32 v10, {TAG}, v{GX+1}
v_xor_b32 v11, {TAG}, v{GX+3}
v_xor_b32 v12, {TAG}, v{GX+5}
v_xor_b32 v13, {TAG}, v{GX+7}
v_or3_b32 v10, v10, v11, v12
v_xor_b32 v11, {TAG}, v{GS+1}
v_xor_b32 v12, {TAG}, v{GS+3}
v_or3_b32 v10, v10, v11, v12
v_xor_b32 v11, {TAG}, v{GS+5}
v_xor_b32 v12, {TAG}, v{GS+7}
v_or3_b32 v13, v13, v11, v12
v_or_b32 v10, v10, v13
v_cmp_ne_u32 vcc, 0, v10
s_cbranch_vccnz F_rt1
F_ok:
s_mov_b64 exec, -1
{PFLOAD if PFP == 2 else ''}
{chr(10).join(ew3)}
""")
    RT += [f"F_rt1:\n{lim('F_ok')}\ns_mov_b64 exec, vcc\n" + "\n".join(GL) + "\ns_waitcnt vmcnt(0)\ns_branch F_chk"]
    XU, ST, H, HP, GA = 32, 48, 56, 64, 40
    for t in range(4): A(f"v_and_b32 v{ST+1+2*t}, 0xffff0000, v{GS+2*t}")
    for t in range(4): A(f"v_rcp_f32 v{ST+1+2*t}, v{ST+1+2*t}")
    for t in range(4): A(f"v_lshlrev_b32 v{ST+2*t}, 16, v{GS+2*t}")
    for t in range(4): A(f"v_lshlrev_b32 v{XU+2*t}, 16, v{GX+2*t}\nv_and_b32 v{XU+2*t+1}, 0xffff0000, v{GX+2*t}")
    for t in range(4): A(f"v_pk_add_f32 {v(H+2*t,2)}, {v(XU+2*t,2)}, {v(ST+2*t,2)} op_sel_hi:[1,0] neg_lo:[0,1] neg_hi:[0,1]")
    for t in range(4): A(f"v_pk_mul_f32 {v(H+2*t,2)}, {v(ST+2*t,2)}, {v(H+2*t,2)} op_sel:[1,0]")
    gaload = f"global_load_dwordx2 {v(GA,2)}, v{pGA}, s[20:21] sc1"
    A(f"""
s_waitcnt vmcnt({int(PFP >= 2) + 8 * (E2 + E3)})
F_chkm:
v_cmp_ne_u32 vcc, {TAG}, v{GM+1}
v_add_f32_dpp v10, v{GM}, v{GM} quad_perm:[1,0,3,2] row_mask:0xf bank_mask:0xf
s_cbranch_vccnz F_rt2
F_okm:
v_cvt_pk_bf16_f32 v10, v10, v10
v_and_b32 v10, 0xffff0000, v10
v_add_f32 v11, 1.0, v10
v_cvt_pk_bf16_f32 v11, v11, v11
v_readlane_b32 s30, v10, 0
v_readlane_b32 s31, v10, 2
v_and_b32 v11, 0xffff0000, v11
v_mov_b32 v12, s30
v_readlane_b32 s54, v11, 4
v_readlane_b32 s55, v11, 6
v_mov_b32 v13, s31
s_cmp_lg_u32 s38, 0
""")
    RT.append(f"F_rt2:\n{lim('F_okm')}\n{mload}\ns_waitcnt vmcnt(0)\ns_branch F_chkm")
    for t in range(4): A(f"v_pk_fma_f32 {v(H+2*t,2)}, {v(H+2*t,2)}, s[54:55], v[12:13]")
    for ch in range(2):
        for j in range(2): A(f"v_cvt_pk_bf16_f32 v{HP+2*ch+j}, v{H+4*j+ch}, v{H+2+4*j+ch}")
        A(f"ds_write_b64 v{pHW}, {v(HP+2*ch,2)} offset:{ch*HS + 512}")
    relD = []
    for i in range(2):
        relD += [f"v_perm_b32 v{DO+4*i+jp}, v{DL+2*jp+1}, v{DL+2*jp}, s{14+i}" for jp in range(4)]
        relD.append(f"global_store_dwordx4 v{pDO}, {v(DO+4*i,4)}, s[20:21] offset:{256*i} sc1")
    nlc = '\n'
    A(f"""
;TP h
s_cbranch_scc1 F_prep
{PFLOAD if PFP == 1 and PFM & 1 else ''}
s_setprio {EV('CPRIO', 2)}
s_waitcnt lgkmcnt(0)
s_barrier
;TP b3
""")
    ACC = 44
    FB = [76, 140]
    fpload = f"global_load_dword v23, v{pFP}, s[20:21] sc1"
    def reads(s, buf):
        out = []
        base = FB[buf]
        for c in range(8): out.append(f"ds_read_b128 {v(base+32+4*c,4)}, v{pB} offset:{512*c + 192 - 64*s}")
        for G in range(8):
            o = (512 * (1 - (G & 1)) + 192 - 64 * s) // 4
            out.append(f"ds_read2_b32 {v(base+4*G,2)}, v{pA0+G//2} offset0:{o} offset1:{o+1}")
            out.append(f"ds_read2_b32 {v(base+4*G+2,2)}, v{pA0+G//2} offset0:{o+2} offset1:{o+3}")
        return out
    r0 = reads(0, 0)
    r0 = r0[8:10] + r0[:8] + r0[10:]
    for r in r0: A(r)
    for s in range(4):
        base = FB[s & 1]
        nxt = reads(s + 1, (s + 1) & 1) if s < 3 else WSADDR(pWS) + ROLE2 + FPADDR
        if s > 0: A("s_waitcnt lgkmcnt(0)")
        for G in range(8):
            if s == 0 and G == 1: A("s_waitcnt lgkmcnt(0)")
            for c in range(G, 8):
                first = (s == 0 and G == 0)
                if first and c >= 6: A(f"s_waitcnt lgkmcnt({21 - c})")
                if first and c == 0: A("s_waitcnt lgkmcnt(15)")
                A(f"v_mfma_f32_16x16x32_bf16 {v(ACC+4*c,4)}, {v(base+4*G,4)}, {v(base+32+4*(c-G),4)}, {'0' if first else v(ACC+4*c,4)}")
                if nxt and not first: A(nxt.pop(0))
                if s == 3 and G >= 1 and c == min(G + 1, 7) and G < 7: A(f"ds_write_b128 v{pYW}, {v(ACC+4*(G-1),4)} offset:{1280*(G-1)}")
        assert not nxt
    for c in (6, 7): A(f"ds_write_b128 v{pYW}, {v(ACC+4*c,4)} offset:{1280*c}")
    A(f"""
F_b4:
s_waitcnt lgkmcnt(0)
s_barrier
;TP b4
""")
    YR, XS, XO, GG = 80, 96, 76, 40
    A(f"ds_read_b128 {v(GG,4)}, v27")
    for ch in range(2):
        for hf in range(2):
            A(f"ds_read_b128 {v(YR+8*hf+4*ch,4)}, v{pYR} offset:{(2*ch+hf)*YW}")
    A("s_cmp_lg_u32 s38, 0")
    for ch in range(2):
        A(f"s_waitcnt lgkmcnt({2-2*ch})")
        for j in range(2): A(f"v_pk_add_f32 {v(YR+4*ch+2*j,2)}, {v(YR+4*ch+2*j,2)}, {v(YR+8+4*ch+2*j,2)}")
        for j in range(4): A(f"v_fma_f32 v{YR+4*ch+j}, v{GG+ch}, v{YR+4*ch+j}, v{XU+2*j+ch}")
        for j in range(2): A(f"v_pk_mul_f32 {v(XS+2*j,2)}, {v(GG+2,2)}, {v(YR+4*ch+2*j,2)} " + ("op_sel:[1,0]" if ch else "op_sel_hi:[0,1]"))
        for j in range(2): A(f"v_cvt_pk_bf16_f32 v{XO+2*ch+j}, v{XS+2*j}, v{XS+2*j+1}")
        if ch == 0: A(f"v_min_u32 v{XO}, -2, v{XO}")
    A(f"global_store_dwordx4 v{pXO}, {v(XO,4)}, s[74:75] sc1")
    for j in range(4): A(f"v_cvt_pk_bf16_f32 v{XS+j}, v{YR+j}, v{YR+4+j}")
    A(f"v_min_u32 v{XS}, -2, v{XS}\nglobal_store_dwordx4 v{pXO}, {v(XS,4)}, s[20:21] sc1\ns_setprio 0\ns_barrier\ns_cbranch_scc1 G_xb")
    def wl(J, p):
        o = [f"global_load_dword v{W(2*J+1+(e&1))+e//2}, v{p+e//3}, s[64:65] offset:{3584*(e%3-1)}" for e in range(8)]
        if J < 13: o[7] += f"\ns_add_u32 s64, s64, {32*3584}\ns_addc_u32 s65, s65, 0"
        return o
    def wp(J):
        o = [f"v_perm_b32 v{W(2*J+h)+j}, v{W(2*J+2)+j}, v{W(2*J+1)+j}, s{14+h}" for h in range(2) for j in range(4)]
        return o + [f"v_permlane16_swap_b32 v{W(2*J)+j}, v{W(2*J+1)+j}" for j in range(4)]
    PT = [100 + 4 * i for i in range(4)]
    UA = 92
    uvr = lambda k: f"ds_read_b128 {v(PT[k % 4],4)}, v{pPT} offset:{32*k}"
    uvm = lambda k: f"v_mfma_f32_16x16x32_bf16 {v(UA,4)}, {v(PT[k % 4],4)}, {v(W(k),4)}, {v(UA,4) if k else 0}"
    U = W(28)
    uvfin = f"""v_cvt_pk_bf16_f32 v{U+1}, v{UA}, v{UA}
v_and_b32 v{U+1}, 0xffff0000, v{U+1}
v_sub_f32 v{U}, v{UA}, v{U+1}
v_cvt_pk_bf16_f32 v{U}, v{U+1}, v{U}
v_mov_b32 v{U+1}, 0
v_mov_b32 v{U+2}, 0
v_mov_b32 v{U+3}, 0"""
    def uv(J):
        return [f"s_waitcnt lgkmcnt({2 * (J < 13)})\n{uvm(2*J)}", uvm(2*J+1)] + ([uvr(2*J+4), uvr(2*J+5)] if J < 12 else [])
    class Str:
        def __init__(s, A, Q): s.A = A; s.Q = list(Q)
        def vm(s, op): return min(63, len(s.Q) - 1 - s.Q.index(op)) if op in s.Q else 63
        def load(s, J, p, work):
            for e, l in enumerate(wl(J, p)):
                s.A(l); s.Q.append((J, e))
                s.A(nlc.join(w_() if callable(w_) else w_ for w_ in work[len(work) * e // 8:len(work) * (e + 1) // 8]))
        def proc(s, J): return [f"s_waitcnt vmcnt({s.vm((J, 7))})"] + wp(J)
    def fpcheck(S, n):
        S.A(f"s_waitcnt vmcnt({min(S.vm('fp'), S.vm('x1'))})\nG_fc{n}:\nv_cmp_ne_u32 vcc, {TAG}, v23\ns_cbranch_vccnz G_fr{n}\nG_fo{n}:\n;TP xak")
        RT.append(f"G_fr{n}:\n{lim(f'G_fo{n}')}\ns_sleep {EV('FSL', 2)}\n{fpload}\ns_waitcnt vmcnt(0)\ns_branch G_fc{n}")
    NE = 14 - NL
    S = Str(A, ['ew', 'x0', 'x1'])
    A(nlc.join(uvr(k) for k in range(4)))
    pro = ffn_pro()
    pro += [lambda: f"s_waitcnt vmcnt({S.vm('ew')})"] + sum((wp(J) + (uv(J - 1) if J else []) for J in range(EJ)), [])
    NW = min(LAGA, NE - EJ)
    for J in range(EJ, NE):
        if J == NE - FQA: A(fpload); S.Q.append('fp')
        if J - EJ < NW: S.load(J, pWS, pro[len(pro) * (J - EJ) // NW:len(pro) * (J - EJ + 1) // NW])
        else:
            A(nlc.join(S.proc(J - LAGA)[:1]))
            S.load(J, pWS, wp(J - LAGA) + (uv(J - LAGA - 1) if J > LAGA else []))
        A(f";TP z{J}")
    fpcheck(S, 0)
    A(XDMA); S.Q += ['xd'] * 7
    for J in range(NE - NW, NE): A(nlc.join(S.proc(J) + (uv(J - 1) if J else [])))
    A(nlc.join(uv(NE - 1)) + "\n" + (uvfin if NL == 0 else "") + "\n;TP lat")
    ffn(A, W, RT, wl, wp, uvr, uvm, uvfin)

    GB = 100
    g2 = nlc.join(f"global_load_dwordx4 {v(GB+8*m+4*hf,4)}, v{pSB1 if hf else pSB0}, s[20:21] offset:{3584*m} sc1" for m in range(2) for hf in range(2))
    gc = [f"v_xor_b32 v{44+i}, {TAG}, v{GB+1+2*i}" for i in range(3)] + ["v_or3_b32 v44, v44, v45, v46"]
    gc += [f"v_xor_b32 v{45+i}, {TAG}, v{GB+7+2*i}" for i in range(3)] + ["v_or3_b32 v45, v45, v46, v47"]
    gc += [f"v_xor_b32 v{46+i}, {TAG}, v{GB+13+2*i}" for i in range(2)] + ["v_or3_b32 v44, v44, v45, v46", "v_or_b32 v44, v44, v47", "v_cmp_ne_u32 vcc, 0, v44"]
    RT.append(f"F_rt4:\n{lim('F_ok2')}\n{g2}\ns_waitcnt vmcnt(0)\ns_branch F_chk2")
    RT.append(f"""F_gb:
v_readlane_b32 s56, v42, 4
v_readlane_b32 s57, v42, 6
s_lshl_b32 s3, s35, 3
s_add_u32 s3, s3, {WS_MOD}
v_mov_b32 v44, s3
s_lshr_b32 s56, s56, 16
s_or_b32 s56, s56, s57
v_mov_b32 v10, s56
v_mov_b32 v45, {WS_EP}
s_mov_b64 exec, 1
global_store_dwordx2 v44, v[10:11], s[20:21] sc1
s_cmp_lg_u32 s2, 0
s_cbranch_scc1 F_gb1
global_store_dword v45, v11, s[20:21]
F_gb1:
s_mov_b64 exec, -1
s_branch F_gb2""")
    RT.append(f"F_rt3:\n{lim('F_ok3')}\n{gaload}\ns_waitcnt vmcnt(0)\ns_branch F_chk3")
    A(f"""
F_prep:
{g2}
s_lshl_b32 s3, s35, {FPS}
s_add_u32 s3, s3, {WS_FP}
v_mov_b32 v10, s3
v_mov_b32 v11, {TAG}
s_cmp_eq_u32 s33, 5
s_cselect_b64 exec, 1, 0
s_setprio {EV('UPRIO', 0)}
s_waitcnt lgkmcnt(0)
s_barrier
global_store_dword v10, v11, s[20:21] sc1
s_mov_b64 exec, -1
{PFLOAD if PFP == 1 and PFM & 2 else ''}
""")
    S = Str(A, ['ew', 'g', 'g', 'g', 'g2'] + ['pf'] * (PFP == 1 and PFM >> 1))
    def gsum():
        A(f"s_waitcnt vmcnt({S.vm('g2')})\nF_chk2:\n{nlc.join(gc)}\ns_cbranch_vccnz F_rt4\nF_ok2:\n;TP gok2")
        for m in range(2):
            for j in range(2): A(f"v_add_f32 v{GB+8*m+2*j}, v{GB+8*m+2*j}, v{GB+8*m+4+2*j}")
        A(f"""v_cvt_pk_bf16_f32 v{GB}, v{GB}, v{GB+2}
v_cvt_pk_bf16_f32 v{GB+8}, v{GB+8}, v{GB+10}
ds_write_b32 v{pGW}, v{GB} offset:896
v_lshlrev_b32 v{GB+9}, 16, v{GB+8}
v_and_b32 v{GB+8}, 0xffff0000, v{GB+8}
v_add_f32 v{GB+9}, 1.0, v{GB+9}
v_add_f32 v{GB+8}, 1.0, v{GB+8}
v_cvt_pk_bf16_f32 v{GB+8}, v{GB+9}, v{GB+8}
ds_write_b32 v{pGW}, v{GB+8}""")
    def gaproc():
        A(f"""
s_waitcnt vmcnt({S.vm('ga')})
F_chk3:
v_add_f32_dpp v42, v{GA}, v{GA} quad_perm:[1,0,3,2] row_mask:0xf bank_mask:0xf
v_cmp_ne_u32 vcc, {TAG}, v{GA+1}
v_cvt_pk_bf16_f32 v42, v42, v42
s_cbranch_vccnz F_rt3
F_ok3:
v_and_b32 v42, 0xffff0000, v42
v_add_f32 v43, 1.0, v42
v_cvt_pk_bf16_f32 v43, v43, v43
v_and_b32 v43, 0xffff0000, v43
v_cmp_gt_u32 vcc, 8, v2
v_cndmask_b32 v43, v43, v42, vcc
v_and_b32 v44, 2, v2
v_and_b32 v45, 8, v2
v_lshl_add_u32 v44, v44, 1, v45
s_mov_b64 exec, 0x505
v_add_u32 v44, v44, v27
ds_write_b32 v44, v43
s_mov_b64 exec, -1
s_cmp_eq_u32 s33, 6
s_cbranch_scc1 F_gb
F_gb2:
""")
    pro = FPADDR + ROLE2 + ffn_pro()
    pro += [lambda: f"s_waitcnt vmcnt({S.vm('ew')})"] + sum((wp(J) for J in range(EJ)), [])
    NW = min(LAGB, NBP - EJ)
    assert NBP <= NE and EJ <= min(GAI, GSI) and max(GAI, GSI) < NBP and NE - FQB >= NBP and EJ + RLJ <= min(GAI, 8)
    for J in range(EJ, NE):
        if J == EJ + RLJ: A(nlc.join(relD)); S.Q += ['d0', 'd1']
        if J - EJ < NW: S.load(J, pWS, pro[len(pro) * (J - EJ) // NW:len(pro) * (J - EJ + 1) // NW])
        elif J - EJ < LAGB: S.load(J, pWS, [])
        else:
            A(nlc.join(S.proc(J - LAGB)[:1]))
            S.load(J, pWS, wp(J - LAGB))
        A(f";TP y{J}")
        if J == GSI: gsum()
        if J == GAI: A(gaload); S.Q.append('ga')
        if J == NBP - 1:
            gaproc()
            A(";TP pdone\ns_branch F_b4\nG_xb:"); S.Q += ['x0', 'x1']
            A(nlc.join(uvr(k) for k in range(4)))
        if J == NE - FQB - 1: A(fpload); S.Q.append('fp')
    XB = EV("XB", 0)
    for J in range(max(EJ, NE - LAGB)): A(nlc.join(uv(J)))
    for J in range(max(EJ, NE - LAGB), NE - XB): A(nlc.join(S.proc(J) + uv(J)))
    fpcheck(S, 1)
    A(XDMA); S.Q += ['xd'] * 7
    for J in range(NE - XB, NE): A(nlc.join(S.proc(J) + uv(J)))
    A((uvfin if NL == 0 else "") + "\n;TP lat\ns_branch G_xw")
    for r in RT: A(r)

    def tree(n, base):
        regs = [base + i for i in range(n)]
        while len(regs) > 1:
            nx = []
            for i in range(0, len(regs) - 1, 2):
                A(f"v_add_f32 v{regs[i]}, v{regs[i]}, v{regs[i+1]}"); nx.append(regs[i])
            if len(regs) & 1: nx.append(regs[-1])
            regs = nx
    A(f"F_spare:\nv_add_u32 v14, s29, v14\nv_add_u32 v15, 5376, v14\nv_add_u32 v16, {2*5376}, v14\nv_add_u32 v18, {3*5376}, v14")
    gemv(1, 3 + 2)
    A("s_waitcnt lgkmcnt(0)\ns_barrier\n;TP s2")
    gemv(2, 3)
    A("s_waitcnt lgkmcnt(0)\ns_barrier\ns_branch F_sst")
    A("F_spare7:")
    for p in range(3):
        if p: A("s_barrier")
        for i in range(7): A(f"ds_read_b32 v{72+i}, v26 offset:{LM + 2048*p + 256*i}")
        if p == 0: A(f"ds_read_b128 {v(PB_,4)}, v31\nv_add_u32 v28, 0, v25")
        if p == 1: A(f"v_add_u32 v28, {2688*4}, v25")
        if p == 2: A(f"s_lshl_b32 s29, s29, 2\nv_add_u32 v28, s29, v25")
        A("s_waitcnt lgkmcnt(0)")
        tree(7, 72)
        A(f"v_mov_b32 v32, v72\nglobal_store_dwordx2 v28, v[32:33], s[20:21] sc1\n;TP s{p+2}")
        if p == 0:
            A(f"""
s_mov_b64 exec, 15
global_store_dwordx4 v9, {v(PB_,4)}, s[20:21] sc1
s_mov_b64 exec, -1
""")
    XR = 96
    xl = lambda i: f"global_load_dwordx4 {v(XR+4*i,4)}, v5, s[20:21] offset:{1024*i-3072} sc1"
    PFG, PFU, NR1, NR2 = EV("PFG", 4), EV("PFU", 0), EV("NR1", 0), EV("NR2", 7)
    def pfw(n, r0, sp):
        return "\n".join(f"v_add_u32 v13, {128*r}, v12\nv_min_u32 v13, 447, v13\nv_mul_u32_u24 v13, 3584, v13\nv_add_u32 v13, v13, v14\nglobal_load_dword v{80+r}, v13, s[{sp}:{sp+1}]" for r in range(r0, n))
    pfd = lambda lo, hi: "\n".join(f"global_load_dword v{84+r}, v15, s[20:21]\nv_add_u32 v15, 2048, v15" for r in range(lo, hi))
    A(f"""
F_sst:
s_and_b32 s3, s24, 24
s_add_u32 s3, s3, s33
s_lshl_b32 s26, s3, 2
v_lshrrev_b32 v12, 4, v2
v_add_u32 v12, s26, v12
v_and_b32 v14, 15, v2
v_min_u32 v14, 13, v14
s_bfe_u32 s26, s2, 0x10002
s_mul_i32 s26, s26, 1792
v_lshl_add_u32 v14, v14, 7, s26
s_min_u32 s3, s3, 27
s_cmp_ge_u32 s3, 14
s_cselect_b32 s26, {14*HF_TT - 1024}, 0
s_mul_i32 s3, s3, {HF_TT}
s_sub_u32 s3, s3, s26
s_add_u32 s3, s3, {WS_WDF}
v_lshrrev_b32 v15, 3, v2
v_mul_u32_u24 v15, {14*1024}, v15
v_and_b32 v13, 7, v2
v_lshl_add_u32 v15, v13, 7, v15
v_add_u32 v15, s3, v15
{"s_barrier" if PFG or PFU else ""}
{pfw(4, PFU, 46) if PFU else ""}
{pfw(PFG, EJ // 4, 44)}
v_min_u32 v4, 27, v2
s_mul_i32 s3, s33, 28
v_add_u32 v4, s3, v4
v_lshlrev_b32 v4, {FPS}, v4
v_add_u32 v4, {WS_FP}, v4
s_lshl_b32 s24, s24, 1
s_add_u32 s24, s24, s38               ; tb
s_mul_i32 s3, s24, {TB}
s_and_b32 s25, s33, 3
s_mul_i32 s26, s25, 7168
s_add_u32 s3, s3, s26
s_add_u32 s3, s3, {WS_X1 + 3072}
v_add_u32 v5, s3, v3
v_lshrrev_b32 v7, 5, v2
v_lshlrev_b32 v7, 4, v7
v_and_b32 v8, 7, v2
v_lshl_add_u32 v24, v8, 5, v7
v_bfe_u32 v8, v2, 4, 1
v_lshl_add_u32 v24, v8, 3, v24
s_lshl_b32 s3, s33, 8
s_add_u32 s3, s3, 8192
v_add_u32 v24, s3, v24
v_bfe_u32 v8, v2, 2, 3
v_lshl_add_u32 v7, v8, 5, v7
v_and_b32 v8, 3, v2
v_lshl_add_u32 v7, v8, 2, v7
v_add_u32 v7, s3, v7
s_lshl_b32 s3, s24, 9
s_add_u32 s3, s3, {WS_ST2}
v_lshl_add_u32 v6, v2, 3, s3
v_cmp_gt_u32 s[56:57], 32, v2
s_lshl_b32 s3, s2, 7
s_add_u32 s3, s3, {WS_F0 - 224*128}
v_mov_b32 v9, s3
F_s0:
{lim('F_s1')}
s_sleep {EV('PSL', 6)}
global_load_dword v10, v4, s[20:21] sc1
s_waitcnt vmcnt(0)
v_cmp_ne_u32 vcc, {TAG}, v10
s_mov_b64 exec, vcc
s_cbranch_vccnz F_s0
F_s1:
s_cmp_eq_u32 s33, 0
s_cselect_b64 exec, 1, 0
s_barrier
global_store_dword v9, v33, s[20:21] sc1
s_mov_b64 exec, -1
{pfd(0, NR1)}
""")
    if EV('SPOLL', 1): A(f"""
F_s2:
{lim('F_s3')}
s_sleep {EV('SSL', 2)}
{xl(6)}
s_waitcnt vmcnt(0)
v_cmp_eq_u32 vcc, -1, v{XR+24}
s_cbranch_vccnz F_s2
""")
    A(f"F_s3:\n{lim('F_s4')}")
    for i in range(7): A(xl(i))
    A(f"""
s_waitcnt vmcnt(0)
v_max3_u32 v10, v{XR}, v{XR+4}, v{XR+8}
v_max3_u32 v11, v{XR+12}, v{XR+16}, v{XR+20}
v_max3_u32 v10, v10, v11, v{XR+24}
v_cmp_eq_u32 vcc, -1, v10
s_mov_b64 exec, vcc
s_cbranch_vccnz F_s3
F_s4:
s_mov_b64 exec, -1
;TP s5
""")
    for i in range(7):
        for q in range(4):
            A(f"v_dot2_f32_bf16 v{AC+q}, v{XR+4*i+q}, s42, {'v%d' % (AC+q) if i else 0}")
            A(f"v_dot2_f32_bf16 v{AC+4+q}, v{XR+4*i+q}, v{XR+4*i+q}, {'v%d' % (AC+4+q) if i else 0}")
    for j in range(4): A(f"v_permlane32_swap_b32 v{AC+j}, v{AC+4+j}")
    for j in range(4): A(f"v_add_f32 v{AC+j}, v{AC+j}, v{AC+4+j}")
    for j in range(2): A(f"v_permlane16_swap_b32 v{AC+j}, v{AC+2+j}")
    for j in range(2): A(f"v_add_f32 v{AC+j}, v{AC+j}, v{AC+2+j}")
    for j in range(2): A(f"v_add_f32_dpp v{AC+j}, v{AC+j}, v{AC+j} row_ror:8 row_mask:0xf bank_mask:0xf")
    A(f"""
ds_write_b64 v24, {v(AC,2)}
s_cmp_lg_u32 s25, 0
s_waitcnt lgkmcnt(0)
s_barrier
s_cbranch_scc1 F_s7
ds_read2st64_b32 v[20:21], v7 offset0:0 offset1:1
ds_read2st64_b32 v[22:23], v7 offset0:2 offset1:3
s_waitcnt lgkmcnt(0)
v_add_f32 v20, v20, v21
v_add_f32 v22, v22, v23
v_add_f32 v20, v20, v22
v_mul_f32 v20, {hex(INV448)}, v20
v_mov_b32 v22, v20
v_permlane32_swap_b32 v20, v22
v_fma_f32 v22, -v20, v20, v22
v_max_f32 v22, 0, v22
v_cvt_pk_bf16_f32 v22, v22, v22
v_and_b32 v22, 0xffff0000, v22
v_add_f32 v22, {hex(EPS)}, v22
v_cvt_pk_bf16_f32 v22, v22, v22
v_and_b32 v22, 0xffff0000, v22
v_sqrt_f32 v22, v22
v_cvt_pk_bf16_f32 v20, -v20, -v20
v_cvt_pk_bf16_f32 v22, v22, v22
v_cndmask_b32 v32, v22, v20, s[56:57]
global_store_dwordx2 v6, v[32:33], s[20:21] sc1
;TP s6
F_s7:
{"s_barrier" if NR2 > NR1 else ""}
{pfd(NR1, NR2)}
s_waitcnt vmcnt(0)
""")
    A("F_end:\ns_endpgm")
    tab = ktable() + [0] * 8
    A(".p2align 4\n.type ktab,@object\nktab:")
    for i in range(0, len(tab), 16): A(".short " + ", ".join(str(t) for t in tab[i:i+16]))
    A(f".size ktab, {2*len(tab)}")
    return kdesc(KN, 256, 80)
```

```python
import sys, os
import re
from common import *
import kd as kdm
OLD = not set(sys.argv[2]) <= set("dez")
if OLD:
    import k34 as k34m
    from k34 import k34, K34_GRID, K34_LDS, K34_BLOCK
    from k12 import k12, K12_GRID, K12_LDS, K12_BLOCK
    from kf import kf, KF_GRID, KF_LDS, KF_BLOCK, KN

def ke(A):
    A(""".globl empty_kernel
.p2align 8
.type empty_kernel,@function
empty_kernel:
s_endpgm""")
    return kdesc("empty_kernel", 8, 16)

def kz(A):
    a, b = [int(x) for x in os.environ["ZQ"].split(",")]
    A(f""".globl z_kernel
.p2align 8
.type z_kernel,@function
z_kernel:
s_cmp_lg_u32 s2, 0
s_cbranch_scc1 Zend
s_memrealtime s[10:11]
s_load_dwordx2 s[4:5], s[0:1], 128
v_mov_b32 v1, 0
s_waitcnt lgkmcnt(0)
global_load_dword v2, v1, s[4:5] offset:{16*a} sc1
global_load_dword v3, v1, s[4:5] offset:{16*b+4} sc1
s_waitcnt vmcnt(0)
v_readfirstlane_b32 s6, v2
v_readfirstlane_b32 s7, v3
s_nop 3
s_not_b32 s6, s6
{"s_sub_u32 s6, s10, s7" if os.environ.get("ZE") else "s_sub_u32 s6, s7, s6"}
s_min_u32 s6, s6, 10000
s_max_u32 s6, s6, {os.environ.get("ZO", "0")}
s_sub_u32 s6, s6, {os.environ.get("ZO", "0")}
s_lshl_b32 s6, s6, {os.environ.get("ZS", "2")}
Zl:
s_memrealtime s[12:13]
s_waitcnt lgkmcnt(0)
s_sub_u32 s8, s12, s10
s_cmp_lt_u32 s8, s6
s_cbranch_scc1 Zl
Zend:
s_endpgm""")
    return kdesc("z_kernel", 8, 16)

KS = {'d': (kdm.KN, kdm.KD_GRID, kdm.KD_LDS, kdm.kd), 'z': ("z_kernel", 1, 0, kz), 'e': ("empty_kernel", 1, 0, ke)}
if OLD: KS.update({'u': (KN, KF_GRID, KF_LDS, kf), 'g': ("front_kernel", K12_GRID, K12_LDS, k12), 'f': ("ffn_kernel", K34_GRID, K34_LDS, k34)})
BLK = {'u': 512, 'd': 512, 'f': 512, 'g': 512}
WS_TS = 0x2000000
def add_stamps(A, names):
    out = []
    for ln in A.lines:
        t = ln.strip()
        if t[:-1] in names and t.endswith(':'):
            ki = names.index(t[:-1])
            out.append(ln)
            out += ["  " + x for x in f"""s_memrealtime s[90:91]
s_memtime s[80:81]
s_load_dwordx2 s[92:93], s[0:1], 136
v_lshrrev_b32 v1, 6, v0
s_nop 1
v_readfirstlane_b32 s94, v1
s_lshl_b32 s95, s2, 3
s_add_u32 s94, s94, s95
s_lshl_b32 s94, s94, 6
s_add_u32 s94, s94, {WS_TS + ki * 0x80000}
s_mov_b32 s82, 0
s_mov_b32 s84, 0
s_mov_b32 s86, 0
s_mov_b32 s88, 0
s_mov_b32 s76, 0
s_mov_b32 s78, 0
s_waitcnt lgkmcnt(0)""".split("\n")]
        elif t.startswith(";TP "):
            sel = os.environ.get("TP", "row,pub,chain,kcopy,b3,b4").split(",")
            sel2 = os.environ.get("TPS", "row,pub,s1,s2,s3,s4").split(",")
            sel3 = os.environ.get('TPK', 'k0,k1,k2,k3,k4,k5').split(',')
            for sl in ((sel, sel2, sel3) if sys.argv[2] not in 'urd' else (sel, sel2)):
                if t[4:] in sl:
                    r = [82, 84, 86, 88, 76, 78][sl.index(t[4:])]
                    out.append(f"  s_memtime s[{r}:{r+1}]"); break
            if "@" + t[4:] in sel:
                r = [82, 84, 86, 88, 76, 78][sel.index("@" + t[4:])]
                out.append(f"  s_memrealtime s[{r}:{r+1}]")
        elif t.startswith(";TS"):
            i = int(t[3:]); r = [82, 84, 86, 88, 76, 78][i]
            out.append(f"  s_memtime s[{r}:{r+1}]")
        elif t == "s_endpgm":
            out += ["  " + x for x in """s_waitcnt vmcnt(0) lgkmcnt(0)
s_memrealtime s[96:97]
s_memtime s[98:99]
s_getreg_b32 s100, hwreg(HW_REG_HW_ID)
s_getreg_b32 s101, hwreg(HW_REG_XCC_ID)
s_mov_b64 exec, 1
s_waitcnt lgkmcnt(0)
v_mov_b32 v0, s90
v_mov_b32 v1, s96
v_mov_b32 v2, s100
v_mov_b32 v3, s101
v_mov_b32 v4, s80
v_mov_b32 v5, s82
v_mov_b32 v6, s84
v_mov_b32 v7, s86
v_mov_b32 v8, s88
v_mov_b32 v9, s76
v_mov_b32 v10, s78
v_mov_b32 v11, s98
v_mov_b32 v12, s94
global_store_dwordx4 v12, v[0:3], s[92:93]
global_store_dwordx4 v12, v[4:7], s[92:93] offset:16
global_store_dwordx4 v12, v[8:11], s[92:93] offset:32
s_endpgm""".split("\n")]
        else: out.append(ln)
    if os.environ["TS"] == "2": out = [l.replace("s_memtime", "s_memrealtime") for l in out]
    A.lines = out

def strip(A, name, pred):
    out = []; on = False
    for ln in A.lines:
        t = ln.strip()
        if t.endswith("_kernel:"): on = t == name + ":"
        if on and pred(t): continue
        out.append(ln)
    A.lines = out

def add_dbg(A, names):
    out = []; n = 0
    NL = len(sys.argv[2]); inz = False
    for ln in A.lines:
        t = ln.strip()
        if t in ("z_kernel:", "empty_kernel:"): inz = True
        if inz: out.append(ln); continue
        if t[:-1] in names and t.endswith(':'):
            ki = names.index(t[:-1])
            out.append(ln)
            out += ["  " + x for x in f"""s_memrealtime s[90:91]
s_load_dwordx2 s[92:93], s[0:1], 128
v_lshrrev_b32 v1, 6, v0
s_nop 1
v_readfirstlane_b32 s94, v1
s_lshr_b32 s95, s2, 3
s_xor_b32 s95, s95, s2
s_and_b32 s95, s95, 7
s_or_b32 s94, s94, s95
s_waitcnt lgkmcnt(0)
s_add_u32 s92, s92, {(NL - 1 - ki) * 512 + ki * 16}
s_addc_u32 s93, s93, 0""".split("\n")]
        elif t == "s_endpgm":
            n += 1
            out += ["  " + x for x in f"""s_cmp_lg_u32 s94, 0
s_cbranch_scc1 DBGE{n}
s_waitcnt vmcnt(0) lgkmcnt(0)
s_memrealtime s[96:97]
s_mov_b64 exec, 1
s_not_b32 s90, s90
s_waitcnt lgkmcnt(0)
v_mov_b32 v0, s90
v_mov_b32 v1, s96
v_mov_b32 v2, 0
global_atomic_umax v2, v0, s[92:93]
global_atomic_umax v2, v1, s[92:93] offset:4
DBGE{n}:
s_endpgm""".split("\n")]
        else: out.append(ln)
    A.lines = out

def main():
    A = Asm()
    which = sys.argv[2] if len(sys.argv) > 2 else "12f"
    hdr = []
    if OLD: k34m.GRAN = 'g' in which
    descs = []
    A('.amdgcn_target "amdgcn-amd-amdhsa--gfx950"\n.text')
    seen = set()
    for ch in which:
        name, grid, lds, fn = KS[ch]
        hdr.append(f"; @launch {'' if name == NAME + '_kernel' else 'kernel=' + name + ' '}grid=({grid},1,1) block=({BLK.get(ch, 256)},1,1) lds={lds}")
        if ch not in seen: descs.append(fn(A)); seen.add(ch)
    A("code_end:")
    for kn in os.environ.get("NOMF", ""): strip(A, KS[kn][0], lambda t: t.startswith("v_mfma"))
    for kn in os.environ.get("NOLD", ""): strip(A, KS[kn][0], lambda t: t.startswith("global_load"))
    for kn in os.environ.get("NODS", ""): strip(A, KS[kn][0], lambda t: t.startswith("ds_read"))
    if os.environ.get("STRIP"): strip(A, KS['d'][0], lambda t: re.search(os.environ["STRIP"].replace("_", " ").replace("~", "_"), t) is not None)
    if os.environ.get("DBG"): add_dbg(A, [KS[ch][0] for ch in which if ch not in "ez"])
    if os.environ.get("TS"): add_stamps(A, [KS[ch][0] for ch in which if ch not in "ez"])
    txt = "; generated by dev/gen.py (hand-written generator); see comments there\n" + "\n".join(hdr) + "\n" + A.text() + '.section .rodata,"a"\n' + ("".join(descs) if not (os.environ.get("TS") or os.environ.get("DBG")) else re.sub(r"next_free_sgpr \d+", "next_free_sgpr 102", "".join(descs)))
    open(sys.argv[1], "w").write(txt)

if __name__ == "__main__":
    main()
```

```python
import sys, os
import re
from common import *
import kd as kdm
OLD = not set(sys.argv[2]) <= set("dez")
if OLD:
    import k34 as k34m
    from k34 import k34, K34_GRID, K34_LDS, K34_BLOCK
    from k12 import k12, K12_GRID, K12_LDS, K12_BLOCK
    from kf import kf, KF_GRID, KF_LDS, KF_BLOCK, KN

def ke(A):
    A(""".globl empty_kernel
.p2align 8
.type empty_kernel,@function
empty_kernel:
s_endpgm""")
    return kdesc("empty_kernel", 8, 16)

def kz(A):
    a, b = [int(x) for x in os.environ["ZQ"].split(",")]
    A(f""".globl z_kernel
.p2align 8
.type z_kernel,@function
z_kernel:
s_cmp_lg_u32 s2, 0
s_cbranch_scc1 Zend
s_memrealtime s[10:11]
s_load_dwordx2 s[4:5], s[0:1], 128
v_mov_b32 v1, 0
s_waitcnt lgkmcnt(0)
global_load_dword v2, v1, s[4:5] offset:{16*a} sc1
global_load_dword v3, v1, s[4:5] offset:{16*b+4} sc1
s_waitcnt vmcnt(0)
v_readfirstlane_b32 s6, v2
v_readfirstlane_b32 s7, v3
s_nop 3
s_not_b32 s6, s6
{"s_sub_u32 s6, s10, s7" if os.environ.get("ZE") else "s_sub_u32 s6, s7, s6"}
s_min_u32 s6, s6, 10000
s_max_u32 s6, s6, {os.environ.get("ZO", "0")}
s_sub_u32 s6, s6, {os.environ.get("ZO", "0")}
s_lshl_b32 s6, s6, {os.environ.get("ZS", "2")}
Zl:
s_memrealtime s[12:13]
s_waitcnt lgkmcnt(0)
s_sub_u32 s8, s12, s10
s_cmp_lt_u32 s8, s6
s_cbranch_scc1 Zl
Zend:
s_endpgm""")
    return kdesc("z_kernel", 8, 16)

KS = {'d': (kdm.KN, kdm.KD_GRID, kdm.KD_LDS, kdm.kd), 'z': ("z_kernel", 1, 0, kz), 'e': ("empty_kernel", 1, 0, ke)}
if OLD: KS.update({'u': (KN, KF_GRID, KF_LDS, kf), 'g': ("front_kernel", K12_GRID, K12_LDS, k12), 'f': ("ffn_kernel", K34_GRID, K34_LDS, k34)})
BLK = {'u': 512, 'd': 512, 'f': 512, 'g': 512}
WS_TS = 0x2000000
def add_stamps(A, names):
    out = []
    for ln in A.lines:
        t = ln.strip()
        if t[:-1] in names and t.endswith(':'):
            ki = names.index(t[:-1])
            out.append(ln)
            out += ["  " + x for x in f"""s_memrealtime s[90:91]
s_memtime s[80:81]
s_load_dwordx2 s[92:93], s[0:1], 136
v_lshrrev_b32 v1, 6, v0
s_nop 1
v_readfirstlane_b32 s94, v1
s_lshl_b32 s95, s2, 3
s_add_u32 s94, s94, s95
s_lshl_b32 s94, s94, 6
s_add_u32 s94, s94, {WS_TS + ki * 0x80000}
s_mov_b32 s82, 0
s_mov_b32 s84, 0
s_mov_b32 s86, 0
s_mov_b32 s88, 0
s_mov_b32 s76, 0
s_mov_b32 s78, 0
s_waitcnt lgkmcnt(0)""".split("\n")]
        elif t.startswith(";TP "):
            sel = os.environ.get("TP", "row,pub,chain,kcopy,b3,b4").split(",")
            sel2 = os.environ.get("TPS", "row,pub,s1,s2,s3,s4").split(",")
            sel3 = os.environ.get('TPK', 'k0,k1,k2,k3,k4,k5').split(',')
            for sl in ((sel, sel2, sel3) if sys.argv[2] not in 'urd' else (sel, sel2)):
                if t[4:] in sl:
                    r = [82, 84, 86, 88, 76, 78][sl.index(t[4:])]
                    out.append(f"  s_memtime s[{r}:{r+1}]"); break
            if "@" + t[4:] in sel:
                r = [82, 84, 86, 88, 76, 78][sel.index("@" + t[4:])]
                out.append(f"  s_memrealtime s[{r}:{r+1}]")
        elif t.startswith(";TS"):
            i = int(t[3:]); r = [82, 84, 86, 88, 76, 78][i]
            out.append(f"  s_memtime s[{r}:{r+1}]")
        elif t == "s_endpgm":
            out += ["  " + x for x in """s_waitcnt vmcnt(0) lgkmcnt(0)
s_memrealtime s[96:97]
s_memtime s[98:99]
s_getreg_b32 s100, hwreg(HW_REG_HW_ID)
s_getreg_b32 s101, hwreg(HW_REG_XCC_ID)
s_mov_b64 exec, 1
s_waitcnt lgkmcnt(0)
v_mov_b32 v0, s90
v_mov_b32 v1, s96
v_mov_b32 v2, s100
v_mov_b32 v3, s101
v_mov_b32 v4, s80
v_mov_b32 v5, s82
v_mov_b32 v6, s84
v_mov_b32 v7, s86
v_mov_b32 v8, s88
v_mov_b32 v9, s76
v_mov_b32 v10, s78
v_mov_b32 v11, s98
v_mov_b32 v12, s94
global_store_dwordx4 v12, v[0:3], s[92:93]
global_store_dwordx4 v12, v[4:7], s[92:93] offset:16
global_store_dwordx4 v12, v[8:11], s[92:93] offset:32
s_endpgm""".split("\n")]
        else: out.append(ln)
    if os.environ["TS"] == "2": out = [l.replace("s_memtime", "s_memrealtime") for l in out]
    A.lines = out

def strip(A, name, pred):
    out = []; on = False
    for ln in A.lines:
        t = ln.strip()
        if t.endswith("_kernel:"): on = t == name + ":"
        if on and pred(t): continue
        out.append(ln)
    A.lines = out

def add_dbg(A, names):
    out = []; n = 0
    NL = len(sys.argv[2]); inz = False
    for ln in A.lines:
        t = ln.strip()
        if t in ("z_kernel:", "empty_kernel:"): inz = True
        if inz: out.append(ln); continue
        if t[:-1] in names and t.endswith(':'):
            ki = names.index(t[:-1])
            out.append(ln)
            out += ["  " + x for x in f"""s_memrealtime s[90:91]
s_load_dwordx2 s[92:93], s[0:1], 128
v_lshrrev_b32 v1, 6, v0
s_nop 1
v_readfirstlane_b32 s94, v1
s_lshr_b32 s95, s2, 3
s_xor_b32 s95, s95, s2
s_and_b32 s95, s95, 7
s_xor_b32 s94, s94, {os.environ.get("DBGW", "0")}
s_or_b32 s94, s94, s95
s_waitcnt lgkmcnt(0)
s_mov_b32 s98, s90
s_add_u32 s92, s92, {(NL - 1 - ki) * 512 + ki * 16}
s_addc_u32 s93, s93, 0""".split("\n")]
        elif t == ";TP " + os.environ.get("DBGP", "-"): out.append("  s_memrealtime s[98:99]")
        elif t == "s_endpgm":
            n += 1
            out += ["  " + x for x in f"""s_cmp_lg_u32 s94, 0
s_cbranch_scc1 DBGE{n}
s_waitcnt vmcnt(0) lgkmcnt(0)
s_memrealtime s[96:97]
s_mov_b64 exec, 1
s_not_b32 s90, s90
s_waitcnt lgkmcnt(0)
v_mov_b32 v0, s90
v_mov_b32 v1, {"s98" if os.environ.get("DBGP") else "s96"}
v_mov_b32 v2, 0
global_atomic_umax v2, v0, s[92:93]
global_atomic_umax v2, v1, s[92:93] offset:4
DBGE{n}:
s_endpgm""".split("\n")]
        else: out.append(ln)
    A.lines = out

def main():
    A = Asm()
    which = sys.argv[2] if len(sys.argv) > 2 else "12f"
    hdr = []
    if OLD: k34m.GRAN = 'g' in which
    descs = []
    A('.amdgcn_target "amdgcn-amd-amdhsa--gfx950"\n.text')
    seen = set()
    for ch in which:
        name, grid, lds, fn = KS[ch]
        hdr.append(f"; @launch {'' if name == NAME + '_kernel' else 'kernel=' + name + ' '}grid=({grid},1,1) block=({BLK.get(ch, 256)},1,1) lds={lds}")
        if ch not in seen: descs.append(fn(A)); seen.add(ch)
    A("code_end:")
    for kn in os.environ.get("NOMF", ""): strip(A, KS[kn][0], lambda t: t.startswith("v_mfma"))
    for kn in os.environ.get("NOLD", ""): strip(A, KS[kn][0], lambda t: t.startswith("global_load"))
    for kn in os.environ.get("NODS", ""): strip(A, KS[kn][0], lambda t: t.startswith("ds_read"))
    if os.environ.get("STRIP"): strip(A, KS['d'][0], lambda t: re.search(os.environ["STRIP"].replace("_", " ").replace("~", "_"), t) is not None)
    if os.environ.get("DBG"): add_dbg(A, [KS[ch][0] for ch in which if ch not in "ez"])
    if os.environ.get("TS"): add_stamps(A, [KS[ch][0] for ch in which if ch not in "ez"])
    txt = "; generated by dev/gen.py (hand-written generator); see comments there\n" + "\n".join(hdr) + "\n" + A.text() + '.section .rodata,"a"\n' + ("".join(descs) if not (os.environ.get("TS") or os.environ.get("DBG")) else re.sub(r"next_free_sgpr \d+", "next_free_sgpr 102", "".join(descs)))
    open(sys.argv[1], "w").write(txt)

if __name__ == "__main__":
    main()
```

```python
from common import *
import os
KD_GRID = 256
REMAPD = 0
KN = os.environ.get('KN', 'fusedd_kernel')
NCV = 224
KGS = 53 * RS
KC = 4160
YW = 10240
L_K = 2 * KGS
L_H = L_K + 4 * KC
HS = 4608
L_R = L_H + 2 * HS
RSTR = 912
L_S = L_R + 8 * RSTR
L_X = 4 * YW
L_GS = L_X + 4 * TB
KD_LDS = L_GS + 3 * 896
L_G = L_K + 4096 + 48
TAGC = 0x2F4A7C15
XGP = 14336
MGH = 2688 * 8
TAG = 's40'

LIMIT = int(os.environ.get("LIMIT", "20000"))
def lim(lbl): return f"s_add_u32 s43, s43, 1\ns_cmp_gt_u32 s43, {LIMIT}\ns_cbranch_scc1 {lbl}"

GPOS = int(os.environ.get('GPOS', '1'))
WST = os.environ.get('WST', 'sc1')
XST = os.environ.get('XST', 'sc1')
PST = os.environ.get('PST', 'sc1')
BPRIO = os.environ.get('BPRIO', '')
CPF = f"""s_lshr_b32 s3, s2, 3
s_lshl_b32 s3, s3, 11
v_lshrrev_b32 v3, 5, v0
v_lshl_add_u32 v3, v3, 7, s3
v_min_u32 v3, code_end-{KN}-4, v3
s_sub_u32 s24, s22, ktab-{KN}
s_subb_u32 s25, s23, 0
global_load_dword v255, v3, s[24:25]"""

pFR, pPW, pGX0, pGX1, pGS0, pGS1, pGM, pGA, pHW, pYR, pXO, pDK = range(204, 216)
pA0, pA1, pA2, pA3, pB, pYW = range(216, 222)
pSB0, pSB1, pGW, pPF = range(220, 224)
pPT, pFP, pWS = 21, 22, 217
pWD = 199
pDO = 216
DL = 160
DO = 48
EV = lambda n, d: int(os.environ.get(n, d))
NT = lambda c: ' nt' if c in os.environ.get('NT', '') else ''
KREL = EV('KREL', 50)
POIS = EV('POIS', 1)

def schedule(items):
    dep = {n: [s for s in srcs if s in dict(items)] for n, srcs in items}
    height = {}
    def h(n):
        if n not in height: height[n] = 1 + max([h(m) for m, _ in items if n in dep[m]], default=0)
        return height[n]
    order, pos = [], {}
    left = [n for n, _ in items]
    while left:
        k = len(order)
        for gap in (3, 2):
            c = [n for n in left if all(s in pos and pos[s] <= k - gap for s in dep[n])]
            if c: break
        if not c: order.append(None); continue
        n = max(c, key=h); order.append(n); pos[n] = k; left.remove(n)
    return order

SB1, SB2 = EV("SB1", 13), EV("SB2", 24)
NDA, HB2, GO, PL = EV("NDA", 4), EV("HB2", 3), EV("GO", 14), EV("PL", 11)
SLP = os.environ.get("SLP", "1")
SC0, SBK, SCK, SCF, SCC, SD0 = EV("SC0", 0), EV("SBK", 3), EV("SCK", 21), EV("SCF", 19), EV("SCC", 25), EV("SD0", 7)
FPS, FQA, FQB = 7, EV("FQA", 5), EV("FQB", 0)
EJ, EK0, EK1, RLJ = EV("EJ", 4), EV("EK0", 3), EV("EK1", 45), EV("RLJ", 0)
PFP, PFM, NL = EV("PFP", 0), EV("PFM", 3), EV("NL", 0)
NBP, LAGB, LAGA, GSI, GAI = EV("NBP", 14), EV("LAGB", 7), EV("LAGA", 7), EV("GSI", 10), EV("GAI", 9)
E0, E2, E3 = EV("E0", 1), EV("E2", 1), EV("E3", 1)
W = lambda k: 196 if k == 0 else 220 + 4 * k if k <= 8 else 80 + 4 * k
ew = [f"global_load_dword v{W(2*J+1+(e&1))+e//2}, v{pPF}, s[64:65] offset:{3584*(e%3-1)}{NT('e')}" + (f"\ns_add_u32 s64, s64, {(26 if e == 7 else 3)*3584}\ns_addc_u32 s65, s65, 0" if e in (2, 5, 7) else "")
      for J in range(EJ) for e in range(8)]
ew0, ew, ew2, ew3 = ew[:8*E0], ew[8*E0:8*(EJ-E2-E3)], ew[8*(EJ-E2-E3):8*(EJ-E3)], ew[8*(EJ-E3):]
def lines(t):
    o = []
    for l in t.split("\n"):
        if not l or l[0] == ";": continue
        if l.startswith(("s_addc", "v_cndmask", "s_cselect")): o[-1] += "\n" + l
        else: o.append(l)
    return o

ROLE = lines(f"""; FFN role.  x = wg&7 : rb = 4*(x&3) + (i&3), fb = 7*(x>>2) + (i>>2), i = wg>>3 ; phase 2: th = x>>2, db = i>>2
s_and_b32 s66, s2, 3
s_lshl_b32 s66, s66, 2
s_bfe_u32 s3, s2, 0x20003
s_add_u32 s66, s66, s3                ; rb
s_bfe_u32 s67, s2, 0x10002            ; th
s_lshr_b32 s68, s2, 5                 ; db
s_mul_i32 s69, s67, 7
s_add_u32 s69, s69, s68               ; fb
s_lshl_b32 s70, s69, 2
s_and_b32 s3, s33, 3
s_add_u32 s70, s70, s3
s_lshl_b32 s3, s70, 6
s_add_u32 s3, s3, 3584
s_add_u32 s64, s64, s3
s_addc_u32 s65, s65, 0
""")
WSADDR = lambda p: lines(f"""; lane = kh, step bit, column pair : row 16 sb + 8 kh
v_lshrrev_b32 v{p+1}, 5, v2
v_bfe_u32 v{p+2}, v2, 4, 1
v_lshl_add_u32 v{p+1}, v{p+2}, 1, v{p+1}
v_mul_u32_u24 v{p}, {8*3584}, v{p+1}
v_and_b32 v{p+1}, 15, v2
v_lshl_add_u32 v{p}, v{p+1}, 2, v{p}
v_add_u32 v{p+1}, {3*3584}, v{p}
v_add_u32 v{p+2}, {6*3584}, v{p}
""")
ROLE2 = lines(f"""; pattern rows: g (b3 = 0) / sb on the k groups of row half b2, zero elsewhere
v_lshrrev_b32 v24, 5, v2
v_bfe_u32 v25, v2, 4, 1
v_bfe_u32 v26, v2, 2, 1
v_bfe_u32 v31, v2, 3, 1
v_mad_u32_u24 v31, v31, 56, v24
v_subrev_u32 v31, 112, v31
v_cmp_eq_u32 vcc, v25, v26
v_cndmask_b32 v31, 0, v31, vcc
v_lshlrev_b32 v31, 4, v31
v_add_u32 v{pPT}, {L_GS + 1792}, v31
""")
FPADDR = lines(f"""; "every slot is poisoned" flag of spare WG wg&31
s_and_b32 s3, s2, 31
s_lshl_b32 s3, s3, 7
s_add_u32 s3, s3, {WS_F0}
v_mov_b32 v{pFP}, s3
v_mov_b32 v27, {L_G}
""")
PFADDR = f"""; line prefetch: rows 112rq + 28cg + lane>>1, half lane&1
s_and_b32 s3, s66, 3
s_lshl_b32 s3, s3, 2
s_and_b32 s24, s33, 3
s_add_u32 s3, s3, s24
s_mul_i32 s3, s3, {28*3584}
s_lshl_b32 s24, s24, 6
s_sub_u32 s3, s3, s24
v_min_u32 v31, 55, v2
v_lshrrev_b32 v{pPF}, 1, v31
v_mul_u32_u24 v{pPF}, 3584, v{pPF}
v_and_b32 v31, 1, v31
v_lshl_add_u32 v{pPF}, v31, 7, v{pPF}
v_add_u32 v{pPF}, s3, v{pPF}
"""
PFLOAD = f"global_load_dword v{pPF}, v{pPF}, s[64:65] offset:-3584"

MP, MPA, MPB, MK, MK2 = EV("MP", 0), EV("MPA", 0), EV("MPB", 1), EV("MK", 10), EV("MK2", -1)
MPS = f"""; prefetch source of this wave (exec mask s[60:61] empty for the others)
s_cmp_eq_u32 s33, {MPB}
s_cselect_b32 s56, s46, s44
s_cselect_b32 s57, s47, s45
s_cselect_b32 s59, 0, 1
s_cmp_eq_u32 s33, {MPA}
s_cselect_b32 s59, 0, s59
s_mul_i32 s3, s2, 7168
v_min_u32 v254, 55, v2
v_lshl_add_u32 v254, v254, 7, s3""" if MP else ""
def mpf(pos, half=None):
    if MP != pos: return ""
    if half is None: return f"s_cmp_lg_u32 s59, 0\ns_cbranch_scc1 F_mp\nglobal_load_dword v254, v254, s[56:57]\nF_mp:"
    return f"s_cmp_lg_u32 s33, {(MPA, MPB)[half]}\ns_cbranch_scc1 F_mp{half}\nglobal_load_dword v254, v254, s[56:57]\nF_mp{half}:"

WSO = f"s_add_u32 s20, s20, {EV('WSO', 0) << 20}\ns_addc_u32 s21, s21, 0" if EV('WSO', 0) else ""
def ffn_pro():
    return lines(f"""
s_mul_i32 s44, s66, {4*TB}
s_add_u32 s44, s44, {WS_XS - L_X}
s_and_b32 s45, s33, 1
s_mul_i32 s46, s45, {TB}
s_add_u32 s46, s46, {L_X}
s_lshr_b32 s47, s33, 1
s_lshl_b32 s26, s47, 10
s_add_u32 s26, s26, s46
s_add_u32 s27, s26, s44
s_mul_i32 s28, s47, 7168
s_add_u32 s28, s28, s46
s_add_u32 s28, s28, {2*TB}
s_add_u32 s29, s28, s44
v_add_u32 v14, s26, v3
v_lshrrev_b32 v6, 5, v2
v_lshlrev_b32 v5, 9, v6
v_bfe_u32 v7, v2, 3, 1
v_lshl_add_u32 v5, v7, 7, v5
v_bfe_u32 v8, v2, 4, 1
v_lshl_add_u32 v5, v8, 6, v5
v_and_b32 v7, 3, v2
v_lshl_add_u32 v5, v7, 4, v5
v_and_b32 v9, 4, v2
v_lshl_add_u32 v5, v9, 1, v5
s_mul_i32 s44, s38, {TB}
s_add_u32 s46, s44, {L_X}
v_add_u32 v12, s46, v5
s_sub_u32 s46, {L_X + TB}, s44
v_add_u32 v13, s46, v5
s_lshl_b32 s44, s38, 9
v_lshl_add_u32 v16, v2, 3, s44
s_cmp_eq_u32 s38, 0
s_cselect_b32 s71, 0, 0xff800000
s_cselect_b32 s72, 0, 0x80008000
s_lshl_b32 s44, s66, 11
s_add_u32 s46, s44, {WS_ST2}
s_add_u32 s22, s20, s46
s_addc_u32 s23, s21, 0
s_add_u32 s44, s44, {WS_FL}
s_add_u32 s12, s20, s44
s_addc_u32 s13, s21, 0
s_mul_i32 s48, s33, {14*1024}
s_mul_i32 s44, s68, {2*HF_TT}
s_add_u32 s44, s44, s48
s_add_u32 s44, s44, {WS_WDF + 4096}
s_add_u32 s4, s20, s44
s_addc_u32 s5, s21, 0
v_add_u32 v1, {HF_TT}, v3
s_mul_i32 s44, s66, {4*HF_TT}
s_add_u32 s44, s44, {WS_HF}
s_lshl_b32 s46, s70, 11
s_add_u32 s46, s44, s46
s_mul_i32 s47, s38, {HF_TT}
s_add_u32 s46, s46, s47
s_add_u32 s6, s20, s46
s_addc_u32 s7, s21, 0
s_mul_i32 s46, s67, {HF_TT}
s_add_u32 s44, s44, s46
s_add_u32 s44, s44, s48
s_add_u32 s44, s44, 4096
s_add_u32 s8, s20, s44
s_addc_u32 s9, s21, 0
s_add_u32 s10, s8, 8192
s_addc_u32 s11, s9, 0
v_min_u32 v17, 13, v2
s_mul_i32 s44, s33, 14
v_add_u32 v17, s44, v17
v_lshrrev_b32 v17, 3, v17
v_lshlrev_b32 v17, 7, v17
s_lshl_b32 s44, s69, 7
v_mov_b32 v18, s44
v_mov_b32 v19, {TAG}
s_and_b32 s44, s33, 2
s_add_u32 s44, s44, s67
v_lshrrev_b32 v9, 4, v2               ; octet
v_and_b32 v0, 15, v2
s_lshl_b32 s46, s44, 9
s_lshl_b32 s47, s45, 7
s_add_u32 s46, s46, s47
s_add_u32 s46, s46, 256
v_lshl_add_u32 v7, v0, 3, s46
s_lshl_b32 s46, s66, 2
s_add_u32 s44, s44, s46               ; t block
s_mul_i32 s46, s44, {TB}
s_lshl_b32 s47, s68, 12
s_add_u32 s46, s46, s47
s_lshl_b32 s47, s38, 11
s_add_u32 s46, s46, s47
s_lshl_b32 s47, s45, 6
s_add_u32 s46, s46, s47
s_add_u32 s46, s46, {WS_X1}
v_lshl_add_u32 v8, v9, 9, s46
v_lshl_add_u32 v8, v0, 2, v8
v_mul_u32_u24 v6, 896, v0
v_lshl_add_u32 v6, v9, 4, v6
s_lshl_b32 s44, s44, 1
s_add_u32 s44, s44, s45
s_mul_i32 s44, s44, {16*896}
s_lshl_b32 s46, s68, 7
s_lshl_b32 s47, s38, 6
s_add_u32 s46, s46, s47
s_add_u32 s44, s44, s46
s_add_u32 s62, s62, s44
s_addc_u32 s63, s63, 0
s_lshl_b32 s46, s46, 1
s_add_u32 s46, s46, {WS_MOD}
s_add_u32 s16, s20, s46
s_addc_u32 s17, s21, 0                ; gb
s_lshl_b32 s44, s38, 12
s_lshl_b32 s46, s45, 8
s_add_u32 s44, s44, s46
s_and_b32 s46, s33, 2
s_lshl_b32 s46, s46, 15
s_add_u32 s44, s44, s46
v_lshlrev_b32 v0, 4, v0
v_lshl_add_u32 v0, v9, 9, v0
v_add_u32 v0, s44, v0
v_add_u32 v5, {2*HF_TT}, v3
s_lshl_b32 s49, s33, 13
""")

def xdma(j, stride, vo):
    n = 4096 // stride
    o = f"s_add_u32 m0, m0, 4096\nv_add_u32 v{vo}, 4096, v{vo}\n" if j and j % n == 0 else ""
    return o + f"global_load_lds_dwordx4 v{vo}, s[20:21] offset:{stride*(j%n)} sc1"
XDMA = "s_mov_b32 m0, s26\nv_add_u32 v4, s27, v3\n" + "\n".join(xdma(j, 4096, 4) for j in range(7))

def ffn(A, W, RT, wl, wp, uvr, uvm, uvfin):
    XF = [24, 32]; STT = 40; CF = 44; R = [52, 84]
    WD = lambda j: 200 + 4 * j if j < 6 else W(j - 6)
    RING = [STT, W(28), CF, CF + 4] + [W(k) for k in range(22, 28)] + [24 + 4 * i for i in range(4)]
    T = R[1]
    dma = xdma
    def dmac(j):
        return ("v_add_u32 v15, s29, v3\n" if j == 0 else "v_add_u32 v15, 4096, v15\n" if j == 4 else "") + f"s_add_u32 m0, s28, {4096*(j//4)}\nglobal_load_lds_dwordx4 v15, s[20:21] offset:{1024*(j%4)} sc1"
    def probe(t, lo, hi, stride):
        return [f"ds_read2st64_b32 {v(t+j-lo,2)}, v14 offset0:{j*stride//256} offset1:{min(j+1,hi-1)*stride//256}" for j in range(lo, hi, 2)]
    def fold(t, n):
        o = [f"v_max3_u32 v{t}, v{t}, v{t+j}, v{t+j+1}" if j + 1 < n else f"v_max_u32 v{t}, v{t}, v{t+j}" for j in range(1, n, 2)]
        return o + [f"v_cmp_eq_u32 vcc, -1, v{t}"]
    nl = "\n".join
    A(f"""
G_xw:
s_waitcnt vmcnt(5)
{nl(probe(T, 0, 2, 4096))}
s_waitcnt lgkmcnt(0)
{nl(fold(T, 2))}
s_cbranch_vccnz G_xs
""")
    RT.append(f"""G_xs:
{lim('G_go')}
s_waitcnt vmcnt(0)
{nl(probe(T + 2, 2, 7, 4096))}
s_waitcnt lgkmcnt(0)
{nl(fold(T, 7))}
s_mov_b64 exec, vcc
{XDMA}
s_mov_b64 exec, -1
s_branch G_xw""")
    Q = []
    done = [0]
    def issue(op):
        kind, j = op
        if kind == 'd':
            if j == 16: A("s_add_u32 s4, s4, 8192\ns_addc_u32 s5, s5, 0")
            A(f"global_load_dwordx4 {v(WD(j),4)}, v{1 if j & 1 else 3}, s[4:5] offset:{1024*((j>>1)%8)-4096} sc1")
        else:
            A(j)
        Q.append(op)
    def wait(op, extra=""):
        n = len(Q) - 1 - Q.index(op) if op else len(Q)
        done[0] = max(done[0], len(Q) - n)
        A(f"s_waitcnt vmcnt({min(n, 63)}){extra}")
    order = [('d', j) for j in range(28)]
    def slot():
        if order: issue(order.pop(0))
    def reads(g):
        return [f"ds_read_b64_tr_b16 {v(XF[g&1]+4*i+2*h,2)}, v{12+i} offset:{1024*(g%28)+256*h}" for i in range(2) for h in range(2)]
    def corr(p, z):
        for i in range(2): A(f"v_mfma_f32_32x32x16_bf16 {v(R[p]+16*i,16)}, {v(W(28),4)}, {v(CF+4*i,4)}, {'0' if z else v(R[p]+16*i,16)}")
    ST = lambda p, q: ('s', f"global_store_dwordx4 v3, {v(R[p]+8*q,4)}, s[6:7] offset:{1024*q} sc1")
    def send(p):
        K = R[p]; S = K + 16
        o = []
        for q in range(2):
            o += [f"v_cvt_pk_bf16_f32 v{S+j}, v{S+2*j}, v{S+2*j+1}" for j in range(4*q, 4*q+4)]
            o += [f"v_pk_max_i16 v{S+j}, s72, v{S+j}" for j in range(4*q, 4*q+4)]
            o.append(f"ds_write_b128 v16, {v(S+4*q,4)} offset:{2048*p+1024*q}")
        return o, [f"v_max_f32 v{K+r}, s71, v{K+r}" for r in range(16)]
    def recv(p):
        K = R[p]; S = K + 16
        o = []
        for q in range(2):
            for j in range(4): o += [f"v_lshlrev_b32 v{S+2*j}, 16, v{S+8+4*q+j}", f"v_and_b32 v{S+2*j+1}, 0xffff0000, v{S+8+4*q+j}"]
            o += [f"v_pk_mul_f32 {v(K+8*q+2*j,2)}, {v(K+8*q+2*j,2)}, {v(S+2*j,2)}" for j in range(4)]
            o += [f"v_cvt_pk_bf16_f32 v{K+8*q+j}, v{K+8*q+2*j}, v{K+8*q+2*j+1}" for j in range(4)]
            o.append(lambda q=q: issue(ST(p, q)))
        return [f"ds_read_b128 {v(S+8+4*q,4)}, v14 offset:{2048*p+1024*q}" for q in range(2)], o
    def run(l):
        for f in l: f() if callable(f) else A(f)
    def flag(off, lbl):
        A(f"s_barrier\ns_cmp_lg_u32 s33, 3\ns_cbranch_scc1 {lbl}\ns_mov_b64 exec, 1\nglobal_store_dword v18, v19, s[12:13] offset:{off} sc1\ns_mov_b64 exec, -1\n{lbl}:")
    fill, pre = {g: [] for g in range(56)}, {}
    def spread(l, lo, hi):
        n = hi - lo
        for k in range(n): fill[lo + k] += l[len(l) * k // n:len(l) * (k + 1) // n]
    dsq = []
    def ds(ins, tag): A(ins); dsq.append(tag)
    def lg(tag): return f"lgkmcnt({min(15, len(dsq) - 1 - max(i for i, t in enumerate(dsq) if t == tag))})"
    I = lambda op: (lambda: issue(op))
    Wt = lambda op: (lambda: wait(op))
    fill[SBK] += [Wt(None)] + probe(T, 2, 7, 4096)
    fill[SBK + 1] += ["need:f"] + fold(T, 5) + ["s_cbranch_vccnz G_br\nG_bo:"]
    RT.append(f"""G_br:
{lim('G_bo')}
s_add_u32 m0, s26, 4096
s_mov_b64 exec, vcc
v_add_u32 v4, s27, v3
v_add_u32 v4, 4096, v4
{nl(dma(j, 4096, 4) for j in range(2, 7))}
s_mov_b64 exec, -1
s_waitcnt vmcnt(0)
{nl(probe(T, 2, 7, 4096))}
s_waitcnt lgkmcnt(0)
{nl(fold(T, 5))}
s_cbranch_vccnz G_br
s_branch G_bo""")
    NE = 14 - NL
    Dd = lambda ins, tag: (lambda: ds(ins, tag))
    Nd = lambda tag: (lambda: A(f"s_waitcnt {lg(tag)}") if tag in dsq else None)
    for J in range(NE, 14):
        lw = [('w', l) for l in wl(J, pWS)]
        g0 = (J - NE) * EV("LS", 1)
        spread([I(l) for l in lw], g0, g0 + EV("LS", 1))
        g1 = min(g0 + EV("LD", 8), 2 * J - 2)
        spread([Wt(lw[7])] + wp(J), g1, g1 + 2)
        fill[g1 + 2] += [Nd(('u', J)), uvm(2 * J), uvm(2 * J + 1)] + ([Dd(uvr(2 * J + 4 + h), ('u', J + 2)) for h in range(2)] if J < 12 else [])
        if J == 13: fill[g1 + 3].append(uvfin); assert g1 + 3 < SCC - 1 and SD0 + 4 >= g0 + EV("LS", 1)
    XC = [('x', dmac(j)) for j in range(7)]
    spread([I(x) for x in XC], SC0, SC0 + EV("SCN", 4))
    pre[7] = lambda: A("s_barrier")
    fill[8].append("v_add_u32 v14, s28, v3")
    spread([slot] * 6, SD0, SD0 + 6)
    fill[SCK] += [Wt(XC[6])] + probe(T, 0, 7, 1024)
    fill[SCK + 1] += ["need:f"] + fold(T, 7) + ["s_cbranch_vccnz G_cr\nG_co:"]
    RT.append(f"""G_cr:
{lim('G_co')}
s_mov_b64 exec, vcc
{nl(dmac(j) for j in range(7))}
s_mov_b64 exec, -1
s_waitcnt vmcnt(0)
{nl(probe(T, 0, 7, 1024))}
s_waitcnt lgkmcnt(0)
{nl(fold(T, 7))}
s_cbranch_vccnz G_cr
s_branch G_co""")
    SR = [STT, STT + 2, CF, CF + 4]
    SL = [('c', f"global_load_dwordx2 {v(SR[i],2)}, v{11 if i & 1 else 16}, s[22:23] offset:{1024*(i>>1)} sc1") for i in range(4)]
    fill[9].append("v_xor_b32 v11, 512, v16")
    spread([I(s) for s in SL], SCF, SCF + 2)
    assert SCK + 1 < min(SCC, 27) and SD0 >= 7 and SCF > 9
    ZI = SCC < 28
    fill[32] += ["v_and_b32 v4, 0x30, v2", "v_lshlrev_b32 v4, 1, v4"]
    sc = [f"v_xor_b32 v{20+i}, {TAG}, v{SR[i]+1}" for i in range(4)] + ["v_or3_b32 v20, v20, v21, v22", "v_or_b32 v20, v20, v23", "v_cmp_ne_u32 vcc, 0, v20"]
    fill[SCC - 1] += [Wt(SL[3])] + sc + ["s_cbranch_vccnz G_sr\nG_so:\n;TP sok"]
    RT.append(f"G_sr:\n{lim('G_so')}\n{nl(s[1] for s in SL)}\ns_waitcnt vmcnt(0)\n{nl(sc)}\ns_cbranch_vccnz G_sr\ns_branch G_so")
    fill[SCC] += [f"v_mov_b32 v{CF+4*i+r}, 0" for i in range(2) for r in (1, 2, 3)] + [lambda: corr(1, ZI)]
    fill[SCC + 1] += [f"v_mov_b32 v{CF+4*i}, v{STT+2*i}" for i in range(2)]
    fill[SCC + 2] += [lambda: corr(0, False), "v_add_u32 v16, s49, v3", "v_xor_b32 v14, 32768, v16"]
    fill[26] += [f"v_add_u32 v{r}, {2*TB}, v{r}" for r in (12, 13)]
    pre[27] = lambda: A("s_barrier")
    BS = []
    def ab():
        A(";TP k1")
        nb = len(order) - NDA
        BS.extend(1 + (k * 27) // nb for k in range(nb))
    pre[28] = ab
    hl = lambda n: f"global_load_dwordx4 {v(RING[n%14],4)}, v{5 if n >= 14 else 3}, s[{8 if n%14 < 8 else 10}:{9 if n%14 < 8 else 11}] offset:{1024*(n%14%8)-4096} sc1"
    E0 = max(28, SCC + 3); EXB = E0 + EV("EP1", 3); E1 = EXB + 1 + EV("EP2", 3)
    spread(send(0)[0] + send(0)[1][:8], E0, EXB)
    pre[EXB] = lambda: A(f"s_waitcnt {lg('f')}\ns_barrier")
    fill[EXB] += recv(0)[0] + send(0)[1][8:]
    spread(["need:f"] + recv(0)[1] + [f"s_add_u32 s6, s6, {2*HF_TT}\ns_addc_u32 s7, s7, 0"], EXB + 1, E1)
    assert E1 <= 28 + SB1 and EXB > 28
    RL = [('r', "global_load_dword v7, v7, s[22:23] sc1")] + [('r', f"global_load_dword v{8+j}, v8, s[20:21] offset:{128*j} sc1") for j in (3, 2, 1, 0)]
    spread([I(r) for r in RL], 28 + SB1, 28 + SB1 + 5)
    pre[28 + SB1] = lambda: (wait(ST(0, 1)), flag(0, "K3_fa"))
    PA = ('p', "global_load_dword v15, v17, s[12:13] sc1"); PB = ('p', "global_load_dword v2, v17, s[12:13] offset:64 sc1")
    pre[28 + SB2] = lambda: (issue(PA), issue(('g', "global_load_dwordx4 v[20:23], v4, s[16:17] sc1")))
    A("G_go:\ns_barrier\n;TP k0")
    for i, r in enumerate(reads(0)): ds(r, (0, i // 2))
    for g in range(56):
        p, s = divmod(g, 28)
        fl = list(fill[g])
        pr = pre.get(g)
        if pr: pr()
        nxt = reads(g + 1) if g < 55 else []
        for i in range(2):
            A(f"s_waitcnt {lg((g, i))}")
            if i == 0: A(f";TP {'ae'[p]}{s}")
            A(f"v_mfma_f32_32x32x16_bf16 {v(R[p]+16*i,16)}, {v(W(s),4)}, {v(XF[g&1]+4*i,4)}, {'0' if g == 0 or (g == 28 and not ZI) else v(R[p]+16*i,16)}")
            for h in range(2):
                if nxt: ds(nxt.pop(0), (g + 1, i))
            if p == 1 and BS.count(s) > 1 - i:
                assert order[0][0] == 'd' and order[0][1] - 6 < s
                slot()
            n = (len(fl) + 1) // 2 if i == 0 else len(fl)
            if i == 0 and g == 26: n = min(n, len(fl) - 2)
            for _ in range(n):
                f = fl.pop(0)
                if callable(f): f()
                elif f.startswith("need:"): A(f"s_waitcnt {lg(f[5:])}")
                elif f.startswith("ds_"): ds(f, 'f')
                else: A(f)
    A(";TP k2")
    stream = []
    for n in range(28):
        while order and order[0][1] <= 2 * n + 1: stream.append(order.pop(0))
        stream.append(('h', hl(n)))
    hb0 = stream.index(('h', hl(14)))
    pos = [0]
    def feed(k):
        while pos[0] < k: issue(stream[pos[0]]); pos[0] += 1
    def pachk():
        wait(PA)
        A(f"K3_pc:\nv_cmp_ne_u32 vcc, {TAG}, v15\ns_cbranch_vccnz K3_pr\nK3_po:\n;TP pa")
    HB1, HP1 = EV("HB1", 0), EV("HP1", 1)
    if HB1 and HP1 == 0: pachk(); feed(HB1)
    run(send(1)[1][:8] + send(1)[0])
    if HB1 and HP1 == 1: pachk(); feed(HB1)
    run(send(1)[1][8:])
    A("s_waitcnt lgkmcnt(0)\ns_barrier\n;TP ex")
    run(recv(1)[0])
    A("s_waitcnt lgkmcnt(1)")
    run(recv(1)[1][:17])
    A("s_waitcnt lgkmcnt(0)")
    run(recv(1)[1][17:])
    A(";TP k3")
    if not HB1: pachk()
    if EV("HBB", 0): A("s_barrier")
    issue(('g', "global_load_dwordx4 v[12:15], v4, s[16:17] offset:16 sc1"))
    feed(min(HB2, hb0))
    A("v_and_b32 v7, 0xffff0000, v7\nv_mul_f32 v7, v7, v7\nv_rcp_f32 v7, v7")
    wr = lambda tt, dt, q: f"ds_write_b128 v16, {v(R[tt]+16*dt+4*q,4)} offset:{4096*dt+1024*q}"
    early = [wr(0, dt, q) for dt in range(2) for q in range(4)] + ["v_add_u32 v16, 65536, v16"]
    for n in range(28):
        tt, k = divmod(n, 14)
        if n == HB1:
            wait(ST(1, 1))
            flag(64, "K3_fb")
            A(";TP k4")
            feed(hb0)
        if n == 14 and EV("EW", 1): run(early); early = []
        if n == GO:
            wait(PB); A(f";TP g0\nK3_qc:\nv_cmp_ne_u32 vcc, {TAG}, v2\ns_cbranch_vccnz K3_qr\nK3_qo:\n;TP g1")
        if n >= GO: feed(min(len(stream), hb0 + n))
        if n == 14: run(early); early = []
        wait(('h', hl(n)))
        if n == PL: issue(PB)
        for dt in range(2):
            t = R[tt] + 16 * dt
            A(f"v_mfma_f32_32x32x16_bf16 {v(t,16)}, {v(WD(2*k+dt),4)}, {v(RING[k],4)}, {'0' if k == 0 else v(t,16)}")
    A(";TP k5")
    for dt in range(2):
        for q in range(4): A(wr(1, dt, q))
    B = [116 + 4 * i for i in range(16)]
    XR, TO, GB = 232, 240, [20, 21, 22, 23, 12, 13, 14, 15]
    for j in range(4): A(f"v_lshlrev_b32 v{XR+2*j}, 16, v{8+j}\nv_and_b32 v{XR+2*j+1}, 0xffff0000, v{8+j}")
    gc = [f"v_xor_b32 v{GB[2*j+1]}, {TAG}, v{GB[2*j+1]}" for j in range(4)] + ["v_or3_b32 v21, v21, v23, v13", "v_or_b32 v21, v21, v15", "v_cmp_ne_u32 vcc, 0, v21"]
    A(nl(gc) + "\ns_cbranch_vccnz G_gr\nG_gok:")
    RT.append(f"G_gr:\n{lim('G_gok')}\nglobal_load_dwordx4 v[20:23], v4, s[16:17] sc1\nglobal_load_dwordx4 v[12:15], v4, s[16:17] offset:16 sc1\ns_waitcnt vmcnt(0)\n{nl(gc)}\ns_cbranch_vccnz G_gr\ns_branch G_gok")
    for j in range(4): A(f"v_and_b32 v{GB[2*j+1]}, 0xffff0000, v{GB[2*j]}\nv_lshlrev_b32 v{GB[2*j]}, 16, v{GB[2*j]}")
    for r in range(8): A(f"v_mul_f32 v{GB[r]}, v7, v{GB[r]}")
    A("s_waitcnt lgkmcnt(0)\n;TP w1\ns_barrier\n;TP x1")
    for src in range(8):
        for h in range(2): A(f"ds_read_b128 {v(B[2*src+h],4)}, v0 offset:{8192*src+2048*h}")
    for src in range(1, 8):
        A(f"s_waitcnt lgkmcnt({14-2*src})")
        for h in range(2):
            for r in (0, 2): A(f"v_pk_add_f32 {v(B[h]+r,2)}, {v(B[h]+r,2)}, {v(B[2*src+h]+r,2)}")
    for j in range(4):
        A(f"v_fma_f32 v{XR+2*j}, v{GB[2*j]}, v{B[0]+j}, v{XR+2*j}\nv_fma_f32 v{XR+2*j+1}, v{GB[2*j+1]}, v{B[1]+j}, v{XR+2*j+1}")
    for j in range(4): A(f"v_cvt_pk_bf16_f32 v{TO+j}, v{XR+2*j}, v{XR+2*j+1}")
    A(f"global_store_dwordx4 v6, {v(TO,4)}, s[62:63]\ns_endpgm")
    RT.append(f"""K3_pr:
{lim('K3_po')}
global_load_dword v15, v17, s[12:13] sc1
s_waitcnt vmcnt(0)
s_branch K3_pc
K3_qr:
{lim('K3_qo')}
{"s_sleep " + SLP if SLP != "0" else ""}
global_load_dword v2, v17, s[12:13] offset:64 sc1
s_waitcnt vmcnt(0)
s_branch K3_qc""")

def kd(A):
    A(f""".globl {KN}
.p2align 8
.type {KN},@function
{KN}:
s_cmp_ge_u32 s2, {KD_GRID}
s_cbranch_scc1 F_end
{"s_add_u32 s2, s2, 224" + chr(10) + "s_and_b32 s2, s2, 255" if EV('REMAP', REMAPD) else ""}
s_load_dwordx2 s[36:37], s[0:1], 0
s_load_dwordx2 s[20:21], s[0:1], 136
s_load_dwordx16 s[4:19], s[0:1], 8
s_load_dwordx8 s[44:51], s[0:1], 80
s_load_dwordx2 s[52:53], s[0:1], 112  ; w_mod
s_load_dwordx2 s[62:63], s[0:1], 120  ; out
s_load_dwordx2 s[64:65], s[0:1], 80
;TP i1
s_getpc_b64 s[22:23]
F_pc:
s_add_u32 s22, s22, ktab-F_pc
s_addc_u32 s23, s23, 0
v_and_b32 v17, 255, v0
v_lshlrev_b32 v17, 4, v17             ; n*16
v_lshrrev_b32 v1, 6, v0
v_and_b32 v2, 63, v0                  ; lane
v_readfirstlane_b32 s33, v1           ; w
{CPF}
;TP i2
global_load_dwordx4 v[20:23], v17, s[22:23]
global_load_ushort v19, v17, s[22:23] offset:16
v_lshlrev_b32 v3, 4, v2               ; lane*16
s_and_b32 s34, s2, 1
s_lshl_b32 s3, s2, 3
s_mul_i32 s34, s34, 6
s_sub_u32 s3, s3, s34
s_and_b32 s34, s33, 6
s_add_u32 s3, s3, s33
s_add_u32 s3, s3, s34
s_mul_i32 s3, s3, 896
v_add_u32 v8, s3, v3
v_mov_b32 v4, 0
v_mov_b32 v5, 0
v_mov_b32 v6, 0
v_mov_b32 v7, 0
s_and_b32 s34, s2, 7
s_lshr_b32 s35, s2, 4
s_lshl_b32 s35, s35, 3
s_add_u32 s35, s35, s34
s_lshl_b32 s35, s35, 1
s_bfe_u32 s38, s2, 0x10003
s_add_u32 s35, s35, s38               ; c
s_lshr_b32 s38, s33, 2                ; ch
;TP i3
s_mov_b32 s43, 0
s_mov_b32 s58, {L_R}
s_mov_b32 s42, {ONES}
s_cmp_ge_u32 s2, {NCV}
s_cbranch_scc1 F_spare_loads
s_lshl_b32 s3, s35, 10
v_lshl_add_u32 v1, v0, 1, s3
s_lshl_b32 s3, s35, 2
v_bfe_u32 v10, v0, 5, 1
v_mul_u32_u24 v10, {HS}, v10
v_and_b32 v11, 31, v0
v_lshl_add_u32 v10, v11, 4, v10
v_add_u32 v10, {L_H}, v10
v_bfe_u32 v11, v0, 2, 2
v_mul_u32_u24 v11, {KC}, v11
v_and_b32 v12, 3, v0
v_lshl_add_u32 v11, v12, 4, v11
v_add_u32 v11, {L_K + 4096}, v11
v_cmp_gt_u32 vcc, 64, v0
v_cndmask_b32 v10, v11, v10, vcc
v_add_u32 v11, {L_GS + 1792 - 128}, v3
v_cmp_lt_u32 vcc, 455, v0
v_cndmask_b32 v10, v10, v11, vcc
ds_write_b128 v10, v[4:7]
""")
    for r in range(10, 16): A(f"v_mov_b32 v{r}, 0")
    M0, M0N, M0P = EV("M0", -1), EV("M0N", 14), EV("M0P", 1)
    m0l = f"s_cbranch_scc1 F_m0\nglobal_load_dword v253, v253, s[52:53]\nF_m0:"
    if M0 >= 0: A(f"""; rows 2wg + lane>>5 of w_mod, first lines
v_and_b32 v253, 31, v2
v_min_u32 v253, {M0N - 1}, v253
v_lshrrev_b32 v9, 5, v2
v_mul_u32_u24 v9, 5376, v9
v_lshl_add_u32 v253, v253, 7, v9
s_mul_i32 s24, s2, {2*5376}
v_add_u32 v253, s24, v253
s_cmp_lg_u32 s33, {M0}""")
    A(f"""
{"s_waitcnt lgkmcnt(0)" + chr(10) + m0l if M0 >= 0 and M0P == 0 else ""}
s_mov_b32 exec_hi, 0x00ffffff
;TP i4
s_waitcnt lgkmcnt(0)
global_load_dwordx4 v[4:7], v8, s[36:37]{NT('x')}
s_mov_b32 exec_hi, -1
{m0l if M0 >= 0 and M0P == 1 else ""}
;TSINIT
{WSO}
s_load_dword {TAG}, s[20:21], {WS_EP}
s_load_dword s39, s[16:17], s3
s_load_dword s41, s[18:19], s3
s_and_b32 s27, s33, 3
s_lshl_b32 s27, s27, 8
s_mul_i32 s28, s38, {KGS}
s_add_u32 s27, s27, s28
s_mov_b32 m0, s27
v_and_b32 v24, 31, v2
v_lshrrev_b32 v25, 5, v2
v_mul_u32_u24 v{pFR}, {RS}, v24
v_lshl_add_u32 v{pFR}, v25, 4, v{pFR}
v_add_u32 v{pFR}, s27, v{pFR}
v_mul_u32_u24 v{pPW}, {4*RS}, v25
v_lshl_add_u32 v{pPW}, v24, 2, v{pPW}
v_add_u32 v{pPW}, s27, v{pPW}
; granules
v_lshrrev_b32 v{pGX0}, 2, v0
v_mul_u32_u24 v{pGX0}, {2*XGP}, v{pGX0}
v_and_b32 v26, 3, v0
v_lshl_add_u32 v{pGX0}, v26, 4, v{pGX0}
s_lshl_b32 s3, s35, 6
s_add_u32 s3, s3, {WS_XG}
v_add_u32 v{pGX0}, s3, v{pGX0}
v_add_u32 v{pGX1}, {XGP}, v{pGX0}
v_lshlrev_b32 v{pGS0}, 4, v0
v_add_u32 v{pGS0}, {WS_SG}, v{pGS0}
v_add_u32 v{pGS1}, 8192, v{pGS0}
""")
    for i in range(6): A(f"global_load_short_d16_hi v{10+i}, v1, s[{4+2*i}:{5+2*i}]{NT('p')}")
    PFZ = "" if PFM == 3 or PFP < 2 else f"s_cmp_eq_u32 s38, {PFM - 1}\ns_cselect_b32 s3, 1, 0\nv_mul_u32_u24 v{pPF}, s3, v{pPF}"
    POI = f"global_store_dwordx4 v{pXO}, v[200:203], s[74:75] sc1\nglobal_store_dwordx4 v{pXO}, v[200:203], s[20:21] sc1"
    A(f"""
v_and_b32 v29, 15, v0                 ; m / p / cq
v_bfe_u32 v27, v0, 4, 2               ; kq
v_bfe_u32 v28, v0, 4, 4
v_min_u32 v28, 13, v28                ; rgrp 0..13
{MPS}
{mpf(5)}
s_cmp_lg_u32 s38, 0
s_cbranch_scc1 F_hb
""")
    def rawD():
        for e in range(8):
            if e == 4: A(f"v_add_u32 v{pWD}, {16*896}, v{pWD}")
            A(f"global_load_dword v{DL+e}, v{pWD}, s[48:49] offset:{896*(2*(e&3)-4)}{NT('d')}")
    A(f"""
v_mov_b32 v{pWD}, 0
v_mov_b32 v222, 0
s_lshr_b32 s3, s33, 1
s_and_b32 s29, s33, 1                 ; half
v_and_b32 v{pA0}, 1, v29
v_xor_b32 v{pA0}, 1, v{pA0}
v_mul_u32_u24 v{pA0}, {KC}, v{pA0}
v_lshrrev_b32 v{pA1}, 1, v29
v_lshlrev_b32 v{pA1}, 2, v{pA1}
v_sub_u32 v{pA0}, v{pA0}, v{pA1}
v_lshl_add_u32 v{pA0}, v27, 4, v{pA0}
s_mul_i32 s24, s3, {2*KC}
s_lshl_b32 s25, s29, 8
s_sub_u32 s24, s24, s25
s_add_u32 s24, s24, {L_K + 4060 - 192 - 512}
v_add_u32 v{pA0}, s24, v{pA0}
v_subrev_u32 v{pA1}, 1024, v{pA0}
v_subrev_u32 v{pA2}, 2048, v{pA0}
v_subrev_u32 v{pA3}, 3072, v{pA0}
v_lshlrev_b32 v{pB}, 5, v29
v_lshl_add_u32 v{pB}, v27, 4, v{pB}
s_mul_i32 s24, s3, {HS}
s_sub_u32 s24, s24, s25
s_add_u32 s24, s24, {L_H + 480 - 192}
v_add_u32 v{pB}, s24, v{pB}
v_mul_u32_u24 v{pYW}, 320, v27
v_lshl_add_u32 v{pYW}, v29, 4, v{pYW}
s_mul_i32 s24, s33, {YW}
v_add_u32 v{pYW}, s24, v{pYW}
F_com:
{chr(10).join(ROLE)}
{PFADDR if PFP else chr(10).join(WSADDR(29)[:6]) + chr(10) + 'v_mov_b32 v%d, v29' % pPF}
{PFZ}
{chr(10).join(ew0)}
{mpf(1)}
v_lshrrev_b32 v{pXO}, 3, v0
v_mul_u32_u24 v{pXO}, {TB}, v{pXO}
v_and_b32 v27, 7, v0
v_lshl_add_u32 v{pXO}, v27, 4, v{pXO}
s_lshl_b32 s3, s35, 7
s_add_u32 s3, s3, {WS_X1}
v_add_u32 v{pXO}, s3, v{pXO}
s_add_u32 s74, s20, {WS_XS - WS_X1}
s_addc_u32 s75, s21, 0
v_mov_b32 v200, -1
v_mov_b32 v201, -1
v_mov_b32 v202, -1
v_mov_b32 v203, -1
{POI if POIS == 0 else ""}
v_and_b32 v27, 1, v0
v_mul_u32_u24 v{pGM}, {MGH}, v27
v_and_b32 v27, 2, v0
v_lshl_add_u32 v{pGM}, v27, 2, v{pGM}
s_lshl_b32 s3, s35, 4
s_add_u32 s3, s3, {WS_MG}
v_add_u32 v{pGM}, s3, v{pGM}
v_bfe_u32 v27, v0, 2, 1
v_bfe_u32 v28, v0, 3, 1
v_mad_u32_u24 v{pGA}, v27, 3, 2
v_lshl_add_u32 v{pGA}, v28, 1, v{pGA}
v_min_u32 v{pGA}, 5, v{pGA}
v_mul_u32_u24 v{pGA}, 3584, v{pGA}
v_add_u32 v{pGA}, v{pGM}, v{pGA}
v_mul_u32_u24 v27, 3584, v27
v_add_u32 v{pGM}, v{pGM}, v27
v_lshlrev_b32 v{pHW}, 3, v0
v_add_u32 v{pHW}, {L_H}, v{pHW}
v_mul_u32_u24 v{pYR}, 320, v26
v_bfe_u32 v27, v0, 2, 4
v_lshl_add_u32 v{pYR}, v27, 4, v{pYR}
s_mul_i32 s3, s33, 1280
v_add_u32 v{pYR}, s3, v{pYR}
v_mov_b32 v27, {255*16}
v_cmp_eq_u32 s[30:31], v27, v17
s_mul_i32 s3, s38, {2*KC}
s_add_u32 s3, s3, {L_K}
v_add_u32 v17, s3, v17
s_mov_b32 s14, 0x05040100
s_mov_b32 s15, 0x07060302
s_branch F_stats
F_hb:
s_mov_b64 s[64:65], s[46:47]
{chr(10).join(WSADDR(pWS))}
s_lshr_b32 s3, s2, 2
s_lshl_b32 s3, s3, 2
s_and_b32 s46, s2, 1
s_add_u32 s3, s3, s46
s_lshl_b32 s3, s3, 3
s_bfe_u32 s46, s2, 0x10001
s_add_u32 s3, s3, s46
s_add_u32 s3, s3, 4
s_mul_i32 s3, s3, 896
v_lshlrev_b32 v{pWD}, 6, v28
v_lshl_add_u32 v{pWD}, v29, 2, v{pWD}
v_add_u32 v{pWD}, s3, v{pWD}          ; row +4
v_mul_u32_u24 v{pDO}, {HF_TT}, v28
v_lshl_add_u32 v{pDO}, v29, 4, v{pDO}
s_lshl_b32 s3, s2, 9
s_add_u32 s3, s3, {WS_WDF}
v_add_u32 v{pDO}, s3, v{pDO}
v_subrev_u32 v31, 256, v0
v_min_u32 v31, 223, v31
v_lshlrev_b32 v{pSB0}, 4, v31
v_add_u32 v{pSB0}, {WS_MG + 3*3584}, v{pSB0}
v_add_u32 v{pSB1}, {MGH}, v{pSB0}
v_lshlrev_b32 v{pGW}, 2, v31
v_add_u32 v{pGW}, {L_GS}, v{pGW}
s_branch F_com
F_spare_loads:
""")
    for r in [199] + list(range(204, 224)): A(f"v_mov_b32 v{r}, 0")
    P = [96, 112, 128]
    AC = 64
    LM = 0
    A(f"""
s_sub_u32 s24, s2, {NCV}
s_min_u32 s25, s24, 27
s_and_b32 s26, s25, 1                 ; hf
s_lshr_b32 s25, s25, 1                ; g
v_lshrrev_b32 v12, 3, v0
v_min_u32 v12, 55, v12
v_and_b32 v13, 7, v0                  ; chunk
s_mul_i32 s27, s26, 448
v_lshl_add_u32 v10, v12, 3, s27       ; c offset
v_mul_u32_u24 v14, {4*5376}, v12
v_lshl_add_u32 v14, v13, 4, v14
s_mul_i32 s27, s26, {224*5376}
s_lshl_b32 s28, s25, 7
s_add_u32 s27, s27, s28
v_add_u32 v14, s27, v14
v_add_u32 v15, 5376, v14
v_add_u32 v16, {2*5376}, v14
v_add_u32 v18, {3*5376}, v14
s_cmp_ge_u32 s25, 7
s_cselect_b32 s29, 2, 1
s_mul_i32 s29, s29, 1792
s_mov_b32 exec_hi, 0x00ffffff
;TP i4
s_waitcnt lgkmcnt(0)
global_load_dwordx4 v[4:7], v8, s[36:37]{NT('x')}
s_mov_b32 exec_hi, -1
;TSINIT
{WSO}
s_load_dword {TAG}, s[20:21], {WS_EP}
s_cmp_eq_u32 s33, 7
s_cbranch_scc1 F_stats0
global_load_dwordx2 v[10:11], v10, s[50:51]
""")
    RA = [14, 15, 16, 18]
    for i in range(4): A(f"global_load_dwordx4 {v(P[0]+4*i,4)}, v{RA[i]}, s[52:53]{NT('m')}")
    A(f"""
s_mov_b32 s27, {hex(LOG2E | 0x80000000)}
v_lshrrev_b32 v24, 5, v2
v_lshlrev_b32 v24, 4, v24
v_lshl_add_u32 v24, v13, 5, v24
v_bfe_u32 v25, v2, 4, 1
v_lshl_add_u32 v24, v25, 3, v24
s_lshl_b32 s3, s33, 8
v_add_u32 v24, s3, v24
s_waitcnt vmcnt(4)
v_lshlrev_b32 v44, 16, v10
v_and_b32 v45, 0xffff0000, v10
v_lshlrev_b32 v46, 16, v11
v_and_b32 v47, 0xffff0000, v11
""")
    for i in range(4): A(f"v_mul_f32 v{48+i}, s27, v{44+i}")
    for i in range(4): A(f"v_exp_f32 v{48+i}, v{48+i}")
    for i in range(4): A(f"v_add_f32 v{48+i}, 1.0, v{48+i}")
    for i in range(4): A(f"v_rcp_f32 v{48+i}, v{48+i}")
    for i in range(4): A(f"v_mul_f32 v{44+i}, v{44+i}, v{48+i}")
    A("v_cvt_pk_bf16_f32 v48, v44, v45\nv_cvt_pk_bf16_f32 v49, v46, v47")
    A("v_lshlrev_b32 v44, 16, v48\nv_and_b32 v45, 0xffff0000, v48\nv_lshlrev_b32 v46, 16, v49\nv_and_b32 v47, 0xffff0000, v49")
    def gemv(p, waitbase):
        for i in range(4):
            A(f"s_waitcnt vmcnt({waitbase - i})\n;TP m{p}{i}")
            if i == 3 and p < 2:
                for k in range(4): A(f"global_load_dwordx4 {v(P[p+1]+4*k,4)}, v{RA[k]}, s[52:53]" + (" offset:2688" if p == 0 else "") + NT('m'))
            for j in range(4): A(f"v_lshlrev_b32 v{56+2*j}, 16, v{P[p]+4*i+j}\nv_and_b32 v{57+2*j}, 0xffff0000, v{P[p]+4*i+j}")
            for j in range(8):
                if i == 0: A(f"v_mul_f32 v{AC+j}, v44, v{56+j}")
                else: A(f"v_fmac_f32 v{AC+j}, v{44+i}, v{56+j}")
        for j in range(4): A(f"v_permlane32_swap_b32 v{AC+j}, v{AC+4+j}")
        for j in range(4): A(f"v_add_f32 v{AC+j}, v{AC+j}, v{AC+4+j}")
        for j in range(2): A(f"v_permlane16_swap_b32 v{AC+j}, v{AC+2+j}")
        for j in range(2): A(f"v_add_f32 v{AC+j}, v{AC+j}, v{AC+2+j}")
        for j in range(2): A(f"v_add_f32_dpp v{AC+j}, v{AC+j}, v{AC+j} row_ror:8 row_mask:0xf bank_mask:0xf")
        A(f"ds_write_b64 v24, {v(AC,2)} offset:{LM + 2048*p}")
    gemv(0, 3)
    A(f""";TP s1
s_branch F_stats
F_stats0:
v_lshlrev_b32 v26, 2, v2
s_mul_i32 s3, s26, {MGH}
s_lshl_b32 s28, s25, 9
s_add_u32 s3, s3, s28
s_add_u32 s3, s3, {WS_MG}
v_lshl_add_u32 v25, v2, 3, s3
s_waitcnt vmcnt(0)
F_stats:
""")
    A(f"""
s_mul_i32 s3, s33, {RSTR}
s_add_u32 s3, s3, {L_R}
v_add_u32 v8, s3, v3
v_and_b32 v30, 3, v0
v_mul_u32_u24 v28, {2*RSTR}, v30
v_and_b32 v29, 0x1fc, v0
v_add3_u32 v28, v28, v29, s58
v_add_u32 v31, {L_S}, v3
s_mul_i32 s3, s2, {XGP}
s_add_u32 s3, s3, {WS_XG}
v_lshl_add_u32 v29, v0, 4, s3
v_add_u32 v27, {XGP//2}, v29
s_lshr_b32 s3, s2, 1
s_lshl_b32 s3, s3, 6
s_and_b32 s60, s2, 1
s_lshl_b32 s60, s60, 13
s_add_u32 s3, s3, s60
s_add_u32 s3, s3, {WS_SG}
v_add_u32 v9, s3, v3
s_lshl_b32 s3, s33, 3
s_add_u32 s3, s3, {L_S}
v_mov_b32 v30, s3
s_waitcnt vmcnt({6 + 8 * E0 + 2 * (POIS == 0)})
{("s_cmp_ge_u32 s2, 224" + chr(10) + "s_cbranch_scc1 F_mp" + chr(10) if MP == 3 else "") + mpf(3)}
v_dot2_f32_bf16 v42, v4, s42, 0
v_dot2_f32_bf16 v43, v4, v4, 0
s_mov_b32 exec_hi, 0x00ffffff
ds_write_b128 v8, v[4:7]
s_mov_b32 exec_hi, -1
""")
    for j in range(1, 4): A(f"v_dot2_f32_bf16 v42, v{4+j}, s42, v42\nv_dot2_f32_bf16 v43, v{4+j}, v{4+j}, v43")
    A("v_permlane32_swap_b32 v42, v43\nv_add_f32 v42, v42, v43")
    for sh in (8, 4, 2, 1): A(f"v_add_f32_dpp v42, v42, v42 row_ror:{sh} row_mask:0xf bank_mask:0xf")
    PB_ = 160
    A(f"""
v_mov_b32 v43, v42
v_permlane16_swap_b32 v42, v43
v_add_f32 v42, v42, v43
v_mul_f32 v42, {hex(INV448)}, v42
v_mov_b32 v43, v42
v_permlane32_swap_b32 v42, v43        ; v42 mean, v43 E[x^2]
v_fma_f32 v43, -v42, v42, v43
v_max_f32 v43, 0, v43
v_cvt_pk_bf16_f32 v43, v43, v43
v_and_b32 v43, 0xffff0000, v43
v_add_f32 v43, {hex(EPS)}, v43
v_cvt_pk_bf16_f32 v43, v43, v43
v_and_b32 v43, 0xffff0000, v43
v_sqrt_f32 v43, v43
s_waitcnt lgkmcnt(0)
s_add_u32 {TAG}, {TAG}, {hex(TAGC)}
v_mov_b32 v33, {TAG}
v_cvt_pk_bf16_f32 v32, v42, v43
ds_write_b64 v30, v[32:33]
v_mov_b32 v{PB_+1}, {TAG}
v_mov_b32 v{PB_+3}, {TAG}
v_mov_b32 v{PB_+5}, {TAG}
v_mov_b32 v{PB_+7}, {TAG}
s_cmp_ge_u32 s2, {NCV}
s_cbranch_scc1 F_b1
""")
    Z1, Z8, P_ = 34, 36, 38
    T1, T8, TP = 40, 42, 44
    A(f"""
s_lshl_b32 s3, s38, 4
s_lshr_b32 s39, s39, s3
s_lshl_b32 s39, s39, 16
s_lshr_b32 s41, s41, s3
s_lshl_b32 s41, s41, 16
s_mov_b32 s29, {LOG2E}
v_mov_b32 v16, s39
v_mul_f32 v16, s29, v16
v_exp_f32 v16, v16
v_mov_b32 v{pDK}, s41
v_cndmask_b32 v{pDK}, 0, v{pDK}, s[30:31]
v_cvt_pk_bf16_f32 v16, v16, v16
v_and_b32 v16, 0xffff0000, v16        ; dt
s_waitcnt vmcnt({8 * E0 + 2 * (POIS == 0)})
v_mul_f32 v10, v16, v10
v_mul_f32 v11, v16, v11
v_mul_f32 v10, s29, v10
v_mul_f32 v11, 0.15915494, v11
v_mul_f32 v12, v16, v12               ; dB
v_mul_f32 v13, v16, v13
v_mul_f32 v{T8+1}, {hex(f2u(8.0))}, v11
v_mul_f32 v{TP+1}, {hex(f2u(256.0))}, v11
v_mul_f32 v{T8}, {hex(f2u(8.0))}, v10
v_mul_f32 v{TP}, {hex(f2u(256.0))}, v10
v_fract_f32 v{T8+1}, v{T8+1}
v_fract_f32 v{T1+1}, v11
v_fract_f32 v{TP+1}, v{TP+1}
v_exp_f32 v{T8}, v{T8}
v_cos_f32 v{Z8}, v{T8+1}
v_sin_f32 v{Z8+1}, v{T8+1}
v_exp_f32 v{T1}, v10
v_cos_f32 v{Z1}, v{T1+1}
v_sin_f32 v{Z1+1}, v{T1+1}
v_pk_mul_f32 {v(Z8,2)}, {v(Z8,2)}, {v(T8,2)} op_sel_hi:[1,0]
v_exp_f32 v{TP}, v{TP}
v_cos_f32 v{P_}, v{TP+1}
v_sin_f32 v{P_+1}, v{TP+1}
v_pk_mul_f32 {v(Z1,2)}, {v(Z1,2)}, {v(T1,2)} op_sel_hi:[1,0]
v_mov_b32 v175, 0x3f80
v_pk_mul_f32 {v(P_,2)}, {v(P_,2)}, {v(TP,2)} op_sel_hi:[1,0]
F_b1:
s_cmp_eq_u32 s33, 7
s_waitcnt lgkmcnt(0)
s_barrier
;TP b1
s_cbranch_scc1 F_pub7
""")
    for j in range(4): A(f"ds_read_b32 v{PB_+2*j}, v28 offset:{(j&1)*RSTR + (j>>1)*448}")
    A(f"""
s_cmp_ge_u32 s2, {NCV}
s_waitcnt lgkmcnt(2)
global_store_dwordx4 v29, {v(PB_,4)}, s[20:21] sc1
s_waitcnt lgkmcnt(0)
global_store_dwordx4 v27, {v(PB_+4,4)}, s[20:21] sc1
s_cbranch_scc1 F_spare
""")
    A(f"""
{mpf(2)}
s_cmp_eq_u32 s38, 0
s_cbranch_scc1 F_kg
s_branch F_wl
F_pub7:
s_cmp_ge_u32 s2, {NCV}
s_cbranch_scc1 F_spare7
ds_read_b128 {v(PB_,4)}, v31
s_mov_b64 exec, 15
s_waitcnt lgkmcnt(0)
global_store_dwordx4 v9, {v(PB_,4)}, s[20:21] sc1
s_mov_b64 exec, -1
""")
    A("F_wl:"); rawD()
    A("F_kg:\n.p2align 3")
    X = lambda i: 48 + 2 * i
    Y = lambda j: Z8 if j == 1 else 96 + 2 * j
    reg = {'C': 14, 'B': 12, 'Z1': Z1, 'P': P_, 'y1': Z8}
    it = [('x0', ('C', 'B'))] + [(f'x{i}', (f'x{i-1}', 'Z1')) for i in range(1, 8)]
    for i, s in ((8, 0), (9, 2), (10, 4), (11, 6), (12, 8), (13, 12), (14, 10), (15, 14), (16, 13), (17, 16), (18, 17), (19, 18), (20, 19)):
        it.append((f'x{i}', (f'x{s}', 'P')))
    it += [('y2', ('y1', 'y1')), ('y3', ('y2', 'y1')), ('y4', ('y2', 'y2'))] + [(f'y{j}', (f'y{j-4}', 'y4')) for j in range(5, 9)]
    it += [(f'y{j}', (f'y{j-8}', 'y8')) for j in range(9, 32)]
    for n, _ in it: reg[n] = X(int(n[1:])) if n[0] == 'x' else Y(int(n[1:]))
    order = schedule(it); src = dict(it)
    TT = 168
    def outs(n, k):
        t = TT + k % 7
        i = int(n[1:])
        if n[0] == 'x': return f"v_cvt_pk_bf16_f32 v{t}, v{X(i)}, -v{X(i)+1}", f"ds_write_addtid_b32 v{t} offset:{i*RS}"
        return f"v_cvt_pk_bf16_f32 v{t}, v{Y(i)}, v{Y(i)+1}", f"ds_write_addtid_b32 v{t} offset:{(21+i)*RS}"
    seq = [None, None, 'y1'] + order
    N = len(seq)
    A(f"ds_write_addtid_b32 v175 offset:{21*RS}")
    RT = []
    assert not (EJ and PFP)
    for k in range(3, N + 4):
        if EK0 <= k < EK1: A("\n".join(ew[len(ew) * (k - EK0) // (EK1 - EK0):len(ew) * (k + 1 - EK0) // (EK1 - EK0)]))
        if k == KREL and POIS == 1: A(POI)
        if k == MK: A(mpf(4, None if MK2 < 0 else 0))
        if k == MK2: A(mpf(4, 1))
        g = lambda d: seq[k - d] if 0 <= k - d < N else None
        if g(0): A(cmul(A, reg[g(0)], reg[src[g(0)][0]], reg[src[g(0)][1]])[0])
        if g(3): A(outs(g(3), k - 3)[0])
        if g(1) and g(1) != 'y1': A(cmul(A, reg[g(1)], reg[src[g(1)][0]], reg[src[g(1)][1]])[1])
        if g(4): A(outs(g(4), k - 4)[1])
    AF, BF, ACC = 48, 96, 80
    TA = 24
    for ks in range(8):
        A(f"ds_read_b128 {v(AF+4*ks,4)}, v{pFR} offset:{ks*32}")
        A(f"ds_read_b128 {v(BF+4*ks,4)}, v{pFR} offset:{21*RS + ks*32}")
    GX, GS, GM = 176, 184, 192
    GL = [f"global_load_dwordx4 {v(GX,4)}, v{pGX0}, s[20:21] sc1", f"global_load_dwordx4 {v(GX+4,4)}, v{pGX1}, s[20:21] sc1",
          f"global_load_dwordx4 {v(GS,4)}, v{pGS0}, s[20:21] sc1", f"global_load_dwordx4 {v(GS+4,4)}, v{pGS1}, s[20:21] sc1"]
    mload = f"global_load_dwordx2 {v(GM,2)}, v{pGM}, s[20:21] sc1"
    A(f"v_add_u32 v{TA+8}, s28, v19")
    for ks in range(8):
        A(f"s_waitcnt lgkmcnt({14-2*ks})")
        A(f"v_mfma_f32_32x32x16_bf16 {v(ACC,16)}, {v(AF+4*ks,4)}, {v(BF+4*ks,4)}, {'0' if ks==0 else v(ACC,16)}")
        A(f"v_and_b32 v{TA+ks}, 0xffff, v{20+ks//2}" if ks % 2 == 0 else f"v_lshrrev_b32 v{TA+ks}, 16, v{20+ks//2}")
        A(f"v_add_u32 v{TA+ks}, s28, v{TA+ks}")
        if GPOS == 0 and ks >= 4: A(GL[ks - 4])
    for r in range(12):
        A(f"ds_write_b32 v{pPW}, v{ACC+r} offset:{((r&3)+8*(r>>2))*RS}")
    if GPOS == 1:
        for g in GL: A(g)
    A(f";TP pb2\ns_waitcnt lgkmcnt(0)\ns_barrier\n;TP b2")
    E = 48
    for e in range(9):
        A(f"ds_read2st64_b32 {v(E+4*e,2)}, v{TA+e} offset0:0 offset1:1")
        A(f"ds_read2st64_b32 {v(E+4*e+2,2)}, v{TA+e} offset0:2 offset1:3")
    A(mload)
    if PFP == 3: A(PFLOAD)
    e2 = list(ew2)
    for e in range(9):
        A(f"s_waitcnt lgkmcnt({min(15, 16-2*e)})")
        A(f"v_pk_add_f32 {v(E+4*e,2)}, {v(E+4*e,2)}, {v(E+4*e+2,2)}")
        if e == 7: A(f"v_add_f32 v{E+4*e}, v{E+4*e}, v{pDK}")
        A(f"v_add_f32 v{E+4*e}, v{E+4*e}, v{E+4*e+1}")
        if e == 8: A(f"v_cndmask_b32 v{E+32}, v{E+32}, 0, s[30:31]")
        if e & 1: A(f"v_cvt_pk_bf16_f32 v{88+e//2}, v{E+4*e-4}, v{E+4*e}")
        elif e: A(f"v_cvt_pk_bf16_f32 v{92+e//2-1}, v{E+4*e-4}, v{E+4*e}")
        if e == 7: A("ds_write_b128 v17, v[88:91]")
        A("\n".join(ew2[len(ew2) * e // 9:len(ew2) * (e + 1) // 9]))
    A(f"ds_write_b128 v17, v[92:95] offset:{KC}")
    A(f"""
s_waitcnt vmcnt({1 + (PFP == 3) + 8 * E2})
F_chk:
v_xor_b32 v10, {TAG}, v{GX+1}
v_xor_b32 v11, {TAG}, v{GX+3}
v_xor_b32 v12, {TAG}, v{GX+5}
v_xor_b32 v13, {TAG}, v{GX+7}
v_or3_b32 v10, v10, v11, v12
v_xor_b32 v11, {TAG}, v{GS+1}
v_xor_b32 v12, {TAG}, v{GS+3}
v_or3_b32 v10, v10, v11, v12
v_xor_b32 v11, {TAG}, v{GS+5}
v_xor_b32 v12, {TAG}, v{GS+7}
v_or3_b32 v13, v13, v11, v12
v_or_b32 v10, v10, v13
v_cmp_ne_u32 vcc, 0, v10
s_cbranch_vccnz F_rt1
F_ok:
s_mov_b64 exec, -1
{PFLOAD if PFP == 2 else ''}
{chr(10).join(ew3)}
""")
    RT += [f"F_rt1:\n{lim('F_ok')}\ns_mov_b64 exec, vcc\n" + "\n".join(GL) + "\ns_waitcnt vmcnt(0)\ns_branch F_chk"]
    XU, ST, H, HP, GA = 32, 48, 56, 64, 40
    for t in range(4): A(f"v_and_b32 v{ST+1+2*t}, 0xffff0000, v{GS+2*t}")
    for t in range(4): A(f"v_rcp_f32 v{ST+1+2*t}, v{ST+1+2*t}")
    for t in range(4): A(f"v_lshlrev_b32 v{ST+2*t}, 16, v{GS+2*t}")
    for t in range(4): A(f"v_lshlrev_b32 v{XU+2*t}, 16, v{GX+2*t}\nv_and_b32 v{XU+2*t+1}, 0xffff0000, v{GX+2*t}")
    for t in range(4): A(f"v_pk_add_f32 {v(H+2*t,2)}, {v(XU+2*t,2)}, {v(ST+2*t,2)} op_sel_hi:[1,0] neg_lo:[0,1] neg_hi:[0,1]")
    for t in range(4): A(f"v_pk_mul_f32 {v(H+2*t,2)}, {v(ST+2*t,2)}, {v(H+2*t,2)} op_sel:[1,0]")
    gaload = f"global_load_dwordx2 {v(GA,2)}, v{pGA}, s[20:21] sc1"
    A(f"""
s_waitcnt vmcnt({int(PFP >= 2) + 8 * (E2 + E3)})
F_chkm:
v_cmp_ne_u32 vcc, {TAG}, v{GM+1}
v_add_f32_dpp v10, v{GM}, v{GM} quad_perm:[1,0,3,2] row_mask:0xf bank_mask:0xf
s_cbranch_vccnz F_rt2
F_okm:
v_cvt_pk_bf16_f32 v10, v10, v10
v_and_b32 v10, 0xffff0000, v10
v_add_f32 v11, 1.0, v10
v_cvt_pk_bf16_f32 v11, v11, v11
v_readlane_b32 s30, v10, 0
v_readlane_b32 s31, v10, 2
v_and_b32 v11, 0xffff0000, v11
v_mov_b32 v12, s30
v_readlane_b32 s54, v11, 4
v_readlane_b32 s55, v11, 6
v_mov_b32 v13, s31
s_cmp_lg_u32 s38, 0
""")
    RT.append(f"F_rt2:\n{lim('F_okm')}\n{mload}\ns_waitcnt vmcnt(0)\ns_branch F_chkm")
    for t in range(4): A(f"v_pk_fma_f32 {v(H+2*t,2)}, {v(H+2*t,2)}, s[54:55], v[12:13]")
    for ch in range(2):
        for j in range(2): A(f"v_cvt_pk_bf16_f32 v{HP+2*ch+j}, v{H+4*j+ch}, v{H+2+4*j+ch}")
        A(f"ds_write_b64 v{pHW}, {v(HP+2*ch,2)} offset:{ch*HS + 512}")
    relD = []
    for i in range(2):
        relD += [f"v_perm_b32 v{DO+4*i+jp}, v{DL+2*jp+1}, v{DL+2*jp}, s{14+i}" for jp in range(4)]
        relD.append(f"global_store_dwordx4 v{pDO}, {v(DO+4*i,4)}, s[20:21] offset:{256*i} sc1")
    nlc = '\n'
    A(f"""
;TP h
s_cbranch_scc1 F_prep
{PFLOAD if PFP == 1 and PFM & 1 else ''}
s_setprio {EV('CPRIO', 2)}
s_waitcnt lgkmcnt(0)
s_barrier
;TP b3
""")
    ACC = 44
    FB = [76, 140]
    fpload = f"global_load_dword v23, v{pFP}, s[20:21] sc1"
    def reads(s, buf):
        out = []
        base = FB[buf]
        for c in range(8): out.append(f"ds_read_b128 {v(base+32+4*c,4)}, v{pB} offset:{512*c + 192 - 64*s}")
        for G in range(8):
            o = (512 * (1 - (G & 1)) + 192 - 64 * s) // 4
            out.append(f"ds_read2_b32 {v(base+4*G,2)}, v{pA0+G//2} offset0:{o} offset1:{o+1}")
            out.append(f"ds_read2_b32 {v(base+4*G+2,2)}, v{pA0+G//2} offset0:{o+2} offset1:{o+3}")
        return out
    r0 = reads(0, 0)
    r0 = r0[8:10] + r0[:8] + r0[10:]
    for r in r0: A(r)
    for s in range(4):
        base = FB[s & 1]
        nxt = reads(s + 1, (s + 1) & 1) if s < 3 else WSADDR(pWS) + ROLE2 + FPADDR
        if s > 0: A("s_waitcnt lgkmcnt(0)")
        for G in range(8):
            if s == 0 and G == 1: A("s_waitcnt lgkmcnt(0)")
            for c in range(G, 8):
                first = (s == 0 and G == 0)
                if first and c >= 6: A(f"s_waitcnt lgkmcnt({21 - c})")
                if first and c == 0: A("s_waitcnt lgkmcnt(15)")
                A(f"v_mfma_f32_16x16x32_bf16 {v(ACC+4*c,4)}, {v(base+4*G,4)}, {v(base+32+4*(c-G),4)}, {'0' if first else v(ACC+4*c,4)}")
                if nxt and not first: A(nxt.pop(0))
                if s == 3 and G >= 1 and c == min(G + 1, 7) and G < 7: A(f"ds_write_b128 v{pYW}, {v(ACC+4*(G-1),4)} offset:{1280*(G-1)}")
        assert not nxt
    for c in (6, 7): A(f"ds_write_b128 v{pYW}, {v(ACC+4*c,4)} offset:{1280*c}")
    A(f"""
F_b4:
s_waitcnt lgkmcnt(0)
s_barrier
;TP b4
""")
    YR, XS, XO, GG = 80, 96, 76, 40
    A(f"ds_read_b128 {v(GG,4)}, v27")
    for ch in range(2):
        for hf in range(2):
            A(f"ds_read_b128 {v(YR+8*hf+4*ch,4)}, v{pYR} offset:{(2*ch+hf)*YW}")
    A("s_cmp_lg_u32 s38, 0")
    for ch in range(2):
        A(f"s_waitcnt lgkmcnt({2-2*ch})")
        for j in range(2): A(f"v_pk_add_f32 {v(YR+4*ch+2*j,2)}, {v(YR+4*ch+2*j,2)}, {v(YR+8+4*ch+2*j,2)}")
        for j in range(4): A(f"v_fma_f32 v{YR+4*ch+j}, v{GG+ch}, v{YR+4*ch+j}, v{XU+2*j+ch}")
        for j in range(2): A(f"v_pk_mul_f32 {v(XS+2*j,2)}, {v(GG+2,2)}, {v(YR+4*ch+2*j,2)} " + ("op_sel:[1,0]" if ch else "op_sel_hi:[0,1]"))
        for j in range(2): A(f"v_cvt_pk_bf16_f32 v{XO+2*ch+j}, v{XS+2*j}, v{XS+2*j+1}")
        if ch == 0: A(f"v_min_u32 v{XO}, -2, v{XO}")
    A(f"global_store_dwordx4 v{pXO}, {v(XO,4)}, s[74:75] sc1")
    for j in range(4): A(f"v_cvt_pk_bf16_f32 v{XS+j}, v{YR+j}, v{YR+4+j}")
    A(f"v_min_u32 v{XS}, -2, v{XS}\nglobal_store_dwordx4 v{pXO}, {v(XS,4)}, s[20:21] sc1\ns_setprio 0\ns_barrier\ns_cbranch_scc1 G_xb")
    def wl(J, p):
        o = [f"global_load_dword v{W(2*J+1+(e&1))+e//2}, v{p+e//3}, s[64:65] offset:{3584*(e%3-1)}{NT('w')}" for e in range(8)]
        if J < 13: o[7] += f"\ns_add_u32 s64, s64, {32*3584}\ns_addc_u32 s65, s65, 0"
        return o
    def wp(J):
        o = [f"v_perm_b32 v{W(2*J+h)+j}, v{W(2*J+2)+j}, v{W(2*J+1)+j}, s{14+h}" for h in range(2) for j in range(4)]
        return o + [f"v_permlane16_swap_b32 v{W(2*J)+j}, v{W(2*J+1)+j}" for j in range(4)]
    PT = [100 + 4 * i for i in range(4)]
    UA = 92
    uvr = lambda k: f"ds_read_b128 {v(PT[k % 4],4)}, v{pPT} offset:{32*k}"
    uvm = lambda k: f"v_mfma_f32_16x16x32_bf16 {v(UA,4)}, {v(PT[k % 4],4)}, {v(W(k),4)}, {v(UA,4) if k else 0}"
    U = W(28)
    uvfin = f"""v_cvt_pk_bf16_f32 v{U+1}, v{UA}, v{UA}
v_and_b32 v{U+1}, 0xffff0000, v{U+1}
v_sub_f32 v{U}, v{UA}, v{U+1}
v_cvt_pk_bf16_f32 v{U}, v{U+1}, v{U}
v_mov_b32 v{U+1}, 0
v_mov_b32 v{U+2}, 0
v_mov_b32 v{U+3}, 0"""
    def uv(J):
        return [f"s_waitcnt lgkmcnt({2 * (J < 13)})\n{uvm(2*J)}", uvm(2*J+1)] + ([uvr(2*J+4), uvr(2*J+5)] if J < 12 else [])
    class Str:
        def __init__(s, A, Q): s.A = A; s.Q = list(Q)
        def vm(s, op): return min(63, len(s.Q) - 1 - s.Q.index(op)) if op in s.Q else 63
        def load(s, J, p, work):
            for e, l in enumerate(wl(J, p)):
                s.A(l); s.Q.append((J, e))
                s.A(nlc.join(w_() if callable(w_) else w_ for w_ in work[len(work) * e // 8:len(work) * (e + 1) // 8]))
        def proc(s, J): return [f"s_waitcnt vmcnt({s.vm((J, 7))})"] + wp(J)
    def fpcheck(S, n):
        S.A(f"s_waitcnt vmcnt({min(S.vm('fp'), S.vm('x1'))})\nG_fc{n}:\nv_cmp_ne_u32 vcc, {TAG}, v23\ns_cbranch_vccnz G_fr{n}\nG_fo{n}:\n;TP xak")
        RT.append(f"G_fr{n}:\n{lim(f'G_fo{n}')}\ns_sleep {EV('FSL', 2)}\n{fpload}\ns_waitcnt vmcnt(0)\ns_branch G_fc{n}")
    NE = 14 - NL
    S = Str(A, ['ew', 'x0', 'x1'])
    A(nlc.join(uvr(k) for k in range(4)))
    pro = ffn_pro()
    pro += [lambda: f"s_waitcnt vmcnt({S.vm('ew')})"] + sum((wp(J) + (uv(J - 1) if J else []) for J in range(EJ)), [])
    NW = min(LAGA, NE - EJ)
    for J in range(EJ, NE):
        if J == NE - FQA: A(fpload); S.Q.append('fp')
        if J - EJ < NW: S.load(J, pWS, pro[len(pro) * (J - EJ) // NW:len(pro) * (J - EJ + 1) // NW])
        else:
            A(nlc.join(S.proc(J - LAGA)[:1]))
            S.load(J, pWS, wp(J - LAGA) + (uv(J - LAGA - 1) if J > LAGA else []))
        A(f";TP z{J}")
    fpcheck(S, 0)
    A(XDMA); S.Q += ['xd'] * 7
    for J in range(NE - NW, NE): A(nlc.join(S.proc(J) + (uv(J - 1) if J else [])))
    A(nlc.join(uv(NE - 1)) + "\n" + (uvfin if NL == 0 else "") + "\n;TP lat")
    ffn(A, W, RT, wl, wp, uvr, uvm, uvfin)

    GB = 100
    g2 = nlc.join(f"global_load_dwordx4 {v(GB+8*m+4*hf,4)}, v{pSB1 if hf else pSB0}, s[20:21] offset:{3584*m} sc1" for m in range(2) for hf in range(2))
    gc = [f"v_xor_b32 v{44+i}, {TAG}, v{GB+1+2*i}" for i in range(3)] + ["v_or3_b32 v44, v44, v45, v46"]
    gc += [f"v_xor_b32 v{45+i}, {TAG}, v{GB+7+2*i}" for i in range(3)] + ["v_or3_b32 v45, v45, v46, v47"]
    gc += [f"v_xor_b32 v{46+i}, {TAG}, v{GB+13+2*i}" for i in range(2)] + ["v_or3_b32 v44, v44, v45, v46", "v_or_b32 v44, v44, v47", "v_cmp_ne_u32 vcc, 0, v44"]
    RT.append(f"F_rt4:\n{lim('F_ok2')}\n{g2}\ns_waitcnt vmcnt(0)\ns_branch F_chk2")
    RT.append(f"""F_gb:
v_readlane_b32 s56, v42, 4
v_readlane_b32 s57, v42, 6
s_lshl_b32 s3, s35, 3
s_add_u32 s3, s3, {WS_MOD}
v_mov_b32 v44, s3
s_lshr_b32 s56, s56, 16
s_or_b32 s56, s56, s57
v_mov_b32 v10, s56
v_mov_b32 v45, {WS_EP}
s_mov_b64 exec, 1
global_store_dwordx2 v44, v[10:11], s[20:21] sc1
s_cmp_lg_u32 s2, 0
s_cbranch_scc1 F_gb1
global_store_dword v45, v11, s[20:21]
F_gb1:
s_mov_b64 exec, -1
s_branch F_gb2""")
    RT.append(f"F_rt3:\n{lim('F_ok3')}\n{gaload}\ns_waitcnt vmcnt(0)\ns_branch F_chk3")
    A(f"""
F_prep:
{g2}
s_lshl_b32 s3, s35, {FPS}
s_add_u32 s3, s3, {WS_FP}
v_mov_b32 v10, s3
v_mov_b32 v11, {TAG}
s_cmp_eq_u32 s33, 5
s_cselect_b64 exec, 1, 0
s_setprio {EV('UPRIO', 0)}
s_waitcnt lgkmcnt(0)
s_barrier
global_store_dword v10, v11, s[20:21] sc1
s_mov_b64 exec, -1
{PFLOAD if PFP == 1 and PFM & 2 else ''}
""")
    S = Str(A, ['ew', 'g', 'g', 'g', 'g2'] + ['pf'] * (PFP == 1 and PFM >> 1))
    def gsum():
        A(f"s_waitcnt vmcnt({S.vm('g2')})\nF_chk2:\n{nlc.join(gc)}\ns_cbranch_vccnz F_rt4\nF_ok2:\n;TP gok2")
        for m in range(2):
            for j in range(2): A(f"v_add_f32 v{GB+8*m+2*j}, v{GB+8*m+2*j}, v{GB+8*m+4+2*j}")
        A(f"""v_cvt_pk_bf16_f32 v{GB}, v{GB}, v{GB+2}
v_cvt_pk_bf16_f32 v{GB+8}, v{GB+8}, v{GB+10}
ds_write_b32 v{pGW}, v{GB} offset:896
v_lshlrev_b32 v{GB+9}, 16, v{GB+8}
v_and_b32 v{GB+8}, 0xffff0000, v{GB+8}
v_add_f32 v{GB+9}, 1.0, v{GB+9}
v_add_f32 v{GB+8}, 1.0, v{GB+8}
v_cvt_pk_bf16_f32 v{GB+8}, v{GB+9}, v{GB+8}
ds_write_b32 v{pGW}, v{GB+8}""")
    def gaproc():
        A(f"""
s_waitcnt vmcnt({S.vm('ga')})
F_chk3:
v_add_f32_dpp v42, v{GA}, v{GA} quad_perm:[1,0,3,2] row_mask:0xf bank_mask:0xf
v_cmp_ne_u32 vcc, {TAG}, v{GA+1}
v_cvt_pk_bf16_f32 v42, v42, v42
s_cbranch_vccnz F_rt3
F_ok3:
v_and_b32 v42, 0xffff0000, v42
v_add_f32 v43, 1.0, v42
v_cvt_pk_bf16_f32 v43, v43, v43
v_and_b32 v43, 0xffff0000, v43
v_cmp_gt_u32 vcc, 8, v2
v_cndmask_b32 v43, v43, v42, vcc
v_and_b32 v44, 2, v2
v_and_b32 v45, 8, v2
v_lshl_add_u32 v44, v44, 1, v45
s_mov_b64 exec, 0x505
v_add_u32 v44, v44, v27
ds_write_b32 v44, v43
s_mov_b64 exec, -1
s_cmp_eq_u32 s33, 6
s_cbranch_scc1 F_gb
F_gb2:
""")
    pro = FPADDR + ROLE2 + ffn_pro()
    pro += [lambda: f"s_waitcnt vmcnt({S.vm('ew')})"] + sum((wp(J) for J in range(EJ)), [])
    NW = min(LAGB, NBP - EJ)
    assert NBP <= NE and EJ <= min(GAI, GSI) and max(GAI, GSI) < NBP and NE - FQB >= NBP and EJ + RLJ <= min(GAI, 8)
    for J in range(EJ, NE):
        if J == EJ + RLJ: A(nlc.join(relD)); S.Q += ['d0', 'd1']
        if J - EJ < NW: S.load(J, pWS, pro[len(pro) * (J - EJ) // NW:len(pro) * (J - EJ + 1) // NW])
        elif J - EJ < LAGB: S.load(J, pWS, [])
        else:
            A(nlc.join(S.proc(J - LAGB)[:1]))
            S.load(J, pWS, wp(J - LAGB))
        A(f";TP y{J}")
        if J == GSI: gsum()
        if J == GAI: A(gaload); S.Q.append('ga')
        if J == NBP - 1:
            gaproc()
            A(";TP pdone\ns_branch F_b4\nG_xb:"); S.Q += ['x0', 'x1']
            A(nlc.join(uvr(k) for k in range(4)))
        if J == NE - FQB - 1: A(fpload); S.Q.append('fp')
    XB = EV("XB", 0)
    for J in range(max(EJ, NE - LAGB)): A(nlc.join(uv(J)))
    for J in range(max(EJ, NE - LAGB), NE - XB): A(nlc.join(S.proc(J) + uv(J)))
    fpcheck(S, 1)
    A(XDMA); S.Q += ['xd'] * 7
    for J in range(NE - XB, NE): A(nlc.join(S.proc(J) + uv(J)))
    A((uvfin if NL == 0 else "") + "\n;TP lat\ns_branch G_xw")
    for r in RT: A(r)

    def tree(n, base):
        regs = [base + i for i in range(n)]
        while len(regs) > 1:
            nx = []
            for i in range(0, len(regs) - 1, 2):
                A(f"v_add_f32 v{regs[i]}, v{regs[i]}, v{regs[i+1]}"); nx.append(regs[i])
            if len(regs) & 1: nx.append(regs[-1])
            regs = nx
    A(f"F_spare:\nv_add_u32 v14, s29, v14\nv_add_u32 v15, 5376, v14\nv_add_u32 v16, {2*5376}, v14\nv_add_u32 v18, {3*5376}, v14")
    gemv(1, 3 + 2)
    A("s_waitcnt lgkmcnt(0)\ns_barrier\n;TP s2")
    gemv(2, 3)
    A("s_waitcnt lgkmcnt(0)\ns_barrier\ns_branch F_sst")
    A("F_spare7:")
    for p in range(3):
        if p: A("s_barrier")
        for i in range(7): A(f"ds_read_b32 v{72+i}, v26 offset:{LM + 2048*p + 256*i}")
        if p == 0: A(f"ds_read_b128 {v(PB_,4)}, v31\nv_add_u32 v28, 0, v25")
        if p == 1: A(f"v_add_u32 v28, {2688*4}, v25")
        if p == 2: A(f"s_lshl_b32 s29, s29, 2\nv_add_u32 v28, s29, v25")
        A("s_waitcnt lgkmcnt(0)")
        tree(7, 72)
        A(f"v_mov_b32 v32, v72\nglobal_store_dwordx2 v28, v[32:33], s[20:21] sc1\n;TP s{p+2}")
        if p == 0:
            A(f"""
s_mov_b64 exec, 15
global_store_dwordx4 v9, {v(PB_,4)}, s[20:21] sc1
s_mov_b64 exec, -1
""")
    XR = 96
    xl = lambda i: f"global_load_dwordx4 {v(XR+4*i,4)}, v5, s[20:21] offset:{1024*i-3072} sc1"
    PFG, PFU, NR1, NR2 = EV("PFG", 4), EV("PFU", 0), EV("NR1", 0), EV("NR2", 7)
    def pfw(n, r0, sp):
        return "\n".join(f"v_add_u32 v13, {128*r}, v12\nv_min_u32 v13, 447, v13\nv_mul_u32_u24 v13, 3584, v13\nv_add_u32 v13, v13, v14\nglobal_load_dword v{80+r}, v13, s[{sp}:{sp+1}]" for r in range(r0, n))
    pfd = lambda lo, hi: "\n".join(f"global_load_dword v{84+r}, v15, s[20:21]\nv_add_u32 v15, 2048, v15" for r in range(lo, hi))
    A(f"""
F_sst:
s_and_b32 s3, s24, 24
s_add_u32 s3, s3, s33
s_lshl_b32 s26, s3, 2
v_lshrrev_b32 v12, 4, v2
v_add_u32 v12, s26, v12
v_and_b32 v14, 15, v2
v_min_u32 v14, 13, v14
s_bfe_u32 s26, s2, 0x10002
s_mul_i32 s26, s26, 1792
v_lshl_add_u32 v14, v14, 7, s26
s_min_u32 s3, s3, 27
s_cmp_ge_u32 s3, 14
s_cselect_b32 s26, {14*HF_TT - 1024}, 0
s_mul_i32 s3, s3, {HF_TT}
s_sub_u32 s3, s3, s26
s_add_u32 s3, s3, {WS_WDF}
v_lshrrev_b32 v15, 3, v2
v_mul_u32_u24 v15, {14*1024}, v15
v_and_b32 v13, 7, v2
v_lshl_add_u32 v15, v13, 7, v15
v_add_u32 v15, s3, v15
{"s_barrier" if PFG or PFU else ""}
{pfw(4, PFU, 46) if PFU else ""}
{pfw(PFG, EJ // 4, 44)}
v_min_u32 v4, 27, v2
s_mul_i32 s3, s33, 28
v_add_u32 v4, s3, v4
v_lshlrev_b32 v4, {FPS}, v4
v_add_u32 v4, {WS_FP}, v4
s_lshl_b32 s24, s24, 1
s_add_u32 s24, s24, s38               ; tb
s_mul_i32 s3, s24, {TB}
s_and_b32 s25, s33, 3
s_mul_i32 s26, s25, 7168
s_add_u32 s3, s3, s26
s_add_u32 s3, s3, {WS_X1 + 3072}
v_add_u32 v5, s3, v3
v_lshrrev_b32 v7, 5, v2
v_lshlrev_b32 v7, 4, v7
v_and_b32 v8, 7, v2
v_lshl_add_u32 v24, v8, 5, v7
v_bfe_u32 v8, v2, 4, 1
v_lshl_add_u32 v24, v8, 3, v24
s_lshl_b32 s3, s33, 8
s_add_u32 s3, s3, 8192
v_add_u32 v24, s3, v24
v_bfe_u32 v8, v2, 2, 3
v_lshl_add_u32 v7, v8, 5, v7
v_and_b32 v8, 3, v2
v_lshl_add_u32 v7, v8, 2, v7
v_add_u32 v7, s3, v7
s_lshl_b32 s3, s24, 9
s_add_u32 s3, s3, {WS_ST2}
v_lshl_add_u32 v6, v2, 3, s3
v_cmp_gt_u32 s[56:57], 32, v2
s_lshl_b32 s3, s2, 7
s_add_u32 s3, s3, {WS_F0 - 224*128}
v_mov_b32 v9, s3
F_s0:
{lim('F_s1')}
s_sleep {EV('PSL', 6)}
global_load_dword v10, v4, s[20:21] sc1
s_waitcnt vmcnt(0)
v_cmp_ne_u32 vcc, {TAG}, v10
s_mov_b64 exec, vcc
s_cbranch_vccnz F_s0
F_s1:
s_cmp_eq_u32 s33, 0
s_cselect_b64 exec, 1, 0
s_barrier
global_store_dword v9, v33, s[20:21] sc1
s_mov_b64 exec, -1
{pfd(0, NR1)}
""")
    if EV('SPOLL', 1): A(f"""
F_s2:
{lim('F_s3')}
s_sleep {EV('SSL', 2)}
{xl(6)}
s_waitcnt vmcnt(0)
v_cmp_eq_u32 vcc, -1, v{XR+24}
s_cbranch_vccnz F_s2
""")
    A(f"F_s3:\n{lim('F_s4')}")
    for i in range(7): A(xl(i))
    A(f"""
s_waitcnt vmcnt(0)
v_max3_u32 v10, v{XR}, v{XR+4}, v{XR+8}
v_max3_u32 v11, v{XR+12}, v{XR+16}, v{XR+20}
v_max3_u32 v10, v10, v11, v{XR+24}
v_cmp_eq_u32 vcc, -1, v10
s_mov_b64 exec, vcc
s_cbranch_vccnz F_s3
F_s4:
s_mov_b64 exec, -1
;TP s5
""")
    for i in range(7):
        for q in range(4):
            A(f"v_dot2_f32_bf16 v{AC+q}, v{XR+4*i+q}, s42, {'v%d' % (AC+q) if i else 0}")
            A(f"v_dot2_f32_bf16 v{AC+4+q}, v{XR+4*i+q}, v{XR+4*i+q}, {'v%d' % (AC+4+q) if i else 0}")
    for j in range(4): A(f"v_permlane32_swap_b32 v{AC+j}, v{AC+4+j}")
    for j in range(4): A(f"v_add_f32 v{AC+j}, v{AC+j}, v{AC+4+j}")
    for j in range(2): A(f"v_permlane16_swap_b32 v{AC+j}, v{AC+2+j}")
    for j in range(2): A(f"v_add_f32 v{AC+j}, v{AC+j}, v{AC+2+j}")
    for j in range(2): A(f"v_add_f32_dpp v{AC+j}, v{AC+j}, v{AC+j} row_ror:8 row_mask:0xf bank_mask:0xf")
    A(f"""
ds_write_b64 v24, {v(AC,2)}
s_cmp_lg_u32 s25, 0
s_waitcnt lgkmcnt(0)
s_barrier
s_cbranch_scc1 F_s7
ds_read2st64_b32 v[20:21], v7 offset0:0 offset1:1
ds_read2st64_b32 v[22:23], v7 offset0:2 offset1:3
s_waitcnt lgkmcnt(0)
v_add_f32 v20, v20, v21
v_add_f32 v22, v22, v23
v_add_f32 v20, v20, v22
v_mul_f32 v20, {hex(INV448)}, v20
v_mov_b32 v22, v20
v_permlane32_swap_b32 v20, v22
v_fma_f32 v22, -v20, v20, v22
v_max_f32 v22, 0, v22
v_cvt_pk_bf16_f32 v22, v22, v22
v_and_b32 v22, 0xffff0000, v22
v_add_f32 v22, {hex(EPS)}, v22
v_cvt_pk_bf16_f32 v22, v22, v22
v_and_b32 v22, 0xffff0000, v22
v_sqrt_f32 v22, v22
v_cvt_pk_bf16_f32 v20, -v20, -v20
v_cvt_pk_bf16_f32 v22, v22, v22
v_cndmask_b32 v32, v22, v20, s[56:57]
global_store_dwordx2 v6, v[32:33], s[20:21] sc1
;TP s6
F_s7:
{"s_barrier" if NR2 > NR1 else ""}
{pfd(NR1, NR2)}
s_waitcnt vmcnt(0)
""")
    A("s_endpgm\nF_end:\ns_endpgm")
    tab = ktable() + [0] * 8
    A(".p2align 4\n.type ktab,@object\nktab:")
    for i in range(0, len(tab), 16): A(".short " + ", ".join(str(t) for t in tab[i:i+16]))
    A(f".size ktab, {2*len(tab)}")
    return kdesc(KN, 256, 80)
```

```python
import sys, os
import re
from common import *
import kd as kdm
OLD = not set(sys.argv[2]) <= set("dez")
if OLD:
    import k34 as k34m
    from k34 import k34, K34_GRID, K34_LDS, K34_BLOCK
    from k12 import k12, K12_GRID, K12_LDS, K12_BLOCK
    from kf import kf, KF_GRID, KF_LDS, KF_BLOCK, KN

def ke(A):
    A(""".globl empty_kernel
.p2align 8
.type empty_kernel,@function
empty_kernel:
s_endpgm""")
    return kdesc("empty_kernel", 8, 16)

def kz(A):
    a, b = [int(x) for x in os.environ["ZQ"].split(",")]
    A(f""".globl z_kernel
.p2align 8
.type z_kernel,@function
z_kernel:
s_cmp_lg_u32 s2, 0
s_cbranch_scc1 Zend
s_memrealtime s[10:11]
s_load_dwordx2 s[4:5], s[0:1], 128
v_mov_b32 v1, 0
s_waitcnt lgkmcnt(0)
global_load_dword v2, v1, s[4:5] offset:{16*a} sc1
global_load_dword v3, v1, s[4:5] offset:{16*b+4} sc1
s_waitcnt vmcnt(0)
v_readfirstlane_b32 s6, v2
v_readfirstlane_b32 s7, v3
s_nop 3
s_not_b32 s6, s6
{"s_sub_u32 s6, s10, s7" if os.environ.get("ZE") else "s_sub_u32 s6, s7, s6"}
s_min_u32 s6, s6, 10000
s_max_u32 s6, s6, {os.environ.get("ZO", "0")}
s_sub_u32 s6, s6, {os.environ.get("ZO", "0")}
s_lshl_b32 s6, s6, {os.environ.get("ZS", "2")}
Zl:
s_memrealtime s[12:13]
s_waitcnt lgkmcnt(0)
s_sub_u32 s8, s12, s10
s_cmp_lt_u32 s8, s6
s_cbranch_scc1 Zl
Zend:
s_endpgm""")
    return kdesc("z_kernel", 8, 16)

KS = {'d': (kdm.KN, kdm.KD_GRID, kdm.KD_LDS, kdm.kd), 'z': ("z_kernel", 1, 0, kz), 'e': ("empty_kernel", 1, 0, ke)}
if OLD: KS.update({'u': (KN, KF_GRID, KF_LDS, kf), 'g': ("front_kernel", K12_GRID, K12_LDS, k12), 'f': ("ffn_kernel", K34_GRID, K34_LDS, k34)})
BLK = {'u': 512, 'd': 512, 'f': 512, 'g': 512}
WS_TS = 0x2000000
def add_stamps(A, names):
    out = []
    for ln in A.lines:
        t = ln.strip()
        if t[:-1] in names and t.endswith(':'):
            ki = names.index(t[:-1])
            out.append(ln)
            if names == [kdm.KN]: out += ["  s_memrealtime s[90:91]"] + (["  s_memtime s[80:81]"] if os.environ["TS"] != "2" else [])
            else: out += ["  " + x for x in f"""s_memrealtime s[90:91]
s_memtime s[80:81]
s_load_dwordx2 s[92:93], s[0:1], 136
v_lshrrev_b32 v1, 6, v0
s_nop 1
v_readfirstlane_b32 s94, v1
s_lshl_b32 s95, s2, 3
s_add_u32 s94, s94, s95
s_lshl_b32 s94, s94, 6
s_add_u32 s94, s94, {WS_TS + ki * 0x80000}
s_mov_b32 s82, 0
s_mov_b32 s84, 0
s_mov_b32 s86, 0
s_mov_b32 s88, 0
s_mov_b32 s76, 0
s_mov_b32 s78, 0
s_waitcnt lgkmcnt(0)""".split("\n")]
        elif t == ";TSINIT":
            out += ["  " + x for x in f"""s_mov_b64 s[92:93], s[20:21]
s_lshl_b32 s95, s2, 3
s_add_u32 s94, s33, s95
s_lshl_b32 s94, s94, 6
s_add_u32 s94, s94, {WS_TS}
{"s_mov_b64 s[80:81], s[90:91]" if os.environ["TS"] == "2" else ""}
s_mov_b32 s82, 0
s_mov_b32 s84, 0
s_mov_b32 s86, 0
s_mov_b32 s88, 0
s_mov_b32 s76, 0
s_mov_b32 s78, 0""".split("\n")[:6 if os.environ.get("NOZ") else 99]]
        elif t.startswith(";TP "):
            sel = os.environ.get("TP", "row,pub,chain,kcopy,b3,b4").split(",")
            sel2 = os.environ.get("TPS", "row,pub,s1,s2,s3,s4").split(",")
            sel3 = os.environ.get('TPK', 'k0,k1,k2,k3,k4,k5').split(',')
            for sl in ((sel, sel2, sel3) if sys.argv[2] not in 'urd' else (sel, sel2)):
                if t[4:] in sl:
                    r = [82, 84, 86, 88, 76, 78][sl.index(t[4:])]
                    out.append(f"  s_memtime s[{r}:{r+1}]"); break
            if "@" + t[4:] in sel:
                r = [82, 84, 86, 88, 76, 78][sel.index("@" + t[4:])]
                out.append(f"  s_memrealtime s[{r}:{r+1}]")
        elif t.startswith(";TS") and t != ";TSINIT":
            i = int(t[3:]); r = [82, 84, 86, 88, 76, 78][i]
            out.append(f"  s_memtime s[{r}:{r+1}]")
        elif t == "s_endpgm":
            out += ["  " + x for x in """s_waitcnt vmcnt(0) lgkmcnt(0)
s_memrealtime s[96:97]
s_memtime s[98:99]
s_getreg_b32 s100, hwreg(HW_REG_HW_ID)
s_getreg_b32 s101, hwreg(HW_REG_XCC_ID)
s_mov_b64 exec, 1
s_waitcnt lgkmcnt(0)
v_mov_b32 v0, s90
v_mov_b32 v1, s96
v_mov_b32 v2, s100
v_mov_b32 v3, s101
v_mov_b32 v4, s80
v_mov_b32 v5, s82
v_mov_b32 v6, s84
v_mov_b32 v7, s86
v_mov_b32 v8, s88
v_mov_b32 v9, s76
v_mov_b32 v10, s78
v_mov_b32 v11, s98
v_mov_b32 v12, s94
global_store_dwordx4 v12, v[0:3], s[92:93]
global_store_dwordx4 v12, v[4:7], s[92:93] offset:16
global_store_dwordx4 v12, v[8:11], s[92:93] offset:32
s_endpgm""".split("\n")]
        else: out.append(ln)
    if os.environ["TS"] == "2": out = [l.replace("s_memtime", "s_memrealtime") for l in out]
    A.lines = out

def strip(A, name, pred):
    out = []; on = False
    for ln in A.lines:
        t = ln.strip()
        if t.endswith("_kernel:"): on = t == name + ":"
        if on and pred(t): continue
        out.append(ln)
    A.lines = out

def add_dbg(A, names):
    out = []; n = 0
    NL = len(sys.argv[2]); inz = False
    for ln in A.lines:
        t = ln.strip()
        if t in ("z_kernel:", "empty_kernel:"): inz = True
        if inz: out.append(ln); continue
        if t[:-1] in names and t.endswith(':'):
            ki = names.index(t[:-1])
            out.append(ln)
            out += ["  " + x for x in f"""s_memrealtime s[90:91]
s_load_dwordx2 s[92:93], s[0:1], 128
v_lshrrev_b32 v1, 6, v0
s_nop 1
v_readfirstlane_b32 s94, v1
s_lshr_b32 s95, s2, 3
s_xor_b32 s95, s95, s2
s_and_b32 s95, s95, 7
s_xor_b32 s94, s94, {os.environ.get("DBGW", "0")}
s_or_b32 s94, s94, s95
s_waitcnt lgkmcnt(0)
s_mov_b32 s98, s90
s_add_u32 s92, s92, {(NL - 1 - ki) * 512 + ki * 16}
s_addc_u32 s93, s93, 0""".split("\n")]
        elif t == ";TP " + os.environ.get("DBGP", "-"): out.append("  s_memrealtime s[98:99]")
        elif t == "s_endpgm":
            n += 1
            out += ["  " + x for x in f"""s_cmp_lg_u32 s94, 0
s_cbranch_scc1 DBGE{n}
s_waitcnt vmcnt(0) lgkmcnt(0)
s_memrealtime s[96:97]
s_mov_b64 exec, 1
s_not_b32 s90, s90
s_waitcnt lgkmcnt(0)
v_mov_b32 v0, s90
v_mov_b32 v1, {"s98" if os.environ.get("DBGP") else "s96"}
v_mov_b32 v2, 0
global_atomic_umax v2, v0, s[92:93]
global_atomic_umax v2, v1, s[92:93] offset:4
DBGE{n}:
s_endpgm""".split("\n")]
        else: out.append(ln)
    A.lines = out

def main():
    A = Asm()
    which = sys.argv[2] if len(sys.argv) > 2 else "12f"
    hdr = []
    if OLD: k34m.GRAN = 'g' in which
    descs = []
    A('.amdgcn_target "amdgcn-amd-amdhsa--gfx950"\n.text')
    seen = set()
    for ch in which:
        name, grid, lds, fn = KS[ch]
        hdr.append(f"; @launch {'' if name == NAME + '_kernel' else 'kernel=' + name + ' '}grid=({grid},1,1) block=({BLK.get(ch, 256)},1,1) lds={lds}")
        if ch not in seen: descs.append(fn(A)); seen.add(ch)
    A("code_end:")
    for kn in os.environ.get("NOMF", ""): strip(A, KS[kn][0], lambda t: t.startswith("v_mfma"))
    for kn in os.environ.get("NOLD", ""): strip(A, KS[kn][0], lambda t: t.startswith("global_load"))
    for kn in os.environ.get("NODS", ""): strip(A, KS[kn][0], lambda t: t.startswith("ds_read"))
    if os.environ.get("STRIP"): strip(A, KS['d'][0], lambda t: re.search(os.environ["STRIP"].replace("_", " ").replace("~", "_"), t) is not None)
    if os.environ.get("DBG"): add_dbg(A, [KS[ch][0] for ch in which if ch not in "ez"])
    if os.environ.get("TS"): add_stamps(A, [KS[ch][0] for ch in which if ch not in "ez"])
    txt = "; generated by dev/gen.py (hand-written generator); see comments there\n" + "\n".join(hdr) + "\n" + A.text() + '.section .rodata,"a"\n' + ("".join(descs) if not (os.environ.get("TS") or os.environ.get("DBG")) else re.sub(r"next_free_sgpr \d+", "next_free_sgpr 102", "".join(descs)))
    open(sys.argv[1], "w").write(txt)

if __name__ == "__main__":
    main()
```

```python
from common import *
import os
KD_GRID = 256
REMAPD = 0
KN = os.environ.get('KN', 'fusedd_kernel')
NCV = 224
KGS = 53 * RS
KC = 4160
YW = 10240
L_K = 2 * KGS
L_H = L_K + 4 * KC
HS = 4608
L_R = L_H + 2 * HS
RSTR = 912
L_S = L_R + 8 * RSTR
L_X = 4 * YW
L_GS = L_X + 4 * TB
KD_LDS = L_GS + 3 * 896
L_G = L_K + 4096 + 48
TAGC = 0x2F4A7C15
XGP = 14336
MGH = 2688 * 8
TAG = 's40'
TAG2 = 's73'

LIMIT = int(os.environ.get("LIMIT", "20000"))
def lim(lbl): return f"s_add_u32 s43, s43, 1\ns_cmp_gt_u32 s43, {LIMIT}\ns_cbranch_scc1 {lbl}"

GPOS = int(os.environ.get('GPOS', '1'))
WST = os.environ.get('WST', 'sc1')
XST = os.environ.get('XST', 'sc1')
PST = os.environ.get('PST', 'sc1')
BPRIO = os.environ.get('BPRIO', '')
CPF = f"""s_lshr_b32 s3, s2, 3
s_lshl_b32 s3, s3, 11
v_lshrrev_b32 v3, 5, v0
v_lshl_add_u32 v3, v3, 7, s3
v_min_u32 v3, code_end-{KN}-4, v3
s_sub_u32 s24, s22, ktab-{KN}
s_subb_u32 s25, s23, 0
global_load_dword v255, v3, s[24:25]"""

pFR, pPW, pGX0, pGX1, pGS0, pGS1, pGM, pGA, pHW, pYR, pXO, pDK = range(204, 216)
pA0, pA1, pA2, pA3, pB, pYW = range(216, 222)
pSB0, pSB1, pGW, pPF = range(220, 224)
pPT, pFP, pWS = 21, 22, 217
pWD = 199
pDO = 216
DL = 160
DO = 48
EV = lambda n, d: int(os.environ.get(n, d))
NT = lambda c: ' nt' if c in os.environ.get('NT', '') else ''
KREL = EV('KREL', 50)
POIS = EV('POIS', 1)

def schedule(items):
    dep = {n: [s for s in srcs if s in dict(items)] for n, srcs in items}
    height = {}
    def h(n):
        if n not in height: height[n] = 1 + max([h(m) for m, _ in items if n in dep[m]], default=0)
        return height[n]
    order, pos = [], {}
    left = [n for n, _ in items]
    while left:
        k = len(order)
        for gap in (3, 2):
            c = [n for n in left if all(s in pos and pos[s] <= k - gap for s in dep[n])]
            if c: break
        if not c: order.append(None); continue
        n = max(c, key=h); order.append(n); pos[n] = k; left.remove(n)
    return order

SB1, SB2 = EV("SB1", 13), EV("SB2", 24)
NDA, HB2, GO, PL = EV("NDA", 4), EV("HB2", 3), EV("GO", 14), EV("PL", 11)
SLP = os.environ.get("SLP", "1")
SC0, SBK, SCK, SCF, SCC, SD0 = EV("SC0", 0), EV("SBK", 3), EV("SCK", 21), EV("SCF", 19), EV("SCC", 25), EV("SD0", 7)
FPS, FQA, FQB = 7, EV("FQA", 5), EV("FQB", 0)
EJ, EK0, EK1, RLJ = EV("EJ", 4), EV("EK0", 3), EV("EK1", 45), EV("RLJ", 0)
PFP, PFM, NL = EV("PFP", 0), EV("PFM", 3), EV("NL", 0)
NBP, LAGB, LAGA, GSI, GAI = EV("NBP", 14), EV("LAGB", 7), EV("LAGA", 7), EV("GSI", 10), EV("GAI", 9)
E0, E2, E3 = EV("E0", 1), EV("E2", 1), EV("E3", 1)
W = lambda k: 196 if k == 0 else 220 + 4 * k if k <= 8 else 80 + 4 * k
ew = [f"global_load_dword v{W(2*J+1+(e&1))+e//2}, v{pPF}, s[64:65] offset:{3584*(e%3-1)}{NT('e')}" + (f"\ns_add_u32 s64, s64, {(26 if e == 7 else 3)*3584}\ns_addc_u32 s65, s65, 0" if e in (2, 5, 7) else "")
      for J in range(EJ) for e in range(8)]
ew0, ew, ew2, ew3 = ew[:8*E0], ew[8*E0:8*(EJ-E2-E3)], ew[8*(EJ-E2-E3):8*(EJ-E3)], ew[8*(EJ-E3):]
def lines(t):
    o = []
    for l in t.split("\n"):
        if not l or l[0] == ";": continue
        if l.startswith(("s_addc", "v_cndmask", "s_cselect")): o[-1] += "\n" + l
        else: o.append(l)
    return o

ROLE = lines(f"""; FFN role.  x = wg&7 : rb = 4*(x&3) + (i&3), fb = 7*(x>>2) + (i>>2), i = wg>>3 ; phase 2: th = x>>2, db = i>>2
s_and_b32 s66, s2, 3
s_lshl_b32 s66, s66, 2
s_bfe_u32 s3, s2, 0x20003
s_add_u32 s66, s66, s3                ; rb
s_bfe_u32 s67, s2, 0x10002            ; th
s_lshr_b32 s68, s2, 5                 ; db
s_mul_i32 s69, s67, 7
s_add_u32 s69, s69, s68               ; fb
s_lshl_b32 s70, s69, 2
s_and_b32 s3, s33, 3
s_add_u32 s70, s70, s3
s_lshl_b32 s3, s70, 6
s_add_u32 s3, s3, 3584
s_add_u32 s64, s64, s3
s_addc_u32 s65, s65, 0
""")
WSADDR = lambda p: lines(f"""; lane = kh, step bit, column pair : row 16 sb + 8 kh
v_lshrrev_b32 v{p+1}, 5, v2
v_bfe_u32 v{p+2}, v2, 4, 1
v_lshl_add_u32 v{p+1}, v{p+2}, 1, v{p+1}
v_mul_u32_u24 v{p}, {8*3584}, v{p+1}
v_and_b32 v{p+1}, 15, v2
v_lshl_add_u32 v{p}, v{p+1}, 2, v{p}
v_add_u32 v{p+1}, {3*3584}, v{p}
v_add_u32 v{p+2}, {6*3584}, v{p}
""")
ROLE2 = lines(f"""; pattern rows: g (b3 = 0) / sb on the k groups of row half b2, zero elsewhere
v_lshrrev_b32 v24, 5, v2
v_bfe_u32 v25, v2, 4, 1
v_bfe_u32 v26, v2, 2, 1
v_bfe_u32 v31, v2, 3, 1
v_mad_u32_u24 v31, v31, 56, v24
v_subrev_u32 v31, 112, v31
v_cmp_eq_u32 vcc, v25, v26
v_cndmask_b32 v31, 0, v31, vcc
v_lshlrev_b32 v31, 4, v31
v_add_u32 v{pPT}, {L_GS + 1792}, v31
""")
FPADDR = lines(f"""; "every slot is poisoned" flag of spare WG wg&31
s_and_b32 s3, s2, 31
s_lshl_b32 s3, s3, 7
s_add_u32 s3, s3, {WS_F0}
v_mov_b32 v{pFP}, s3
v_mov_b32 v27, {L_G}
""")
PFADDR = f"""; line prefetch: rows 112rq + 28cg + lane>>1, half lane&1
s_and_b32 s3, s66, 3
s_lshl_b32 s3, s3, 2
s_and_b32 s24, s33, 3
s_add_u32 s3, s3, s24
s_mul_i32 s3, s3, {28*3584}
s_lshl_b32 s24, s24, 6
s_sub_u32 s3, s3, s24
v_min_u32 v31, 55, v2
v_lshrrev_b32 v{pPF}, 1, v31
v_mul_u32_u24 v{pPF}, 3584, v{pPF}
v_and_b32 v31, 1, v31
v_lshl_add_u32 v{pPF}, v31, 7, v{pPF}
v_add_u32 v{pPF}, s3, v{pPF}
"""
PFLOAD = f"global_load_dword v{pPF}, v{pPF}, s[64:65] offset:-3584"

MQ = [x.split(":") for x in os.environ.get("MQ", "").split(",") if x]
def mqs():
    if not MQ: return ""
    o = "v_lshrrev_b32 v253, 5, v2\nv_and_b32 v254, 31, v2\n"
    hi, lo = 28 - 2 * EJ, 2 * (EJ - E0)
    for i, (w, src, pos) in enumerate(MQ):
        sp, st, n, off = {'g': (44, 3584, 27, 0), 'u': (46, 3584, 27, 0), 'm': (52, 5376, 27, 1792), 'n': (52, 5376, 13, 0),
                          'G': (44, hi * 128, hi - 1, EJ * 32 * 3584), 'U': (46, hi * 128, hi - 1, EJ * 32 * 3584),
                          'a': (44, lo * 128, lo - 1, E0 * 32 * 3584), 'b': (46, lo * 128, lo - 1, E0 * 32 * 3584)}[src]
        if i == 0: o += f"s_mov_b64 s[56:57], s[{sp}:{sp+1}]\ns_mov_b32 s59, {st}\ns_mov_b32 s60, {n}\ns_mov_b32 s61, {off}\n"
        else: o += f"s_cmp_eq_u32 s33, {w}\ns_cselect_b64 s[56:57], s[{sp}:{sp+1}], s[56:57]\ns_cselect_b32 s59, {st}, s59\ns_cselect_b32 s60, {n}, s60\ns_cselect_b32 s61, {off}, s61\n"
    return o + "v_min_u32 v254, s60, v254\nv_lshl_add_u32 v253, s2, 1, v253\nv_mul_u32_u24 v253, s59, v253\nv_lshl_add_u32 v254, v254, 7, v253\nv_add_u32 v214, s61, v254"
def mpf(pos):
    ws = [int(w) for w, _, p in MQ if p == str(pos)]
    if not ws: return ""
    return f"s_bitcmp1_b32 {hex(sum(1 << w for w in ws))}, s33\ns_cbranch_scc0 F_mp{pos}\nglobal_load_dword v214, v214, s[56:57]\nF_mp{pos}:"

WSO = f"s_add_u32 s20, s20, {EV('WSO', 0) << 20}\ns_addc_u32 s21, s21, 0" if EV('WSO', 0) else ""
def ffn_pro():
    return lines(f"""
s_and_b32 s45, s33, 1
s_mul_i32 s46, s45, {TB}
s_add_u32 s46, s46, {L_X}
s_lshr_b32 s47, s33, 1
s_lshl_b32 s26, s47, 10
s_add_u32 s26, s26, s46
s_mul_i32 s27, s47, {-6*512}
s_sub_u32 s27, s27, {8*XGP}
s_lshl_b32 s44, s66, 2
s_add_u32 s44, s44, s45
s_mul_i32 s44, s44, {4*XGP}
s_mul_i32 s28, s47, 3584
s_add_u32 s29, s28, s44
s_add_u32 s29, s29, {WS_XG + 8*XGP}
v_and_b32 v15, 7, v2
v_lshl_add_u32 v15, v15, 4, s29
v_lshrrev_b32 v6, 4, v2
v_lshl_add_u32 v15, v6, 7, v15
v_bfe_u32 v6, v2, 3, 1
v_mul_u32_u24 v6, {2*XGP}, v6
v_add_u32 v15, v15, v6
s_lshl_b32 s28, s28, 1
s_add_u32 s28, s28, s46
s_add_u32 s28, s28, {2*TB}
v_add3_u32 v14, s26, v3, 4
v_lshrrev_b32 v6, 5, v2
v_lshlrev_b32 v5, 9, v6
v_bfe_u32 v7, v2, 3, 1
v_lshl_add_u32 v5, v7, 6, v5
v_bfe_u32 v8, v2, 4, 1
v_lshl_add_u32 v5, v8, 7, v5
v_and_b32 v7, 3, v2
v_lshl_add_u32 v5, v7, 4, v5
v_and_b32 v9, 4, v2
v_lshl_add_u32 v5, v9, 1, v5
s_mul_i32 s44, s38, {TB}
s_add_u32 s46, s44, {L_X}
v_add_u32 v12, s46, v5
s_sub_u32 s46, {L_X + TB}, s44
v_add_u32 v13, s46, v5
s_lshl_b32 s44, s38, 9
v_lshl_add_u32 v16, v2, 3, s44
s_cmp_eq_u32 s38, 0
s_cselect_b32 s71, 0, 0xff800000
s_cselect_b32 s72, 0, 0x80008000
s_lshl_b32 s44, s66, 11
s_add_u32 s46, s44, {WS_ST2}
s_add_u32 s22, s20, s46
s_addc_u32 s23, s21, 0
s_add_u32 s44, s44, {WS_FL}
s_add_u32 s12, s20, s44
s_addc_u32 s13, s21, 0
s_mul_i32 s48, s33, {14*1024}
s_mul_i32 s44, s68, {2*HF_TT}
s_add_u32 s44, s44, s48
s_add_u32 s44, s44, {WS_WDF + 4096}
s_add_u32 s4, s20, s44
s_addc_u32 s5, s21, 0
v_add_u32 v1, {HF_TT}, v3
s_mul_i32 s44, s66, {4*HF_TT}
s_add_u32 s44, s44, {WS_HF}
s_lshl_b32 s46, s70, 11
s_add_u32 s46, s44, s46
s_mul_i32 s47, s38, {HF_TT}
s_add_u32 s46, s46, s47
s_add_u32 s6, s20, s46
s_addc_u32 s7, s21, 0
s_mul_i32 s46, s67, {HF_TT}
s_add_u32 s44, s44, s46
s_add_u32 s44, s44, s48
s_add_u32 s44, s44, 4096
s_add_u32 s8, s20, s44
s_addc_u32 s9, s21, 0
s_add_u32 s10, s8, 8192
s_addc_u32 s11, s9, 0
v_min_u32 v17, 13, v2
s_mul_i32 s44, s33, 14
v_add_u32 v17, s44, v17
v_lshrrev_b32 v17, 3, v17
v_lshlrev_b32 v17, 7, v17
s_lshl_b32 s44, s69, 7
v_mov_b32 v18, s44
v_mov_b32 v19, {TAG}
s_and_b32 s44, s33, 2
s_add_u32 s44, s44, s67
v_lshrrev_b32 v9, 4, v2               ; octet
v_and_b32 v0, 15, v2
s_lshl_b32 s46, s44, 9
s_lshl_b32 s47, s45, 7
s_add_u32 s46, s46, s47
s_add_u32 s46, s46, 256
v_lshl_add_u32 v7, v0, 3, s46
s_lshl_b32 s46, s66, 2
s_add_u32 s44, s44, s46               ; t block
s_lshl_b32 s44, s44, 1
s_add_u32 s44, s44, s45
s_mul_i32 s46, s44, {2*XGP}
s_lshl_b32 s47, s68, 11
s_add_u32 s46, s46, s47
s_lshl_b32 s47, s38, 10
s_add_u32 s46, s46, s47
s_add_u32 s46, s46, {WS_XG + XGP}
v_lshl_add_u32 v8, v9, 8, s46
v_lshl_add_u32 v8, v0, 2, v8
v_mul_u32_u24 v6, 896, v0
v_lshl_add_u32 v6, v9, 4, v6
s_mul_i32 s44, s44, {16*896}
s_lshl_b32 s46, s68, 7
s_lshl_b32 s47, s38, 6
s_add_u32 s46, s46, s47
s_add_u32 s44, s44, s46
s_add_u32 s62, s62, s44
s_addc_u32 s63, s63, 0
s_lshl_b32 s46, s46, 1
s_add_u32 s46, s46, {WS_MOD}
s_add_u32 s16, s20, s46
s_addc_u32 s17, s21, 0                ; gb
s_lshl_b32 s44, s38, 12
s_lshl_b32 s46, s45, 8
s_add_u32 s44, s44, s46
s_and_b32 s46, s33, 2
s_lshl_b32 s46, s46, 15
s_add_u32 s44, s44, s46
v_lshlrev_b32 v0, 4, v0
v_lshl_add_u32 v0, v9, 9, v0
v_add_u32 v0, s44, v0
v_add_u32 v5, {2*HF_TT}, v3
s_lshl_b32 s49, s33, 13
""")

def xdma(j):
    o = f"s_add_u32 m0, s26, {4096*j - 2048*(j&1)}\n" + ("v_add_u32 v4, 4096, v4\n" if j and j % 2 == 0 else "")
    return o + f"global_load_lds_dwordx4 v4, s[20:21] offset:{2048*(j&1)} sc1"
XDMA = "v_add_u32 v4, s27, v15\n" + "\n".join(xdma(j) for j in range(7))

def ffn(A, W, RT, wl, wp, uvr, uvm, uvfin):
    XF = [24, 32]; STT = 40; CF = 44; R = [52, 84]
    WD = lambda j: 200 + 4 * j if j < 6 else W(j - 6)
    RING = [STT, W(28), CF, CF + 4] + [W(k) for k in range(22, 28)] + [24 + 4 * i for i in range(4)]
    T = R[1]
    dmac = lambda j: f"s_add_u32 m0, s28, {512*j}\nglobal_load_lds_dwordx4 v15, s[20:21] offset:{512*j} sc1"
    def probe(t, lo, hi, stride):
        return [f"ds_read2st64_b32 {v(t+j-lo,2)}, v14 offset0:{j*stride//256} offset1:{min(j+1,hi-1)*stride//256}" for j in range(lo, hi, 2)]
    def fold(t, n):
        o = [f"v_max3_u32 v{t}, v{t}, v{t+j}, v{t+j+1}" if j + 1 < n else f"v_max_u32 v{t}, v{t}, v{t+j}" for j in range(1, n, 2)]
        return o + [f"v_cmp_le_u32 vcc, 0xffff0000, v{t}"]
    nl = "\n".join
    A(f"""
G_xw:
s_waitcnt vmcnt(5)
{nl(probe(T, 0, 2, 4096))}
s_waitcnt lgkmcnt(0)
{nl(fold(T, 2))}
s_cbranch_vccnz G_xs
""")
    RT.append(f"""G_xs:
{lim('G_go')}
s_waitcnt vmcnt(0)
{nl(probe(T + 2, 2, 7, 4096))}
s_waitcnt lgkmcnt(0)
{nl(fold(T, 7))}
s_mov_b64 exec, vcc
{XDMA}
s_mov_b64 exec, -1
s_branch G_xw""")
    Q = []
    done = [0]
    def issue(op):
        kind, j = op
        if kind == 'd':
            if j == 16: A("s_add_u32 s4, s4, 8192\ns_addc_u32 s5, s5, 0")
            A(f"global_load_dwordx4 {v(WD(j),4)}, v{1 if j & 1 else 3}, s[4:5] offset:{1024*((j>>1)%8)-4096} sc1")
        else:
            A(j)
        Q.append(op)
    def wait(op, extra=""):
        n = len(Q) - 1 - Q.index(op) if op else len(Q)
        done[0] = max(done[0], len(Q) - n)
        A(f"s_waitcnt vmcnt({min(n, 63)}){extra}")
    order = [('d', j) for j in range(28)]
    def slot():
        if order: issue(order.pop(0))
    def reads(g):
        return [f"ds_read_b64_tr_b16 {v(XF[g&1]+4*i+2*h,2)}, v{12+i} offset:{1024*(g%28)+256*h}" for i in range(2) for h in range(2)]
    def corr(p, z):
        for i in range(2): A(f"v_mfma_f32_32x32x16_bf16 {v(R[p]+16*i,16)}, {v(W(28),4)}, {v(CF+4*i,4)}, {'0' if z else v(R[p]+16*i,16)}")
    ST = lambda p, q: ('s', f"global_store_dwordx4 v3, {v(R[p]+8*q,4)}, s[6:7] offset:{1024*q} sc1")
    def send(p):
        K = R[p]; S = K + 16
        o = []
        for q in range(2):
            o += [f"v_cvt_pk_bf16_f32 v{S+j}, v{S+2*j}, v{S+2*j+1}" for j in range(4*q, 4*q+4)]
            o += [f"v_pk_max_i16 v{S+j}, s72, v{S+j}" for j in range(4*q, 4*q+4)]
            o.append(f"ds_write_b128 v16, {v(S+4*q,4)} offset:{2048*p+1024*q}")
        return o, [f"v_max_f32 v{K+r}, s71, v{K+r}" for r in range(16)]
    def recv(p):
        K = R[p]; S = K + 16
        o = []
        for q in range(2):
            for j in range(4): o += [f"v_lshlrev_b32 v{S+2*j}, 16, v{S+8+4*q+j}", f"v_and_b32 v{S+2*j+1}, 0xffff0000, v{S+8+4*q+j}"]
            o += [f"v_pk_mul_f32 {v(K+8*q+2*j,2)}, {v(K+8*q+2*j,2)}, {v(S+2*j,2)}" for j in range(4)]
            o += [f"v_cvt_pk_bf16_f32 v{K+8*q+j}, v{K+8*q+2*j}, v{K+8*q+2*j+1}" for j in range(4)]
            o.append(lambda q=q: issue(ST(p, q)))
        return [f"ds_read_b128 {v(S+8+4*q,4)}, v14 offset:{2048*p+1024*q}" for q in range(2)], o
    def run(l):
        for f in l: f() if callable(f) else A(f)
    def flag(off, lbl):
        A(f"s_barrier\ns_cmp_lg_u32 s33, 3\ns_cbranch_scc1 {lbl}\ns_mov_b64 exec, 1\nglobal_store_dword v18, v19, s[12:13] offset:{off} sc1\ns_mov_b64 exec, -1\n{lbl}:")
    fill, pre = {g: [] for g in range(56)}, {}
    def spread(l, lo, hi):
        n = hi - lo
        for k in range(n): fill[lo + k] += l[len(l) * k // n:len(l) * (k + 1) // n]
    dsq = []
    def ds(ins, tag): A(ins); dsq.append(tag)
    def lg(tag): return f"lgkmcnt({min(15, len(dsq) - 1 - max(i for i, t in enumerate(dsq) if t == tag))})"
    I = lambda op: (lambda: issue(op))
    Wt = lambda op: (lambda: wait(op))
    fill[SBK] += [Wt(None)] + probe(T, 2, 7, 4096)
    fill[SBK + 1] += ["need:f"] + fold(T, 5) + ["s_cbranch_vccnz G_br\nG_bo:"]
    RT.append(f"""G_br:
{lim('G_bo')}
v_add_u32 v4, s27, v15
s_mov_b64 exec, vcc
{nl(xdma(j) for j in range(2, 7))}
s_mov_b64 exec, -1
s_waitcnt vmcnt(0)
{nl(probe(T, 2, 7, 4096))}
s_waitcnt lgkmcnt(0)
{nl(fold(T, 5))}
s_cbranch_vccnz G_br
s_branch G_bo""")
    NE = 14 - NL
    Dd = lambda ins, tag: (lambda: ds(ins, tag))
    Nd = lambda tag: (lambda: A(f"s_waitcnt {lg(tag)}") if tag in dsq else None)
    for J in range(NE, 14):
        lw = [('w', l) for l in wl(J, pWS)]
        g0 = (J - NE) * EV("LS", 1)
        spread([I(l) for l in lw], g0, g0 + EV("LS", 1))
        g1 = min(g0 + EV("LD", 8), 2 * J - 2)
        spread([Wt(lw[7])] + wp(J), g1, g1 + 2)
        fill[g1 + 2] += [Nd(('u', J)), uvm(2 * J), uvm(2 * J + 1)] + ([Dd(uvr(2 * J + 4 + h), ('u', J + 2)) for h in range(2)] if J < 12 else [])
        if J == 13: fill[g1 + 3].append(uvfin); assert g1 + 3 < SCC - 1 and SD0 + 4 >= g0 + EV("LS", 1)
    XC = [('x', dmac(j)) for j in range(7)]
    spread([I(x) for x in XC], SC0, SC0 + EV("SCN", 4))
    pre[7] = lambda: A("s_barrier")
    fill[8].append("v_add3_u32 v14, s28, v3, 4")
    spread([slot] * 6, SD0, SD0 + 6)
    fill[SCK] += [Wt(XC[6])] + probe(T, 0, 7, 1024)
    fill[SCK + 1] += ["need:f"] + fold(T, 7) + ["s_cbranch_vccnz G_cr\nG_co:"]
    RT.append(f"""G_cr:
{lim('G_co')}
s_mov_b64 exec, vcc
{nl(dmac(j) for j in range(7))}
s_mov_b64 exec, -1
s_waitcnt vmcnt(0)
{nl(probe(T, 0, 7, 1024))}
s_waitcnt lgkmcnt(0)
{nl(fold(T, 7))}
s_cbranch_vccnz G_cr
s_branch G_co""")
    SR = [STT, STT + 2, CF, CF + 4]
    SL = [('c', f"global_load_dwordx2 {v(SR[i],2)}, v{11 if i & 1 else 16}, s[22:23] offset:{1024*(i>>1)} sc1") for i in range(4)]
    fill[9].append("v_xor_b32 v11, 512, v16")
    spread([I(s) for s in SL], SCF, SCF + 2)
    assert SCK + 1 < min(SCC, 27) and SD0 >= 7 and SCF > 9
    ZI = SCC < 28
    fill[32] += ["v_and_b32 v4, 0x30, v2", "v_lshlrev_b32 v4, 1, v4"]
    sc = [f"v_xor_b32 v{20+i}, {TAG}, v{SR[i]+1}" for i in range(4)] + ["v_or3_b32 v20, v20, v21, v22", "v_or_b32 v20, v20, v23", "v_cmp_ne_u32 vcc, 0, v20"]
    fill[SCC - 1] += [Wt(SL[3])] + sc + ["s_cbranch_vccnz G_sr\nG_so:\n;TP sok"]
    RT.append(f"G_sr:\n{lim('G_so')}\n{nl(s[1] for s in SL)}\ns_waitcnt vmcnt(0)\n{nl(sc)}\ns_cbranch_vccnz G_sr\ns_branch G_so")
    fill[SCC] += [f"v_mov_b32 v{CF+4*i+r}, 0" for i in range(2) for r in (1, 2, 3)] + [lambda: corr(1, ZI)]
    fill[SCC + 1] += [f"v_mov_b32 v{CF+4*i}, v{STT+2*i}" for i in range(2)]
    fill[SCC + 2] += [lambda: corr(0, False), "v_add_u32 v16, s49, v3", "v_xor_b32 v14, 32768, v16"]
    fill[26] += [f"v_add_u32 v{r}, {2*TB}, v{r}" for r in (12, 13)]
    pre[27] = lambda: A("s_barrier")
    BS = []
    def ab():
        A(";TP k1")
        nb = len(order) - NDA
        BS.extend(1 + (k * 27) // nb for k in range(nb))
    pre[28] = ab
    hl = lambda n: f"global_load_dwordx4 {v(RING[n%14],4)}, v{5 if n >= 14 else 3}, s[{8 if n%14 < 8 else 10}:{9 if n%14 < 8 else 11}] offset:{1024*(n%14%8)-4096} sc1"
    E0 = max(28, SCC + 3); EXB = E0 + EV("EP1", 3); E1 = EXB + 1 + EV("EP2", 3)
    spread(send(0)[0] + send(0)[1][:8], E0, EXB)
    pre[EXB] = lambda: A(f"s_waitcnt {lg('f')}\ns_barrier")
    fill[EXB] += recv(0)[0] + send(0)[1][8:]
    spread(["need:f"] + recv(0)[1] + [f"s_add_u32 s6, s6, {2*HF_TT}\ns_addc_u32 s7, s7, 0"], EXB + 1, E1)
    assert E1 <= 28 + SB1 and EXB > 28
    RL = [('r', "global_load_dword v7, v7, s[22:23] sc1")] + [('r', f"global_load_dword v{8+j}, v8, s[20:21] offset:{64*j} sc1") for j in (3, 2, 1, 0)]
    spread([I(r) for r in RL], 28 + SB1, 28 + SB1 + 5)
    pre[28 + SB1] = lambda: (wait(ST(0, 1)), flag(0, "K3_fa"))
    PA = ('p', "global_load_dword v15, v17, s[12:13] sc1"); PB = ('p', "global_load_dword v2, v17, s[12:13] offset:64 sc1")
    pre[28 + SB2] = lambda: (issue(PA), issue(('g', "global_load_dwordx4 v[20:23], v4, s[16:17] sc1")))
    A("G_go:\ns_barrier\n;TP k0")
    for i, r in enumerate(reads(0)): ds(r, (0, i // 2))
    for g in range(56):
        p, s = divmod(g, 28)
        fl = list(fill[g])
        pr = pre.get(g)
        if pr: pr()
        nxt = reads(g + 1) if g < 55 else []
        for i in range(2):
            A(f"s_waitcnt {lg((g, i))}")
            if i == 0: A(f";TP {'ae'[p]}{s}")
            A(f"v_mfma_f32_32x32x16_bf16 {v(R[p]+16*i,16)}, {v(W(s),4)}, {v(XF[g&1]+4*i,4)}, {'0' if g == 0 or (g == 28 and not ZI) else v(R[p]+16*i,16)}")
            for h in range(2):
                if nxt: ds(nxt.pop(0), (g + 1, i))
            if p == 1 and BS.count(s) > 1 - i:
                assert order[0][0] == 'd' and order[0][1] - 6 < s
                slot()
            n = (len(fl) + 1) // 2 if i == 0 else len(fl)
            if i == 0 and g == 26: n = min(n, len(fl) - 2)
            for _ in range(n):
                f = fl.pop(0)
                if callable(f): f()
                elif f.startswith("need:"): A(f"s_waitcnt {lg(f[5:])}")
                elif f.startswith("ds_"): ds(f, 'f')
                else: A(f)
    A(";TP k2")
    stream = []
    for n in range(28):
        while order and order[0][1] <= 2 * n + 1: stream.append(order.pop(0))
        stream.append(('h', hl(n)))
    hb0 = stream.index(('h', hl(14)))
    pos = [0]
    def feed(k):
        while pos[0] < k: issue(stream[pos[0]]); pos[0] += 1
    def pachk():
        wait(PA)
        A(f"K3_pc:\nv_cmp_ne_u32 vcc, {TAG}, v15\ns_cbranch_vccnz K3_pr\nK3_po:\n;TP pa")
    HB1, HP1 = EV("HB1", 0), EV("HP1", 1)
    if HB1 and HP1 == 0: pachk(); feed(HB1)
    run(send(1)[1][:8] + send(1)[0])
    if HB1 and HP1 == 1: pachk(); feed(HB1)
    run(send(1)[1][8:])
    A("s_waitcnt lgkmcnt(0)\ns_barrier\n;TP ex")
    run(recv(1)[0])
    A("s_waitcnt lgkmcnt(1)")
    run(recv(1)[1][:17])
    A("s_waitcnt lgkmcnt(0)")
    run(recv(1)[1][17:])
    A(";TP k3")
    if not HB1: pachk()
    if EV("HBB", 0): A("s_barrier")
    issue(('g', "global_load_dwordx4 v[12:15], v4, s[16:17] offset:16 sc1"))
    feed(min(HB2, hb0))
    A("v_and_b32 v7, 0xffff0000, v7\nv_mul_f32 v7, v7, v7\nv_rcp_f32 v7, v7")
    wr = lambda tt, dt, q: f"ds_write_b128 v16, {v(R[tt]+16*dt+4*q,4)} offset:{4096*dt+1024*q}"
    early = [wr(0, dt, q) for dt in range(2) for q in range(4)] + ["v_add_u32 v16, 65536, v16"]
    for n in range(28):
        tt, k = divmod(n, 14)
        if n == HB1:
            wait(ST(1, 1))
            flag(64, "K3_fb")
            A(";TP k4")
            feed(hb0)
        if n == 14 and EV("EW", 1): run(early); early = []
        if n == GO:
            wait(PB); A(f";TP g0\nK3_qc:\nv_cmp_ne_u32 vcc, {TAG}, v2\ns_cbranch_vccnz K3_qr\nK3_qo:\n;TP g1")
        if n >= GO: feed(min(len(stream), hb0 + n))
        if n == 14: run(early); early = []
        wait(('h', hl(n)))
        if n == PL: issue(PB)
        for dt in range(2):
            t = R[tt] + 16 * dt
            A(f"v_mfma_f32_32x32x16_bf16 {v(t,16)}, {v(WD(2*k+dt),4)}, {v(RING[k],4)}, {'0' if k == 0 else v(t,16)}")
    A(";TP k5")
    for dt in range(2):
        for q in range(4): A(wr(1, dt, q))
    B = [116 + 4 * i for i in range(16)]
    XR, TO, GB = 232, 240, [20, 21, 22, 23, 12, 13, 14, 15]
    for j in range(4): A(f"v_lshlrev_b32 v{XR+2*j}, 16, v{8+j}\nv_and_b32 v{XR+2*j+1}, 0xffff0000, v{8+j}")
    gc = [f"v_xor_b32 v{GB[2*j+1]}, {TAG}, v{GB[2*j+1]}" for j in range(4)] + ["v_or3_b32 v21, v21, v23, v13", "v_or_b32 v21, v21, v15", "v_cmp_ne_u32 vcc, 0, v21"]
    A(nl(gc) + "\ns_cbranch_vccnz G_gr\nG_gok:")
    RT.append(f"G_gr:\n{lim('G_gok')}\nglobal_load_dwordx4 v[20:23], v4, s[16:17] sc1\nglobal_load_dwordx4 v[12:15], v4, s[16:17] offset:16 sc1\ns_waitcnt vmcnt(0)\n{nl(gc)}\ns_cbranch_vccnz G_gr\ns_branch G_gok")
    for j in range(4): A(f"v_and_b32 v{GB[2*j+1]}, 0xffff0000, v{GB[2*j]}\nv_lshlrev_b32 v{GB[2*j]}, 16, v{GB[2*j]}")
    for r in range(8): A(f"v_mul_f32 v{GB[r]}, v7, v{GB[r]}")
    A("s_waitcnt lgkmcnt(0)\n;TP w1\ns_barrier\n;TP x1")
    for src in range(8):
        for h in range(2): A(f"ds_read_b128 {v(B[2*src+h],4)}, v0 offset:{8192*src+2048*h}")
    for src in range(1, 8):
        A(f"s_waitcnt lgkmcnt({14-2*src})")
        for h in range(2):
            for r in (0, 2): A(f"v_pk_add_f32 {v(B[h]+r,2)}, {v(B[h]+r,2)}, {v(B[2*src+h]+r,2)}")
    for j in range(4):
        A(f"v_fma_f32 v{XR+2*j}, v{GB[2*j]}, v{B[0]+j}, v{XR+2*j}\nv_fma_f32 v{XR+2*j+1}, v{GB[2*j+1]}, v{B[1]+j}, v{XR+2*j+1}")
    for j in range(4): A(f"v_cvt_pk_bf16_f32 v{TO+j}, v{XR+2*j}, v{XR+2*j+1}")
    A(f"global_store_dwordx4 v6, {v(TO,4)}, s[62:63]\ns_endpgm")
    RT.append(f"""K3_pr:
{lim('K3_po')}
global_load_dword v15, v17, s[12:13] sc1
s_waitcnt vmcnt(0)
s_branch K3_pc
K3_qr:
{lim('K3_qo')}
{"s_sleep " + SLP if SLP != "0" else ""}
global_load_dword v2, v17, s[12:13] offset:64 sc1
s_waitcnt vmcnt(0)
s_branch K3_qc""")

def kd(A):
    A(f""".globl {KN}
.p2align 8
.type {KN},@function
{KN}:
s_cmp_ge_u32 s2, {KD_GRID}
s_cbranch_scc1 F_end
{"s_add_u32 s2, s2, 224" + chr(10) + "s_and_b32 s2, s2, 255" if EV('REMAP', REMAPD) else ""}
s_load_dwordx2 s[36:37], s[0:1], 0
s_load_dwordx2 s[20:21], s[0:1], 136
s_load_dwordx16 s[4:19], s[0:1], 8
s_load_dwordx8 s[44:51], s[0:1], 80
s_load_dwordx2 s[52:53], s[0:1], 112  ; w_mod
s_load_dwordx2 s[62:63], s[0:1], 120  ; out
s_load_dwordx2 s[64:65], s[0:1], 80
;TP i1
s_getpc_b64 s[22:23]
F_pc:
s_add_u32 s22, s22, ktab-F_pc
s_addc_u32 s23, s23, 0
v_and_b32 v17, 255, v0
v_lshlrev_b32 v17, 4, v17             ; n*16
v_lshrrev_b32 v1, 6, v0
v_and_b32 v2, 63, v0                  ; lane
v_readfirstlane_b32 s33, v1           ; w
{CPF}
;TP i2
global_load_dwordx4 v[20:23], v17, s[22:23]
global_load_ushort v19, v17, s[22:23] offset:16
v_lshlrev_b32 v3, 4, v2               ; lane*16
s_and_b32 s34, s2, 1
s_lshl_b32 s3, s2, 3
s_mul_i32 s34, s34, 6
s_sub_u32 s3, s3, s34
s_and_b32 s34, s33, 6
s_add_u32 s3, s3, s33
s_add_u32 s3, s3, s34
s_mul_i32 s3, s3, 896
v_add_u32 v8, s3, v3
v_mov_b32 v4, 0
v_mov_b32 v5, 0
v_mov_b32 v6, 0
v_mov_b32 v7, 0
s_and_b32 s34, s2, 7
s_lshr_b32 s35, s2, 4
s_lshl_b32 s35, s35, 3
s_add_u32 s35, s35, s34
s_lshl_b32 s35, s35, 1
s_bfe_u32 s38, s2, 0x10003
s_add_u32 s35, s35, s38               ; c
s_lshr_b32 s38, s33, 2                ; ch
;TP i3
s_mov_b32 s43, 0
s_mov_b32 s58, {L_R}
s_mov_b32 s42, {ONES}
s_lshl_b32 s3, s35, 10
v_lshl_add_u32 v1, v0, 1, s3
s_lshl_b32 s3, s35, 2
v_bfe_u32 v10, v0, 5, 1
v_mul_u32_u24 v10, {HS}, v10
v_and_b32 v11, 31, v0
v_lshl_add_u32 v10, v11, 4, v10
v_add_u32 v10, {L_H}, v10
v_bfe_u32 v11, v0, 2, 2
v_mul_u32_u24 v11, {KC}, v11
v_and_b32 v12, 3, v0
v_lshl_add_u32 v11, v12, 4, v11
v_add_u32 v11, {L_K + 4096}, v11
v_cmp_gt_u32 vcc, 64, v0
v_cndmask_b32 v10, v11, v10, vcc
v_add_u32 v11, {L_GS + 1792 - 128}, v3
v_cmp_lt_u32 vcc, 455, v0
v_cndmask_b32 v10, v10, v11, vcc
ds_write_b128 v10, v[4:7]
""")
    for r in (10, 11, 12, 13, 14, 15, 16, 18): A(f"v_mov_b32 v{r}, 0")
    A(f"""
s_cmp_ge_u32 s2, {NCV}
s_mov_b32 exec_hi, 0x00ffffff
;TP i4
s_waitcnt lgkmcnt(0)
global_load_dwordx4 v[4:7], v8, s[36:37]{NT('x')}
s_mov_b32 exec_hi, -1
s_cbranch_scc1 F_spare_loads
;TSINIT
{WSO}
s_load_dword {TAG}, s[20:21], {WS_EP}
s_load_dword s39, s[16:17], s3
s_load_dword s41, s[18:19], s3
s_and_b32 s27, s33, 3
s_lshl_b32 s27, s27, 8
s_mul_i32 s28, s38, {KGS}
s_add_u32 s27, s27, s28
s_mov_b32 m0, s27
v_and_b32 v24, 31, v2
v_lshrrev_b32 v25, 5, v2
v_mul_u32_u24 v{pFR}, {RS}, v24
v_lshl_add_u32 v{pFR}, v25, 4, v{pFR}
v_add_u32 v{pFR}, s27, v{pFR}
v_mul_u32_u24 v{pPW}, {4*RS}, v25
v_lshl_add_u32 v{pPW}, v24, 2, v{pPW}
v_add_u32 v{pPW}, s27, v{pPW}
; granules
v_lshrrev_b32 v{pGX0}, 2, v0
v_mul_u32_u24 v{pGX0}, {2*XGP}, v{pGX0}
v_and_b32 v26, 3, v0
v_lshl_add_u32 v{pGX0}, v26, 4, v{pGX0}
s_lshl_b32 s3, s35, 6
s_add_u32 s3, s3, {WS_XG}
v_add_u32 v{pGX0}, s3, v{pGX0}
v_add_u32 v{pGX1}, {XGP}, v{pGX0}
v_lshlrev_b32 v{pGS0}, 4, v0
v_add_u32 v{pGS0}, {WS_SG}, v{pGS0}
v_add_u32 v{pGS1}, 8192, v{pGS0}
""")
    for i in range(6): A(f"global_load_short_d16_hi v{10+i}, v1, s[{4+2*i}:{5+2*i}]{NT('p')}")
    PFZ = "" if PFM == 3 or PFP < 2 else f"s_cmp_eq_u32 s38, {PFM - 1}\ns_cselect_b32 s3, 1, 0\nv_mul_u32_u24 v{pPF}, s3, v{pPF}"
    A(f"""
v_and_b32 v29, 15, v0                 ; m / p / cq
v_bfe_u32 v27, v0, 4, 2               ; kq
v_bfe_u32 v28, v0, 4, 4
v_min_u32 v28, 13, v28                ; rgrp 0..13
{mqs()}
{mpf('s')}
s_cmp_lg_u32 s38, 0
s_cbranch_scc1 F_hb
""")
    RAWD = "\n".join((f"v_add_u32 v{pWD}, {16*896}, v{pWD}\n" if e == 4 else "") + f"global_load_dword v{DL+e}, v{pWD}, s[48:49] offset:{896*(2*(e&3)-4)}{NT('d')}" for e in range(8))
    def rawD():
        for e in range(8):
            if e == 4: A(f"v_add_u32 v{pWD}, {16*896}, v{pWD}")
            A(f"global_load_dword v{DL+e}, v{pWD}, s[48:49] offset:{896*(2*(e&3)-4)}{NT('d')}")
    A(f"""
v_mov_b32 v{pWD}, 0
v_mov_b32 v222, 0
s_lshr_b32 s3, s33, 1
s_and_b32 s29, s33, 1                 ; half
v_and_b32 v{pA0}, 1, v29
v_xor_b32 v{pA0}, 1, v{pA0}
v_mul_u32_u24 v{pA0}, {KC}, v{pA0}
v_lshrrev_b32 v{pA1}, 1, v29
v_lshlrev_b32 v{pA1}, 2, v{pA1}
v_sub_u32 v{pA0}, v{pA0}, v{pA1}
v_lshl_add_u32 v{pA0}, v27, 4, v{pA0}
s_mul_i32 s24, s3, {2*KC}
s_lshl_b32 s25, s29, 8
s_sub_u32 s24, s24, s25
s_add_u32 s24, s24, {L_K + 4060 - 192 - 512}
v_add_u32 v{pA0}, s24, v{pA0}
v_subrev_u32 v{pA1}, 1024, v{pA0}
v_subrev_u32 v{pA2}, 2048, v{pA0}
v_subrev_u32 v{pA3}, 3072, v{pA0}
v_lshlrev_b32 v{pB}, 5, v29
v_lshl_add_u32 v{pB}, v27, 4, v{pB}
s_mul_i32 s24, s3, {HS}
s_sub_u32 s24, s24, s25
s_add_u32 s24, s24, {L_H + 480 - 192}
v_add_u32 v{pB}, s24, v{pB}
v_mul_u32_u24 v{pYW}, 320, v27
v_lshl_add_u32 v{pYW}, v29, 4, v{pYW}
s_mul_i32 s24, s33, {YW}
v_add_u32 v{pYW}, s24, v{pYW}
F_com:
{chr(10).join(ROLE)}
{PFADDR if PFP else chr(10).join(WSADDR(29)[:6]) + chr(10) + 'v_mov_b32 v%d, v29' % pPF}
{PFZ}
{chr(10).join(ew0)}
v_and_b32 v27, 1, v0
v_mul_u32_u24 v{pGM}, {MGH}, v27
v_and_b32 v27, 2, v0
v_lshl_add_u32 v{pGM}, v27, 2, v{pGM}
s_lshl_b32 s3, s35, 4
s_add_u32 s3, s3, {WS_MG}
v_add_u32 v{pGM}, s3, v{pGM}
v_bfe_u32 v27, v0, 2, 1
v_bfe_u32 v28, v0, 3, 1
v_mad_u32_u24 v{pGA}, v27, 3, 2
v_lshl_add_u32 v{pGA}, v28, 1, v{pGA}
v_min_u32 v{pGA}, 5, v{pGA}
v_mul_u32_u24 v{pGA}, 3584, v{pGA}
v_add_u32 v{pGA}, v{pGM}, v{pGA}
v_mul_u32_u24 v27, 3584, v27
v_add_u32 v{pGM}, v{pGM}, v27
v_lshlrev_b32 v{pHW}, 3, v0
v_add_u32 v{pHW}, {L_H}, v{pHW}
v_mul_u32_u24 v{pYR}, 320, v26
v_bfe_u32 v27, v0, 2, 4
v_lshl_add_u32 v{pYR}, v27, 4, v{pYR}
s_mul_i32 s3, s33, 1280
v_add_u32 v{pYR}, s3, v{pYR}
v_mov_b32 v27, {255*16}
v_cmp_eq_u32 s[30:31], v27, v17
s_mul_i32 s3, s38, {2*KC}
s_add_u32 s3, s3, {L_K}
v_add_u32 v17, s3, v17
s_mov_b32 s14, 0x05040100
s_mov_b32 s15, 0x07060302
s_branch F_stats
F_hb:
s_mov_b64 s[64:65], s[46:47]
{chr(10).join(WSADDR(pWS))}
s_lshr_b32 s3, s2, 2
s_lshl_b32 s3, s3, 2
s_and_b32 s46, s2, 1
s_add_u32 s3, s3, s46
s_lshl_b32 s3, s3, 3
s_bfe_u32 s46, s2, 0x10001
s_add_u32 s3, s3, s46
s_add_u32 s3, s3, 4
s_mul_i32 s3, s3, 896
v_lshlrev_b32 v{pWD}, 6, v28
v_lshl_add_u32 v{pWD}, v29, 2, v{pWD}
v_add_u32 v{pWD}, s3, v{pWD}          ; row +4
v_mul_u32_u24 v{pDO}, {HF_TT}, v28
v_lshl_add_u32 v{pDO}, v29, 4, v{pDO}
s_lshl_b32 s3, s2, 9
s_add_u32 s3, s3, {WS_WDF}
v_add_u32 v{pDO}, s3, v{pDO}
v_subrev_u32 v31, 256, v0
v_min_u32 v31, 223, v31
v_lshlrev_b32 v{pSB0}, 4, v31
v_add_u32 v{pSB0}, {WS_MG + 3*3584}, v{pSB0}
v_add_u32 v{pSB1}, {MGH}, v{pSB0}
v_lshlrev_b32 v{pGW}, 2, v31
v_add_u32 v{pGW}, {L_GS}, v{pGW}
s_branch F_com
F_spare_loads:
;TSINIT
{WSO}
s_load_dword {TAG}, s[20:21], {WS_EP}
""")
    P = [96, 112, 128]
    AC = 64
    LM = 0
    A(f"""
s_sub_u32 s24, s2, {NCV}
s_min_u32 s25, s24, 27
s_and_b32 s26, s25, 1                 ; hf
s_lshr_b32 s25, s25, 1                ; g
v_lshrrev_b32 v12, 3, v0
v_min_u32 v12, 55, v12
v_and_b32 v13, 7, v0                  ; chunk
s_mul_i32 s27, s26, 448
v_lshl_add_u32 v10, v12, 3, s27       ; c offset
v_mul_u32_u24 v14, {4*5376}, v12
v_lshl_add_u32 v14, v13, 4, v14
s_mul_i32 s27, s26, {224*5376}
s_lshl_b32 s28, s25, 7
s_add_u32 s27, s27, s28
v_add_u32 v14, s27, v14
v_add_u32 v15, 5376, v14
v_add_u32 v16, {2*5376}, v14
v_add_u32 v18, {3*5376}, v14
s_cmp_ge_u32 s25, 7
s_cselect_b32 s29, 2, 1
s_mul_i32 s29, s29, 1792
s_cmp_eq_u32 s33, 7
s_cbranch_scc1 F_stats0
global_load_dwordx2 v[10:11], v10, s[50:51]
""")
    RA = [14, 15, 16, 18]
    for i in range(4): A(f"global_load_dwordx4 {v(P[0]+4*i,4)}, v{RA[i]}, s[52:53]{NT('m')}")
    A(f"""
s_mov_b32 s27, {hex(LOG2E | 0x80000000)}
v_lshrrev_b32 v24, 5, v2
v_lshlrev_b32 v24, 4, v24
v_lshl_add_u32 v24, v13, 5, v24
v_bfe_u32 v25, v2, 4, 1
v_lshl_add_u32 v24, v25, 3, v24
s_lshl_b32 s3, s33, 8
v_add_u32 v24, s3, v24
""")
    SPM = EV("SPM", 1)
    pl = lambda p: [A(f"global_load_dwordx4 {v(P[p]+4*k,4)}, v{RA[k]}, s[52:53]" + (" offset:2688" if p == 1 else "") + NT('m')) for k in range(4)]
    def silu(n):
        A(f"s_waitcnt vmcnt({n})\nv_lshlrev_b32 v44, 16, v10\nv_and_b32 v45, 0xffff0000, v10\nv_lshlrev_b32 v46, 16, v11\nv_and_b32 v47, 0xffff0000, v11")
        for i in range(4): A(f"v_mul_f32 v{48+i}, s27, v{44+i}")
        for i in range(4): A(f"v_exp_f32 v{48+i}, v{48+i}")
        for i in range(4): A(f"v_add_f32 v{48+i}, 1.0, v{48+i}")
        for i in range(4): A(f"v_rcp_f32 v{48+i}, v{48+i}")
        for i in range(4): A(f"v_mul_f32 v{44+i}, v{44+i}, v{48+i}")
        A("v_cvt_pk_bf16_f32 v48, v44, v45\nv_cvt_pk_bf16_f32 v49, v46, v47")
        A("v_lshlrev_b32 v44, 16, v48\nv_and_b32 v45, 0xffff0000, v48\nv_lshlrev_b32 v46, 16, v49\nv_and_b32 v47, 0xffff0000, v49")
    def gemv(p, waitbase, nxt=None):
        for i in range(4):
            A(f"s_waitcnt vmcnt({waitbase - i})\n;TP m{p}{i}")
            if i == 3 and nxt: pl(nxt)
            for j in range(4): A(f"v_lshlrev_b32 v{56+2*j}, 16, v{P[p]+4*i+j}\nv_and_b32 v{57+2*j}, 0xffff0000, v{P[p]+4*i+j}")
            for j in range(8):
                if i == 0: A(f"v_mul_f32 v{AC+j}, v44, v{56+j}")
                else: A(f"v_fmac_f32 v{AC+j}, v{44+i}, v{56+j}")
        for j in range(4): A(f"v_permlane32_swap_b32 v{AC+j}, v{AC+4+j}")
        for j in range(4): A(f"v_add_f32 v{AC+j}, v{AC+j}, v{AC+4+j}")
        for j in range(2): A(f"v_permlane16_swap_b32 v{AC+j}, v{AC+2+j}")
        for j in range(2): A(f"v_add_f32 v{AC+j}, v{AC+j}, v{AC+2+j}")
        for j in range(2): A(f"v_add_f32_dpp v{AC+j}, v{AC+j}, v{AC+j} row_ror:8 row_mask:0xf bank_mask:0xf")
        A(f"ds_write_b64 v24, {v(AC,2)} offset:{LM + 2048*p}")
    ZR = "\n".join(f"v_mov_b32 v{r}, 0" for r in [199] + list(range(204, 224)))
    A(ZR)
    if SPM == 0: silu(4); gemv(0, 3, 1); A(";TP s1")
    else: A("s_waitcnt vmcnt(5)")
    A(f"""
s_branch F_stats
F_stats0:
{ZR}
v_lshlrev_b32 v26, 2, v2
s_mul_i32 s3, s26, {MGH}
s_lshl_b32 s28, s25, 9
s_add_u32 s3, s3, s28
s_add_u32 s3, s3, {WS_MG}
v_lshl_add_u32 v25, v2, 3, s3
s_waitcnt vmcnt(0)
F_stats:
""")
    A(f"""
s_mul_i32 s3, s33, {RSTR}
s_add_u32 s3, s3, {L_R}
v_add_u32 v8, s3, v3
v_and_b32 v30, 3, v0
v_mul_u32_u24 v28, {2*RSTR}, v30
v_and_b32 v29, 0x1fc, v0
v_add3_u32 v28, v28, v29, s58
v_add_u32 v31, {L_S}, v3
s_mul_i32 s3, s2, {XGP}
s_add_u32 s3, s3, {WS_XG}
v_lshl_add_u32 v29, v0, 4, s3
v_add_u32 v27, {XGP//2}, v29
s_lshr_b32 s3, s2, 1
s_lshl_b32 s3, s3, 6
s_and_b32 s60, s2, 1
s_lshl_b32 s60, s60, 13
s_add_u32 s3, s3, s60
s_add_u32 s3, s3, {WS_SG}
v_add_u32 v9, s3, v3
s_lshl_b32 s3, s33, 3
s_add_u32 s3, s3, {L_S}
v_mov_b32 v30, s3
s_waitcnt vmcnt({6 + 8 * E0})
v_dot2_f32_bf16 v42, v4, s42, 0
v_dot2_f32_bf16 v43, v4, v4, 0
s_mov_b32 exec_hi, 0x00ffffff
ds_write_b128 v8, v[4:7]
s_mov_b32 exec_hi, -1
""")
    for j in range(1, 4): A(f"v_dot2_f32_bf16 v42, v{4+j}, s42, v42\nv_dot2_f32_bf16 v43, v{4+j}, v{4+j}, v43")
    A("v_permlane32_swap_b32 v42, v43\nv_add_f32 v42, v42, v43")
    for sh in (8, 4, 2, 1): A(f"v_add_f32_dpp v42, v42, v42 row_ror:{sh} row_mask:0xf bank_mask:0xf")
    PB_ = 160
    A(f"""
v_mov_b32 v43, v42
v_permlane16_swap_b32 v42, v43
v_add_f32 v42, v42, v43
v_mul_f32 v42, {hex(INV448)}, v42
v_mov_b32 v43, v42
v_permlane32_swap_b32 v42, v43        ; v42 mean, v43 E[x^2]
v_fma_f32 v43, -v42, v42, v43
v_max_f32 v43, 0, v43
v_cvt_pk_bf16_f32 v43, v43, v43
v_and_b32 v43, 0xffff0000, v43
v_add_f32 v43, {hex(EPS)}, v43
v_cvt_pk_bf16_f32 v43, v43, v43
v_and_b32 v43, 0xffff0000, v43
v_sqrt_f32 v43, v43
s_waitcnt lgkmcnt(0)
s_add_u32 {TAG}, {TAG}, {hex(TAGC)}
v_mov_b32 v33, {TAG}
v_cvt_pk_bf16_f32 v32, v42, v43
ds_write_b64 v30, v[32:33]
s_or_b32 {TAG2}, {TAG}, 0xffff0000
v_mov_b32 v{PB_+1}, {TAG2}
v_mov_b32 v{PB_+3}, {TAG}
v_mov_b32 v{PB_+5}, {TAG2}
v_mov_b32 v{PB_+7}, {TAG}
s_cmp_ge_u32 s2, {NCV}
s_cbranch_scc1 F_b1
""")
    Z1, Z8, P_ = 34, 36, 38
    T1, T8, TP = 40, 42, 44
    A(f"""
{mpf('r')}
s_lshl_b32 s3, s38, 4
s_lshr_b32 s39, s39, s3
s_lshl_b32 s39, s39, 16
s_lshr_b32 s41, s41, s3
s_lshl_b32 s41, s41, 16
s_mov_b32 s29, {LOG2E}
v_mov_b32 v16, s39
v_mul_f32 v16, s29, v16
v_exp_f32 v16, v16
v_mov_b32 v{pDK}, s41
v_cndmask_b32 v{pDK}, 0, v{pDK}, s[30:31]
v_cvt_pk_bf16_f32 v16, v16, v16
v_and_b32 v16, 0xffff0000, v16        ; dt
s_waitcnt vmcnt({8 * E0})
v_mul_f32 v10, v16, v10
v_mul_f32 v11, v16, v11
v_mul_f32 v10, s29, v10
v_mul_f32 v11, 0.15915494, v11
v_mul_f32 v12, v16, v12               ; dB
v_mul_f32 v13, v16, v13
v_mul_f32 v{T8+1}, {hex(f2u(8.0))}, v11
v_mul_f32 v{TP+1}, {hex(f2u(256.0))}, v11
v_mul_f32 v{T8}, {hex(f2u(8.0))}, v10
v_mul_f32 v{TP}, {hex(f2u(256.0))}, v10
v_fract_f32 v{T8+1}, v{T8+1}
v_fract_f32 v{T1+1}, v11
v_fract_f32 v{TP+1}, v{TP+1}
v_exp_f32 v{T8}, v{T8}
v_cos_f32 v{Z8}, v{T8+1}
v_sin_f32 v{Z8+1}, v{T8+1}
v_exp_f32 v{T1}, v10
v_cos_f32 v{Z1}, v{T1+1}
v_sin_f32 v{Z1+1}, v{T1+1}
v_pk_mul_f32 {v(Z8,2)}, {v(Z8,2)}, {v(T8,2)} op_sel_hi:[1,0]
v_exp_f32 v{TP}, v{TP}
v_cos_f32 v{P_}, v{TP+1}
v_sin_f32 v{P_+1}, v{TP+1}
v_pk_mul_f32 {v(Z1,2)}, {v(Z1,2)}, {v(T1,2)} op_sel_hi:[1,0]
v_mov_b32 v175, 0x3f80
v_pk_mul_f32 {v(P_,2)}, {v(P_,2)}, {v(TP,2)} op_sel_hi:[1,0]
F_b1:
s_cmp_eq_u32 s33, 7
s_waitcnt lgkmcnt(0)
s_barrier
;TP b1
s_cbranch_scc1 F_pub7
""")
    for j in range(4): A(f"ds_read_b32 v{PB_+2*j}, v28 offset:{(j&1)*RSTR + (j>>1)*448}")
    A(f"""
s_cmp_ge_u32 s2, {NCV}
s_waitcnt lgkmcnt(2)
global_store_dwordx4 v29, {v(PB_,4)}, s[20:21] sc1
s_waitcnt lgkmcnt(0)
global_store_dwordx4 v27, {v(PB_+4,4)}, s[20:21] sc1
s_cbranch_scc1 F_spare
""")
    A(f"""
s_cmp_eq_u32 s38, 0
s_cbranch_scc1 F_kg
s_branch F_wl
F_pub7:
s_cmp_ge_u32 s2, {NCV}
s_cbranch_scc1 F_spare7
ds_read_b128 {v(PB_,4)}, v31
s_mov_b64 exec, 15
s_waitcnt lgkmcnt(0)
global_store_dwordx4 v9, {v(PB_,4)}, s[20:21] sc1
s_mov_b64 exec, -1
""")
    RDP = os.environ.get("RDP", "p")
    A("F_wl:")
    if RDP == "p": rawD()
    A("F_kg:\n;TP pub\n" + mpf('p') + "\n.p2align 3")
    X = lambda i: 48 + 2 * i
    Y = lambda j: Z8 if j == 1 else 96 + 2 * j
    reg = {'C': 14, 'B': 12, 'Z1': Z1, 'P': P_, 'y1': Z8}
    it = [('x0', ('C', 'B'))] + [(f'x{i}', (f'x{i-1}', 'Z1')) for i in range(1, 8)]
    for i, s in ((8, 0), (9, 2), (10, 4), (11, 6), (12, 8), (13, 12), (14, 10), (15, 14), (16, 13), (17, 16), (18, 17), (19, 18), (20, 19)):
        it.append((f'x{i}', (f'x{s}', 'P')))
    it += [('y2', ('y1', 'y1')), ('y3', ('y2', 'y1')), ('y4', ('y2', 'y2'))] + [(f'y{j}', (f'y{j-4}', 'y4')) for j in range(5, 9)]
    it += [(f'y{j}', (f'y{j-8}', 'y8')) for j in range(9, 32)]
    for n, _ in it: reg[n] = X(int(n[1:])) if n[0] == 'x' else Y(int(n[1:]))
    order = schedule(it); src = dict(it)
    TT = 168
    def outs(n, k):
        t = TT + k % 7
        i = int(n[1:])
        if n[0] == 'x': return f"v_cvt_pk_bf16_f32 v{t}, v{X(i)}, -v{X(i)+1}", f"ds_write_addtid_b32 v{t} offset:{i*RS}"
        return f"v_cvt_pk_bf16_f32 v{t}, v{Y(i)}, v{Y(i)+1}", f"ds_write_addtid_b32 v{t} offset:{(21+i)*RS}"
    seq = [None, None, 'y1'] + order
    N = len(seq)
    A(f"ds_write_addtid_b32 v175 offset:{21*RS}")
    RT = []
    assert not (EJ and PFP)
    for k in range(3, N + 4):
        if EK0 <= k < EK1: A("\n".join(ew[len(ew) * (k - EK0) // (EK1 - EK0):len(ew) * (k + 1 - EK0) // (EK1 - EK0)]))
        A(mpf(k))
        g = lambda d: seq[k - d] if 0 <= k - d < N else None
        if g(0): A(cmul(A, reg[g(0)], reg[src[g(0)][0]], reg[src[g(0)][1]])[0])
        if g(3): A(outs(g(3), k - 3)[0])
        if g(1) and g(1) != 'y1': A(cmul(A, reg[g(1)], reg[src[g(1)][0]], reg[src[g(1)][1]])[1])
        if g(4): A(outs(g(4), k - 4)[1])
    AF, BF, ACC = 48, 96, 80
    TA = 24
    for ks in range(8):
        A(f"ds_read_b128 {v(AF+4*ks,4)}, v{pFR} offset:{ks*32}")
        A(f"ds_read_b128 {v(BF+4*ks,4)}, v{pFR} offset:{21*RS + ks*32}")
    GX, GS, GM = 176, 184, 192
    GL = [f"global_load_dwordx4 {v(GX,4)}, v{pGX0}, s[20:21] sc1", f"global_load_dwordx4 {v(GX+4,4)}, v{pGX1}, s[20:21] sc1",
          f"global_load_dwordx4 {v(GS,4)}, v{pGS0}, s[20:21] sc1", f"global_load_dwordx4 {v(GS+4,4)}, v{pGS1}, s[20:21] sc1"]
    mload = f"global_load_dwordx2 {v(GM,2)}, v{pGM}, s[20:21] sc1"
    A(f"v_add_u32 v{TA+8}, s28, v19")
    for ks in range(8):
        A(f"s_waitcnt lgkmcnt({14-2*ks})")
        A(f"v_mfma_f32_32x32x16_bf16 {v(ACC,16)}, {v(AF+4*ks,4)}, {v(BF+4*ks,4)}, {'0' if ks==0 else v(ACC,16)}")
        A(f"v_and_b32 v{TA+ks}, 0xffff, v{20+ks//2}" if ks % 2 == 0 else f"v_lshrrev_b32 v{TA+ks}, 16, v{20+ks//2}")
        A(f"v_add_u32 v{TA+ks}, s28, v{TA+ks}")
        if GPOS == 0 and ks >= 4: A(GL[ks - 4])
    for r in range(12):
        A(f"ds_write_b32 v{pPW}, v{ACC+r} offset:{((r&3)+8*(r>>2))*RS}")
    if GPOS == 1:
        for g in GL: A(g)
    A(f";TP pb2\ns_waitcnt lgkmcnt(0)\ns_barrier\n;TP b2")
    E = 48
    for e in range(9):
        A(f"ds_read2st64_b32 {v(E+4*e,2)}, v{TA+e} offset0:0 offset1:1")
        A(f"ds_read2st64_b32 {v(E+4*e+2,2)}, v{TA+e} offset0:2 offset1:3")
    A(mload)
    A(mpf('k'))
    if PFP == 3: A(PFLOAD)
    e2 = list(ew2)
    for e in range(9):
        A(f"s_waitcnt lgkmcnt({min(15, 16-2*e)})")
        A(f"v_pk_add_f32 {v(E+4*e,2)}, {v(E+4*e,2)}, {v(E+4*e+2,2)}")
        if e == 7: A(f"v_add_f32 v{E+4*e}, v{E+4*e}, v{pDK}")
        A(f"v_add_f32 v{E+4*e}, v{E+4*e}, v{E+4*e+1}")
        if e == 8: A(f"v_cndmask_b32 v{E+32}, v{E+32}, 0, s[30:31]")
        if e & 1: A(f"v_cvt_pk_bf16_f32 v{88+e//2}, v{E+4*e-4}, v{E+4*e}")
        elif e: A(f"v_cvt_pk_bf16_f32 v{92+e//2-1}, v{E+4*e-4}, v{E+4*e}")
        if e == 7: A("ds_write_b128 v17, v[88:91]")
        A("\n".join(ew2[len(ew2) * e // 9:len(ew2) * (e + 1) // 9]))
    A(f"ds_write_b128 v17, v[92:95] offset:{KC}")
    A(f"""
s_waitcnt vmcnt({1 + (PFP == 3) + 8 * E2})
F_chk:
v_xor_b32 v10, {TAG2}, v{GX+1}
v_xor_b32 v11, {TAG}, v{GX+3}
v_xor_b32 v12, {TAG2}, v{GX+5}
v_xor_b32 v13, {TAG}, v{GX+7}
v_or3_b32 v10, v10, v11, v12
v_xor_b32 v11, {TAG}, v{GS+1}
v_xor_b32 v12, {TAG}, v{GS+3}
v_or3_b32 v10, v10, v11, v12
v_xor_b32 v11, {TAG}, v{GS+5}
v_xor_b32 v12, {TAG}, v{GS+7}
v_or3_b32 v13, v13, v11, v12
v_or_b32 v10, v10, v13
v_cmp_ne_u32 vcc, 0, v10
s_cbranch_vccnz F_rt1
F_ok:
s_mov_b64 exec, -1
{mpf('g')}
{PFLOAD if PFP == 2 else ''}
{chr(10).join(ew3)}
""")
    RT += [f"F_rt1:\n{lim('F_ok')}\ns_mov_b64 exec, vcc\n" + "\n".join(GL) + "\ns_waitcnt vmcnt(0)\ns_branch F_chk"]
    XU, ST, H, HP, GA = 32, 48, 56, 64, 40
    for t in range(4): A(f"v_and_b32 v{ST+1+2*t}, 0xffff0000, v{GS+2*t}")
    for t in range(4): A(f"v_rcp_f32 v{ST+1+2*t}, v{ST+1+2*t}")
    for t in range(4): A(f"v_lshlrev_b32 v{ST+2*t}, 16, v{GS+2*t}")
    for t in range(4): A(f"v_lshlrev_b32 v{XU+2*t}, 16, v{GX+2*t}\nv_and_b32 v{XU+2*t+1}, 0xffff0000, v{GX+2*t}")
    for t in range(4): A(f"v_pk_add_f32 {v(H+2*t,2)}, {v(XU+2*t,2)}, {v(ST+2*t,2)} op_sel_hi:[1,0] neg_lo:[0,1] neg_hi:[0,1]")
    for t in range(4): A(f"v_pk_mul_f32 {v(H+2*t,2)}, {v(ST+2*t,2)}, {v(H+2*t,2)} op_sel:[1,0]")
    gaload = f"global_load_dwordx2 {v(GA,2)}, v{pGA}, s[20:21] sc1"
    A(f"""
s_waitcnt vmcnt({int(PFP >= 2) + 8 * (E2 + E3)})
F_chkm:
v_cmp_ne_u32 vcc, {TAG}, v{GM+1}
v_add_f32_dpp v10, v{GM}, v{GM} quad_perm:[1,0,3,2] row_mask:0xf bank_mask:0xf
s_cbranch_vccnz F_rt2
F_okm:
{mpf('h')}
v_cvt_pk_bf16_f32 v10, v10, v10
v_and_b32 v10, 0xffff0000, v10
v_add_f32 v11, 1.0, v10
v_cvt_pk_bf16_f32 v11, v11, v11
v_readlane_b32 s30, v10, 0
v_readlane_b32 s31, v10, 2
v_and_b32 v11, 0xffff0000, v11
v_mov_b32 v12, s30
v_readlane_b32 s54, v11, 4
v_readlane_b32 s55, v11, 6
v_mov_b32 v13, s31
s_cmp_lg_u32 s38, 0
""")
    RT.append(f"F_rt2:\n{lim('F_okm')}\n{mload}\ns_waitcnt vmcnt(0)\ns_branch F_chkm")
    for t in range(4): A(f"v_pk_fma_f32 {v(H+2*t,2)}, {v(H+2*t,2)}, s[54:55], v[12:13]")
    for ch in range(2):
        for j in range(2): A(f"v_cvt_pk_bf16_f32 v{HP+2*ch+j}, v{H+4*j+ch}, v{H+2+4*j+ch}")
        A(f"ds_write_b64 v{pHW}, {v(HP+2*ch,2)} offset:{ch*HS + 512}")
    relD = []
    for i in range(2):
        relD += [f"v_perm_b32 v{DO+4*i+jp}, v{DL+2*jp+1}, v{DL+2*jp}, s{14+i}" for jp in range(4)]
        relD.append(f"global_store_dwordx4 v{pDO}, {v(DO+4*i,4)}, s[20:21] offset:{256*i} sc1")
    nlc = '\n'
    A(f"""
;TP h
s_cbranch_scc1 F_prep
{PFLOAD if PFP == 1 and PFM & 1 else ''}
s_setprio {EV('CPRIO', 2)}
s_waitcnt lgkmcnt(0)
s_barrier
;TP b3
""")
    ACC = 44
    FB = [76, 140]
    fpload = f"global_load_dword v23, v{pFP}, s[20:21] sc1"
    def reads(s, buf):
        out = []
        base = FB[buf]
        for c in range(8): out.append(f"ds_read_b128 {v(base+32+4*c,4)}, v{pB} offset:{512*c + 192 - 64*s}")
        for G in range(8):
            o = (512 * (1 - (G & 1)) + 192 - 64 * s) // 4
            out.append(f"ds_read2_b32 {v(base+4*G,2)}, v{pA0+G//2} offset0:{o} offset1:{o+1}")
            out.append(f"ds_read2_b32 {v(base+4*G+2,2)}, v{pA0+G//2} offset0:{o+2} offset1:{o+3}")
        return out
    r0 = reads(0, 0)
    r0 = r0[8:10] + r0[:8] + r0[10:]
    for r in r0: A(r)
    for s in range(4):
        base = FB[s & 1]
        nxt = reads(s + 1, (s + 1) & 1) if s < 3 else WSADDR(pWS) + ROLE2 + FPADDR
        if s > 0: A("s_waitcnt lgkmcnt(0)")
        for G in range(8):
            if s == 0 and G == 1: A("s_waitcnt lgkmcnt(0)")
            for c in range(G, 8):
                first = (s == 0 and G == 0)
                if first and c >= 6: A(f"s_waitcnt lgkmcnt({21 - c})")
                if first and c == 0: A("s_waitcnt lgkmcnt(15)")
                A(f"v_mfma_f32_16x16x32_bf16 {v(ACC+4*c,4)}, {v(base+4*G,4)}, {v(base+32+4*(c-G),4)}, {'0' if first else v(ACC+4*c,4)}")
                if nxt and not first: A(nxt.pop(0))
                if s == 3 and G >= 1 and c == min(G + 1, 7) and G < 7: A(f"ds_write_b128 v{pYW}, {v(ACC+4*(G-1),4)} offset:{1280*(G-1)}")
        assert not nxt
    for c in (6, 7): A(f"ds_write_b128 v{pYW}, {v(ACC+4*c,4)} offset:{1280*c}")
    A(f"""
F_b4:
s_waitcnt lgkmcnt(0)
s_barrier
;TP b4
""")
    YR, XS, XO, GG = 80, 96, 76, 40
    A(f"ds_read_b128 {v(GG,4)}, v27")
    for ch in range(2):
        for hf in range(2):
            A(f"ds_read_b128 {v(YR+8*hf+4*ch,4)}, v{pYR} offset:{(2*ch+hf)*YW}")
    A("s_cmp_lg_u32 s38, 0")
    for ch in range(2):
        A(f"s_waitcnt lgkmcnt({2-2*ch})")
        for j in range(2): A(f"v_pk_add_f32 {v(YR+4*ch+2*j,2)}, {v(YR+4*ch+2*j,2)}, {v(YR+8+4*ch+2*j,2)}")
        for j in range(4): A(f"v_fma_f32 v{YR+4*ch+j}, v{GG+ch}, v{YR+4*ch+j}, v{XU+2*j+ch}")
        for j in range(2): A(f"v_pk_mul_f32 {v(XS+2*j,2)}, {v(GG+2,2)}, {v(YR+4*ch+2*j,2)} " + ("op_sel:[1,0]" if ch else "op_sel_hi:[0,1]"))
        for j in range(2): A(f"v_cvt_pk_bf16_f32 v{XO+2*ch+j}, v{XS+2*j}, v{XS+2*j+1}")
        if ch == 0: A(f"v_min_u32 v{XO+1}, 0xfffeffff, v{XO+1}")
    A(f"global_store_dwordx4 v{pGX0}, {v(XO,4)}, s[20:21] sc1")
    for j in range(4): A(f"v_cvt_pk_bf16_f32 v{XS+j}, v{YR+j}, v{YR+4+j}")
    A(f"v_min_u32 v{XS+1}, 0xfffeffff, v{XS+1}\nglobal_store_dwordx4 v{pGX1}, {v(XS,4)}, s[20:21] sc1\ns_setprio 0\ns_barrier\ns_cbranch_scc1 G_xb")
    def wl(J, p):
        o = [f"global_load_dword v{W(2*J+1+(e&1))+e//2}, v{p+e//3}, s[64:65] offset:{3584*(e%3-1)}{NT('w')}" for e in range(8)]
        if J < 13: o[7] += f"\ns_add_u32 s64, s64, {32*3584}\ns_addc_u32 s65, s65, 0"
        return o
    def wp(J):
        o = [f"v_perm_b32 v{W(2*J+h)+j}, v{W(2*J+2)+j}, v{W(2*J+1)+j}, s{14+h}" for h in range(2) for j in range(4)]
        return o + [f"v_permlane16_swap_b32 v{W(2*J)+j}, v{W(2*J+1)+j}" for j in range(4)]
    PT = [100 + 4 * i for i in range(4)]
    UA = 92
    uvr = lambda k: f"ds_read_b128 {v(PT[k % 4],4)}, v{pPT} offset:{32*k}"
    uvm = lambda k: f"v_mfma_f32_16x16x32_bf16 {v(UA,4)}, {v(PT[k % 4],4)}, {v(W(k),4)}, {v(UA,4) if k else 0}"
    U = W(28)
    uvfin = f"""v_cvt_pk_bf16_f32 v{U+1}, v{UA}, v{UA}
v_and_b32 v{U+1}, 0xffff0000, v{U+1}
v_sub_f32 v{U}, v{UA}, v{U+1}
v_cvt_pk_bf16_f32 v{U}, v{U+1}, v{U}
v_mov_b32 v{U+1}, 0
v_mov_b32 v{U+2}, 0
v_mov_b32 v{U+3}, 0"""
    def uv(J):
        return [f"s_waitcnt lgkmcnt({2 * (J < 13)})\n{uvm(2*J)}", uvm(2*J+1)] + ([uvr(2*J+4), uvr(2*J+5)] if J < 12 else [])
    class Str:
        def __init__(s, A, Q): s.A = A; s.Q = list(Q)
        def vm(s, op): return min(63, len(s.Q) - 1 - s.Q.index(op)) if op in s.Q else 63
        def load(s, J, p, work):
            for e, l in enumerate(wl(J, p)):
                s.A(l); s.Q.append((J, e))
                s.A(nlc.join(w_() if callable(w_) else w_ for w_ in work[len(work) * e // 8:len(work) * (e + 1) // 8]))
        def proc(s, J): return [f"s_waitcnt vmcnt({s.vm((J, 7))})"] + wp(J)
    def fpcheck(S, n):
        S.A(f"s_waitcnt vmcnt({min(S.vm('fp'), S.vm('x1'))})\nG_fc{n}:\nv_cmp_ne_u32 vcc, {TAG}, v23\ns_cbranch_vccnz G_fr{n}\nG_fo{n}:\n;TP xak")
        RT.append(f"G_fr{n}:\n{lim(f'G_fo{n}')}\ns_sleep {EV('FSL', 2)}\n{fpload}\ns_waitcnt vmcnt(0)\ns_branch G_fc{n}")
    NE = 14 - NL
    S = Str(A, ['ew', 'x0', 'x1'])
    A(nlc.join(uvr(k) for k in range(4)))
    pro = ffn_pro()
    pro += [lambda: f"s_waitcnt vmcnt({S.vm('ew')})"] + sum((wp(J) + (uv(J - 1) if J else []) for J in range(EJ)), [])
    NW = min(LAGA, NE - EJ)
    for J in range(EJ, NE):
        if J == NE - FQA: A(fpload); S.Q.append('fp')
        if J - EJ < NW: S.load(J, pWS, pro[len(pro) * (J - EJ) // NW:len(pro) * (J - EJ + 1) // NW])
        else:
            A(nlc.join(S.proc(J - LAGA)[:1]))
            S.load(J, pWS, wp(J - LAGA) + (uv(J - LAGA - 1) if J > LAGA else []))
        A(f";TP z{J}")
    fpcheck(S, 0)
    A(XDMA); S.Q += ['xd'] * 7
    for J in range(NE - NW, NE): A(nlc.join(S.proc(J) + (uv(J - 1) if J else [])))
    A(nlc.join(uv(NE - 1)) + "\n" + (uvfin if NL == 0 else "") + "\n;TP lat")
    ffn(A, W, RT, wl, wp, uvr, uvm, uvfin)

    GB = 100
    g2 = nlc.join(f"global_load_dwordx4 {v(GB+8*m+4*hf,4)}, v{pSB1 if hf else pSB0}, s[20:21] offset:{3584*m} sc1" for m in range(2) for hf in range(2))
    gc = [f"v_xor_b32 v{44+i}, {TAG}, v{GB+1+2*i}" for i in range(3)] + ["v_or3_b32 v44, v44, v45, v46"]
    gc += [f"v_xor_b32 v{45+i}, {TAG}, v{GB+7+2*i}" for i in range(3)] + ["v_or3_b32 v45, v45, v46, v47"]
    gc += [f"v_xor_b32 v{46+i}, {TAG}, v{GB+13+2*i}" for i in range(2)] + ["v_or3_b32 v44, v44, v45, v46", "v_or_b32 v44, v44, v47", "v_cmp_ne_u32 vcc, 0, v44"]
    RT.append(f"F_rt4:\n{lim('F_ok2')}\n{g2}\ns_waitcnt vmcnt(0)\ns_branch F_chk2")
    RT.append(f"""F_gb:
v_readlane_b32 s56, v42, 4
v_readlane_b32 s57, v42, 6
s_lshl_b32 s3, s35, 3
s_add_u32 s3, s3, {WS_MOD}
v_mov_b32 v44, s3
s_lshr_b32 s56, s56, 16
s_or_b32 s56, s56, s57
v_mov_b32 v10, s56
v_mov_b32 v45, {WS_EP}
s_mov_b64 exec, 1
global_store_dwordx2 v44, v[10:11], s[20:21] sc1
s_cmp_lg_u32 s2, 0
s_cbranch_scc1 F_gb1
global_store_dword v45, v11, s[20:21]
F_gb1:
s_mov_b64 exec, -1
s_branch F_gb2""")
    RT.append(f"F_rt3:\n{lim('F_ok3')}\n{gaload}\ns_waitcnt vmcnt(0)\ns_branch F_chk3")
    A(f"""
F_prep:
{g2}
{RAWD if RDP == "b" else ""}
s_lshl_b32 s3, s35, {FPS}
s_add_u32 s3, s3, {WS_FP}
v_mov_b32 v10, s3
v_mov_b32 v11, {TAG}
s_cmp_eq_u32 s33, 5
s_cselect_b64 exec, 1, 0
s_setprio {EV('UPRIO', 0)}
s_waitcnt lgkmcnt(0)
s_barrier
global_store_dword v10, v11, s[20:21] sc1
s_mov_b64 exec, -1
{PFLOAD if PFP == 1 and PFM & 2 else ''}
""")
    S = Str(A, ['ew', 'g', 'g', 'g', 'g2'] + (['rd'] * 7 + ['rd7'] if RDP == "b" else []) + ['pf'] * (PFP == 1 and PFM >> 1))
    def gsum():
        A(f"s_waitcnt vmcnt({S.vm('g2')})\nF_chk2:\n{nlc.join(gc)}\ns_cbranch_vccnz F_rt4\nF_ok2:\n;TP gok2")
        for m in range(2):
            for j in range(2): A(f"v_add_f32 v{GB+8*m+2*j}, v{GB+8*m+2*j}, v{GB+8*m+4+2*j}")
        A(f"""v_cvt_pk_bf16_f32 v{GB}, v{GB}, v{GB+2}
v_cvt_pk_bf16_f32 v{GB+8}, v{GB+8}, v{GB+10}
ds_write_b32 v{pGW}, v{GB} offset:896
v_lshlrev_b32 v{GB+9}, 16, v{GB+8}
v_and_b32 v{GB+8}, 0xffff0000, v{GB+8}
v_add_f32 v{GB+9}, 1.0, v{GB+9}
v_add_f32 v{GB+8}, 1.0, v{GB+8}
v_cvt_pk_bf16_f32 v{GB+8}, v{GB+9}, v{GB+8}
ds_write_b32 v{pGW}, v{GB+8}""")
    def gaproc():
        A(f"""
s_waitcnt vmcnt({S.vm('ga')})
F_chk3:
v_add_f32_dpp v42, v{GA}, v{GA} quad_perm:[1,0,3,2] row_mask:0xf bank_mask:0xf
v_cmp_ne_u32 vcc, {TAG}, v{GA+1}
v_cvt_pk_bf16_f32 v42, v42, v42
s_cbranch_vccnz F_rt3
F_ok3:
v_and_b32 v42, 0xffff0000, v42
v_add_f32 v43, 1.0, v42
v_cvt_pk_bf16_f32 v43, v43, v43
v_and_b32 v43, 0xffff0000, v43
v_cmp_gt_u32 vcc, 8, v2
v_cndmask_b32 v43, v43, v42, vcc
v_and_b32 v44, 2, v2
v_and_b32 v45, 8, v2
v_lshl_add_u32 v44, v44, 1, v45
s_mov_b64 exec, 0x505
v_add_u32 v44, v44, v27
ds_write_b32 v44, v43
s_mov_b64 exec, -1
s_cmp_eq_u32 s33, 6
s_cbranch_scc1 F_gb
F_gb2:
""")
    pro = FPADDR + ROLE2 + ffn_pro()
    pro += [lambda: f"s_waitcnt vmcnt({S.vm('ew')})"] + sum((wp(J) for J in range(EJ)), [])
    NW = min(LAGB, NBP - EJ)
    assert NBP <= NE and EJ <= min(GAI, GSI) and max(GAI, GSI) < NBP and NE - FQB >= NBP and EJ + RLJ <= min(GAI, 8)
    for J in range(EJ, NE):
        if J == EJ + RLJ and RDP == "b": A(f"s_waitcnt vmcnt({S.vm('rd7')})")
        if J == EJ + RLJ: A(nlc.join(relD)); S.Q += ['d0', 'd1']
        if J - EJ < NW: S.load(J, pWS, pro[len(pro) * (J - EJ) // NW:len(pro) * (J - EJ + 1) // NW])
        elif J - EJ < LAGB: S.load(J, pWS, [])
        else:
            A(nlc.join(S.proc(J - LAGB)[:1]))
            S.load(J, pWS, wp(J - LAGB))
        A(f";TP y{J}")
        if J == GSI: gsum()
        if J == GAI: A(gaload); S.Q.append('ga')
        if J == NBP - 1:
            gaproc()
            A(";TP pdone\ns_branch F_b4\nG_xb:"); S.Q += ['x0', 'x1']
            A(nlc.join(uvr(k) for k in range(4)))
        if J == NE - FQB - 1: A(fpload); S.Q.append('fp')
    XB = EV("XB", 0)
    for J in range(max(EJ, NE - LAGB)): A(nlc.join(uv(J)))
    for J in range(max(EJ, NE - LAGB), NE - XB): A(nlc.join(S.proc(J) + uv(J)))
    fpcheck(S, 1)
    A(XDMA); S.Q += ['xd'] * 7
    for J in range(NE - XB, NE): A(nlc.join(S.proc(J) + uv(J)))
    A((uvfin if NL == 0 else "") + "\n;TP lat\ns_branch G_xw")
    for r in RT: A(r)

    def tree(n, base):
        regs = [base + i for i in range(n)]
        while len(regs) > 1:
            nx = []
            for i in range(0, len(regs) - 1, 2):
                A(f"v_add_f32 v{regs[i]}, v{regs[i]}, v{regs[i+1]}"); nx.append(regs[i])
            if len(regs) & 1: nx.append(regs[-1])
            regs = nx
    adr2 = f"v_add_u32 v14, s29, v14\nv_add_u32 v15, 5376, v14\nv_add_u32 v16, {2*5376}, v14\nv_add_u32 v18, {3*5376}, v14"
    stp = f"s_mov_b64 exec, 15\nglobal_store_dwordx4 v9, {v(PB_,4)}, s[20:21] sc1\ns_mov_b64 exec, -1"
    def red(p):
        for i in range(7): A(f"ds_read_b32 v{72+8*p+i}, v26 offset:{LM + 2048*p + 256*i}")
        A([f"v_add_u32 v28, 0, v25", f"v_add_u32 v29, {2688*4}, v25", f"s_lshl_b32 s29, s29, 2\nv_add_u32 v30, s29, v25"][p])
    def fin(p):
        tree(7, 72 + 8 * p)
        A(f"v_mov_b32 v{73+8*p}, v33\nglobal_store_dwordx2 v{28+p}, {v(72+8*p,2)}, s[20:21] sc1\n;TP s{p+2}")
    A("F_spare:")
    if SPM == 0:
        A(adr2)
        gemv(1, 3 + 2, 2)
        A("s_waitcnt lgkmcnt(0)\ns_barrier\n;TP s2")
        gemv(2, 3)
        A("s_waitcnt lgkmcnt(0)\ns_barrier\ns_branch F_sst")
        A(f"F_spare7:\nds_read_b128 {v(PB_,4)}, v31")
        for p in range(3):
            if p: A("s_barrier")
            red(p); A("s_waitcnt lgkmcnt(0)"); fin(p)
            if p == 0: A(stp)
    else:
        silu(6); gemv(0, 5)
        A(";TP s1\ns_waitcnt lgkmcnt(0)\ns_barrier\ns_barrier")
        pl(1); A(adr2); pl(2)
        gemv(1, 7)
        if SPM == 2: A("s_waitcnt lgkmcnt(0)\ns_barrier")
        gemv(2, 3)
        A("s_waitcnt lgkmcnt(0)\ns_barrier\ns_branch F_sst")
        A(f"F_spare7:\nds_read_b128 {v(PB_,4)}, v31\ns_waitcnt lgkmcnt(0)\n{stp}\ns_barrier")
        red(0); A("s_waitcnt lgkmcnt(0)"); fin(0)
        A("s_barrier\ns_barrier")
        red(1)
        if SPM == 2: A("s_waitcnt lgkmcnt(0)"); fin(1); A("s_barrier")
        red(2); A("s_waitcnt lgkmcnt(0)")
        if SPM == 1: fin(1)
        fin(2)
    XR = 96
    xl = lambda i: f"global_load_dwordx4 {v(XR+4*i,4)}, v5, s[20:21] offset:{512*i} sc1"
    PFG, PFU, NR1, NR2 = EV("PFG", 4), EV("PFU", 0), EV("NR1", 0), EV("NR2", 7)
    def pfw(n, r0, sp):
        return "\n".join(f"v_add_u32 v13, {128*r}, v12\nv_min_u32 v13, 447, v13\nv_mul_u32_u24 v13, 3584, v13\nv_add_u32 v13, v13, v14\nglobal_load_dword v{80+r}, v13, s[{sp}:{sp+1}]" for r in range(r0, n))
    pfd = lambda lo, hi: "\n".join(f"global_load_dword v{84+r}, v15, s[20:21]\nv_add_u32 v15, 2048, v15" for r in range(lo, hi))
    A(f"""
F_sst:
s_and_b32 s3, s24, 24
s_add_u32 s3, s3, s33
s_lshl_b32 s26, s3, 2
v_lshrrev_b32 v12, 4, v2
v_add_u32 v12, s26, v12
v_and_b32 v14, 15, v2
v_min_u32 v14, 13, v14
s_bfe_u32 s26, s2, 0x10002
s_mul_i32 s26, s26, 1792
v_lshl_add_u32 v14, v14, 7, s26
s_min_u32 s3, s3, 27
s_cmp_ge_u32 s3, 14
s_cselect_b32 s26, {14*HF_TT - 1024}, 0
s_mul_i32 s3, s3, {HF_TT}
s_sub_u32 s3, s3, s26
s_add_u32 s3, s3, {WS_WDF}
v_lshrrev_b32 v15, 3, v2
v_mul_u32_u24 v15, {14*1024}, v15
v_and_b32 v13, 7, v2
v_lshl_add_u32 v15, v13, 7, v15
v_add_u32 v15, s3, v15
{"s_barrier" if PFG or PFU else ""}
{pfw(4, PFU, 46) if PFU else ""}
{pfw(PFG, EJ // 4, 44)}
v_min_u32 v4, 27, v2
s_mul_i32 s3, s33, 28
v_add_u32 v4, s3, v4
v_lshlrev_b32 v4, {FPS}, v4
v_add_u32 v4, {WS_FP}, v4
s_lshl_b32 s24, s24, 1
s_add_u32 s24, s24, s38               ; tb
s_mul_i32 s3, s24, {4*XGP}
s_and_b32 s25, s33, 3
s_mul_i32 s26, s25, 3584
s_add_u32 s3, s3, s26
s_add_u32 s3, s3, {WS_XG + XGP}
v_and_b32 v5, 3, v2
v_lshl_add_u32 v5, v5, 4, s3
v_lshrrev_b32 v7, 3, v2
v_lshl_add_u32 v5, v7, 6, v5
v_bfe_u32 v7, v2, 2, 1
v_mul_u32_u24 v7, {2*XGP}, v7
v_add_u32 v5, v5, v7
v_lshrrev_b32 v7, 5, v2
v_lshlrev_b32 v7, 4, v7
v_and_b32 v8, 7, v2
v_lshl_add_u32 v24, v8, 5, v7
v_bfe_u32 v8, v2, 4, 1
v_lshl_add_u32 v24, v8, 3, v24
s_lshl_b32 s3, s33, 8
s_add_u32 s3, s3, 8192
v_add_u32 v24, s3, v24
v_bfe_u32 v8, v2, 2, 3
v_lshl_add_u32 v7, v8, 5, v7
v_and_b32 v8, 3, v2
v_lshl_add_u32 v7, v8, 2, v7
v_add_u32 v7, s3, v7
s_lshl_b32 s3, s24, 9
s_add_u32 s3, s3, {WS_ST2}
v_lshl_add_u32 v6, v2, 3, s3
v_cmp_gt_u32 s[56:57], 32, v2
s_lshl_b32 s3, s2, 7
s_add_u32 s3, s3, {WS_F0 - 224*128}
v_mov_b32 v9, s3
F_s0:
{lim('F_s1')}
s_sleep {EV('PSL', 6)}
global_load_dword v10, v4, s[20:21] sc1
s_waitcnt vmcnt(0)
v_cmp_ne_u32 vcc, {TAG}, v10
s_mov_b64 exec, vcc
s_cbranch_vccnz F_s0
F_s1:
s_cmp_eq_u32 s33, 0
s_cselect_b64 exec, 1, 0
s_barrier
global_store_dword v9, v33, s[20:21] sc1
s_mov_b64 exec, -1
{pfd(0, NR1)}
""")
    if EV('SPOLL', 1): A(f"""
F_s2:
{lim('F_s3')}
s_sleep {EV('SSL', 2)}
{xl(6)}
s_waitcnt vmcnt(0)
v_cmp_le_u32 vcc, 0xffff0000, v{XR+25}
s_cbranch_vccnz F_s2
""")
    A(f"F_s3:\n{lim('F_s4')}")
    for i in range(7): A(xl(i))
    A(f"""
s_waitcnt vmcnt(0)
v_max3_u32 v10, v{XR+1}, v{XR+5}, v{XR+9}
v_max3_u32 v11, v{XR+13}, v{XR+17}, v{XR+21}
v_max3_u32 v10, v10, v11, v{XR+25}
v_cmp_le_u32 vcc, 0xffff0000, v10
s_mov_b64 exec, vcc
s_cbranch_vccnz F_s3
F_s4:
s_mov_b64 exec, -1
;TP s5
""")
    for i in range(7):
        for q in range(4):
            A(f"v_dot2_f32_bf16 v{AC+q}, v{XR+4*i+q}, s42, {'v%d' % (AC+q) if i else 0}")
            A(f"v_dot2_f32_bf16 v{AC+4+q}, v{XR+4*i+q}, v{XR+4*i+q}, {'v%d' % (AC+4+q) if i else 0}")
    for j in range(4): A(f"v_permlane32_swap_b32 v{AC+j}, v{AC+4+j}")
    for j in range(4): A(f"v_add_f32 v{AC+j}, v{AC+j}, v{AC+4+j}")
    for j in range(2): A(f"v_permlane16_swap_b32 v{AC+j}, v{AC+2+j}")
    for j in range(2): A(f"v_add_f32 v{AC+j}, v{AC+j}, v{AC+2+j}")
    for j in range(2): A(f"v_add_f32_dpp v{AC+j}, v{AC+j}, v{AC+j} row_ror:8 row_mask:0xf bank_mask:0xf")
    A(f"""
ds_write_b64 v24, {v(AC,2)}
s_cmp_lg_u32 s25, 0
s_waitcnt lgkmcnt(0)
s_barrier
s_cbranch_scc1 F_s7
ds_read2st64_b32 v[20:21], v7 offset0:0 offset1:1
ds_read2st64_b32 v[22:23], v7 offset0:2 offset1:3
s_waitcnt lgkmcnt(0)
v_add_f32 v20, v20, v21
v_add_f32 v22, v22, v23
v_add_f32 v20, v20, v22
v_mul_f32 v20, {hex(INV448)}, v20
v_mov_b32 v22, v20
v_permlane32_swap_b32 v20, v22
v_fma_f32 v22, -v20, v20, v22
v_max_f32 v22, 0, v22
v_cvt_pk_bf16_f32 v22, v22, v22
v_and_b32 v22, 0xffff0000, v22
v_add_f32 v22, {hex(EPS)}, v22
v_cvt_pk_bf16_f32 v22, v22, v22
v_and_b32 v22, 0xffff0000, v22
v_sqrt_f32 v22, v22
v_cvt_pk_bf16_f32 v20, -v20, -v20
v_cvt_pk_bf16_f32 v22, v22, v22
v_cndmask_b32 v32, v22, v20, s[56:57]
global_store_dwordx2 v6, v[32:33], s[20:21] sc1
;TP s6
F_s7:
{"s_barrier" if NR2 > NR1 else ""}
{pfd(NR1, NR2)}
s_waitcnt vmcnt(0)
""")
    A("s_endpgm\nF_end:\ns_endpgm")
    tab = ktable() + [0] * 8
    A(".p2align 4\n.type ktab,@object\nktab:")
    for i in range(0, len(tab), 16): A(".short " + ", ".join(str(t) for t in tab[i:i+16]))
    A(f".size ktab, {2*len(tab)}")
    return kdesc(KN, 256, 80)
```

```python
import sys, os
import re
from common import *
import importlib
kdm = importlib.import_module(os.environ.get('KD', 'kd'))
OLD = not set(sys.argv[2]) <= set("dez")
if OLD:
    import k34 as k34m
    from k34 import k34, K34_GRID, K34_LDS, K34_BLOCK
    from k12 import k12, K12_GRID, K12_LDS, K12_BLOCK
    from kf import kf, KF_GRID, KF_LDS, KF_BLOCK, KN

def ke(A):
    A(""".globl empty_kernel
.p2align 8
.type empty_kernel,@function
empty_kernel:
s_endpgm""")
    return kdesc("empty_kernel", 8, 16)

def kz(A):
    a, b = [int(x) for x in os.environ["ZQ"].split(",")]
    A(f""".globl z_kernel
.p2align 8
.type z_kernel,@function
z_kernel:
s_cmp_lg_u32 s2, 0
s_cbranch_scc1 Zend
s_memrealtime s[10:11]
s_load_dwordx2 s[4:5], s[0:1], 128
v_mov_b32 v1, 0
s_waitcnt lgkmcnt(0)
global_load_dword v2, v1, s[4:5] offset:{16*a} sc1
global_load_dword v3, v1, s[4:5] offset:{16*b+4} sc1
s_waitcnt vmcnt(0)
v_readfirstlane_b32 s6, v2
v_readfirstlane_b32 s7, v3
s_nop 3
s_not_b32 s6, s6
{"s_mul_i32 s6, s6, " + os.environ["ZN"] if os.environ.get("ZN") else ""}
{"s_sub_u32 s6, s10, s7" if os.environ.get("ZE") else "s_sub_u32 s6, s7, s6"}
{"s_lshr_b32 s6, s6, " + os.environ["ZR"] if os.environ.get("ZN") else ""}
s_min_u32 s6, s6, 10000
s_max_u32 s6, s6, {os.environ.get("ZO", "0")}
s_sub_u32 s6, s6, {os.environ.get("ZO", "0")}
s_lshl_b32 s6, s6, {os.environ.get("ZS", "2")}
Zl:
s_memrealtime s[12:13]
s_waitcnt lgkmcnt(0)
s_sub_u32 s8, s12, s10
s_cmp_lt_u32 s8, s6
s_cbranch_scc1 Zl
Zend:
s_endpgm""")
    return kdesc("z_kernel", 8, 16)

KS = {'d': (kdm.KN, kdm.KD_GRID, kdm.KD_LDS, kdm.kd), 'z': ("z_kernel", 1, 0, kz), 'e': ("empty_kernel", 1, 0, ke)}
if OLD: KS.update({'u': (KN, KF_GRID, KF_LDS, kf), 'g': ("front_kernel", K12_GRID, K12_LDS, k12), 'f': ("ffn_kernel", K34_GRID, K34_LDS, k34)})
BLK = {'u': 512, 'd': 512, 'f': 512, 'g': 512}
WS_TS = 0x2000000
def add_stamps(A, names):
    out = []
    for ln in A.lines:
        t = ln.strip()
        if t[:-1] in names and t.endswith(':'):
            ki = names.index(t[:-1])
            out.append(ln)
            if names == [kdm.KN]: out += ["  s_memrealtime s[90:91]"] + (["  s_memtime s[80:81]"] if os.environ["TS"] != "2" else [])
            else: out += ["  " + x for x in f"""s_memrealtime s[90:91]
s_memtime s[80:81]
s_load_dwordx2 s[92:93], s[0:1], 136
v_lshrrev_b32 v1, 6, v0
s_nop 1
v_readfirstlane_b32 s94, v1
s_lshl_b32 s95, s2, 3
s_add_u32 s94, s94, s95
s_lshl_b32 s94, s94, 6
s_add_u32 s94, s94, {WS_TS + ki * 0x80000}
s_mov_b32 s82, 0
s_mov_b32 s84, 0
s_mov_b32 s86, 0
s_mov_b32 s88, 0
s_mov_b32 s76, 0
s_mov_b32 s78, 0
s_waitcnt lgkmcnt(0)""".split("\n")]
        elif t == ";TSINIT":
            out += ["  " + x for x in f"""s_mov_b64 s[92:93], s[20:21]
s_lshl_b32 s95, s2, 3
s_add_u32 s94, s33, s95
s_lshl_b32 s94, s94, 6
s_add_u32 s94, s94, {WS_TS}
{"s_mov_b64 s[80:81], s[90:91]" if os.environ["TS"] == "2" else ""}
s_mov_b32 s82, 0
s_mov_b32 s84, 0
s_mov_b32 s86, 0
s_mov_b32 s88, 0
s_mov_b32 s76, 0
s_mov_b32 s78, 0""".split("\n")[:6 if os.environ.get("NOZ") else 99]]
        elif t.startswith(";TP "):
            sel = os.environ.get("TP", "row,pub,chain,kcopy,b3,b4").split(",")
            sel2 = os.environ.get("TPS", "row,pub,s1,s2,s3,s4").split(",")
            sel3 = os.environ.get('TPK', 'k0,k1,k2,k3,k4,k5').split(',')
            for sl in ((sel, sel2, sel3) if sys.argv[2] not in 'urd' else (sel, sel2)):
                if t[4:] in sl:
                    r = [82, 84, 86, 88, 76, 78][sl.index(t[4:])]
                    out.append(f"  s_memtime s[{r}:{r+1}]"); break
            if "#" + t[4:] in sel:
                r = [82, 84, 86, 88, 76, 78][sel.index("#" + t[4:])]
                out += [f"  s_mul_i32 s{r}, s43, 100", f"  s_add_u32 s{r}, s{r}, s80", f"  s_add_u32 s{r}, s{r}, 1"]
            if "@" + t[4:] in sel:
                r = [82, 84, 86, 88, 76, 78][sel.index("@" + t[4:])]
                out.append(f"  s_memrealtime s[{r}:{r+1}]")
        elif t.startswith(";TS") and t != ";TSINIT":
            i = int(t[3:]); r = [82, 84, 86, 88, 76, 78][i]
            out.append(f"  s_memtime s[{r}:{r+1}]")
        elif t == "s_endpgm":
            out += ["  " + x for x in """s_waitcnt vmcnt(0) lgkmcnt(0)
s_memrealtime s[96:97]
s_memtime s[98:99]
s_getreg_b32 s100, hwreg(HW_REG_HW_ID)
s_getreg_b32 s101, hwreg(HW_REG_XCC_ID)
s_mov_b64 exec, 1
s_waitcnt lgkmcnt(0)
v_mov_b32 v0, s90
v_mov_b32 v1, s96
v_mov_b32 v2, s100
v_mov_b32 v3, s101
v_mov_b32 v4, s80
v_mov_b32 v5, s82
v_mov_b32 v6, s84
v_mov_b32 v7, s86
v_mov_b32 v8, s88
v_mov_b32 v9, s76
v_mov_b32 v10, s78
v_mov_b32 v11, s98
v_mov_b32 v12, s94
global_store_dwordx4 v12, v[0:3], s[92:93]
global_store_dwordx4 v12, v[4:7], s[92:93] offset:16
global_store_dwordx4 v12, v[8:11], s[92:93] offset:32
s_endpgm""".split("\n")]
        else: out.append(ln)
    if os.environ["TS"] == "2": out = [l.replace("s_memtime", "s_memrealtime") for l in out]
    A.lines = out

def strip(A, name, pred):
    out = []; on = False
    for ln in A.lines:
        t = ln.strip()
        if t.endswith("_kernel:"): on = t == name + ":"
        if on and pred(t): continue
        out.append(ln)
    A.lines = out

def add_dbg(A, names):
    out = []; n = 0
    NL = len(sys.argv[2]); inz = False
    for ln in A.lines:
        t = ln.strip()
        if t in ("z_kernel:", "empty_kernel:"): inz = True
        if inz: out.append(ln); continue
        if t[:-1] in names and t.endswith(':'):
            ki = names.index(t[:-1])
            out.append(ln)
            out += ["  " + x for x in f"""s_memrealtime s[90:91]
s_load_dwordx2 s[92:93], s[0:1], 128
v_lshrrev_b32 v1, 6, v0
s_nop 1
v_readfirstlane_b32 s94, v1
s_lshr_b32 s95, s2, 3
s_xor_b32 s95, s95, s2
s_and_b32 s95, s95, 7
s_xor_b32 s94, s94, {os.environ.get("DBGW", "0")}
s_or_b32 s94, s94, s95
s_waitcnt lgkmcnt(0)
s_mov_b32 s98, s90
s_add_u32 s92, s92, {(NL - 1 - ki) * 512 + ki * 16}
s_addc_u32 s93, s93, 0""".split("\n")]
        elif t == ";TP " + os.environ.get("DBGP", "-"): out.append("  s_memrealtime s[98:99]")
        elif t == "s_endpgm":
            n += 1
            out += ["  " + x for x in f"""s_cmp_lg_u32 s94, 0
s_cbranch_scc1 DBGE{n}
s_waitcnt vmcnt(0) lgkmcnt(0)
s_memrealtime s[96:97]
s_mov_b64 exec, 1
s_not_b32 s90, s90
s_waitcnt lgkmcnt(0)
v_mov_b32 v0, s90
v_mov_b32 v1, {"s98" if os.environ.get("DBGP") else "s96"}
v_mov_b32 v2, 0
global_atomic_umax v2, v0, s[92:93]
global_atomic_umax v2, v1, s[92:93] offset:4
DBGE{n}:
s_endpgm""".split("\n")]
        else: out.append(ln)
    A.lines = out

def add_avg(A):
    f = os.environ["AVG"].split(":"); pt = f[0]; wv = int(f[1]) if len(f) > 1 else 0
    out = []; inz = False; n = 0
    for ln in A.lines:
        t = ln.strip()
        if t in ("z_kernel:", "empty_kernel:"): inz = True
        if inz: out.append(ln); continue
        if t == kdm.KN + ":": out += [ln, "  s_memrealtime s[90:91]"]
        elif t == ";TSINIT": out += ["  s_mov_b32 s98, 0"]
        elif t == ";TP " + pt: out.append("  s_memrealtime s[98:99]")
        elif t == "s_endpgm":
            n += 1
            out += ["  " + x for x in f"""s_cmp_lg_u32 s33, {wv}
s_cbranch_scc1 DBGE{n}
s_waitcnt vmcnt(0) lgkmcnt(0)
{"s_memrealtime s[98:99]" if pt == "end" else ""}
s_load_dwordx2 s[92:93], s[0:1], 128
s_mov_b64 exec, 1
s_not_b32 s90, s90
s_cmp_{"ge" if len(f) > 2 else "lt"}_u32 s2, 224
s_waitcnt lgkmcnt(0)
s_cselect_b32 s98, s98, 0
{"s_bitcmp" + os.environ["AVX"] + "_b32 s2, 2" + chr(10) + "s_cselect_b32 s98, s98, 0" if os.environ.get("AVX") else ""}
v_mov_b32 v0, s90
v_mov_b32 v1, s98
v_mov_b32 v2, 0
global_atomic_umax v2, v0, s[92:93] offset:512
global_atomic_{os.environ.get("AOP", "add")} v2, v1, s[92:93] offset:516
DBGE{n}:
s_endpgm""".split("\n") if x]
        else: out.append(ln)
    A.lines = out

def main():
    A = Asm()
    which = sys.argv[2] if len(sys.argv) > 2 else "12f"
    hdr = []
    if OLD: k34m.GRAN = 'g' in which
    descs = []
    A('.amdgcn_target "amdgcn-amd-amdhsa--gfx950"\n.text')
    seen = set()
    for ch in which:
        name, grid, lds, fn = KS[ch]
        hdr.append(f"; @launch {'' if name == NAME + '_kernel' else 'kernel=' + name + ' '}grid=({grid},1,1) block=({BLK.get(ch, 256)},1,1) lds={lds}")
        if ch not in seen: descs.append(fn(A)); seen.add(ch)
    A("code_end:")
    for kn in os.environ.get("NOMF", ""): strip(A, KS[kn][0], lambda t: t.startswith("v_mfma"))
    for kn in os.environ.get("NOLD", ""): strip(A, KS[kn][0], lambda t: t.startswith("global_load"))
    for kn in os.environ.get("NODS", ""): strip(A, KS[kn][0], lambda t: t.startswith("ds_read"))
    if os.environ.get("STRIP"): strip(A, KS['d'][0], lambda t: re.search(os.environ["STRIP"].replace("_", " ").replace("~", "_"), t) is not None)
    if os.environ.get("AVG"): add_avg(A)
    if os.environ.get("DBG"): add_dbg(A, [KS[ch][0] for ch in which if ch not in "ez"])
    if os.environ.get("TS"): add_stamps(A, [KS[ch][0] for ch in which if ch not in "ez"])
    txt = "; generated by dev/gen.py (hand-written generator); see comments there\n" + "\n".join(hdr) + "\n" + A.text() + '.section .rodata,"a"\n' + ("".join(descs) if not (os.environ.get("TS") or os.environ.get("DBG") or os.environ.get("AVG")) else re.sub(r"next_free_sgpr \d+", "next_free_sgpr 102", "".join(descs)))
    open(sys.argv[1], "w").write(txt)

if __name__ == "__main__":
    main()
```

```python
import re

REG = re.compile(r'^(-|abs\()?\|?([vas])(?:(\d+)|\[(\d+):(\d+)\])\|?\)?$')

def regs_of(tok):
    tok = tok.strip()
    if tok in ('vcc',): return {('s', 106), ('s', 107)}
    if tok == 'vcc_lo': return {('s', 106)}
    if tok == 'vcc_hi': return {('s', 107)}
    if tok == 'exec': return {('s', 126), ('s', 127)}
    if tok == 'm0': return {('s', 124)}
    m = REG.match(tok)
    if not m: return set()
    f = m.group(2)
    if m.group(3) is not None: return {(f, int(m.group(3)))}
    return {(f, i) for i in range(int(m.group(4)), int(m.group(5)) + 1)}

TRANS = ('v_exp_f32', 'v_log_f32', 'v_rcp_f32', 'v_rsq_f32', 'v_sqrt_f32', 'v_sin_f32', 'v_cos_f32', 'v_rcp_iflag_f32')

class Ins:
    def __init__(s, text):
        s.text = text
        body = text.split(';')[0].strip()
        s.label = body.endswith(':')
        s.directive = body.startswith('.')
        s.empty = not body
        s.op = body.split()[0] if body else ''
        rest = body[len(s.op):].strip()
        ops, cur, depth = [], '', 0
        for ch in rest:
            if ch in '[(': depth += 1
            if ch in '])': depth -= 1
            if ch == ',' and depth == 0: ops.append(cur.strip()); cur = ''
            else: cur += ch
        if cur.strip(): ops.append(cur.strip())
        s.mods = ''
        if ops:
            parts = ops[-1].split(None, 1)
            ops[-1] = parts[0]
            s.mods = parts[1] if len(parts) > 1 else ''
        s.ops = ops
        op = s.op
        s.mfma = op.startswith('v_mfma')
        s.valu = op.startswith('v_') and not s.mfma
        s.trans = any(op.startswith(t) for t in TRANS)
        s.dot = op.startswith('v_dot')
        s.dpp = '_dpp' in op or 'row_' in s.mods or 'quad_perm' in s.mods or 'wave_' in s.mods
        s.permlane = op.startswith('v_permlane')
        s.readlane = op.startswith('v_readlane') or op.startswith('v_readfirstlane')
        s.vmem = op.startswith(('global_', 'buffer_', 'flat_'))
        s.ds = op.startswith('ds_')
        s.salu = op.startswith('s_')
        s.ldsdma = s.vmem and ('_lds_' in op or re.search(r'\blds\b', s.mods) is not None)
        s.store = s.vmem and ('store' in op or 'atomic' in op)
        s.widestore = s.store and ('x4' in op or 'x3' in op)
        s.passes = 0
        if s.mfma: s.passes = 8 if '32x32x16' in op else 4 if '16x16x32' in op else None
        R = [regs_of(o) for o in ops]
        s.w, s.r = set(), set()
        if s.label or s.directive or s.empty: return
        allr = set().union(*R) if R else set()
        if s.mfma:
            s.w = R[0]; s.A = R[1]; s.B = R[2]; s.C = R[3]; s.r = R[1] | R[2] | R[3]
        elif s.valu:
            if s.permlane and 'swap' in op: s.w = R[0] | R[1]; s.r = R[0] | R[1]
            elif op.startswith(('v_add_co', 'v_sub_co', 'v_addc_co', 'v_subb_co')):
                s.w = R[0] | R[1]; s.r = set().union(*R[2:])
            else:
                s.w = R[0]; s.r = set().union(*R[1:]) if len(R) > 1 else set()
                if op.startswith(('v_fmac', 'v_dot2c', 'v_pk_fmac')) or s.dpp: s.r |= R[0]
                if op.startswith('v_cndmask') and len(ops) == 3: s.r |= regs_of('vcc')
        elif s.vmem:
            if s.store or s.ldsdma or op.startswith(('buffer_wbl2', 'buffer_inv')):
                s.r = allr
                s.data = (R[1] if op.startswith(('global_', 'flat_')) else R[0]) if s.store else set()
            else:
                s.w = R[0]; s.r = set().union(*R[1:])
                if 'd16' in op: s.r |= R[0]
            if s.ldsdma: s.r |= regs_of('m0')
        elif s.ds:
            if 'write' in op or op.startswith(('ds_add', 'ds_max', 'ds_min')): s.r = allr
            else: s.w = R[0]; s.r = set().union(*R[1:]) if len(R) > 1 else set()
            if 'addtid' in op: s.r |= regs_of('m0')
        elif s.salu:
            if op.startswith(('s_cmp', 's_cbranch', 's_branch', 's_waitcnt', 's_barrier', 's_nop', 's_endpgm', 's_setprio', 's_sleep')):
                s.r = allr
            else:
                s.w = R[0] if R else set(); s.r = set().union(*R[1:]) if len(R) > 1 else set()
                if 'saveexec' in op: s.w |= regs_of('exec')
    def states(s):
        if s.label or s.directive or s.empty: return 0
        if s.op == 's_nop': return int(s.ops[0], 0) + 1
        return 1

def need(p, c):
    n = 0
    vw = {r for r in p.w if r[0] in 'va'}
    sw = {r for r in p.w if r[0] == 's'}
    if p.mfma:
        P = p.passes
        full = {4: 8, 8: 12}[P]; ovl = {4: 6, 8: 10}[P]; war = {4: 3, 8: 7}[P]
        if c.mfma:
            if p.w & (c.A | c.B): n = max(n, full)
            if p.w & c.C and not (p.w == c.C and c.passes == P): n = max(n, ovl)
            if p.w & c.w and not (p.w & c.C): n = max(n, full)
        else:
            if p.w & (c.r | c.w): n = max(n, full)
            if c.valu and (p.C & c.w): n = max(n, war)
        return n
    if p.valu:
        if c.mfma and vw & c.r: n = max(n, 2)
        if p.trans and (vw & c.r) and not c.trans: n = max(n, 1)
        if c.valu and c.dpp and vw & c.r: n = max(n, 2)
        if c.permlane and vw & c.r: n = max(n, 2)
        if c.readlane and vw & c.r: n = max(n, 1)
        if sw:
            if c.valu and sw & c.r: n = max(n, 4 if c.readlane or c.op.startswith('v_writelane') else 2)
            if c.vmem and sw & c.r: n = max(n, 5)
            if c.salu and sw & c.r: n = max(n, 1)
        if p.dot and vw & (c.r | c.w):
            same_chain = c.op == p.op and len(c.ops) >= 3 and not (vw & (regs_of(c.ops[1]) | regs_of(c.ops[2])))
            if not same_chain: n = max(n, 3)
        if ('sdwa' in p.op or 'dst_sel' in p.mods) and 'dst_sel:DWORD' not in p.mods and vw & (c.r | c.w): n = max(n, 1)
    if p.salu and ('s', 124) in p.w and (c.ldsdma or 'addtid' in c.op): n = max(n, 1)
    if p.widestore and p.data & c.w: n = max(n, 2 if c.valu else 1)
    return n

import os
PIPE = int(os.environ.get('PIPE', 1))
def fix_hazards(lines):
    out, hist = [], []
    for ln in lines:
        c = Ins(ln)
        assert not (c.op.startswith('v_pk_') and re.search(r'op_sel:\[0,1', c.mods)), ln
        if c.label or c.directive or c.empty:
            out.append(ln)
            continue
        dist, req, nm = 0, 0, None
        for p in reversed(hist):
            if p.mfma and nm is not None and PIPE: dist = max(dist, nm + p.passes - 1)
            if dist >= 12: break
            nd = need(p, c)
            if nd > dist: req = max(req, nd - dist)
            dist += p.states()
            if p.mfma: nm = dist
        if req:
            nop = Ins(f'  s_nop {req - 1}')
            out.append(nop.text + '   ; hazard pad'); hist.append(nop)
        out.append(ln); hist.append(c)
        if c.op in ('s_endpgm', 's_branch'): hist = []
        hist = hist[-16:]
    return out

class Asm:
    def __init__(s): s.lines = []
    def __call__(s, text):
        for ln in text.strip('\n').split('\n'):
            ln = ln.strip()
            if not ln: continue
            s.lines.append(ln if ln.endswith(':') or ln.startswith('.') else '  ' + ln)
    def text(s): return '\n'.join(fix_hazards(s.lines)) + '\n'

def v(a, n=1): return f'v{a}' if n == 1 else f'v[{a}:{a+n-1}]'
def a_(a, n=1): return f'a{a}' if n == 1 else f'a[{a}:{a+n-1}]'
def s_(a, n=1): return f's{a}' if n == 1 else f's[{a}:{a+n-1}]'

def kdesc(name, vgpr, sgpr, accum=None):
    acc = accum if accum is not None else (vgpr + 3) // 4 * 4
    return f""".p2align 6
.amdhsa_kernel {name}
  .amdhsa_next_free_vgpr {vgpr}
  .amdhsa_next_free_sgpr {sgpr}
  .amdhsa_accum_offset {acc}
  .amdhsa_group_segment_fixed_size 0
  .amdhsa_kernarg_size 144
  .amdhsa_user_sgpr_count 2
  .amdhsa_user_sgpr_kernarg_segment_ptr 1
  .amdhsa_system_sgpr_workgroup_id_x 1
.end_amdhsa_kernel
"""
```
